```python
import torch

def _softmax(x, axis=-1):
    return torch.softmax(x, dim=axis)
def _gelu(x):
    return torch.nn.functional.gelu(x, approximate="tanh")
def _silu(x):
    return torch.nn.functional.silu(x)
def _sigmoid(x):
    return torch.sigmoid(x)
def _layernorm(x, axis=-1, eps=1e-5):
    m = x.mean(dim=axis, keepdim=True)
    v = x.var(dim=axis, keepdim=True, unbiased=False)
    return (x - m) / torch.sqrt(v + eps)
def _scatter_add(tgt, idx, src, axis=0):
    return tgt.clone().index_add_(axis, idx, src)
def _segment_sum(src, seg, n):
    out = torch.zeros((n,) + src.shape[1:], dtype=src.dtype)
    return out.index_add_(0, seg, src)
def _pad(x, pw):
    flat = tuple(v for pair in reversed(pw) for v in pair)
    return torch.nn.functional.pad(x, flat)

kernel_name = 'gated_mix__spectral_fnet__geglu_ffn__prompt'

def setup_inputs():

    _w = (lambda a: (lambda t: t.to(torch.bfloat16) if t.is_floating_point() else t)(torch.as_tensor(a)))
    def _A_setup():
        B, S, D = 1, 2048, 512
        ns = torch.arange(S)[:, None] * torch.arange(S)[None, :]
        nd = torch.arange(D)[:, None] * torch.arange(D)[None, :]
        Ws_re = torch.cos(-2.0 * torch.pi * ns / S).to(float)
        Ws_im = torch.sin(-2.0 * torch.pi * ns / S).to(float)
        Wd_re = torch.cos(-2.0 * torch.pi * nd / D).to(float)
        Wd_im = torch.sin(-2.0 * torch.pi * nd / D).to(float)
        return {
            "x": _w((lambda *s: torch.randn(*s, dtype=torch.bfloat16) * 0.05)(B, S, D)),
            "dft_seq_re": _w(Ws_re),
            "dft_seq_im": _w(Ws_im),
            "dft_hid_re": _w(Wd_re),
            "dft_hid_im": _w(Wd_im),
        }
    _A_in = _A_setup()

    def _B_setup():
        B, S, D, F = 1, 2048, 512, 1376
        return {
            "x": _w((lambda *s: torch.randn(*s, dtype=torch.bfloat16) * 0.05)(B, S, D)),
            "w_gate": _w((lambda *s: torch.randn(*s, dtype=torch.bfloat16) * 0.8)(D, F)),
            "w_up": _w((lambda *s: torch.randn(*s, dtype=torch.bfloat16) * 0.8)(D, F)),
            "w_down": _w((lambda *s: torch.randn(*s, dtype=torch.bfloat16) * 0.8)(F, D)),
        }
    _B_in = _B_setup()

    return {
        "A_x": _A_in["x"],
        "A_dft_seq_re": _A_in["dft_seq_re"],
        "A_dft_seq_im": _A_in["dft_seq_im"],
        "A_dft_hid_re": _A_in["dft_hid_re"],
        "A_dft_hid_im": _A_in["dft_hid_im"],
        "B_x": _B_in["x"],
        "B_w_gate": _B_in["w_gate"],
        "B_w_up": _B_in["w_up"],
        "B_w_down": _B_in["w_down"],
        "gate_w": _w((lambda *s: torch.randn(*s, dtype=torch.bfloat16) * 0.05)(512) * 16.0),
    }

def reference(A_x, A_dft_seq_re, A_dft_seq_im, A_dft_hid_re, A_dft_hid_im, B_x, B_w_gate, B_w_up, B_w_down, gate_w):
    def _A_ref(x, dft_seq_re, dft_seq_im, dft_hid_re, dft_hid_im):
        a = torch.einsum("bsd,ed->bse", x, dft_hid_re)
        b = torch.einsum("bsd,ed->bse", x, dft_hid_im)
        y = torch.einsum("ts,bse->bte", dft_seq_re, a) - torch.einsum("ts,bse->bte", dft_seq_im, b)
        return y

    def _B_ref(x, w_gate, w_up, w_down):
        return (_gelu(x @ w_gate) * (x @ w_up)) @ w_down

    x = A_x
    g = _sigmoid((x * gate_w).sum(-1, keepdims=True))
    a = _A_ref(x, A_dft_seq_re, A_dft_seq_im, A_dft_hid_re, A_dft_hid_im)
    b = _B_ref(x, B_w_gate, B_w_up, B_w_down)
    return g * a + (1 - g) * b
```

```python
import sys, math, struct

NAME = "gated_mix__spectral_fnet__geglu_ffn__prompt"
STAMP = "--stamp" in sys.argv

NKS = 86
H_OFF = 0
H_BYTES = 64 * NKS * 1024
EP = 288
C_OFF = 0x600000
C_BYTES = 32 * 16 * EP * 16
G_OFF = 0x900000
WS_USED = 0x910000
ST_OFF = 0x1000000

def f32(x):
    return "0x%08x" % struct.unpack("<I", struct.pack("<f", x))[0]

class Asm:
    def __init__(self):
        self.l = []
    def __call__(self, s):
        self.l.append("    " + s)
    def lab(self, s):
        self.l.append(s + ":")
    def c(self, s):
        self.l.append("    ; " + s)
    def text(self):
        return "\n".join(self.l) + "\n"

def vr(b, n=1):
    return f"v{b}" if n == 1 else f"v[{b}:{b+n-1}]"
def sr(b, n=1):
    return f"s{b}" if n == 1 else f"s[{b}:{b+n-1}]"

def srd(a, d, lo, hi, nbytes):
    a(f"s_mov_b32 s{d}, s{lo}")
    a(f"s_mov_b32 s{d+1}, s{hi}")
    a(f"s_mov_b32 s{d+2}, 0x{nbytes:x}")
    a(f"s_mov_b32 s{d+3}, 0x20000")

def stamp(a, idx, wsrd, vt=250):
    if not STAMP:
        return
    a("s_memrealtime s[62:63]")
    a("s_waitcnt lgkmcnt(0)")
    a(f"v_mov_b32 v{vt}, s62")
    a(f"v_mov_b32 v{vt+1}, 0")
    a(f"buffer_store_dword v{vt}, v{vt+1}, s[{wsrd}:{wsrd+3}], s60 offen offset:{idx*4}")

SLOT = 40960
XB = 16384
WB = 12288
NWG1 = 288

def k1(a):
    a.lab("p1_kernel")
    a(f"s_cmp_ge_u32 s2, {NWG1}")
    a("s_cbranch_scc1 P1_END")
    a("s_load_dwordx16 s[4:19], s[0:1], 0")
    a("s_load_dwordx8 s[20:27], s[0:1], 64")
    a("s_load_dwordx2 s[28:29], s[0:1], 96")
    a("v_lshrrev_b32 v1, 6, v0")
    a("v_and_b32 v0, 63, v0")
    a("v_readfirstlane_b32 s3, v1")
    a("s_and_b32 s56, s2, 15")
    a("s_lshr_b32 s57, s2, 4")
    a("s_cmp_ge_u32 s57, 15")
    a("s_cselect_b32 s58, 1, 0")
    if STAMP:
        a("s_lshl_b32 s60, s2, 3")
        a("s_add_u32 s60, s60, s3")
        a("s_lshl_b32 s60, s60, 6")
        a(f"s_add_u32 s60, s60, 0x{ST_OFF:x}")
        a("s_memrealtime s[64:65]")
    a("s_waitcnt lgkmcnt(0)")
    srd(a, 44, 28, 29, 0x2000000 if STAMP else WS_USED)
    if STAMP:
        a("v_mov_b32 v250, s64")
        a("v_mov_b32 v251, 0")
        a("buffer_store_dword v250, v251, s[44:47], s60 offen offset:0")
        stamp(a, 1, 44)
    a("s_cmp_ge_u32 s3, 4")
    a("s_cbranch_scc1 P1_CONS")
    srd(a, 32, 4, 5, 2048 * 1024)
    a("s_cmp_eq_u32 s58, 1")
    a("s_cselect_b32 s36, s10, s16")
    a("s_cselect_b32 s37, s11, s17")
    a("s_cselect_b32 s40, s12, s18")
    a("s_cselect_b32 s41, s13, s19")
    a(f"s_cselect_b32 s38, 0x{512*1024:x}, 0x{512*1024:x}") if False else None
    a(f"s_mov_b32 s30, 0x{512*2752:x}")
    a(f"s_cselect_b32 s38, 0x{512*1024:x}, s30")
    a("s_mov_b32 s42, s38")
    a("s_mov_b32 s39, 0x20000")
    a("s_mov_b32 s43, 0x20000")
    a("s_movk_i32 s30, 2752")
    a("s_cselect_b32 s59, 0x400, s30")
    a("s_sub_u32 s30, s57, 15")
    a("s_cmp_eq_u32 s58, 1")
    a("s_cselect_b32 s30, s30, s57")
    a("s_mul_i32 s31, s30, 192")
    srd(a, 48, 22, 23, 1024)
    a("s_lshl_b32 s30, s2, 3")
    a("s_lshl_b32 s61, s3, 1")
    a("s_add_u32 s61, s61, s30")
    a("s_lshl_b32 s30, s61, 10")
    a("v_lshlrev_b32 v2, 4, v0")
    a("buffer_load_dwordx4 v[32:35], v2, s[48:51], 0 offen")
    a("buffer_load_dwordx4 v[36:39], v2, s[32:35], s30 offen")
    a("buffer_load_dwordx4 v[40:43], v2, s[32:35], s30 offen offset:1024")
    a("v_lshrrev_b32 v3, 3, v0")
    a("v_and_b32 v8, 7, v0")
    a("v_lshrrev_b32 v9, 4, v0")
    a("s_lshl_b32 s30, s56, 2")
    a("s_add_u32 s30, s30, s3")
    a("s_lshl_b32 s30, s30, 10")
    for j in range(4):
        a(f"v_add_u32 v10, {4*j}, v9")
        a("v_and_b32 v10, 7, v10")
        a("v_xor_b32 v10, v10, v8")
        a("v_lshlrev_b32 v10, 4, v10")
        a(f"v_add_u32 v11, {8*j}, v3")
        a("v_lshlrev_b32 v11, 16, v11")
        a(f"v_add3_u32 v{4+j}, v10, v11, s30")
        if j:
            a(f"v_subrev_u32 v{4+j}, {j*1024}, v{4+j}")
    a("s_lshl_b32 s30, s3, 4")
    a("s_mul_i32 s30, s30, s59")
    a("s_add_u32 s30, s30, s31")
    for jj in range(3):
        a(f"v_add_u32 v10, {64*jj}, v0")
        a("v_mul_u32_u24 v11, 171, v10")
        a("v_lshrrev_b32 v11, 11, v11")
        a("v_mul_u32_u24 v15, 12, v11")
        a("v_sub_u32 v10, v10, v15")
        a("v_lshrrev_b32 v15, 2, v11")
        a("v_and_b32 v15, 2, v15")
        a("v_xor_b32 v10, v10, v15")
        a("v_lshlrev_b32 v10, 4, v10")
        a("v_mul_lo_u32 v11, v11, s59")
        a(f"v_add3_u32 v{12+jj}, v10, v11, s30")
        if jj:
            a(f"v_subrev_u32 v{12+jj}, {jj*1024}, v{12+jj}")
    a("s_lshl_b32 s66, s3, 12")
    a("s_mul_i32 s67, s3, 3072")
    a(f"s_add_u32 s67, s67, {XB}")
    a(f"s_add_u32 s68, s67, {WB}")
    a("s_lshl_b32 s69, s59, 6")
    a("s_mov_b32 s70, 0")
    a("s_mov_b32 s71, 0")

    def issue(stage):
        sl = (stage % 4) * SLOT
        a(f"s_add_u32 m0, s66, {sl}")
        a("s_nop 0")
        for j in range(4):
            a(f"buffer_load_dwordx4 v{4+j}, s[32:35], s70 offen offset:{j*1024} lds")
        a(f"s_add_u32 m0, s67, {sl}")
        a("s_nop 0")
        for jj in range(3):
            a(f"buffer_load_dwordx4 v{12+jj}, s[36:39], s71 offen offset:{jj*1024} lds")
        a(f"s_add_u32 m0, s68, {sl}")
        a("s_nop 0")
        for jj in range(3):
            a(f"buffer_load_dwordx4 v{12+jj}, s[40:43], s71 offen offset:{jj*1024} lds")
        a("s_add_u32 s70, s70, 128")
        a("s_add_u32 s71, s71, s69")

    for s in range(4):
        issue(s)
    a("s_waitcnt vmcnt(30)")
    a("s_barrier")
    for rr in range(2):
        xb = 36 + 4 * rr
        acc = 20 + rr
        first = True
        for d in range(4):
            a(f"v_lshlrev_b32 v16, 16, v{xb+d}")
            a(f"v_and_b32 v17, 0xffff0000, v{xb+d}")
            a(f"v_lshlrev_b32 v18, 16, v{32+d}")
            a(f"v_and_b32 v19, 0xffff0000, v{32+d}")
            a("v_mul_f32 v16, v16, v18")
            a("v_mul_f32 v17, v17, v19")
            a("v_cvt_pk_bf16_f32 v16, v16, v17")
            a("v_and_b32 v17, 0xffff0000, v16")
            a("v_lshlrev_b32 v16, 16, v16")
            if first:
                a(f"v_add_f32 v{acc}, v16, v17")
                first = False
            else:
                a(f"v_add_f32 v{acc}, v{acc}, v16")
                a(f"v_add_f32 v{acc}, v{acc}, v17")
    for sh in (8, 4, 2, 1):
        a("s_nop 1")
        a(f"v_add_f32_dpp v20, v20, v20 row_ror:{sh} row_mask:0xf bank_mask:0xf")
        a(f"v_add_f32_dpp v21, v21, v21 row_ror:{sh} row_mask:0xf bank_mask:0xf")
    a("s_nop 1")
    a("v_add_f32_dpp v20, v20, v20 row_bcast:15 row_mask:0xa bank_mask:0xf")
    a("v_add_f32_dpp v21, v21, v21 row_bcast:15 row_mask:0xa bank_mask:0xf")
    a("s_nop 1")
    a("v_add_f32_dpp v20, v20, v20 row_bcast:31 row_mask:0xc bank_mask:0xf")
    a("v_add_f32_dpp v21, v21, v21 row_bcast:31 row_mask:0xc bank_mask:0xf")
    a("s_nop 1")
    a("v_cvt_pk_bf16_f32 v20, v20, v21")
    a("v_and_b32 v21, 0xffff0000, v20")
    a("v_lshlrev_b32 v20, 16, v20")
    a(f"v_mul_f32 v20, {f32(-math.log2(math.e))}, v20")
    a(f"v_mul_f32 v21, {f32(-math.log2(math.e))}, v21")
    a("v_exp_f32 v20, v20")
    a("v_exp_f32 v21, v21")
    a("s_nop 0")
    a("v_add_f32 v20, 1.0, v20")
    a("v_add_f32 v21, 1.0, v21")
    a("v_rcp_f32 v20, v20")
    a("v_rcp_f32 v21, v21")
    a("s_nop 0")
    a("v_cvt_pk_bf16_f32 v20, v20, v21")
    a("v_and_b32 v21, 0xffff0000, v20")
    a("v_lshlrev_b32 v20, 16, v20")
    a("s_lshl_b32 s30, s61, 2")
    a(f"s_add_u32 s30, s30, 0x{G_OFF:x}")
    a("v_mov_b32 v22, 0")
    a("s_cmp_ge_u32 s2, 256")
    a("s_cbranch_scc1 P1_NOG")
    a("s_mov_b64 exec, 0x8000000000000000") if False else None
    a("v_cmp_eq_u32 vcc, 63, v0")
    a("s_and_saveexec_b64 s[72:73], vcc")
    a("buffer_store_dwordx2 v[20:21], v22, s[44:47], s30 offen")
    a("s_mov_b64 exec, s[72:73]")
    a("s_waitcnt vmcnt(21)")
    a("s_branch P1_G1")
    a.lab("P1_NOG")
    a("s_waitcnt vmcnt(20)")
    a.lab("P1_G1")
    a("s_barrier")
    issue(4)
    a("s_waitcnt vmcnt(20)")
    a("s_barrier")
    issue(5)
    a("s_waitcnt vmcnt(20)")
    a("s_barrier")
    issue(6)
    a("s_waitcnt vmcnt(20)")
    a("s_barrier")
    issue(7)
    a("s_waitcnt vmcnt(20)")
    a("s_barrier")
    a("s_waitcnt vmcnt(10)")
    a("s_barrier")
    a("s_waitcnt vmcnt(0)")
    a("s_barrier")
    stamp(a, 2, 44)
    a("s_endpgm")

    a.lab("P1_CONS")
    a("s_sub_u32 s3, s3, 4")
    a("s_lshr_b32 s66, s3, 1")
    a("s_and_b32 s67, s3, 1")
    a("v_and_b32 v1, 15, v0")
    a("v_lshrrev_b32 v2, 4, v0")
    a("v_lshrrev_b32 v3, 1, v1")
    a("v_xor_b32 v3, v3, v2")
    a("v_lshlrev_b32 v3, 4, v3")
    a("s_lshl_b32 s30, s66, 13")
    a("v_lshl_add_u32 v4, v1, 7, v3")
    a("v_add_u32 v4, s30, v4")
    a("v_xor_b32 v5, 64, v4")
    a("v_lshrrev_b32 v3, 2, v1")
    a("v_lshl_add_u32 v3, v2, 3, v3")
    a("v_mul_u32_u24 v3, 192, v3")
    a("v_and_b32 v8, 3, v0")
    a("v_lshl_add_u32 v3, v8, 3, v3")
    a("s_mul_i32 s30, s67, 96")
    a(f"s_add_u32 s30, s30, {XB}")
    a("v_add_u32 v3, s30, v3")
    a("v_and_b32 v8, 1, v2")
    a("v_lshlrev_b32 v8, 5, v8")
    a("v_add_u32 v6, v3, v8")
    a("v_sub_u32 v7, v3, v8")
    a("s_cmp_eq_u32 s67, 0")
    a("s_cbranch_scc1 P1_NOSWAP")
    a("v_swap_b32 v6, v7")
    a.lab("P1_NOSWAP")
    FS = [16, 56]
    ACC = 96
    def xf(s, rt): return FS[s] + 4 * rt
    def wf(s, mat, ul): return FS[s] + 16 + 4 * (3 * mat + ul)
    def acc(rt, ul, mat): return ACC + 4 * ((rt * 3 + ul) * 2 + mat)

    def reads(s, st):
        r = []
        order = [("w", 0, 0), ("x", 0, 0), ("w", 1, 0), ("x", 1, 0), ("x", 2, 0), ("x", 3, 0),
                 ("w", 0, 1), ("w", 1, 1), ("w", 0, 2), ("w", 1, 2)]
        for kind, p, ul in order:
            if kind == "x":
                r.append(f"ds_read_b128 {vr(xf(s, p), 4)}, v{4+st} offset:{p*2048}")
            else:
                base = 7 if ul == 1 else 6
                for hf in range(2):
                    off = p * WB + st * 6144 + hf * 768 + ul * 32
                    r.append(f"ds_read_b64_tr_b16 {vr(wf(s, p, ul) + 2*hf, 2)}, v{base} offset:{off}")
        return r

    def mfmas(s, dft):
        m = []
        for ul in range(3):
            for rt in range(4):
                for mat in range(2):
                    d = vr(acc(rt, ul, mat), 4)
                    w = vr(wf(s, mat, ul), 4)
                    x = vr(xf(s, rt), 4)
                    if dft:
                        m.append(f"v_mfma_f32_16x16x32_bf16 {d}, {x}, {w}, {d}")
                    else:
                        m.append(f"v_mfma_f32_16x16x32_bf16 {d}, {w}, {x}, {d}")
        return m

    def mainloop(dft):
        tag = "D" if dft else "F"
        for i in range(96):
            a(f"v_mov_b32 v{ACC+i}, 0")
        a("s_mov_b32 s68, 0")
        a("s_barrier")
        stamp(a, 2, 44)
        for r in reads(0, 0):
            a(r)
        a.lab(f"P1_LOOP{tag}")
        a("s_waitcnt lgkmcnt(0)")
        m = mfmas(0, dft)
        r = reads(1, 1)
        for i, mm in enumerate(m):
            a(mm)
            if i < len(r):
                a(r[i])
        a("s_add_u32 s68, s68, 1")
        a("s_and_b32 s30, s68, 3")
        a("s_cmp_eq_u32 s30, 0")
        a(f"s_mov_b32 s30, {SLOT}")
        a(f"s_cselect_b32 s30, {-3*SLOT & 0xffffffff}, s30")
        for v in (4, 5, 6, 7):
            a(f"v_add_u32 v{v}, s30, v{v}")
        a("s_waitcnt lgkmcnt(0)")
        m = mfmas(1, dft)
        a("s_cmp_eq_u32 s68, 8")
        a(f"s_cbranch_scc1 P1_LAST{tag}")
        r = reads(0, 0)
        for i, mm in enumerate(m):
            a(mm)
            if i == 1:
                a("s_barrier")
            if 2 <= i < 2 + len(r):
                a(r[i - 2])
        a(f"s_branch P1_LOOP{tag}")
        a.lab(f"P1_LAST{tag}")
        for mm in m:
            a(mm)
        stamp(a, 3, 44)

    a("s_cmp_eq_u32 s58, 1")
    a("s_cbranch_scc1 P1_DFT")
    mainloop(False)
    c1 = -2.0 * math.sqrt(2.0 / math.pi) * math.log2(math.e)
    c2 = c1 * 0.044715
    a(f"s_mov_b32 s72, {f32(c2)}")
    a(f"s_mov_b32 s73, {f32(c2)}")
    a(f"v_mov_b32 v10, {f32(c1)}")
    a(f"v_mov_b32 v11, {f32(c1)}")
    a("v_lshrrev_b32 v3, 1, v2")
    a("v_lshl_add_u32 v3, v3, 5, v1")
    a("v_lshlrev_b32 v3, 4, v3")
    a("v_and_b32 v8, 1, v2")
    a("v_lshl_add_u32 v3, v8, 3, v3")
    a("s_mul_i32 s69, s57, 6")
    a("s_mul_i32 s30, s67, 3")
    a("s_add_u32 s69, s69, s30")
    a("s_lshl_b32 s30, s56, 2")
    a("s_lshl_b32 s31, s66, 1")
    a("s_add_u32 s30, s30, s31")
    a(f"s_mul_i32 s30, s30, {NKS}")
    a("s_add_u32 s30, s30, s69")
    a("s_lshl_b32 s70, s30, 10")
    a(f"s_add_u32 s71, s70, {NKS*1024}")
    a("s_nop 7")
    for ul in range(3):
        a(f"s_add_u32 s30, s69, {ul}")
        a(f"s_cmp_ge_u32 s30, {NKS}")
        a("s_cbranch_scc1 P1_FEND")
        for rt in range(4):
            g = acc(rt, ul, 0)
            u = acc(rt, ul, 1)
            t = 16 + 8 * (rt & 1)
            for p in range(2):
                a(f"v_pk_mul_f32 {vr(t+2*p,2)}, {vr(g+2*p,2)}, {vr(g+2*p,2)}")
            for p in range(2):
                a(f"v_pk_fma_f32 {vr(t+2*p,2)}, {vr(t+2*p,2)}, s[72:73], v[10:11]")
            for p in range(2):
                a(f"v_pk_mul_f32 {vr(t+2*p,2)}, {vr(t+2*p,2)}, {vr(g+2*p,2)}")
            for p in range(4):
                a(f"v_exp_f32 v{t+p}, v{t+p}")
            for p in range(2):
                a(f"v_pk_mul_f32 {vr(g+2*p,2)}, {vr(g+2*p,2)}, {vr(u+2*p,2)}")
            for p in range(2):
                a(f"v_pk_add_f32 {vr(t+2*p,2)}, {vr(t+2*p,2)}, 1.0 op_sel_hi:[1,0]")
            for p in range(4):
                a(f"v_rcp_f32 v{t+p}, v{t+p}")
            a("s_nop 0")
            for p in range(2):
                a(f"v_pk_mul_f32 {vr(g+2*p,2)}, {vr(g+2*p,2)}, {vr(t+2*p,2)}")
            a(f"v_cvt_pk_bf16_f32 v{u}, v{g}, v{g+1}")
            a(f"v_cvt_pk_bf16_f32 v{u+1}, v{g+2}, v{g+3}")
            a(f"buffer_store_dwordx2 {vr(u,2)}, v3, s[44:47], s{70 + (rt>>1)} offen offset:{(rt&1)*256 + ul*1024}")
    a.lab("P1_FEND")
    stamp(a, 4, 44)
    a("s_endpgm")

    a.lab("P1_DFT")
    srd(a, 48, 6, 7, 2048 * 4096)
    srd(a, 52, 8, 9, 2048 * 4096)
    a("v_lshlrev_b32 v3, 18, v1")
    a("v_lshl_add_u32 v3, v2, 3, v3")
    a(f"s_mov_b32 s30, {16 << 18}")
    for mt in range(2):
        so = "0" if mt == 0 else "s30"
        a(f"buffer_load_dwordx2 {vr(192+4*mt,2)}, v3, s[48:51], {so} offen")
        a(f"buffer_load_dwordx2 {vr(194+4*mt,2)}, v3, s[48:51], {so} offen offset:32")
        a(f"buffer_load_dwordx2 {vr(200+4*mt,2)}, v3, s[52:55], {so} offen")
        a(f"buffer_load_dwordx2 {vr(202+4*mt,2)}, v3, s[52:55], {so} offen offset:32")
    mainloop(True)
    a("s_waitcnt vmcnt(0)")
    for i in range(8):
        a(f"v_xor_b32 v{208+i}, 0x80008000, v{192+i}")
        a(f"v_xor_b32 v{200+i}, 0x80008000, v{200+i}")
    a(f"s_mov_b32 s30, {4*16*EP*16}")
    a("v_mul_lo_u32 v3, v2, s30")
    a("v_lshl_add_u32 v3, v1, 4, v3")
    a("s_sub_u32 s30, s57, 15")
    a("s_mul_i32 s30, s30, 96")
    a("s_mul_i32 s31, s67, 48")
    a("s_add_u32 s30, s30, s31")
    a(f"s_mul_i32 s31, s56, {EP}")
    a("s_add_u32 s30, s30, s31")
    a("s_lshl_b32 s30, s30, 4")
    a("s_lshl_b32 s31, s66, 3")
    a("s_add_u32 s30, s30, s31")
    a(f"s_add_u32 s69, s30, 0x{C_OFF:x}")
    for ul in range(3):
        for uu in range(2):
            for mat in range(2):
                b = 16 + 4 * (2 * uu + mat)
                for hh in range(2):
                    s = acc(2 * uu + hh, ul, mat)
                    a(f"v_cvt_pk_bf16_f32 v{b+2*hh}, v{s}, v{s+1}")
                    a(f"v_cvt_pk_bf16_f32 v{b+2*hh+1}, v{s+2}, v{s+3}")
        a("s_nop 1")
        def o(uu, comp, mt): return 32 + 4 * ((uu * 2 + comp) * 2 + mt)
        for uu in range(2):
            for mt in range(2):
                a(f"v_mfma_f32_16x16x32_bf16 {vr(o(uu,0,mt),4)}, {vr(192+4*mt,4)}, {vr(16+8*uu,4)}, 0")
                a(f"v_mfma_f32_16x16x32_bf16 {vr(o(uu,1,mt),4)}, {vr(200+4*mt,4)}, {vr(16+8*uu,4)}, 0")
        for uu in range(2):
            for mt in range(2):
                a(f"v_mfma_f32_16x16x32_bf16 {vr(o(uu,0,mt),4)}, {vr(200+4*mt,4)}, {vr(20+8*uu,4)}, {vr(o(uu,0,mt),4)}")
                a(f"v_mfma_f32_16x16x32_bf16 {vr(o(uu,1,mt),4)}, {vr(208+4*mt,4)}, {vr(20+8*uu,4)}, {vr(o(uu,1,mt),4)}")
        a("s_nop 7")
        for mt in range(2):
            for r in range(4):
                d = 64 + 2 * (mt * 4 + r)
                a(f"v_cvt_pk_bf16_f32 v{d}, v{o(0,0,mt)+r}, v{o(1,0,mt)+r}")
                a(f"v_cvt_pk_bf16_f32 v{d+1}, v{o(0,1,mt)+r}, v{o(1,1,mt)+r}")
                a(f"s_add_u32 s30, s69, {(16*mt + r)*16*EP*16}")
                a(f"buffer_store_dwordx2 {vr(d,2)}, v3, s[44:47], s30 offen offset:{ul*256}")
        a("s_waitcnt vmcnt(0)") if ul < 2 else None
    stamp(a, 4, 44)
    a.lab("P1_END")
    a("s_endpgm")

D2 = 8
NST = 22
RING = D2 * 2048
XCH = 4 * RING
LDS2 = XCH + 12 * 4096

def k2(a):
    a.lab("p2_kernel")
    a("s_cmp_ge_u32 s2, 256")
    a("s_cbranch_scc1 P2_END")
    a("s_load_dwordx4 s[4:7], s[0:1], 8")
    a("s_load_dwordx2 s[8:9], s[0:1], 64")
    a("s_load_dwordx2 s[10:11], s[0:1], 80")
    a("s_load_dwordx2 s[12:13], s[0:1], 96")
    a("v_lshrrev_b32 v1, 6, v0")
    a("v_and_b32 v0, 63, v0")
    a("v_readfirstlane_b32 s3, v1")
    a("s_and_b32 s30, s2, 7")
    a("s_lshr_b32 s31, s2, 3")
    a("s_lshl_b32 s56, s30, 2")
    a("s_and_b32 s30, s31, 3")
    a("s_add_u32 s56, s56, s30")
    a("s_lshr_b32 s57, s31, 2")
    a("s_and_b32 s58, s3, 1")
    a("s_lshr_b32 s59, s3, 1")
    if STAMP:
        a("s_lshl_b32 s60, s2, 3")
        a("s_add_u32 s60, s60, s3")
        a("s_lshl_b32 s60, s60, 6")
        a(f"s_add_u32 s60, s60, 0x{ST_OFF + 0x100000:x}")
        a("s_memrealtime s[64:65]")
    a("v_lshrrev_b32 v3, 3, v0")
    a("v_and_b32 v4, 7, v0")
    a("v_lshlrev_b32 v5, 1, v3")
    a("v_and_b32 v5, 4, v5")
    a("v_xor_b32 v4, v4, v5")
    a("v_lshlrev_b32 v4, 4, v4")
    a("v_lshl_add_u32 v2, v3, 10, v4")
    a(f"s_mul_i32 s30, s3, {NST*16384}")
    a("s_lshl_b32 s31, s57, 7")
    a("s_add_u32 s30, s30, s31")
    a("v_add_u32 v2, s30, v2")
    a("s_lshl_b32 s30, s59, 5")
    a("s_add_u32 s30, s30, s56")
    a("s_xor_b32 s31, s30, 32")
    a(f"s_mul_i32 s61, s3, {NST}")
    a(f"s_mul_i32 s66, s30, {NKS}")
    a("s_add_u32 s66, s66, s61")
    a("s_lshl_b32 s66, s66, 10")
    a(f"s_mul_i32 s67, s31, {NKS}")
    a("s_add_u32 s67, s67, s61")
    a("s_lshl_b32 s67, s67, 10")
    a("v_lshlrev_b32 v5, 4, v0")
    a("v_add_u32 v3, s66, v5")
    a("v_add_u32 v4, s67, v5")
    a("v_lshrrev_b32 v8, 5, v0")
    a("v_and_b32 v9, 15, v0")
    a("v_lshrrev_b32 v10, 2, v9")
    a("v_lshl_add_u32 v10, v8, 3, v10")
    a("v_lshlrev_b32 v10, 7, v10")
    a("v_lshrrev_b32 v11, 3, v9")
    a("v_xor_b32 v11, s58, v11")
    a("v_lshl_add_u32 v10, v11, 6, v10")
    a("v_and_b32 v11, 16, v0")
    a("v_lshl_add_u32 v10, v11, 1, v10")
    a("v_and_b32 v11, 3, v0")
    a("v_lshl_add_u32 v10, v11, 3, v10")
    a(f"s_mul_i32 s68, s3, {RING}")
    a("v_add_u32 v6, s68, v10")
    a("v_xor_b32 v7, 64, v6")
    a("v_and_b32 v12, 31, v0")
    a("v_lshlrev_b32 v12, 6, v12")
    a("v_add_u32 v12, s30, v12")
    a("v_sub_u32 v13, 0, v12")
    a("v_and_b32 v13, 0x7ff, v13")
    a("s_lshl_b32 s31, s57, 6")
    a("s_lshl_b32 s61, s58, 5")
    a("s_add_u32 s31, s31, s61")
    a("v_and_b32 v14, 31, v0")
    a("v_add_u32 v14, s31, v14")
    a("v_sub_u32 v15, 0x200, v14")
    a("s_sub_u32 s61, 32, s56")
    a("s_and_b32 s61, s61, 31")
    a("s_cmp_ge_u32 s57, 4")
    a("s_cselect_b32 s61, s61, s56")
    a("s_cselect_b64 vcc, -1, 0")
    a("v_cndmask_b32 v13, v12, v13, vcc")
    a("v_cndmask_b32 v14, v14, v15, vcc")
    a("v_lshlrev_b32 v13, 12, v13")
    a("v_lshl_add_u32 v13, v8, 6, v13")
    a(f"v_mul_u32_u24 v15, {8*EP}, v8")
    a("v_add_u32 v14, v14, v15")
    a("v_lshlrev_b32 v14, 4, v14")
    a(f"s_mul_i32 s61, s61, {16*EP*16}")
    a(f"s_add_u32 s61, s61, 0x{C_OFF:x}")
    a("v_lshlrev_b32 v15, 2, v12")
    a("v_lshlrev_b32 v12, 10, v12")
    a("v_lshl_add_u32 v12, v8, 4, v12")
    a("s_lshl_b32 s31, s31, 1")
    a("v_add_u32 v12, s31, v12")
    a("s_waitcnt lgkmcnt(0)")
    srd(a, 32, 8, 9, 1376 * 1024)
    srd(a, 36, 12, 13, 0x2000000 if STAMP else WS_USED)
    srd(a, 40, 4, 5, 2048 * 4096)
    srd(a, 44, 6, 7, 2048 * 4096)
    srd(a, 48, 10, 11, 2048 * 1024)
    if STAMP:
        a("v_mov_b32 v250, s64")
        a("v_mov_b32 v251, 0")
        a("buffer_store_dword v250, v251, s[36:39], s60 offen offset:0")
        stamp(a, 1, 36)
        a("s_waitcnt vmcnt(0)")
    HR = 16
    WF = HR + D2 * 8
    ACC = WF + 16
    YA = ACC + 64
    CF = YA + 16
    MF = CF + 32
    GV = MF + 32
    assert GV < 250, GV
    a("s_cmp_eq_u32 s3, 3")
    a("s_cselect_b32 s72, 0x10000000, 0")

    def issue(st):
        sl = st % D2
        a(f"s_add_u32 m0, s68, {sl*2048}")
        a(f"s_mov_b32 s70, {st*16384}")
        a(f"s_mov_b32 s71, {st*16384 + 7168}")
        a(f"buffer_load_dwordx4 v2, s[32:35], s70 offen lds")
        a(f"buffer_load_dwordx4 v2, s[32:35], s71 offen offset:1024 lds")
        if st >= 20:
            a(f"s_add_u32 s69, s72, {(st // 4) * 4096}")
        else:
            a(f"s_mov_b32 s69, {(st // 4) * 4096}")
        a(f"buffer_load_dwordx4 {vr(HR + sl*8, 4)}, v3, s[36:39], s69 offen offset:{(st % 4)*1024}")
        a(f"buffer_load_dwordx4 {vr(HR + sl*8 + 4, 4)}, v4, s[36:39], s69 offen offset:{(st % 4)*1024}")

    def trread(st):
        sl = st % D2
        s = st & 1
        for aa in range(2):
            for hf in range(2):
                a(f"ds_read_b64_tr_b16 {vr(WF + s*8 + aa*4 + hf*2, 2)}, v{6+aa} offset:{sl*2048 + hf*512}")

    for st in range(D2):
        issue(st)
    for i in range(4):
        a(f"buffer_load_dwordx4 {vr(MF + 8*i, 4)}, v13, s[40:43], 0 offen offset:{16*i}")
        a(f"buffer_load_dwordx4 {vr(MF + 8*i + 4, 4)}, v13, s[44:47], 0 offen offset:{16*i}")
    for i in range(8):
        a(f"s_add_u32 s70, s61, {i*EP*16}")
        a(f"buffer_load_dwordx4 {vr(CF + 4*i, 4)}, v14, s[36:39], s70 offen")
    a(f"s_mov_b32 s70, 0x{G_OFF:x}")
    a(f"buffer_load_dword v{GV}, v15, s[36:39], s70 offen")
    NX = 17
    ops = []
    for st in range(D2):
        ops += [("s", st)] * 4
    ops += [("x", 0)] * NX
    def wait_for(st):
        last = max(i for i, o in enumerate(ops) if o == ("s", st))
        return len(ops) - 1 - last
    a(f"s_waitcnt vmcnt({wait_for(0)})")
    stamp(a, 2, 36) if False else None
    trread(0)
    for st in range(NST):
        s = st & 1
        sl = st % D2
        if st + 1 < NST:
            a(f"s_waitcnt vmcnt({wait_for(st+1)})")
            trread(st + 1)
            a("s_waitcnt lgkmcnt(4)")
        else:
            a("s_waitcnt lgkmcnt(0)")
        for aa in range(2):
            for b in range(2):
                d = vr(ACC + 16 * (aa + 2 * b), 16)
                c = "0" if st == 0 else d
                a(f"v_mfma_f32_32x32x16_bf16 {d}, {vr(WF + s*8 + aa*4, 4)}, {vr(HR + sl*8 + 4*b, 4)}, {c}")
        if st + D2 < NST:
            issue(st + D2)
            ops += [("s", st + D2)] * 4
        if st == D2:
            for i in range(4):
                R = MF + 8 * i
                I = R + 4
                a(f"v_swap_b32 v{R+1}, v{R+2}")
                a(f"v_swap_b32 v{R+1}, v{I}")
                a(f"v_swap_b32 v{I+1}, v{I+2}")
                a(f"v_swap_b32 v{R+3}, v{I+2}")
            a("s_nop 1")
            for i in range(8):
                c = "0" if i == 0 else vr(YA, 16)
                a(f"v_mfma_f32_32x32x16_bf16 {vr(YA,16)}, {vr(CF+4*i,4)}, {vr(MF+4*i,4)}, {c}")
    stamp(a, 3, 36)
    a("v_lshlrev_b32 v5, 4, v0")
    for idx in range(1, 4):
        a(f"s_xor_b32 s30, s3, {idx}")
        a("s_mul_i32 s30, s30, 12288")
        a(f"s_add_u32 s30, s30, {XCH + (idx-1)*4096}")
        a(f"v_add_u32 v{idx+7}, s30, v5")
    a("s_mul_i32 s30, s3, 12288")
    a(f"s_add_u32 s30, s30, {XCH}")
    a("v_add_u32 v11, s30, v5")
    a("s_nop 7")
    for idx in range(1, 4):
        for qd in range(4):
            a(f"ds_write_b128 v{idx+7}, {vr(ACC + 16*idx + 4*qd, 4)} offset:{qd*1024}")
    a("s_waitcnt lgkmcnt(0)")
    a("s_barrier")
    for idx in range(3):
        for qd in range(4):
            a(f"ds_read_b128 {vr(HR + 16*idx + 4*qd, 4)}, v11 offset:{idx*4096 + qd*1024}")
    a(f"v_sub_f32 v{GV+1}, 1.0, v{GV}")
    a(f"v_cvt_pk_bf16_f32 v{GV+1}, v{GV+1}, v{GV+1}")
    a(f"v_lshlrev_b32 v{GV+1}, 16, v{GV+1}")
    for r in range(16):
        a(f"v_mul_f32 v{YA+r}, v{GV}, v{YA+r}")
    for idx in range(3):
        a(f"s_waitcnt lgkmcnt({8 - 4*idx})")
        for r in range(16):
            a(f"v_add_f32 v{ACC+r}, v{ACC+r}, v{HR + 16*idx + r}")
    for r in range(16):
        a(f"v_fma_f32 v{YA+r}, v{GV+1}, v{ACC+r}, v{YA+r}")
    for i in range(8):
        a(f"v_cvt_pk_bf16_f32 v{HR+i}, v{YA+2*i}, v{YA+2*i+1}")
    a("s_nop 1")
    for k in (0, 4):
        a(f"v_permlane32_swap_b32 v{HR+k}, v{HR+k+2}")
        a(f"v_permlane32_swap_b32 v{HR+k+1}, v{HR+k+3}")
    a(f"buffer_store_dwordx4 {vr(HR,4)}, v12, s[48:51], 0 offen")
    a(f"buffer_store_dwordx4 {vr(HR+4,4)}, v12, s[48:51], 0 offen offset:32")
    stamp(a, 4, 36)
    a.lab("P2_END")
    a("s_endpgm")

HEADER = open("cdna_kernels/" + NAME + ".s.ref").read().split("; Override launch")[0]

def desc(name, vgpr):
    return f""".amdhsa_kernel {name}
  .amdhsa_next_free_vgpr {vgpr}
  .amdhsa_next_free_sgpr 80
  .amdhsa_accum_offset {vgpr}
  .amdhsa_group_segment_fixed_size 0
  .amdhsa_kernarg_size 104
  .amdhsa_user_sgpr_count 2
  .amdhsa_user_sgpr_kernarg_segment_ptr 1
  .amdhsa_system_sgpr_workgroup_id_x 1
.end_amdhsa_kernel
"""

def main():
    out = HEADER
    out += f"; @launch kernel=p1_kernel grid=({NWG1},1,1) block=(512,1,1) lds={4*SLOT}\n"
    out += f"; @launch kernel=p2_kernel grid=(256,1,1) block=(256,1,1) lds={LDS2}\n"
    out += '.amdgcn_target "amdgcn-amd-amdhsa--gfx950"\n.text\n'
    for nm, fn in (("p1_kernel", k1), ("p2_kernel", k2)):
        a = Asm()
        out += f".globl {nm}\n.p2align 8\n.type {nm},@function\n"
        fn(a)
        out += a.text()
    out += '.section .rodata,"a"\n.p2align 6\n' + desc("p1_kernel", 256) + ".p2align 6\n" + desc("p2_kernel", 256)
    path = [x for x in sys.argv[1:] if not x.startswith("--")][0]
    open(path, "w").write(out)

main()
```

```python
import sys, math, struct

NAME = "gated_mix__spectral_fnet__geglu_ffn__prompt"
STAMP = "--stamp" in sys.argv
def opt(name, default):
    for x in sys.argv:
        if x.startswith("--" + name + "="):
            return int(x.split("=")[1])
    return default
RA = opt("ra", 1); RB = opt("rb", 2); RM = opt("rm", 6)
ROT2 = opt("rot2", 3)
HSC = "sc1" if opt("hsc", 1) else ""
CSC = "sc1" if opt("csc", 0) else ""
PFW = opt("pfw", 1)

NKS = 86
EP = 264
C_OFF = 0x600000
G_OFF = 0x900000
WS_USED = 0x910000
ST_OFF = 0x1000000

def f32(x):
    return "0x%08x" % struct.unpack("<I", struct.pack("<f", x))[0]

class Asm:
    def __init__(self):
        self.l = []
    def __call__(self, s):
        self.l.append("    " + s)
    def lab(self, s):
        self.l.append(s + ":")
    def text(self):
        return "\n".join(self.l) + "\n"

def vr(b, n=1):
    return f"v{b}" if n == 1 else f"v[{b}:{b+n-1}]"

def srd(a, d, lo, hi, nbytes):
    a(f"s_mov_b32 s{d}, s{lo}")
    a(f"s_mov_b32 s{d+1}, s{hi}")
    a(f"s_mov_b32 s{d+2}, 0x{nbytes:x}")
    a(f"s_mov_b32 s{d+3}, 0x20000")

def stamp(a, idx, wsrd, vt=13):
    if not STAMP:
        return
    a("s_memrealtime s[62:63]")
    a("s_memtime s[76:77]")
    a("s_waitcnt lgkmcnt(0)")
    a(f"v_mov_b32 v{vt}, s62")
    a(f"v_mov_b32 v{vt+1}, 0")
    a(f"v_mov_b32 v{vt+2}, s76")
    a(f"buffer_store_dword v{vt}, v{vt+1}, s[{wsrd}:{wsrd+3}], s60 offen offset:{idx*4}")
    a(f"buffer_store_dword v{vt+2}, v{vt+1}, s[{wsrd}:{wsrd+3}], s60 offen offset:{idx*4+32}")

def weave(a, mf, fill, start=0, per=1):
    fi = 0
    for i, m in enumerate(mf):
        a(m) if not m.endswith(":") else a.lab(m[:-1])
        if i >= start:
            for _ in range(per):
                if fi < len(fill):
                    a(fill[fi]); fi += 1
    while fi < len(fill):
        a(fill[fi]); fi += 1

C1 = -2.0 * math.sqrt(2.0 / math.pi) * math.log2(math.e)
C2 = C1 * 0.044715

def gelu_pair(a, g0, u0, g1, u1, t, dst):
    G = [g0 + i for i in range(4)] + [g1 + i for i in range(4)]
    U = [u0 + i for i in range(4)] + [u1 + i for i in range(4)]
    for i in range(8): a(f"v_mul_f32 v{t+i}, v{G[i]}, v{G[i]}")
    for i in range(8): a(f"v_fma_f32 v{t+i}, v{t+i}, s72, v10")
    for i in range(8): a(f"v_mul_f32 v{t+i}, v{t+i}, v{G[i]}")
    for i in range(8):
        a(f"v_exp_f32 v{t+i}, v{t+i}")
        a(f"v_mul_f32 v{G[i]}, v{G[i]}, v{U[i]}")
    for i in range(8): a(f"v_add_f32 v{t+i}, 1.0, v{t+i}")
    for i in range(8): a(f"v_rcp_f32 v{t+i}, v{t+i}")
    for i in range(8): a(f"v_mul_f32 v{G[i]}, v{G[i]}, v{t+i}")
    for i in range(4): a(f"v_cvt_pk_bf16_f32 v{dst+i}, v{G[2*i]}, v{G[2*i+1]}")
    a("s_nop 1")
    a(f"v_permlane16_swap_b32 v{dst}, v{dst+2}")
    a(f"v_permlane16_swap_b32 v{dst+1}, v{dst+3}")

SLOT = 40960
XB = 16384
WB = 12288

def k1(a):
    a.lab("p1_kernel")
    a("s_cmp_ge_u32 s2, 256")
    a("s_cbranch_scc1 P1_END")
    a("s_load_dwordx16 s[4:19], s[0:1], 0")
    a("s_load_dwordx8 s[20:27], s[0:1], 64")
    a("s_load_dwordx2 s[28:29], s[0:1], 96")
    if STAMP:
        a("s_memrealtime s[64:65]")
    a("v_lshrrev_b32 v1, 6, v0")
    a("v_and_b32 v0, 63, v0")
    a("v_readfirstlane_b32 s3, v1")
    a("s_lshr_b32 s31, s2, 3")
    a("s_and_b32 s56, s2, 1")
    a("s_lshl_b32 s56, s56, 3")
    a("s_and_b32 s74, s31, 7")
    a("s_add_u32 s56, s56, s74")
    a("s_and_b32 s57, s2, 6")
    a("s_lshl_b32 s57, s57, 1")
    a("s_lshr_b32 s75, s31, 3")
    a("s_add_u32 s57, s57, s75")
    a(f"s_mul_i32 s74, s74, {RA}")
    a(f"s_mul_i32 s75, s75, {RB}")
    a("s_add_u32 s74, s74, s75")
    a(f"s_and_b32 s74, s74, {RM}")
    a("s_and_b32 s30, s57, 7")
    a("s_cmp_eq_u32 s30, 3")
    a("s_cselect_b32 s58, 1, 0")
    a("s_lshr_b32 s59, s57, 3")
    a("s_cmp_gt_u32 s30, 3")
    a("s_cselect_b32 s30, 1, 0")
    a("s_add_u32 s30, s30, s59")
    a("s_sub_u32 s78, s57, s30")
    if STAMP:
        a("s_lshl_b32 s60, s2, 3")
        a("s_add_u32 s60, s60, s3")
        a("s_lshl_b32 s60, s60, 6")
        a(f"s_add_u32 s60, s60, 0x{ST_OFF:x}")
    a("s_cmp_ge_u32 s3, 4")
    a("s_cbranch_scc1 P1_CONS")
    a("v_lshrrev_b32 v3, 3, v0")
    a("v_and_b32 v8, 7, v0")
    a("v_lshrrev_b32 v9, 4, v0")
    a("s_lshl_b32 s30, s56, 2")
    a("s_add_u32 s30, s30, s3")
    a("s_lshl_b32 s79, s30, 10")
    a("s_lshl_b32 s66, s3, 12")
    a("s_lshl_b32 s70, s74, 7")
    a("s_cmp_eq_u32 s58, 1")
    a("s_cbranch_scc1 P1_LSP")

    def tail_loader(tag):
        srd(a, 48, 22, 23, 1024)
        srd(a, 52, 20, 21, 1376 * 1024)
        a("s_lshl_b32 s30, s57, 3")
        a("s_lshl_b32 s31, s3, 1")
        a("s_add_u32 s30, s30, s31")
        a("s_lshr_b32 s31, s30, 5")
        a("s_and_b32 s30, s30, 31")
        a("s_lshl_b32 s30, s30, 6")
        a("s_add_u32 s30, s30, s31")
        a("s_lshl_b32 s31, s56, 2")
        a("s_add_u32 s61, s30, s31")
        a("s_lshl_b32 s30, s61, 10")
        a("s_add_u32 s31, s30, 0x10000")
        a("v_lshlrev_b32 v2, 4, v0")
        a("buffer_load_dwordx4 v[64:67], v2, s[48:51], 0 offen")
        a("buffer_load_dwordx4 v[68:71], v2, s[32:35], s30 offen")
        a("buffer_load_dwordx4 v[72:75], v2, s[32:35], s31 offen")
        npf = 0
        if PFW:
            a("s_lshr_b32 s30, s2, 3")
            a("s_lshl_b32 s30, s30, 2")
            a("s_add_u32 s30, s30, s3")
            a(f"s_mul_i32 s30, s30, {86*128}")
            a("v_lshlrev_b32 v2, 7, v0")
            a("buffer_load_dword v76, v2, s[52:55], s30 offen")
            a("s_add_u32 s30, s30, 8192")
            a("s_mov_b64 exec, 0x3fffff")
            a("buffer_load_dword v77, v2, s[52:55], s30 offen")
            a("s_mov_b64 exec, -1")
            npf = 2
        return npf

    def gcalc(npf):
        a(f"s_waitcnt vmcnt({npf})")
        for rr in range(2):
            xb = 68 + 4 * rr
            acc = 20 + rr
            for d in range(4):
                a(f"v_lshlrev_b32 v16, 16, v{xb+d}")
                a(f"v_and_b32 v17, 0xffff0000, v{xb+d}")
                a(f"v_lshlrev_b32 v18, 16, v{64+d}")
                a(f"v_and_b32 v19, 0xffff0000, v{64+d}")
                a("v_mul_f32 v16, v16, v18")
                a("v_mul_f32 v17, v17, v19")
                a("v_cvt_pk_bf16_f32 v16, v16, v17")
                a("v_and_b32 v17, 0xffff0000, v16")
                a("v_lshlrev_b32 v16, 16, v16")
                if d == 0:
                    a(f"v_add_f32 v{acc}, v16, v17")
                else:
                    a(f"v_add_f32 v{acc}, v{acc}, v16")
                    a(f"v_add_f32 v{acc}, v{acc}, v17")
        for sh in (8, 4, 2, 1):
            a("s_nop 1")
            a(f"v_add_f32_dpp v20, v20, v20 row_ror:{sh} row_mask:0xf bank_mask:0xf")
            a(f"v_add_f32_dpp v21, v21, v21 row_ror:{sh} row_mask:0xf bank_mask:0xf")
        a("s_nop 1")
        a("v_add_f32_dpp v20, v20, v20 row_bcast:15 row_mask:0xa bank_mask:0xf")
        a("v_add_f32_dpp v21, v21, v21 row_bcast:15 row_mask:0xa bank_mask:0xf")
        a("s_nop 1")
        a("v_add_f32_dpp v20, v20, v20 row_bcast:31 row_mask:0xc bank_mask:0xf")
        a("v_add_f32_dpp v21, v21, v21 row_bcast:31 row_mask:0xc bank_mask:0xf")
        a("s_nop 1")
        a("v_cvt_pk_bf16_f32 v20, v20, v21")
        a("v_and_b32 v21, 0xffff0000, v20")
        a("v_lshlrev_b32 v20, 16, v20")
        a(f"v_mul_f32 v20, {f32(-math.log2(math.e))}, v20")
        a(f"v_mul_f32 v21, {f32(-math.log2(math.e))}, v21")
        a("v_exp_f32 v20, v20")
        a("v_exp_f32 v21, v21")
        a("s_nop 0")
        a("v_add_f32 v20, 1.0, v20")
        a("v_add_f32 v21, 1.0, v21")
        a("v_rcp_f32 v20, v20")
        a("v_rcp_f32 v21, v21")
        a("s_nop 0")
        a("v_cvt_pk_bf16_f32 v20, v20, v21")
        a("v_and_b32 v21, 0xffff0000, v20")
        a("v_lshlrev_b32 v20, 16, v20")
        a("s_lshl_b32 s30, s61, 2")
        a(f"s_add_u32 s30, s30, 0x{G_OFF:x}")
        a("v_mov_b32 v22, 0")
        a("v_cmp_eq_u32 vcc, 63, v0")
        a("s_and_saveexec_b64 s[72:73], vcc")
        a("buffer_store_dword v20, v22, s[44:47], s30 offen")
        a("buffer_store_dword v21, v22, s[44:47], s30 offen offset:256")
        a("s_mov_b64 exec, s[72:73]")

    def stamp0():
        if STAMP:
            a("v_mov_b32 v13, s64")
            a("v_mov_b32 v14, 0")
            a("buffer_store_dword v13, v14, s[44:47], s60 offen offset:0")
            stamp(a, 1, 44)

    for j in range(4):
        a(f"v_add_u32 v10, {4*j}, v9")
        a("v_and_b32 v10, 7, v10")
        a("v_xor_b32 v10, v10, v8")
        a("v_lshlrev_b32 v10, 4, v10")
        a(f"v_add_u32 v11, {8*j}, v3")
        a("v_lshlrev_b32 v11, 16, v11")
        a(f"v_add3_u32 v{4+j}, v10, v11, s79")
        if j:
            a(f"v_subrev_u32 v{4+j}, {j*1024}, v{4+j}")
    a(f"s_mul_i32 s30, s3, {16*2752}")
    a("s_mul_i32 s31, s78, 192")
    a("s_add_u32 s30, s30, s31")
    for jj in range(3):
        a(f"v_add_u32 v10, {64*jj}, v0")
        a("v_mul_u32_u24 v11, 171, v10")
        a("v_lshrrev_b32 v11, 11, v11")
        a("v_mul_u32_u24 v12, 12, v11")
        a("v_sub_u32 v10, v10, v12")
        a("v_lshrrev_b32 v12, 2, v11")
        a("v_and_b32 v12, 2, v12")
        a("v_xor_b32 v10, v10, v12")
        a("v_lshlrev_b32 v10, 4, v10")
        a("v_mul_u32_u24 v11, 2752, v11")
        a(f"v_add3_u32 v{24+jj}, v10, v11, s30")
        if jj:
            a(f"v_subrev_u32 v{24+jj}, {jj*1024}, v{24+jj}")
    a("s_mul_i32 s67, s3, 3072")
    a(f"s_add_u32 s67, s67, {XB}")
    a(f"s_add_u32 s68, s67, {WB}")
    a(f"s_mul_i32 s71, s74, {64*2752}")
    a("s_waitcnt lgkmcnt(0)")
    srd(a, 32, 4, 5, 2048 * 1024)
    srd(a, 36, 16, 17, 512 * 2752)
    srd(a, 40, 18, 19, 512 * 2752)
    srd(a, 44, 28, 29, 0x2000000 if STAMP else WS_USED)
    stamp0()

    def issueF(stage):
        sl = (stage % 4) * SLOT
        a(f"s_add_u32 m0, s67, {sl}")
        a("s_add_u32 s74, s74, 1")
        for jj in range(3):
            a(f"buffer_load_dwordx4 v{24+jj}, s[36:39], s71 offen offset:{jj*1024} lds")
        a(f"s_add_u32 m0, s66, {sl}")
        a("s_and_b32 s74, s74, 7")
        for j in range(4):
            a(f"buffer_load_dwordx4 v{4+j}, s[32:35], s70 offen offset:{j*1024} lds")
        a(f"s_add_u32 m0, s68, {sl}")
        a("s_lshl_b32 s70, s74, 7")
        for jj in range(3):
            a(f"buffer_load_dwordx4 v{24+jj}, s[40:43], s71 offen offset:{jj*1024} lds")
        a(f"s_mul_i32 s71, s74, {64*2752}")

    issueF(0)
    for b in range(8):
        if b < 7:
            issueF(b + 1)
            a("s_waitcnt vmcnt(10)")
        else:
            npf = tail_loader("F")
            a(f"s_waitcnt vmcnt({3 + npf})")
        a("s_barrier")
    stamp(a, 2, 44) if False else None
    gcalc(npf)
    stamp(a, 2, 44)
    a("s_endpgm")

    a.lab("P1_LSP")
    a("v_lshlrev_b32 v10, 4, v8")
    a("v_lshlrev_b32 v11, 16, v3")
    a("v_add3_u32 v4, v10, v11, s79")
    a("v_lshrrev_b32 v10, 1, v8")
    a("v_xor_b32 v10, v10, v9")
    a("v_lshlrev_b32 v10, 4, v10")
    a("v_and_b32 v11, 1, v8")
    a("v_lshl_add_u32 v10, v11, 3, v10")
    a("v_lshl_add_u32 v10, v3, 7, v10")
    a("v_add_u32 v5, s66, v10")
    a("v_xor_b32 v6, 64, v5")
    a("s_and_b32 s30, s3, 1")
    a("s_lshl_b32 s30, s30, 5")
    a("s_lshr_b32 s31, s3, 1")
    a("s_add_u32 s30, s30, s31")
    a("s_lshl_b32 s30, s30, 10")
    a("s_lshl_b32 s31, s59, 7")
    a("s_add_u32 s30, s30, s31")
    a("v_and_b32 v10, 2, v3")
    a("v_xor_b32 v10, v10, v8")
    a("v_lshlrev_b32 v10, 4, v10")
    a("v_lshlrev_b32 v11, 11, v3")
    a("v_add3_u32 v24, v10, v11, s30")
    a("v_xor_b32 v25, 64, v24")
    a(f"v_add_u32 v25, {16*1024 - 1024}, v25")
    a("v_lshrrev_b32 v10, 1, v0")
    a("v_lshrrev_b32 v11, 2, v0")
    a("v_and_b32 v11, 4, v11")
    a("v_xor_b32 v10, v10, v11")
    a(f"v_mul_u32_u24 v10, {2*2752}, v10")
    a("v_and_b32 v11, 1, v0")
    a("v_lshlrev_b32 v11, 4, v11")
    a("s_and_b32 s30, s3, 1")
    a("s_mul_i32 s30, s30, 2752")
    a("s_lshl_b32 s31, s59, 5")
    a("s_add_u32 s30, s30, s31")
    a(f"s_add_u32 s30, s30, {1344*2}")
    a("v_add3_u32 v26, v10, v11, s30")
    a("v_and_b32 v10, 2, v0")
    a("v_lshrrev_b32 v11, 1, v0")
    a("v_and_b32 v11, 4, v11")
    a("v_or_b32 v10, v10, v11")
    a("v_lshlrev_b32 v10, 4, v10")
    a("v_lshl_add_u32 v10, v0, 7, v10")
    a("s_lshl_b32 s67, s3, 11")
    a(f"s_add_u32 s67, s67, {XB}")
    a("s_add_u32 s68, s67, 8192")
    a("v_add_u32 v27, s68, v10")
    a("s_lshr_b32 s30, s3, 1")
    a("v_xor_b32 v28, s30, v0")
    a("v_and_b32 v28, 1, v28")
    a("v_lshlrev_b32 v28, 15, v28")
    a("v_or_b32 v28, 0x3f80, v28")
    a("s_lshl_b32 s69, s3, 10")
    a(f"s_add_u32 s69, s69, {XB + 16384}")
    a("s_lshl_b32 s71, s74, 16")
    a(f"s_mul_i32 s75, s74, {64*2752}")
    a("s_mov_b32 s80, 0x05040100")
    a("s_mov_b32 s81, 0x07060302")
    a("s_waitcnt lgkmcnt(0)")
    srd(a, 32, 4, 5, 2048 * 1024)
    srd(a, 36, 10, 11, 512 * 1024)
    srd(a, 40, 12, 13, 512 * 1024)
    srd(a, 44, 28, 29, 0x2000000 if STAMP else WS_USED)
    a("s_cmp_ge_u32 s3, 2")
    a("s_cselect_b32 s84, s18, s16")
    a("s_cselect_b32 s85, s19, s17")
    a(f"s_mov_b32 s86, 0x{512*2752:x}")
    a("s_mov_b32 s87, 0x20000")
    stamp0()

    def issueS(stage):
        sl = (stage % 4) * SLOT
        xr = 32 + 16 * (stage & 1)
        for j in range(4):
            if j:
                a(f"s_add_u32 s30, s70, {j * 8 * 65536}")
            a(f"buffer_load_dwordx4 {vr(xr+4*j,4)}, v4, s[32:35], {'s30' if j else 's70'} offen")
        a(f"s_add_u32 m0, s67, {sl}")
        a("s_add_u32 s74, s74, 1")
        for jj in range(2):
            a(f"buffer_load_dwordx4 v{24+jj}, s[36:39], s71 offen offset:{jj*1024} lds")
        a(f"s_add_u32 m0, s68, {sl}")
        a("s_and_b32 s74, s74, 7")
        for jj in range(2):
            a(f"buffer_load_dwordx4 v{24+jj}, s[40:43], s71 offen offset:{jj*1024} lds")
        a(f"s_add_u32 m0, s69, {sl}")
        a("s_lshl_b32 s70, s74, 7")
        a("buffer_load_dwordx4 v26, s[84:87], s75 offen lds")
        a("s_lshl_b32 s71, s74, 16")
        a(f"s_mul_i32 s75, s74, {64*2752}")

    def commitS(stage):
        sl = (stage % 4) * SLOT
        xr = 32 + 16 * (stage & 1)
        a(f"v_add_u32 v7, {sl}, v5")
        a(f"v_add_u32 v2, {sl}, v6")
        for j in range(4):
            r = xr + 4 * j
            t = 16 + 4 * (j & 1)
            a(f"v_perm_b32 v{t}, v{r+1}, v{r}, s80")
            a(f"v_perm_b32 v{t+1}, v{r+3}, v{r+2}, s80")
            a(f"v_perm_b32 v{t+2}, v{r+1}, v{r}, s81")
            a(f"v_perm_b32 v{t+3}, v{r+3}, v{r+2}, s81")
            e, o = (7, 2) if (j & 1) == 0 else (2, 7)
            a(f"ds_write_b64 v{e}, {vr(t,2)} offset:{j*1024}")
            a(f"ds_write_b64 v{o}, {vr(t+2,2)} offset:{j*1024}")
        a("s_cmp_lg_u32 s59, 0")
        a(f"s_cbranch_scc1 P1_NP{stage}")
        a(f"v_add_u32 v7, {sl}, v27")
        a("s_mov_b64 exec, 0xffff")
        a("ds_write_b16 v7, v28")
        a("s_mov_b64 exec, -1")
        a.lab(f"P1_NP{stage}")
        a("s_waitcnt lgkmcnt(0)")

    issueS(0)
    for b in range(8):
        if b < 7:
            issueS(b + 1)
            a("s_waitcnt vmcnt(9)")
        else:
            npf = tail_loader("S")
            a(f"s_waitcnt vmcnt({3 + npf})")
        commitS(b)
        a("s_barrier")
    gcalc(npf)
    stamp(a, 2, 44)
    a("s_endpgm")

    a.lab("P1_CONS")
    a("s_sub_u32 s3, s3, 4")
    a("s_lshr_b32 s66, s3, 1")
    a("s_and_b32 s67, s3, 1")
    a("v_and_b32 v1, 15, v0")
    a("v_lshrrev_b32 v2, 4, v0")
    a("v_lshrrev_b32 v3, 1, v1")
    a("v_xor_b32 v3, v3, v2")
    a("v_lshlrev_b32 v3, 4, v3")
    a("s_lshl_b32 s30, s66, 13")
    a("v_lshl_add_u32 v4, v1, 7, v3")
    a("v_add_u32 v4, s30, v4")
    a("v_xor_b32 v5, 64, v4")
    a("v_lshrrev_b32 v3, 2, v1")
    a("v_lshl_add_u32 v3, v2, 3, v3")
    a("v_and_b32 v11, 3, v0")
    a(f"s_mov_b32 s72, {f32(C2)}")
    a(f"v_mov_b32 v10, {f32(C1)}")
    a("s_mov_b32 s68, 0")
    FS = [16, 56]
    ACC = 96
    def xf(s, rt): return FS[s] + 4 * rt
    def wf(s, i): return FS[s] + 16 + 4 * i

    def advance(regs):
        f = ["s_add_u32 s68, s68, 1",
             "s_and_b32 s30, s68, 3",
             "s_cmp_eq_u32 s30, 0",
             f"s_cselect_b32 s30, s82, s83"]
        f += [f"v_add_u32 v{v}, s30, v{v}" for v in regs]
        f += ["s_cmp_eq_u32 s68, 8"]
        return f

    def mainloop(tag, reads, mfmas, regs):
        a(f"s_mov_b32 s82, {(-3*SLOT) & 0xffffffff}")
        a(f"s_mov_b32 s83, {SLOT}")
        a("s_waitcnt lgkmcnt(0)")
        srd(a, 44, 28, 29, 0x2000000 if STAMP else WS_USED)
        stamp0()
        a("s_barrier")
        stamp(a, 2, 44)
        for r in reads(0, 0):
            a(r)
        a.lab(f"P1_LOOP{tag}")
        a("s_waitcnt lgkmcnt(0)")
        weave(a, mfmas(0, 0, tag + "a"), reads(1, 1) + advance(regs))
        a("s_waitcnt lgkmcnt(0)")
        a(f"s_cbranch_scc1 P1_LAST{tag}")
        weave(a, mfmas(1, 1, tag + "b"), ["s_barrier"] + reads(0, 0))
        a(f"s_branch P1_LOOP{tag}")
        a.lab(f"P1_LAST{tag}")
        weave(a, mfmas(1, 1, tag + "c"), [])
        stamp(a, 3, 44)

    a("s_cmp_eq_u32 s58, 1")
    a("s_cbranch_scc1 P1_CSP")
    a("v_mul_u32_u24 v3, 192, v3")
    a("v_lshl_add_u32 v3, v11, 3, v3")
    a("s_mul_i32 s30, s67, 96")
    a(f"s_add_u32 s30, s30, {XB}")
    a("v_add_u32 v3, s30, v3")
    a("v_and_b32 v8, 1, v2")
    a("v_lshlrev_b32 v8, 5, v8")
    a("v_add_u32 v6, v3, v8")
    a("v_sub_u32 v7, v3, v8")
    a("s_cmp_eq_u32 s67, 0")
    a("s_cbranch_scc1 P1_NOSWAP")
    a("v_swap_b32 v6, v7")
    a.lab("P1_NOSWAP")
    def accF(rt, ul, mat): return ACC + 4 * ((rt * 3 + ul) * 2 + mat)
    def readsF(s, st):
        r = []
        order = [("w", 0, 0), ("x", 0, 0), ("w", 1, 0), ("x", 1, 0), ("x", 2, 0), ("x", 3, 0),
                 ("w", 0, 1), ("w", 1, 1), ("w", 0, 2), ("w", 1, 2)]
        for kind, p, ul in order:
            if kind == "x":
                r.append(f"ds_read_b128 {vr(xf(s, p), 4)}, v{4+st} offset:{p*2048}")
            else:
                base = 7 if ul == 1 else 6
                for hf in range(2):
                    off = p * WB + st * 6144 + hf * 768 + ul * 32
                    r.append(f"ds_read_b64_tr_b16 {vr(wf(s, 3*p+ul) + 2*hf, 2)}, v{base} offset:{off}")
        return r
    def mfmasF(s, st, tag):
        m = []
        for ul in range(3):
            for rt in range(4):
                for mat in range(2):
                    d = vr(accF(rt, ul, mat), 4)
                    m.append(f"v_mfma_f32_16x16x32_bf16 {d}, {vr(wf(s, 3*mat+ul), 4)}, {vr(xf(s, rt), 4)}, {d}")
        return m
    for i in range(96):
        a(f"v_mov_b32 v{ACC+i}, 0")
    a("v_lshlrev_b32 v3, 4, v0")
    a("s_mul_i32 s69, s78, 6")
    a("s_mul_i32 s30, s67, 3")
    a("s_add_u32 s69, s69, s30")
    a("s_lshl_b32 s30, s56, 2")
    a("s_lshl_b32 s31, s66, 1")
    a("s_add_u32 s30, s30, s31")
    a(f"s_mul_i32 s30, s30, {NKS}")
    a("s_add_u32 s30, s30, s69")
    a("s_lshl_b32 s70, s30, 10")
    a(f"s_add_u32 s71, s70, {NKS*1024}")
    mainloop("F", readsF, mfmasF, (4, 5, 6, 7))
    k = 0
    for ul in range(3):
        for uu in range(2):
            dst = 32 + 4 * k
            gelu_pair(a, accF(2*uu, ul, 0), accF(2*uu, ul, 1), accF(2*uu+1, ul, 0), accF(2*uu+1, ul, 1), 16 + 8 * (k & 1), dst)
            a(f"buffer_store_dwordx4 {vr(dst,4)}, v3, s[44:47], s{70 + uu} offen offset:{ul*1024} {HSC}")
            k += 1
    stamp(a, 4, 44)
    a("s_endpgm")

    a.lab("P1_CSP")
    a("v_lshrrev_b32 v8, 3, v1")
    a("v_and_b32 v9, 1, v2")
    a("v_lshl_or_b32 v8, v9, 1, v8")
    a("s_lshl_b32 s30, s67, 1")
    a("v_xor_b32 v8, s30, v8")
    a("v_lshlrev_b32 v8, 5, v8")
    a("v_lshl_add_u32 v8, v3, 7, v8")
    a("v_lshl_add_u32 v8, v11, 3, v8")
    a(f"v_add_u32 v6, {XB}, v8")
    a("v_xor_b32 v7, 32, v6")
    a("v_lshlrev_b32 v8, 5, v3")
    a("v_lshl_add_u32 v8, v9, 7, v8")
    a("v_lshl_add_u32 v8, v11, 3, v8")
    a(f"v_add_u32 v8, {XB + 16384}, v8")
    a("v_xor_b32 v9, 0x80, v8")
    a("s_cmp_eq_u32 s67, 1")
    a("s_cselect_b64 vcc, -1, 0")
    def accD(st, rt, ul, mat): return ACC + 4 * (((st * 4 + rt) * 2 + ul) * 2 + mat)
    def accS(rr, mat): return ACC + 128 + 4 * (rr * 2 + mat)
    F1 = 240
    def readsS(s, st):
        r = []
        def dread(mat, ul):
            for hf in range(2):
                r.append(f"ds_read_b64_tr_b16 {vr(wf(s, 2*mat+ul) + 2*hf, 2)}, v{6+ul} offset:{mat*8192 + st*4096 + hf*512}")
        def xread(p):
            r.append(f"ds_read_b128 {vr(xf(s, p), 4)}, v{4+st} offset:{p*2048}")
        dread(0, 0); xread(0); dread(1, 0); xread(1); xread(2); xread(3); dread(0, 1); dread(1, 1)
        for mat in range(2):
            for hf in range(2):
                r.append(f"ds_read_b64_tr_b16 {vr(wf(s, 4+mat) + 2*hf, 2)}, v{8+hf} offset:{mat*2048 + st*1024}")
        return r
    def mfmasS(s, st, tag):
        m = []
        for ul in range(2):
            for rt in range(4):
                for mat in range(2):
                    d = vr(accD(st, rt, ul, mat), 4)
                    m.append(f"v_mfma_f32_16x16x32_bf16 {d}, {vr(xf(s, rt), 4)}, {vr(wf(s, 2*mat+ul), 4)}, {d}")
        return m
    def ffnS(s, tag):
        a(f"s_cbranch_vccnz P1_X1{tag}")
        for ch in range(2):
            if ch == 1:
                a(f"s_branch P1_X2{tag}")
                a.lab(f"P1_X1{tag}")
            for rr in range(2):
                for mat in range(2):
                    d = vr(accS(rr, mat), 4)
                    a(f"v_mfma_f32_16x16x32_bf16 {d}, {vr(wf(s, 4+mat), 4)}, {vr(xf(s, 2*ch+rr), 4)}, {d}")
        a.lab(f"P1_X2{tag}")
    for i in range(144):
        a(f"v_mov_b32 v{ACC+i}, 0")
    a("v_cvt_f32_u32 v16, v1")
    a(f"v_mul_f32 v16, {f32(1.0/32)}, v16")
    a("v_add_f32 v17, 0.5, v16")
    a("v_lshlrev_b32 v18, 2, v2")
    a("v_cvt_f32_u32 v18, v18")
    for mt in range(2):
        for i in range(8):
            s1 = i if i < 4 else 12 + i
            a(f"v_add_f32 v19, {f32(float(s1))}, v18")
            a(f"v_mul_f32 v19, v19, v{16+mt}")
            a(f"v_cos_f32 v{20+i}, v19")
            a(f"v_sin_f32 v{28+i}, v19")
        a("s_nop 0")
        for i in range(4):
            a(f"v_cvt_pk_bf16_f32 v{F1+4*mt+i}, v{20+2*i}, v{21+2*i}")
            a(f"v_cvt_pk_bf16_f32 v{F1+8+4*mt+i}, v{28+2*i}, v{29+2*i}")
    a(f"s_mov_b32 s82, {(-3*SLOT) & 0xffffffff}")
    a(f"s_mov_b32 s83, {SLOT}")
    a("s_waitcnt lgkmcnt(0)")
    srd(a, 44, 28, 29, 0x2000000 if STAMP else WS_USED)
    stamp0()
    a("s_barrier")
    stamp(a, 2, 44)
    for r in readsS(0, 0):
        a(r)
    a.lab("P1_LOOPS")
    a("s_waitcnt lgkmcnt(0)")
    weave(a, mfmasS(0, 0, ""), readsS(1, 1))
    for f in advance((4, 5, 6, 7, 8, 9)):
        a(f)
    ffnS(0, "a")
    a("s_waitcnt lgkmcnt(0)")
    a("s_cbranch_scc1 P1_LASTS")
    a("s_barrier")
    weave(a, mfmasS(1, 1, ""), readsS(0, 0))
    ffnS(1, "b")
    a("s_branch P1_LOOPS")
    a.lab("P1_LASTS")
    ffnS(1, "c")
    weave(a, mfmasS(1, 1, ""), [])
    stamp(a, 3, 44)
    a("v_lshlrev_b32 v3, 4, v0")
    a("s_lshl_b32 s30, s56, 2")
    a("s_add_u32 s30, s30, s3")
    a(f"s_mul_i32 s30, s30, {NKS}")
    a("s_add_u32 s30, s30, s59")
    a("s_add_u32 s30, s30, 84")
    a("s_lshl_b32 s70, s30, 10")
    gelu_pair(a, accS(0, 0), accS(0, 1), accS(1, 0), accS(1, 1), 16, 24)
    a(f"buffer_store_dwordx4 v[24:27], v3, s[44:47], s70 offen {HSC}")
    NWR = ACC + 128
    for i in range(8):
        a(f"v_xor_b32 v{NWR+i}, 0x80008000, v{F1+i}")
    a(f"s_mov_b32 s30, {4*16*EP*16}")
    a("v_mul_lo_u32 v3, v2, s30")
    a("s_lshl_b32 s30, s59, 6")
    a("s_lshl_b32 s31, s67, 5")
    a("s_add_u32 s30, s30, s31")
    a("v_add_u32 v4, s30, v1")
    a("v_sub_u32 v5, 240, v4")
    a("v_lshl_add_u32 v4, v4, 4, v3")
    a("v_lshl_add_u32 v5, v5, 4, v3")
    a(f"v_add_u32 v6, {128*16}, v3")
    a(f"s_mul_i32 s31, s56, {EP*16}")
    a("s_lshl_b32 s69, s66, 3")
    a("s_add_u32 s69, s69, s31")
    a(f"s_add_u32 s69, s69, 0x{C_OFF:x}")
    a("s_cmp_eq_u32 s30, 0")
    a("s_cselect_b32 s71, 1, 0")
    a("s_cselect_b32 s80, 0x00010001, 0")
    a("s_mov_b32 s81, s80")
    BF = 28
    OUT = 44
    PK = 76
    def o(uu, comp, mt): return OUT + 4 * ((uu * 2 + comp) * 2 + mt)
    def stage1(addr, imm):
        a("s_nop 1")
        for uu in range(2):
            for mt in range(2):
                a(f"v_mfma_f32_16x16x32_bf16 {vr(o(uu,0,mt),4)}, {vr(F1+4*mt,4)}, {vr(BF+8*uu,4)}, 0")
                a(f"v_mfma_f32_16x16x32_bf16 {vr(o(uu,1,mt),4)}, {vr(F1+8+4*mt,4)}, {vr(BF+8*uu,4)}, 0")
        for uu in range(2):
            for mt in range(2):
                a(f"v_mfma_f32_16x16x32_bf16 {vr(o(uu,0,mt),4)}, {vr(F1+8+4*mt,4)}, {vr(BF+4+8*uu,4)}, {vr(o(uu,0,mt),4)}")
                a(f"v_mfma_f32_16x16x32_bf16 {vr(o(uu,1,mt),4)}, {vr(NWR+4*mt,4)}, {vr(BF+4+8*uu,4)}, {vr(o(uu,1,mt),4)}")
        a("s_nop 7")
        for mt in range(2):
            for r in range(4):
                d = PK + 2 * (mt * 4 + r)
                a(f"v_cvt_pk_bf16_f32 v{d}, v{o(0,0,mt)+r}, v{o(1,0,mt)+r}")
                a(f"v_cvt_pk_bf16_f32 v{d+1}, v{o(0,1,mt)+r}, v{o(1,1,mt)+r}")
                a(f"s_add_u32 s30, s69, {(16*mt + r)*16*EP*16}")
                a(f"buffer_store_dwordx2 {vr(d,2)}, v{addr}, s[44:47], s30 offen offset:{imm} {CSC}")
    for ul in range(2):
        for sg in range(2):
            for uu in range(2):
                for mat in range(2):
                    b = BF + 8 * uu + 4 * mat
                    for hh in range(2):
                        E = accD(0, 2 * uu + hh, ul, mat)
                        T = accD(1, 2 * uu + hh, ul, mat)
                        for r in range(4):
                            if sg == 0:
                                a(f"v_add_f32 v{16+r}, v{E+r}, v{T+r}")
                            elif mat == 0:
                                a(f"v_sub_f32 v{16+r}, v{E+r}, v{T+r}")
                            else:
                                a(f"v_sub_f32 v{16+r}, v{T+r}, v{E+r}")
                        a(f"v_cvt_pk_bf16_f32 v{b+2*hh}, v16, v17")
                        a(f"v_cvt_pk_bf16_f32 v{b+2*hh+1}, v18, v19")
                    if ul == 0 and mat == 1:
                        for i in range(4):
                            a(f"v_cndmask_b32 v{b+i}, v{b+i}, 0, s[80:81]")
            if sg == 0:
                stage1(4, ul * 256)
            else:
                stage1(5, (1 - ul) * 256)
    a("s_cmp_eq_u32 s71, 0")
    a("s_cbranch_scc1 P1_SEND")
    for uu in range(2):
        for st in range(2):
            b = BF + 8 * uu + 4 * st
            for hh in range(2):
                E = accD(st, 2 * uu + hh, 0, 1)
                a(f"v_cvt_pk_bf16_f32 v{b+2*hh}, v{E}, v{E+1}")
                a(f"v_cvt_pk_bf16_f32 v{b+2*hh+1}, v{E+2}, v{E+3}")
    a("v_mov_b32 v7, 0x10000000")
    a("v_cndmask_b32 v6, v7, v6, s[80:81]")
    stage1(6, 0)
    a.lab("P1_SEND")
    stamp(a, 4, 44)
    a.lab("P1_END")
    a("s_endpgm")

D2 = opt("d2", 8)
NST = 22
RING = D2 * 2048
XCH = 4 * RING
LDS2 = XCH + 12 * 4096

def k2(a):
    a.lab("p2_kernel")
    a("s_cmp_ge_u32 s2, 256")
    a("s_cbranch_scc1 P2_END")
    a("s_load_dwordx2 s[8:9], s[0:1], 64")
    a("s_load_dwordx2 s[10:11], s[0:1], 80")
    a("s_load_dwordx2 s[12:13], s[0:1], 96")
    if STAMP:
        a("s_memrealtime s[64:65]")
    a("v_lshrrev_b32 v1, 6, v0")
    a("v_and_b32 v0, 63, v0")
    a("v_readfirstlane_b32 s3, v1")
    a("s_and_b32 s30, s2, 7")
    a("s_lshr_b32 s31, s2, 3")
    a("s_lshr_b32 s57, s31, 2")
    a("s_and_b32 s31, s31, 3")
    a("s_sub_u32 s61, 0, s30")
    a("s_bitcmp1_b32 s31, 0")
    a("s_cselect_b32 s56, s61, s30")
    a("s_cselect_b32 s61, 8, 0")
    a("s_cmp_eq_u32 s30, 0")
    a("s_cselect_b32 s56, s61, s56")
    a("s_lshr_b32 s31, s31, 1")
    a("s_lshl_b32 s31, s31, 4")
    a("s_add_u32 s56, s56, s31")
    a("s_and_b32 s56, s56, 31")
    a("s_and_b32 s58, s3, 1")
    a("s_lshr_b32 s59, s3, 1")
    a(f"s_mul_i32 s74, s57, {ROT2}")
    if STAMP:
        a("s_lshl_b32 s60, s2, 3")
        a("s_add_u32 s60, s60, s3")
        a("s_lshl_b32 s60, s60, 6")
        a(f"s_add_u32 s60, s60, 0x{ST_OFF + 0x100000:x}")
    a("s_lshl_b32 s30, s59, 5")
    a("s_add_u32 s30, s30, s56")
    a("s_xor_b32 s31, s30, 32")
    a(f"s_mul_i32 s61, s3, {NST}")
    a(f"s_mul_i32 s66, s30, {NKS}")
    a("s_add_u32 s66, s66, s61")
    a("s_lshl_b32 s66, s66, 10")
    a(f"s_mul_i32 s67, s31, {NKS}")
    a("s_add_u32 s67, s67, s61")
    a("s_lshl_b32 s67, s67, 10")
    a("v_lshlrev_b32 v5, 4, v0")
    a("v_add_u32 v3, s66, v5")
    a("v_add_u32 v4, s67, v5")
    a("s_cmp_eq_u32 s3, 3")
    a(f"s_cselect_b32 s72, 20, {NST}")
    a("v_lshrrev_b32 v8, 5, v0")
    a("s_lshl_b32 s31, s57, 6")
    a("s_lshl_b32 s61, s58, 5")
    a("s_add_u32 s31, s31, s61")
    a("v_and_b32 v9, 31, v0")
    a("v_add_u32 v10, s31, v9")
    a("v_sub_u32 v11, 0x200, v10")
    a("s_sub_u32 s61, 32, s56")
    a("s_and_b32 s61, s61, 31")
    a("s_cmp_ge_u32 s57, 4")
    a("s_cselect_b32 s61, s61, s56")
    a("s_cselect_b64 vcc, -1, 0")
    a("s_cselect_b32 s73, 1.0, -1.0")
    a("v_cndmask_b32 v10, v10, v11, vcc")
    a(f"v_mul_u32_u24 v11, {8*EP}, v8")
    a("v_add_u32 v10, v10, v11")
    a("v_lshlrev_b32 v10, 4, v10")
    a(f"s_mul_i32 s61, s61, {16*EP*16}")
    a(f"s_add_u32 s61, s61, 0x{C_OFF:x}")
    a("v_lshlrev_b32 v12, 6, v9")
    a("v_add_u32 v12, s30, v12")
    a("v_lshlrev_b32 v11, 2, v12")
    a("v_lshrrev_b32 v6, 3, v0")
    a("v_and_b32 v7, 7, v0")
    a("v_lshlrev_b32 v2, 1, v6")
    a("v_and_b32 v2, 4, v2")
    a("v_xor_b32 v7, v7, v2")
    a("v_lshlrev_b32 v7, 4, v7")
    a("v_lshl_add_u32 v2, v6, 10, v7")
    a(f"s_mul_i32 s30, s3, {NST*16384}")
    a("s_lshl_b32 s66, s57, 7")
    a("s_add_u32 s30, s30, s66")
    a("v_add_u32 v2, s30, v2")
    a(f"s_mul_i32 s68, s3, {RING}")
    a("s_mov_b32 s75, s74")
    a("s_waitcnt lgkmcnt(0)")
    srd(a, 36, 12, 13, 0x2000000 if STAMP else WS_USED)
    srd(a, 32, 8, 9, 1376 * 1024)
    srd(a, 48, 10, 11, 2048 * 1024)
    if STAMP:
        a("v_mov_b32 v13, s64")
        a("v_mov_b32 v14, 0")
        a("buffer_store_dword v13, v14, s[36:39], s60 offen offset:0")
        stamp(a, 1, 36)
    HR = 16
    WF = HR + D2 * 8
    ACC = WF + 16
    YA = ACC + 64
    CF = YA + 16
    MF = CF + 32
    GV = MF + 32
    assert GV + 1 < 256, GV
    ops = []
    def issue_h(st):
        sl = st % D2
        a("s_lshl_b32 s69, s74, 10")
        a("s_cmp_ge_u32 s74, s72")
        a("s_cselect_b32 s69, 0x10000000, s69")
        a("s_add_u32 s74, s74, 1")
        a(f"buffer_load_dwordx4 {vr(HR + sl*8, 4)}, v3, s[36:39], s69 offen")
        a(f"s_cmp_eq_u32 s74, {NST}")
        a("s_cselect_b32 s74, 0, s74")
        a(f"buffer_load_dwordx4 {vr(HR + sl*8 + 4, 4)}, v4, s[36:39], s69 offen")
        ops.extend([("s", st)] * 2)
    def issue_w(st):
        sl = st % D2
        a(f"s_add_u32 m0, s68, {sl*2048}")
        a("s_lshl_b32 s70, s75, 14")
        a("s_add_u32 s71, s70, 7168")
        a("buffer_load_dwordx4 v2, s[32:35], s70 offen lds")
        a("s_add_u32 s75, s75, 1")
        a(f"s_cmp_eq_u32 s75, {NST}")
        a("s_cselect_b32 s75, 0, s75")
        a("buffer_load_dwordx4 v2, s[32:35], s71 offen offset:1024 lds")
        ops.extend([("s", st)] * 2)
    def trread(st):
        sl = st % D2
        s = st & 1
        for aa in range(2):
            for hf in range(2):
                a(f"ds_read_b64_tr_b16 {vr(WF + s*8 + aa*4 + hf*2, 2)}, v{6+aa} offset:{sl*2048 + hf*512}")
    def wait_for(st):
        last = max(i for i, o in enumerate(ops) if o == ("s", st))
        return len(ops) - 1 - last

    NM = max(1, ROT2)
    for st in range(min(NM, D2)):
        issue_h(st)
    for i in range(8):
        a(f"s_add_u32 s70, s61, {i*EP*16}")
        a(f"buffer_load_dwordx4 {vr(CF + 4*i, 4)}, v10, s[36:39], s70 offen")
    a(f"s_mov_b32 s70, 0x{G_OFF:x}")
    a(f"buffer_load_dword v{GV}, v11, s[36:39], s70 offen")
    ops.extend([("x", 0)] * 9)
    LA0 = opt("la0", 4)
    for st in range(LA0):
        issue_w(st)
        if st >= NM:
            issue_h(st)
    a("v_and_b32 v9, 15, v0")
    a("v_lshrrev_b32 v10, 2, v9")
    a("v_lshl_add_u32 v10, v8, 3, v10")
    a("v_lshlrev_b32 v10, 7, v10")
    a("v_lshrrev_b32 v11, 3, v9")
    a("v_xor_b32 v11, s58, v11")
    a("v_lshl_add_u32 v10, v11, 6, v10")
    a("v_and_b32 v11, 16, v0")
    a("v_lshl_add_u32 v10, v11, 1, v10")
    a("v_and_b32 v11, 3, v0")
    a("v_lshl_add_u32 v10, v11, 3, v10")
    a("v_add_u32 v6, s68, v10")
    a("v_xor_b32 v7, 64, v6")
    a("v_cvt_f32_u32 v9, v12")
    a(f"v_mul_f32 v9, {f32(1.0/2048)}, v9")
    a("v_mul_f32 v9, s73, v9")
    a("v_lshlrev_b32 v10, 5, v8")
    a("v_cvt_f32_u32 v10, v10")
    a("v_mul_f32 v10, v10, v9")
    T = ACC
    for i in range(8):
        for c in range(4):
            a(f"v_cos_f32 v{T+c}, v10")
            a(f"v_sin_f32 v{T+4+c}, v10")
            a("v_add_f32 v10, v10, v9")
        a(f"v_cvt_pk_bf16_f32 v{MF+4*i}, v{T}, v{T+1}")
        a(f"v_cvt_pk_bf16_f32 v{MF+4*i+1}, v{T+4}, v{T+5}")
        a(f"v_cvt_pk_bf16_f32 v{MF+4*i+2}, v{T+2}, v{T+3}")
        a(f"v_cvt_pk_bf16_f32 v{MF+4*i+3}, v{T+6}, v{T+7}")
    a("v_lshlrev_b32 v12, 10, v12")
    a("v_lshl_add_u32 v12, v8, 4, v12")
    a("s_lshl_b32 s31, s31, 1")
    a("v_add_u32 v12, s31, v12")
    for st in range(LA0, D2):
        issue_w(st)
        if st >= NM:
            issue_h(st)
    a(f"s_waitcnt vmcnt({wait_for(0)})")
    stamp(a, 2, 36) if False else None
    trread(0)
    for i in range(8):
        c = "0" if i == 0 else vr(YA, 16)
        a(f"v_mfma_f32_32x32x16_bf16 {vr(YA,16)}, {vr(CF+4*i,4)}, {vr(MF+4*i,4)}, {c}")
    for st in range(NST):
        s = st & 1
        sl = st % D2
        if st + 1 < NST:
            a(f"s_waitcnt vmcnt({wait_for(st+1)})")
            trread(st + 1)
            a("s_waitcnt lgkmcnt(4)")
        else:
            a("s_waitcnt lgkmcnt(0)")
        mm = []
        for aa in range(2):
            for b in range(2):
                d = vr(ACC + 16 * (aa + 2 * b), 16)
                c = "0" if st == 0 else d
                mm.append(f"v_mfma_f32_32x32x16_bf16 {d}, {vr(WF + s*8 + aa*4, 4)}, {vr(HR + sl*8 + 4*b, 4)}, {c}")
        a(mm[0]); a(mm[1])
        if st + D2 < NST:
            issue_w(st + D2)
        a(mm[2]); a(mm[3])
        if st + D2 < NST:
            issue_h(st + D2)
    stamp(a, 3, 36)
    for idx in range(1, 4):
        a(f"s_xor_b32 s30, s3, {idx}")
        a("s_mul_i32 s30, s30, 12288")
        a(f"s_add_u32 s30, s30, {XCH + (idx-1)*4096}")
        a(f"v_add_u32 v{idx+7}, s30, v5")
    a("s_mul_i32 s30, s3, 12288")
    a(f"s_add_u32 s30, s30, {XCH}")
    a("v_add_u32 v11, s30, v5")
    for idx in (2, 1, 3):
        for qd in range(4):
            a(f"ds_write_b128 v{idx+7}, {vr(ACC + 16*idx + 4*qd, 4)} offset:{qd*1024}")
    a(f"v_sub_f32 v{GV+1}, 1.0, v{GV}")
    a(f"v_cvt_pk_bf16_f32 v{GV+1}, v{GV+1}, v{GV+1}")
    a(f"v_lshlrev_b32 v{GV+1}, 16, v{GV+1}")
    for r in range(16):
        a(f"v_mul_f32 v{YA+r}, v{GV}, v{YA+r}")
    a("s_waitcnt lgkmcnt(0)")
    a("s_barrier")
    for idx in range(3):
        for qd in range(4):
            a(f"ds_read_b128 {vr(HR + 16*idx + 4*qd, 4)}, v11 offset:{idx*4096 + qd*1024}")
    for idx in range(3):
        a(f"s_waitcnt lgkmcnt({8 - 4*idx})")
        for r in range(16):
            a(f"v_add_f32 v{ACC+r}, v{ACC+r}, v{HR + 16*idx + r}")
    for r in range(16):
        a(f"v_fma_f32 v{YA+r}, v{GV+1}, v{ACC+r}, v{YA+r}")
    for i in range(8):
        a(f"v_cvt_pk_bf16_f32 v{HR+i}, v{YA+2*i}, v{YA+2*i+1}")
    a("s_nop 1")
    for k in (0, 4):
        a(f"v_permlane32_swap_b32 v{HR+k}, v{HR+k+2}")
        a(f"v_permlane32_swap_b32 v{HR+k+1}, v{HR+k+3}")
    a(f"buffer_store_dwordx4 {vr(HR,4)}, v12, s[48:51], 0 offen")
    a(f"buffer_store_dwordx4 {vr(HR+4,4)}, v12, s[48:51], 0 offen offset:32")
    stamp(a, 4, 36)
    a.lab("P2_END")
    a("s_endpgm")

HEADER = open("cdna_kernels/" + NAME + ".s.ref").read().split("; Override launch")[0]

def desc(name, vgpr):
    return f""".amdhsa_kernel {name}
  .amdhsa_next_free_vgpr {vgpr}
  .amdhsa_next_free_sgpr 96
  .amdhsa_accum_offset {vgpr}
  .amdhsa_group_segment_fixed_size 0
  .amdhsa_kernarg_size 104
  .amdhsa_user_sgpr_count 2
  .amdhsa_user_sgpr_kernarg_segment_ptr 1
  .amdhsa_system_sgpr_workgroup_id_x 1
.end_amdhsa_kernel
"""

def main():
    out = HEADER
    out += f"; @launch kernel=p1_kernel grid=(256,1,1) block=(512,1,1) lds={4*SLOT}\n"
    out += f"; @launch kernel=p2_kernel grid=(256,1,1) block=(256,1,1) lds={LDS2}\n"
    out += '.amdgcn_target "amdgcn-amd-amdhsa--gfx950"\n.text\n'
    for nm, fn in (("p1_kernel", k1), ("p2_kernel", k2)):
        a = Asm()
        out += f".globl {nm}\n.p2align 8\n.type {nm},@function\n"
        fn(a)
        out += a.text()
    out += '.section .rodata,"a"\n.p2align 6\n' + desc("p1_kernel", 256) + ".p2align 6\n" + desc("p2_kernel", 256)
    path = [x for x in sys.argv[1:] if not x.startswith("--")][0]
    open(path, "w").write(out)

main()
```

```python
import sys
src = open(sys.argv[1]).read()
kern, wave, idx, mul, op = int(sys.argv[3]), int(sys.argv[4]), int(sys.argv[5]), int(sys.argv[6]), sys.argv[7]
BASE = 5000
lines = src.split("\n")
li = [i for i, l in enumerate(lines) if l.startswith("; @launch")]
lines[li[-1]+1:li[-1]+1] = ["; @launch kernel=e_kernel grid=(1,1,1) block=(64,1,1) lds=0"]
b = ["s_cmp_ge_u32 s2, 1", "s_cbranch_scc1 E_END", "s_load_dwordx2 s[28:29], s[0:1], 96", "v_lshlrev_b32 v1, 9, v0", "s_waitcnt lgkmcnt(0)",
     "s_mov_b32 s32, s28", "s_mov_b32 s33, s29", "s_mov_b32 s34, 0x2000000", "s_mov_b32 s35, 0x20000"]
for k in range(4):
    b += [f"s_mov_b32 s30, {0x1000000 + k*32768}", f"buffer_load_dword v{2+k}, v1, s[32:35], s30 offen"]
    b += [f"s_mov_b32 s30, {0x1000000 + kern*0x100000 + k*32768 + wave*64 + idx*4}", f"buffer_load_dword v{6+k}, v1, s[32:35], s30 offen"]
b += ["s_waitcnt vmcnt(0)", "v_min_u32 v2, v2, v3", "v_min_u32 v4, v4, v5", "v_min_u32 v2, v2, v4",
      f"v_{op}_u32 v6, v6, v7", f"v_{op}_u32 v8, v8, v9", f"v_{op}_u32 v6, v6, v8"]
for sh in (8, 4, 2, 1):
    b += ["s_nop 1", f"v_min_u32_dpp v2, v2, v2 row_ror:{sh} row_mask:0xf bank_mask:0xf", f"v_{op}_u32_dpp v6, v6, v6 row_ror:{sh} row_mask:0xf bank_mask:0xf"]
b += ["s_nop 1"]
for i in range(4):
    b += [f"v_readlane_b32 s{40+i}, v2, {16*i}", f"v_readlane_b32 s{44+i}, v6, {16*i}"]
b += ["s_nop 3", "s_min_u32 s40, s40, s41", "s_min_u32 s42, s42, s43", "s_min_u32 s40, s40, s42",
      f"s_{op}_u32 s44, s44, s45", f"s_{op}_u32 s46, s46, s47", f"s_{op}_u32 s44, s44, s46",
      "s_sub_u32 s44, s44, s40", "s_min_u32 s44, s44, 5000", f"s_mul_i32 s44, s44, {mul}", f"s_add_u32 s44, s44, {BASE}",
      "E_L:", "s_memrealtime s[36:37]", "s_waitcnt lgkmcnt(0)", "s_sub_u32 s36, s36, s40", "s_cmp_lt_u32 s36, s44", "s_cbranch_scc1 E_L", "E_END:", "s_endpgm"]
body = "".join(("    " + x if not x.endswith(":") else x) + "\n" for x in b)
src = "\n".join(lines)
src = src.replace('.section .rodata,"a"', '.globl e_kernel\n.p2align 8\n.type e_kernel,@function\ne_kernel:\n' + body + '.section .rodata,"a"')
src += """.p2align 6
.amdhsa_kernel e_kernel
  .amdhsa_next_free_vgpr 16
  .amdhsa_next_free_sgpr 56
  .amdhsa_accum_offset 16
  .amdhsa_group_segment_fixed_size 0
  .amdhsa_kernarg_size 104
  .amdhsa_user_sgpr_count 2
  .amdhsa_user_sgpr_kernarg_segment_ptr 1
  .amdhsa_system_sgpr_workgroup_id_x 1
.end_amdhsa_kernel
"""
open(sys.argv[2], "w").write(src)
```

```python
import sys, math, struct

NAME = "gated_mix__spectral_fnet__geglu_ffn__prompt"
STAMP = "--stamp" in sys.argv
def opt(name, default):
    for x in sys.argv:
        if x.startswith("--" + name + "="):
            return int(x.split("=")[1])
    return default
RA = opt("ra", 1); RB = opt("rb", 2); RM = opt("rm", 6)
ROT2 = opt("rot2", 3)
HSC = "sc1" if opt("hsc", 1) else ""
CSC = "sc1" if opt("csc", 0) else ""
PFW = opt("pfw", 1)
SPIN = opt("spin", 0)
CSC = "sc1"
HSC = "sc1"
FL_OFF = 0x908000

NKS = 86
EP = 264
C_OFF = 0x600000
G_OFF = 0x900000
WS_USED = 0x910000
ST_OFF = 0x1000000

def f32(x):
    return "0x%08x" % struct.unpack("<I", struct.pack("<f", x))[0]

class Asm:
    def __init__(self):
        self.l = []
    def __call__(self, s):
        self.l.append("    " + s)
    def lab(self, s):
        self.l.append(s + ":")
    def text(self):
        return "\n".join(self.l) + "\n"

def vr(b, n=1):
    return f"v{b}" if n == 1 else f"v[{b}:{b+n-1}]"

def srd(a, d, lo, hi, nbytes):
    a(f"s_mov_b32 s{d}, s{lo}")
    a(f"s_mov_b32 s{d+1}, s{hi}")
    a(f"s_mov_b32 s{d+2}, 0x{nbytes:x}")
    a(f"s_mov_b32 s{d+3}, 0x20000")

def stamp(a, idx, wsrd, vt=13):
    if not STAMP:
        return
    a("s_memrealtime s[62:63]")
    a("s_memtime s[76:77]")
    a("s_waitcnt lgkmcnt(0)")
    a(f"v_mov_b32 v{vt}, s62")
    a(f"v_mov_b32 v{vt+1}, 0")
    a(f"v_mov_b32 v{vt+2}, s76")
    a(f"buffer_store_dword v{vt}, v{vt+1}, s[{wsrd}:{wsrd+3}], s60 offen offset:{idx*4}")
    a(f"buffer_store_dword v{vt+2}, v{vt+1}, s[{wsrd}:{wsrd+3}], s60 offen offset:{idx*4+32}")

def weave(a, mf, fill, start=0, per=1):
    fi = 0
    for i, m in enumerate(mf):
        a(m) if not m.endswith(":") else a.lab(m[:-1])
        if i >= start:
            for _ in range(per):
                if fi < len(fill):
                    a(fill[fi]); fi += 1
    while fi < len(fill):
        a(fill[fi]); fi += 1

C1 = -2.0 * math.sqrt(2.0 / math.pi) * math.log2(math.e)
C2 = C1 * 0.044715

def gelu_pair(a, g0, u0, g1, u1, t, dst):
    G = [g0 + i for i in range(4)] + [g1 + i for i in range(4)]
    U = [u0 + i for i in range(4)] + [u1 + i for i in range(4)]
    for i in range(8): a(f"v_mul_f32 v{t+i}, v{G[i]}, v{G[i]}")
    for i in range(8): a(f"v_fma_f32 v{t+i}, v{t+i}, s72, v10")
    for i in range(8): a(f"v_mul_f32 v{t+i}, v{t+i}, v{G[i]}")
    for i in range(8):
        a(f"v_exp_f32 v{t+i}, v{t+i}")
        a(f"v_mul_f32 v{G[i]}, v{G[i]}, v{U[i]}")
    for i in range(8): a(f"v_add_f32 v{t+i}, 1.0, v{t+i}")
    for i in range(8): a(f"v_rcp_f32 v{t+i}, v{t+i}")
    for i in range(8): a(f"v_mul_f32 v{G[i]}, v{G[i]}, v{t+i}")
    for i in range(4): a(f"v_cvt_pk_bf16_f32 v{dst+i}, v{G[2*i]}, v{G[2*i+1]}")
    a("s_nop 1")
    a(f"v_permlane16_swap_b32 v{dst}, v{dst+2}")
    a(f"v_permlane16_swap_b32 v{dst+1}, v{dst+3}")

SLOT = 40960
XB = 16384
WB = 12288

def k1(a):
    a.lab(NAME + "_kernel")
    a("s_memrealtime s[90:91]")
    a("s_cmp_ge_u32 s2, 256")
    a("s_cbranch_scc1 P1_END")
    a("s_load_dwordx16 s[4:19], s[0:1], 0")
    a("s_load_dwordx8 s[20:27], s[0:1], 64")
    a("s_load_dwordx2 s[28:29], s[0:1], 96")
    if STAMP:
        a("s_memrealtime s[64:65]")
    a("v_lshrrev_b32 v1, 6, v0")
    a("v_and_b32 v0, 63, v0")
    a("v_readfirstlane_b32 s3, v1")
    a("s_lshr_b32 s31, s2, 3")
    a("s_and_b32 s56, s2, 1")
    a("s_lshl_b32 s56, s56, 3")
    a("s_and_b32 s74, s31, 7")
    a("s_add_u32 s56, s56, s74")
    a("s_and_b32 s57, s2, 6")
    a("s_lshl_b32 s57, s57, 1")
    a("s_lshr_b32 s75, s31, 3")
    a("s_add_u32 s57, s57, s75")
    a(f"s_mul_i32 s74, s74, {RA}")
    a(f"s_mul_i32 s75, s75, {RB}")
    a("s_add_u32 s74, s74, s75")
    a(f"s_and_b32 s74, s74, {RM}")
    a("s_and_b32 s30, s57, 7")
    a("s_cmp_eq_u32 s30, 3")
    a("s_cselect_b32 s58, 1, 0")
    a("s_lshr_b32 s59, s57, 3")
    a("s_cmp_gt_u32 s30, 3")
    a("s_cselect_b32 s30, 1, 0")
    a("s_add_u32 s30, s30, s59")
    a("s_sub_u32 s78, s57, s30")
    if STAMP:
        a("s_lshl_b32 s60, s2, 3")
        a("s_add_u32 s60, s60, s3")
        a("s_lshl_b32 s60, s60, 6")
        a(f"s_add_u32 s60, s60, 0x{ST_OFF:x}")
    a("s_cmp_ge_u32 s3, 4")
    a("s_cbranch_scc1 P1_CONS")
    a("v_lshrrev_b32 v3, 3, v0")
    a("v_and_b32 v8, 7, v0")
    a("v_lshrrev_b32 v9, 4, v0")
    a("s_lshl_b32 s30, s56, 2")
    a("s_add_u32 s30, s30, s3")
    a("s_lshl_b32 s79, s30, 10")
    a("s_lshl_b32 s66, s3, 12")
    a("s_lshl_b32 s70, s74, 7")
    a("s_cmp_eq_u32 s58, 1")
    a("s_cbranch_scc1 P1_LSP")

    def tail_loader(tag):
        srd(a, 48, 22, 23, 1024)
        srd(a, 52, 20, 21, 1376 * 1024)
        a("s_lshl_b32 s30, s57, 3")
        a("s_lshl_b32 s31, s3, 1")
        a("s_add_u32 s30, s30, s31")
        a("s_lshr_b32 s31, s30, 5")
        a("s_and_b32 s30, s30, 31")
        a("s_lshl_b32 s30, s30, 6")
        a("s_add_u32 s30, s30, s31")
        a("s_lshl_b32 s31, s56, 2")
        a("s_add_u32 s61, s30, s31")
        a("s_lshl_b32 s30, s61, 10")
        a("s_add_u32 s31, s30, 0x10000")
        a("v_lshlrev_b32 v2, 4, v0")
        a("buffer_load_dwordx4 v[64:67], v2, s[48:51], 0 offen")
        a("buffer_load_dwordx4 v[68:71], v2, s[32:35], s30 offen")
        a("buffer_load_dwordx4 v[72:75], v2, s[32:35], s31 offen")
        npf = 0
        if PFW:
            a("s_lshr_b32 s30, s2, 3")
            a("s_lshl_b32 s30, s30, 2")
            a("s_add_u32 s30, s30, s3")
            a(f"s_mul_i32 s30, s30, {86*128}")
            a("v_lshlrev_b32 v2, 7, v0")
            a("buffer_load_dword v76, v2, s[52:55], s30 offen")
            a("s_add_u32 s30, s30, 8192")
            a("s_mov_b64 exec, 0x3fffff")
            a("buffer_load_dword v77, v2, s[52:55], s30 offen")
            a("s_mov_b64 exec, -1")
            npf = 2
        return npf

    def gcalc(npf):
        a(f"s_waitcnt vmcnt({npf})")
        for rr in range(2):
            xb = 68 + 4 * rr
            acc = 20 + rr
            for d in range(4):
                a(f"v_lshlrev_b32 v16, 16, v{xb+d}")
                a(f"v_and_b32 v17, 0xffff0000, v{xb+d}")
                a(f"v_lshlrev_b32 v18, 16, v{64+d}")
                a(f"v_and_b32 v19, 0xffff0000, v{64+d}")
                a("v_mul_f32 v16, v16, v18")
                a("v_mul_f32 v17, v17, v19")
                a("v_cvt_pk_bf16_f32 v16, v16, v17")
                a("v_and_b32 v17, 0xffff0000, v16")
                a("v_lshlrev_b32 v16, 16, v16")
                if d == 0:
                    a(f"v_add_f32 v{acc}, v16, v17")
                else:
                    a(f"v_add_f32 v{acc}, v{acc}, v16")
                    a(f"v_add_f32 v{acc}, v{acc}, v17")
        for sh in (8, 4, 2, 1):
            a("s_nop 1")
            a(f"v_add_f32_dpp v20, v20, v20 row_ror:{sh} row_mask:0xf bank_mask:0xf")
            a(f"v_add_f32_dpp v21, v21, v21 row_ror:{sh} row_mask:0xf bank_mask:0xf")
        a("s_nop 1")
        a("v_add_f32_dpp v20, v20, v20 row_bcast:15 row_mask:0xa bank_mask:0xf")
        a("v_add_f32_dpp v21, v21, v21 row_bcast:15 row_mask:0xa bank_mask:0xf")
        a("s_nop 1")
        a("v_add_f32_dpp v20, v20, v20 row_bcast:31 row_mask:0xc bank_mask:0xf")
        a("v_add_f32_dpp v21, v21, v21 row_bcast:31 row_mask:0xc bank_mask:0xf")
        a("s_nop 1")
        a("v_cvt_pk_bf16_f32 v20, v20, v21")
        a("v_and_b32 v21, 0xffff0000, v20")
        a("v_lshlrev_b32 v20, 16, v20")
        a(f"v_mul_f32 v20, {f32(-math.log2(math.e))}, v20")
        a(f"v_mul_f32 v21, {f32(-math.log2(math.e))}, v21")
        a("v_exp_f32 v20, v20")
        a("v_exp_f32 v21, v21")
        a("s_nop 0")
        a("v_add_f32 v20, 1.0, v20")
        a("v_add_f32 v21, 1.0, v21")
        a("v_rcp_f32 v20, v20")
        a("v_rcp_f32 v21, v21")
        a("s_nop 0")
        a("v_cvt_pk_bf16_f32 v20, v20, v21")
        a("v_and_b32 v21, 0xffff0000, v20")
        a("v_lshlrev_b32 v20, 16, v20")
        a("s_lshl_b32 s30, s61, 2")
        a(f"s_add_u32 s30, s30, 0x{G_OFF:x}")
        a("v_mov_b32 v22, 0")
        a("v_cmp_eq_u32 vcc, 63, v0")
        a("s_and_saveexec_b64 s[72:73], vcc")
        a("buffer_store_dword v20, v22, s[44:47], s30 offen sc1")
        a("buffer_store_dword v21, v22, s[44:47], s30 offen offset:256 sc1")
        a("s_mov_b64 exec, s[72:73]")

    def stamp0():
        if STAMP:
            a("v_mov_b32 v13, s64")
            a("v_mov_b32 v14, 0")
            a("buffer_store_dword v13, v14, s[44:47], s60 offen offset:0")
            stamp(a, 1, 44)

    for j in range(4):
        a(f"v_add_u32 v10, {4*j}, v9")
        a("v_and_b32 v10, 7, v10")
        a("v_xor_b32 v10, v10, v8")
        a("v_lshlrev_b32 v10, 4, v10")
        a(f"v_add_u32 v11, {8*j}, v3")
        a("v_lshlrev_b32 v11, 16, v11")
        a(f"v_add3_u32 v{4+j}, v10, v11, s79")
        if j:
            a(f"v_subrev_u32 v{4+j}, {j*1024}, v{4+j}")
    a(f"s_mul_i32 s30, s3, {16*2752}")
    a("s_mul_i32 s31, s78, 192")
    a("s_add_u32 s30, s30, s31")
    for jj in range(3):
        a(f"v_add_u32 v10, {64*jj}, v0")
        a("v_mul_u32_u24 v11, 171, v10")
        a("v_lshrrev_b32 v11, 11, v11")
        a("v_mul_u32_u24 v12, 12, v11")
        a("v_sub_u32 v10, v10, v12")
        a("v_lshrrev_b32 v12, 2, v11")
        a("v_and_b32 v12, 2, v12")
        a("v_xor_b32 v10, v10, v12")
        a("v_lshlrev_b32 v10, 4, v10")
        a("v_mul_u32_u24 v11, 2752, v11")
        a(f"v_add3_u32 v{24+jj}, v10, v11, s30")
        if jj:
            a(f"v_subrev_u32 v{24+jj}, {jj*1024}, v{24+jj}")
    a("s_mul_i32 s67, s3, 3072")
    a(f"s_add_u32 s67, s67, {XB}")
    a(f"s_add_u32 s68, s67, {WB}")
    a(f"s_mul_i32 s71, s74, {64*2752}")
    a("s_waitcnt lgkmcnt(0)")
    srd(a, 32, 4, 5, 2048 * 1024)
    srd(a, 36, 16, 17, 512 * 2752)
    srd(a, 40, 18, 19, 512 * 2752)
    srd(a, 44, 28, 29, 0x2000000 if STAMP else WS_USED)
    stamp0()
    a("s_or_b32 s30, s2, s3")
    a("s_cmp_lg_u32 s30, 0")
    a("s_cbranch_scc1 NONONCE")
    srd(a, 48, 26, 27, 256)
    a("s_or_b32 s30, s90, 1")
    a("v_mov_b32 v16, s30")
    a("v_mov_b32 v17, s91")
    a("v_mov_b32 v18, 0")
    a("s_mov_b64 exec, 1")
    a("buffer_store_dwordx2 v[16:17], v18, s[48:51], 0 offen sc0 sc1")
    a("s_mov_b64 exec, -1")
    a.lab("NONONCE")

    def issueF(stage):
        sl = (stage % 4) * SLOT
        a(f"s_add_u32 m0, s67, {sl}")
        a("s_add_u32 s74, s74, 1")
        for jj in range(3):
            a(f"buffer_load_dwordx4 v{24+jj}, s[36:39], s71 offen offset:{jj*1024} lds")
        a(f"s_add_u32 m0, s66, {sl}")
        a("s_and_b32 s74, s74, 7")
        for j in range(4):
            a(f"buffer_load_dwordx4 v{4+j}, s[32:35], s70 offen offset:{j*1024} lds")
        a(f"s_add_u32 m0, s68, {sl}")
        a("s_lshl_b32 s70, s74, 7")
        for jj in range(3):
            a(f"buffer_load_dwordx4 v{24+jj}, s[40:43], s71 offen offset:{jj*1024} lds")
        a(f"s_mul_i32 s71, s74, {64*2752}")

    issueF(0)
    for b in range(8):
        if b < 7:
            issueF(b + 1)
            a("s_waitcnt vmcnt(10)")
        else:
            npf = tail_loader("F")
            a(f"s_waitcnt vmcnt({3 + npf})")
        a("s_barrier")
    stamp(a, 2, 44) if False else None
    gcalc(npf)
    stamp(a, 2, 44)
    a("s_branch SYNC")

    a.lab("P1_LSP")
    a("v_lshlrev_b32 v10, 4, v8")
    a("v_lshlrev_b32 v11, 16, v3")
    a("v_add3_u32 v4, v10, v11, s79")
    a("v_lshrrev_b32 v10, 1, v8")
    a("v_xor_b32 v10, v10, v9")
    a("v_lshlrev_b32 v10, 4, v10")
    a("v_and_b32 v11, 1, v8")
    a("v_lshl_add_u32 v10, v11, 3, v10")
    a("v_lshl_add_u32 v10, v3, 7, v10")
    a("v_add_u32 v5, s66, v10")
    a("v_xor_b32 v6, 64, v5")
    a("s_and_b32 s30, s3, 1")
    a("s_lshl_b32 s30, s30, 5")
    a("s_lshr_b32 s31, s3, 1")
    a("s_add_u32 s30, s30, s31")
    a("s_lshl_b32 s30, s30, 10")
    a("s_lshl_b32 s31, s59, 7")
    a("s_add_u32 s30, s30, s31")
    a("v_and_b32 v10, 2, v3")
    a("v_xor_b32 v10, v10, v8")
    a("v_lshlrev_b32 v10, 4, v10")
    a("v_lshlrev_b32 v11, 11, v3")
    a("v_add3_u32 v24, v10, v11, s30")
    a("v_xor_b32 v25, 64, v24")
    a(f"v_add_u32 v25, {16*1024 - 1024}, v25")
    a("v_lshrrev_b32 v10, 1, v0")
    a("v_lshrrev_b32 v11, 2, v0")
    a("v_and_b32 v11, 4, v11")
    a("v_xor_b32 v10, v10, v11")
    a(f"v_mul_u32_u24 v10, {2*2752}, v10")
    a("v_and_b32 v11, 1, v0")
    a("v_lshlrev_b32 v11, 4, v11")
    a("s_and_b32 s30, s3, 1")
    a("s_mul_i32 s30, s30, 2752")
    a("s_lshl_b32 s31, s59, 5")
    a("s_add_u32 s30, s30, s31")
    a(f"s_add_u32 s30, s30, {1344*2}")
    a("v_add3_u32 v26, v10, v11, s30")
    a("v_and_b32 v10, 2, v0")
    a("v_lshrrev_b32 v11, 1, v0")
    a("v_and_b32 v11, 4, v11")
    a("v_or_b32 v10, v10, v11")
    a("v_lshlrev_b32 v10, 4, v10")
    a("v_lshl_add_u32 v10, v0, 7, v10")
    a("s_lshl_b32 s67, s3, 11")
    a(f"s_add_u32 s67, s67, {XB}")
    a("s_add_u32 s68, s67, 8192")
    a("v_add_u32 v27, s68, v10")
    a("s_lshr_b32 s30, s3, 1")
    a("v_xor_b32 v28, s30, v0")
    a("v_and_b32 v28, 1, v28")
    a("v_lshlrev_b32 v28, 15, v28")
    a("v_or_b32 v28, 0x3f80, v28")
    a("s_lshl_b32 s69, s3, 10")
    a(f"s_add_u32 s69, s69, {XB + 16384}")
    a("s_lshl_b32 s71, s74, 16")
    a(f"s_mul_i32 s75, s74, {64*2752}")
    a("s_mov_b32 s80, 0x05040100")
    a("s_mov_b32 s81, 0x07060302")
    a("s_waitcnt lgkmcnt(0)")
    srd(a, 32, 4, 5, 2048 * 1024)
    srd(a, 36, 10, 11, 512 * 1024)
    srd(a, 40, 12, 13, 512 * 1024)
    srd(a, 44, 28, 29, 0x2000000 if STAMP else WS_USED)
    a("s_cmp_ge_u32 s3, 2")
    a("s_cselect_b32 s84, s18, s16")
    a("s_cselect_b32 s85, s19, s17")
    a(f"s_mov_b32 s86, 0x{512*2752:x}")
    a("s_mov_b32 s87, 0x20000")
    stamp0()

    def issueS(stage):
        sl = (stage % 4) * SLOT
        xr = 32 + 16 * (stage & 1)
        for j in range(4):
            if j:
                a(f"s_add_u32 s30, s70, {j * 8 * 65536}")
            a(f"buffer_load_dwordx4 {vr(xr+4*j,4)}, v4, s[32:35], {'s30' if j else 's70'} offen")
        a(f"s_add_u32 m0, s67, {sl}")
        a("s_add_u32 s74, s74, 1")
        for jj in range(2):
            a(f"buffer_load_dwordx4 v{24+jj}, s[36:39], s71 offen offset:{jj*1024} lds")
        a(f"s_add_u32 m0, s68, {sl}")
        a("s_and_b32 s74, s74, 7")
        for jj in range(2):
            a(f"buffer_load_dwordx4 v{24+jj}, s[40:43], s71 offen offset:{jj*1024} lds")
        a(f"s_add_u32 m0, s69, {sl}")
        a("s_lshl_b32 s70, s74, 7")
        a("buffer_load_dwordx4 v26, s[84:87], s75 offen lds")
        a("s_lshl_b32 s71, s74, 16")
        a(f"s_mul_i32 s75, s74, {64*2752}")

    def commitS(stage):
        sl = (stage % 4) * SLOT
        xr = 32 + 16 * (stage & 1)
        a(f"v_add_u32 v7, {sl}, v5")
        a(f"v_add_u32 v2, {sl}, v6")
        for j in range(4):
            r = xr + 4 * j
            t = 16 + 4 * (j & 1)
            a(f"v_perm_b32 v{t}, v{r+1}, v{r}, s80")
            a(f"v_perm_b32 v{t+1}, v{r+3}, v{r+2}, s80")
            a(f"v_perm_b32 v{t+2}, v{r+1}, v{r}, s81")
            a(f"v_perm_b32 v{t+3}, v{r+3}, v{r+2}, s81")
            e, o = (7, 2) if (j & 1) == 0 else (2, 7)
            a(f"ds_write_b64 v{e}, {vr(t,2)} offset:{j*1024}")
            a(f"ds_write_b64 v{o}, {vr(t+2,2)} offset:{j*1024}")
        a("s_cmp_lg_u32 s59, 0")
        a(f"s_cbranch_scc1 P1_NP{stage}")
        a(f"v_add_u32 v7, {sl}, v27")
        a("s_mov_b64 exec, 0xffff")
        a("ds_write_b16 v7, v28")
        a("s_mov_b64 exec, -1")
        a.lab(f"P1_NP{stage}")
        a("s_waitcnt lgkmcnt(0)")

    issueS(0)
    for b in range(8):
        if b < 7:
            issueS(b + 1)
            a("s_waitcnt vmcnt(9)")
        else:
            npf = tail_loader("S")
            a(f"s_waitcnt vmcnt({3 + npf})")
        commitS(b)
        a("s_barrier")
    gcalc(npf)
    stamp(a, 2, 44)
    a("s_branch SYNC")

    a.lab("P1_CONS")
    a("s_sub_u32 s3, s3, 4")
    a("s_lshr_b32 s66, s3, 1")
    a("s_and_b32 s67, s3, 1")
    a("v_and_b32 v1, 15, v0")
    a("v_lshrrev_b32 v2, 4, v0")
    a("v_lshrrev_b32 v3, 1, v1")
    a("v_xor_b32 v3, v3, v2")
    a("v_lshlrev_b32 v3, 4, v3")
    a("s_lshl_b32 s30, s66, 13")
    a("v_lshl_add_u32 v4, v1, 7, v3")
    a("v_add_u32 v4, s30, v4")
    a("v_xor_b32 v5, 64, v4")
    a("v_lshrrev_b32 v3, 2, v1")
    a("v_lshl_add_u32 v3, v2, 3, v3")
    a("v_and_b32 v11, 3, v0")
    a(f"s_mov_b32 s72, {f32(C2)}")
    a(f"v_mov_b32 v10, {f32(C1)}")
    a("s_mov_b32 s68, 0")
    FS = [16, 56]
    ACC = 96
    def xf(s, rt): return FS[s] + 4 * rt
    def wf(s, i): return FS[s] + 16 + 4 * i

    def advance(regs):
        f = ["s_add_u32 s68, s68, 1",
             "s_and_b32 s30, s68, 3",
             "s_cmp_eq_u32 s30, 0",
             f"s_cselect_b32 s30, s82, s83"]
        f += [f"v_add_u32 v{v}, s30, v{v}" for v in regs]
        f += ["s_cmp_eq_u32 s68, 8"]
        return f

    def mainloop(tag, reads, mfmas, regs):
        a(f"s_mov_b32 s82, {(-3*SLOT) & 0xffffffff}")
        a(f"s_mov_b32 s83, {SLOT}")
        a("s_waitcnt lgkmcnt(0)")
        srd(a, 44, 28, 29, 0x2000000 if STAMP else WS_USED)
        stamp0()
        a("s_barrier")
        stamp(a, 2, 44)
        for r in reads(0, 0):
            a(r)
        a.lab(f"P1_LOOP{tag}")
        a("s_waitcnt lgkmcnt(0)")
        weave(a, mfmas(0, 0, tag + "a"), reads(1, 1) + advance(regs))
        a("s_waitcnt lgkmcnt(0)")
        a(f"s_cbranch_scc1 P1_LAST{tag}")
        weave(a, mfmas(1, 1, tag + "b"), ["s_barrier"] + reads(0, 0))
        a(f"s_branch P1_LOOP{tag}")
        a.lab(f"P1_LAST{tag}")
        weave(a, mfmas(1, 1, tag + "c"), [])
        stamp(a, 3, 44)

    a("s_cmp_eq_u32 s58, 1")
    a("s_cbranch_scc1 P1_CSP")
    a("v_mul_u32_u24 v3, 192, v3")
    a("v_lshl_add_u32 v3, v11, 3, v3")
    a("s_mul_i32 s30, s67, 96")
    a(f"s_add_u32 s30, s30, {XB}")
    a("v_add_u32 v3, s30, v3")
    a("v_and_b32 v8, 1, v2")
    a("v_lshlrev_b32 v8, 5, v8")
    a("v_add_u32 v6, v3, v8")
    a("v_sub_u32 v7, v3, v8")
    a("s_cmp_eq_u32 s67, 0")
    a("s_cbranch_scc1 P1_NOSWAP")
    a("v_swap_b32 v6, v7")
    a.lab("P1_NOSWAP")
    def accF(rt, ul, mat): return ACC + 4 * ((rt * 3 + ul) * 2 + mat)
    def readsF(s, st):
        r = []
        order = [("w", 0, 0), ("x", 0, 0), ("w", 1, 0), ("x", 1, 0), ("x", 2, 0), ("x", 3, 0),
                 ("w", 0, 1), ("w", 1, 1), ("w", 0, 2), ("w", 1, 2)]
        for kind, p, ul in order:
            if kind == "x":
                r.append(f"ds_read_b128 {vr(xf(s, p), 4)}, v{4+st} offset:{p*2048}")
            else:
                base = 7 if ul == 1 else 6
                for hf in range(2):
                    off = p * WB + st * 6144 + hf * 768 + ul * 32
                    r.append(f"ds_read_b64_tr_b16 {vr(wf(s, 3*p+ul) + 2*hf, 2)}, v{base} offset:{off}")
        return r
    def mfmasF(s, st, tag):
        m = []
        for ul in range(3):
            for rt in range(4):
                for mat in range(2):
                    d = vr(accF(rt, ul, mat), 4)
                    m.append(f"v_mfma_f32_16x16x32_bf16 {d}, {vr(wf(s, 3*mat+ul), 4)}, {vr(xf(s, rt), 4)}, {d}")
        return m
    for i in range(96):
        a(f"v_mov_b32 v{ACC+i}, 0")
    a("v_lshlrev_b32 v3, 4, v0")
    a("s_mul_i32 s69, s78, 6")
    a("s_mul_i32 s30, s67, 3")
    a("s_add_u32 s69, s69, s30")
    a("s_lshl_b32 s30, s56, 2")
    a("s_lshl_b32 s31, s66, 1")
    a("s_add_u32 s30, s30, s31")
    a(f"s_mul_i32 s30, s30, {NKS}")
    a("s_add_u32 s30, s30, s69")
    a("s_lshl_b32 s70, s30, 10")
    a(f"s_add_u32 s71, s70, {NKS*1024}")
    mainloop("F", readsF, mfmasF, (4, 5, 6, 7))
    k = 0
    for ul in range(3):
        for uu in range(2):
            dst = 32 + 4 * k
            gelu_pair(a, accF(2*uu, ul, 0), accF(2*uu, ul, 1), accF(2*uu+1, ul, 0), accF(2*uu+1, ul, 1), 16 + 8 * (k & 1), dst)
            a(f"buffer_store_dwordx4 {vr(dst,4)}, v3, s[44:47], s{70 + uu} offen offset:{ul*1024} {HSC}")
            k += 1
    stamp(a, 4, 44)
    a("s_waitcnt vmcnt(0)")
    a("s_barrier")
    a("s_endpgm")

    a.lab("P1_CSP")
    a("v_lshrrev_b32 v8, 3, v1")
    a("v_and_b32 v9, 1, v2")
    a("v_lshl_or_b32 v8, v9, 1, v8")
    a("s_lshl_b32 s30, s67, 1")
    a("v_xor_b32 v8, s30, v8")
    a("v_lshlrev_b32 v8, 5, v8")
    a("v_lshl_add_u32 v8, v3, 7, v8")
    a("v_lshl_add_u32 v8, v11, 3, v8")
    a(f"v_add_u32 v6, {XB}, v8")
    a("v_xor_b32 v7, 32, v6")
    a("v_lshlrev_b32 v8, 5, v3")
    a("v_lshl_add_u32 v8, v9, 7, v8")
    a("v_lshl_add_u32 v8, v11, 3, v8")
    a(f"v_add_u32 v8, {XB + 16384}, v8")
    a("v_xor_b32 v9, 0x80, v8")
    a("s_cmp_eq_u32 s67, 1")
    a("s_cselect_b64 vcc, -1, 0")
    def accD(st, rt, ul, mat): return ACC + 4 * (((st * 4 + rt) * 2 + ul) * 2 + mat)
    def accS(rr, mat): return ACC + 128 + 4 * (rr * 2 + mat)
    F1 = 240
    def readsS(s, st):
        r = []
        def dread(mat, ul):
            for hf in range(2):
                r.append(f"ds_read_b64_tr_b16 {vr(wf(s, 2*mat+ul) + 2*hf, 2)}, v{6+ul} offset:{mat*8192 + st*4096 + hf*512}")
        def xread(p):
            r.append(f"ds_read_b128 {vr(xf(s, p), 4)}, v{4+st} offset:{p*2048}")
        dread(0, 0); xread(0); dread(1, 0); xread(1); xread(2); xread(3); dread(0, 1); dread(1, 1)
        for mat in range(2):
            for hf in range(2):
                r.append(f"ds_read_b64_tr_b16 {vr(wf(s, 4+mat) + 2*hf, 2)}, v{8+hf} offset:{mat*2048 + st*1024}")
        return r
    def mfmasS(s, st, tag):
        m = []
        for ul in range(2):
            for rt in range(4):
                for mat in range(2):
                    d = vr(accD(st, rt, ul, mat), 4)
                    m.append(f"v_mfma_f32_16x16x32_bf16 {d}, {vr(xf(s, rt), 4)}, {vr(wf(s, 2*mat+ul), 4)}, {d}")
        return m
    def ffnS(s, tag):
        a(f"s_cbranch_vccnz P1_X1{tag}")
        for ch in range(2):
            if ch == 1:
                a(f"s_branch P1_X2{tag}")
                a.lab(f"P1_X1{tag}")
            for rr in range(2):
                for mat in range(2):
                    d = vr(accS(rr, mat), 4)
                    a(f"v_mfma_f32_16x16x32_bf16 {d}, {vr(wf(s, 4+mat), 4)}, {vr(xf(s, 2*ch+rr), 4)}, {d}")
        a.lab(f"P1_X2{tag}")
    for i in range(144):
        a(f"v_mov_b32 v{ACC+i}, 0")
    a("v_cvt_f32_u32 v16, v1")
    a(f"v_mul_f32 v16, {f32(1.0/32)}, v16")
    a("v_add_f32 v17, 0.5, v16")
    a("v_lshlrev_b32 v18, 2, v2")
    a("v_cvt_f32_u32 v18, v18")
    for mt in range(2):
        for i in range(8):
            s1 = i if i < 4 else 12 + i
            a(f"v_add_f32 v19, {f32(float(s1))}, v18")
            a(f"v_mul_f32 v19, v19, v{16+mt}")
            a(f"v_cos_f32 v{20+i}, v19")
            a(f"v_sin_f32 v{28+i}, v19")
        a("s_nop 0")
        for i in range(4):
            a(f"v_cvt_pk_bf16_f32 v{F1+4*mt+i}, v{20+2*i}, v{21+2*i}")
            a(f"v_cvt_pk_bf16_f32 v{F1+8+4*mt+i}, v{28+2*i}, v{29+2*i}")
    a(f"s_mov_b32 s82, {(-3*SLOT) & 0xffffffff}")
    a(f"s_mov_b32 s83, {SLOT}")
    a("s_waitcnt lgkmcnt(0)")
    srd(a, 44, 28, 29, 0x2000000 if STAMP else WS_USED)
    stamp0()
    a("s_barrier")
    stamp(a, 2, 44)
    for r in readsS(0, 0):
        a(r)
    a.lab("P1_LOOPS")
    a("s_waitcnt lgkmcnt(0)")
    weave(a, mfmasS(0, 0, ""), readsS(1, 1))
    for f in advance((4, 5, 6, 7, 8, 9)):
        a(f)
    ffnS(0, "a")
    a("s_waitcnt lgkmcnt(0)")
    a("s_cbranch_scc1 P1_LASTS")
    a("s_barrier")
    weave(a, mfmasS(1, 1, ""), readsS(0, 0))
    ffnS(1, "b")
    a("s_branch P1_LOOPS")
    a.lab("P1_LASTS")
    ffnS(1, "c")
    weave(a, mfmasS(1, 1, ""), [])
    stamp(a, 3, 44)
    a("v_lshlrev_b32 v3, 4, v0")
    a("s_lshl_b32 s30, s56, 2")
    a("s_add_u32 s30, s30, s3")
    a(f"s_mul_i32 s30, s30, {NKS}")
    a("s_add_u32 s30, s30, s59")
    a("s_add_u32 s30, s30, 84")
    a("s_lshl_b32 s70, s30, 10")
    gelu_pair(a, accS(0, 0), accS(0, 1), accS(1, 0), accS(1, 1), 16, 24)
    a(f"buffer_store_dwordx4 v[24:27], v3, s[44:47], s70 offen {HSC}")
    NWR = ACC + 128
    for i in range(8):
        a(f"v_xor_b32 v{NWR+i}, 0x80008000, v{F1+i}")
    a(f"s_mov_b32 s30, {4*16*EP*16}")
    a("v_mul_lo_u32 v3, v2, s30")
    a("s_lshl_b32 s30, s59, 6")
    a("s_lshl_b32 s31, s67, 5")
    a("s_add_u32 s30, s30, s31")
    a("v_add_u32 v4, s30, v1")
    a("v_sub_u32 v5, 240, v4")
    a("v_lshl_add_u32 v4, v4, 4, v3")
    a("v_lshl_add_u32 v5, v5, 4, v3")
    a(f"v_add_u32 v6, {128*16}, v3")
    a(f"s_mul_i32 s31, s56, {EP*16}")
    a("s_lshl_b32 s69, s66, 3")
    a("s_add_u32 s69, s69, s31")
    a(f"s_add_u32 s69, s69, 0x{C_OFF:x}")
    a("s_cmp_eq_u32 s30, 0")
    a("s_cselect_b32 s71, 1, 0")
    a("s_cselect_b32 s80, 0x00010001, 0")
    a("s_mov_b32 s81, s80")
    BF = 28
    OUT = 44
    PK = 76
    def o(uu, comp, mt): return OUT + 4 * ((uu * 2 + comp) * 2 + mt)
    def stage1(addr, imm):
        a("s_nop 1")
        for uu in range(2):
            for mt in range(2):
                a(f"v_mfma_f32_16x16x32_bf16 {vr(o(uu,0,mt),4)}, {vr(F1+4*mt,4)}, {vr(BF+8*uu,4)}, 0")
                a(f"v_mfma_f32_16x16x32_bf16 {vr(o(uu,1,mt),4)}, {vr(F1+8+4*mt,4)}, {vr(BF+8*uu,4)}, 0")
        for uu in range(2):
            for mt in range(2):
                a(f"v_mfma_f32_16x16x32_bf16 {vr(o(uu,0,mt),4)}, {vr(F1+8+4*mt,4)}, {vr(BF+4+8*uu,4)}, {vr(o(uu,0,mt),4)}")
                a(f"v_mfma_f32_16x16x32_bf16 {vr(o(uu,1,mt),4)}, {vr(NWR+4*mt,4)}, {vr(BF+4+8*uu,4)}, {vr(o(uu,1,mt),4)}")
        a("s_nop 7")
        for mt in range(2):
            for r in range(4):
                d = PK + 2 * (mt * 4 + r)
                a(f"v_cvt_pk_bf16_f32 v{d}, v{o(0,0,mt)+r}, v{o(1,0,mt)+r}")
                a(f"v_cvt_pk_bf16_f32 v{d+1}, v{o(0,1,mt)+r}, v{o(1,1,mt)+r}")
                a(f"s_add_u32 s30, s69, {(16*mt + r)*16*EP*16}")
                a(f"buffer_store_dwordx2 {vr(d,2)}, v{addr}, s[44:47], s30 offen offset:{imm} {CSC}")
    for ul in range(2):
        for sg in range(2):
            for uu in range(2):
                for mat in range(2):
                    b = BF + 8 * uu + 4 * mat
                    for hh in range(2):
                        E = accD(0, 2 * uu + hh, ul, mat)
                        T = accD(1, 2 * uu + hh, ul, mat)
                        for r in range(4):
                            if sg == 0:
                                a(f"v_add_f32 v{16+r}, v{E+r}, v{T+r}")
                            elif mat == 0:
                                a(f"v_sub_f32 v{16+r}, v{E+r}, v{T+r}")
                            else:
                                a(f"v_sub_f32 v{16+r}, v{T+r}, v{E+r}")
                        a(f"v_cvt_pk_bf16_f32 v{b+2*hh}, v16, v17")
                        a(f"v_cvt_pk_bf16_f32 v{b+2*hh+1}, v18, v19")
                    if ul == 0 and mat == 1:
                        for i in range(4):
                            a(f"v_cndmask_b32 v{b+i}, v{b+i}, 0, s[80:81]")
            if sg == 0:
                stage1(4, ul * 256)
            else:
                stage1(5, (1 - ul) * 256)
    a("s_cmp_eq_u32 s71, 0")
    a("s_cbranch_scc1 P1_SEND")
    for uu in range(2):
        for st in range(2):
            b = BF + 8 * uu + 4 * st
            for hh in range(2):
                E = accD(st, 2 * uu + hh, 0, 1)
                a(f"v_cvt_pk_bf16_f32 v{b+2*hh}, v{E}, v{E+1}")
                a(f"v_cvt_pk_bf16_f32 v{b+2*hh+1}, v{E+2}, v{E+3}")
    a("v_mov_b32 v7, 0x10000000")
    a("v_cndmask_b32 v6, v7, v6, s[80:81]")
    stage1(6, 0)
    a.lab("P1_SEND")
    stamp(a, 4, 44)
    a("s_waitcnt vmcnt(0)")
    a("s_barrier")
    a.lab("P1_END")
    a("s_endpgm")

D2 = opt("d2", 8)
NST = 22
RING = D2 * 2048
XCH = 4 * RING
LDS2 = XCH + 12 * 4096

def k2(a):
    a.lab("SYNC")
    a("s_lshl_b32 s88, s56, 4")
    a("s_add_u32 s88, s88, s57")
    a("s_mov_b32 s8, s20"); a("s_mov_b32 s9, s21"); a("s_mov_b32 s10, s24"); a("s_mov_b32 s11, s25"); a("s_mov_b32 s12, s28"); a("s_mov_b32 s13, s29")
    if STAMP:
        a("s_memrealtime s[64:65]")
    a("s_and_b32 s30, s2, 7")
    a("s_lshr_b32 s31, s2, 3")
    a("s_lshr_b32 s57, s31, 2")
    a("s_and_b32 s31, s31, 3")
    a("s_sub_u32 s61, 0, s30")
    a("s_bitcmp1_b32 s31, 0")
    a("s_cselect_b32 s56, s61, s30")
    a("s_cselect_b32 s61, 8, 0")
    a("s_cmp_eq_u32 s30, 0")
    a("s_cselect_b32 s56, s61, s56")
    a("s_lshr_b32 s31, s31, 1")
    a("s_lshl_b32 s31, s31, 4")
    a("s_add_u32 s56, s56, s31")
    a("s_and_b32 s56, s56, 31")
    a("s_and_b32 s58, s3, 1")
    a("s_lshr_b32 s59, s3, 1")
    a(f"s_mul_i32 s74, s57, {ROT2}")
    if STAMP:
        a("s_lshl_b32 s60, s2, 3")
        a("s_add_u32 s60, s60, s3")
        a("s_lshl_b32 s60, s60, 6")
        a(f"s_add_u32 s60, s60, 0x{ST_OFF + 0x100000:x}")
    a("s_lshl_b32 s30, s59, 5")
    a("s_add_u32 s30, s30, s56")
    a("s_xor_b32 s31, s30, 32")
    a(f"s_mul_i32 s61, s3, {NST}")
    a(f"s_mul_i32 s66, s30, {NKS}")
    a("s_add_u32 s66, s66, s61")
    a("s_lshl_b32 s66, s66, 10")
    a(f"s_mul_i32 s67, s31, {NKS}")
    a("s_add_u32 s67, s67, s61")
    a("s_lshl_b32 s67, s67, 10")
    a("v_lshlrev_b32 v5, 4, v0")
    a("v_add_u32 v3, s66, v5")
    a("v_add_u32 v4, s67, v5")
    a("s_cmp_eq_u32 s3, 3")
    a(f"s_cselect_b32 s72, 20, {NST}")
    a("v_lshrrev_b32 v8, 5, v0")
    a("s_lshl_b32 s31, s57, 6")
    a("s_lshl_b32 s61, s58, 5")
    a("s_add_u32 s31, s31, s61")
    a("v_and_b32 v9, 31, v0")
    a("v_add_u32 v10, s31, v9")
    a("v_sub_u32 v11, 0x200, v10")
    a("s_sub_u32 s61, 32, s56")
    a("s_and_b32 s61, s61, 31")
    a("s_cmp_ge_u32 s57, 4")
    a("s_cselect_b32 s61, s61, s56")
    a("s_cselect_b64 vcc, -1, 0")
    a("s_cselect_b32 s73, 1.0, -1.0")
    a("v_cndmask_b32 v10, v10, v11, vcc")
    a(f"v_mul_u32_u24 v11, {8*EP}, v8")
    a("v_add_u32 v10, v10, v11")
    a("v_lshlrev_b32 v10, 4, v10")
    a(f"s_mul_i32 s61, s61, {16*EP*16}")
    a(f"s_add_u32 s61, s61, 0x{C_OFF:x}")
    a("v_lshlrev_b32 v12, 6, v9")
    a("v_add_u32 v12, s30, v12")
    a("v_lshlrev_b32 v11, 2, v12")
    a("v_lshrrev_b32 v6, 3, v0")
    a("v_and_b32 v7, 7, v0")
    a("v_lshlrev_b32 v2, 1, v6")
    a("v_and_b32 v2, 4, v2")
    a("v_xor_b32 v7, v7, v2")
    a("v_lshlrev_b32 v7, 4, v7")
    a("v_lshl_add_u32 v2, v6, 10, v7")
    a(f"s_mul_i32 s30, s3, {NST*16384}")
    a("s_lshl_b32 s66, s57, 7")
    a("s_add_u32 s30, s30, s66")
    a("v_add_u32 v2, s30, v2")
    a(f"s_mul_i32 s68, s3, {RING}")
    a("s_mov_b32 s75, s74")
    a("s_waitcnt lgkmcnt(0)")
    srd(a, 36, 12, 13, 0x2000000 if STAMP else WS_USED)
    srd(a, 32, 8, 9, 1376 * 1024)
    srd(a, 48, 10, 11, 2048 * 1024)
    if STAMP:
        a("v_mov_b32 v13, s64")
        a("v_mov_b32 v14, 0")
        a("buffer_store_dword v13, v14, s[36:39], s60 offen offset:0")
        stamp(a, 1, 36)
    HR = 16
    WF = HR + D2 * 8
    ACC = WF + 16
    YA = ACC + 64
    CF = YA + 16
    MF = CF + 32
    GV = MF + 32
    assert GV + 1 < 256, GV
    ops = []
    def issue_h(st):
        sl = st % D2
        a("s_lshl_b32 s69, s74, 10")
        a("s_cmp_ge_u32 s74, s72")
        a("s_cselect_b32 s69, 0x10000000, s69")
        a("s_add_u32 s74, s74, 1")
        a(f"buffer_load_dwordx4 {vr(HR + sl*8, 4)}, v3, s[36:39], s69 offen sc1")
        a(f"s_cmp_eq_u32 s74, {NST}")
        a("s_cselect_b32 s74, 0, s74")
        a(f"buffer_load_dwordx4 {vr(HR + sl*8 + 4, 4)}, v4, s[36:39], s69 offen sc1")
        ops.extend([("s", st)] * 2)
    def issue_w(st):
        sl = st % D2
        a(f"s_add_u32 m0, s68, {sl*2048}")
        a("s_lshl_b32 s70, s75, 14")
        a("s_add_u32 s71, s70, 7168")
        a("buffer_load_dwordx4 v2, s[32:35], s70 offen lds")
        a("s_add_u32 s75, s75, 1")
        a(f"s_cmp_eq_u32 s75, {NST}")
        a("s_cselect_b32 s75, 0, s75")
        a("buffer_load_dwordx4 v2, s[32:35], s71 offen offset:1024 lds")
        ops.extend([("s", st)] * 2)
    def trread(st):
        sl = st % D2
        s = st & 1
        for aa in range(2):
            for hf in range(2):
                a(f"ds_read_b64_tr_b16 {vr(WF + s*8 + aa*4 + hf*2, 2)}, v{6+aa} offset:{sl*2048 + hf*512}")
    def wait_for(st):
        last = max(i for i, o in enumerate(ops) if o == ("s", st))
        return len(ops) - 1 - last

    srd(a, 40, 26, 27, 256)
    a("s_cmp_lg_u32 s3, 0")
    a("s_cbranch_scc1 NOPOLL0")
    a("v_mov_b32 v18, 0")
    a("s_mov_b32 s89, 0")
    a.lab("NONCE_L")
    a("s_add_u32 s89, s89, 1")
    a("s_cmp_gt_u32 s89, 200000")
    a("s_cbranch_scc1 NOPOLL0")
    a("buffer_load_dwordx2 v[16:17], v18, s[40:43], 0 offen sc0 sc1")
    a("s_waitcnt vmcnt(0)")
    a("v_cmp_eq_u32 vcc, 0, v16")
    a("s_cbranch_vccnz NONCE_L")
    a.lab("NOPOLL0")
    a("s_waitcnt vmcnt(0)")
    a("s_barrier")
    a("s_cmp_lg_u32 s3, 0")
    a("s_cbranch_scc1 NOPOLL")
    a("s_lshl_b32 s30, s88, 7")
    a(f"s_add_u32 s30, s30, 0x{FL_OFF:x}")
    a("s_mov_b64 exec, 1")
    a("buffer_store_dwordx2 v[16:17], v18, s[36:39], s30 offen sc0 sc1")
    a("s_mov_b64 exec, -1")
    a("s_lshr_b32 s30, s56, 2")
    a("s_lshl_b32 s30, s30, 4")
    a("v_and_b32 v19, 15, v0")
    a("v_and_b32 v20, 16, v0")
    a("v_lshl_add_u32 v19, v20, 3, v19")
    a("v_add_u32 v19, s30, v19")
    a("v_and_b32 v20, 31, v0")
    a("v_lshlrev_b32 v20, 3, v20")
    a("v_add_u32 v20, 3, v20")
    a("v_cmp_gt_u32 vcc, 32, v0")
    a("s_nop 1")
    a("v_cndmask_b32 v19, v20, v19, vcc")
    a("v_lshlrev_b32 v19, 7, v19")
    a(f"s_mov_b32 s30, 0x{FL_OFF:x}")
    a.lab("POLL_L")
    a("s_add_u32 s89, s89, 1")
    a("s_cmp_gt_u32 s89, 200000")
    a("s_cbranch_scc1 NOPOLL")
    a("buffer_load_dwordx2 v[20:21], v19, s[36:39], s30 offen sc1")
    a("s_waitcnt vmcnt(0)")
    a("v_cmp_ne_u64 vcc, v[20:21], v[16:17]")
    a("s_cbranch_vccnz POLL_L")
    a.lab("NOPOLL")
    a("s_barrier")
    stamp(a, 2, 36)
    NM = max(1, ROT2)
    for st in range(min(NM, D2)):
        issue_h(st)
    for i in range(8):
        a(f"s_add_u32 s70, s61, {i*EP*16}")
        a(f"buffer_load_dwordx4 {vr(CF + 4*i, 4)}, v10, s[36:39], s70 offen sc1")
    a(f"s_mov_b32 s70, 0x{G_OFF:x}")
    a(f"buffer_load_dword v{GV}, v11, s[36:39], s70 offen sc1")
    ops.extend([("x", 0)] * 9)
    LA0 = opt("la0", 4)
    for st in range(LA0):
        issue_w(st)
        if st >= NM:
            issue_h(st)
    a("v_and_b32 v9, 15, v0")
    a("v_lshrrev_b32 v10, 2, v9")
    a("v_lshl_add_u32 v10, v8, 3, v10")
    a("v_lshlrev_b32 v10, 7, v10")
    a("v_lshrrev_b32 v11, 3, v9")
    a("v_xor_b32 v11, s58, v11")
    a("v_lshl_add_u32 v10, v11, 6, v10")
    a("v_and_b32 v11, 16, v0")
    a("v_lshl_add_u32 v10, v11, 1, v10")
    a("v_and_b32 v11, 3, v0")
    a("v_lshl_add_u32 v10, v11, 3, v10")
    a("v_add_u32 v6, s68, v10")
    a("v_xor_b32 v7, 64, v6")
    a("v_cvt_f32_u32 v9, v12")
    a(f"v_mul_f32 v9, {f32(1.0/2048)}, v9")
    a("v_mul_f32 v9, s73, v9")
    a("v_lshlrev_b32 v10, 5, v8")
    a("v_cvt_f32_u32 v10, v10")
    a("v_mul_f32 v10, v10, v9")
    T = ACC
    for i in range(8):
        for c in range(4):
            a(f"v_cos_f32 v{T+c}, v10")
            a(f"v_sin_f32 v{T+4+c}, v10")
            a("v_add_f32 v10, v10, v9")
        a(f"v_cvt_pk_bf16_f32 v{MF+4*i}, v{T}, v{T+1}")
        a(f"v_cvt_pk_bf16_f32 v{MF+4*i+1}, v{T+4}, v{T+5}")
        a(f"v_cvt_pk_bf16_f32 v{MF+4*i+2}, v{T+2}, v{T+3}")
        a(f"v_cvt_pk_bf16_f32 v{MF+4*i+3}, v{T+6}, v{T+7}")
    a("v_lshlrev_b32 v12, 10, v12")
    a("v_lshl_add_u32 v12, v8, 4, v12")
    a("s_lshl_b32 s31, s31, 1")
    a("v_add_u32 v12, s31, v12")
    for st in range(LA0, D2):
        issue_w(st)
        if st >= NM:
            issue_h(st)
    a(f"s_waitcnt vmcnt({wait_for(0)})")
    stamp(a, 2, 36) if False else None
    trread(0)
    for i in range(8):
        c = "0" if i == 0 else vr(YA, 16)
        a(f"v_mfma_f32_32x32x16_bf16 {vr(YA,16)}, {vr(CF+4*i,4)}, {vr(MF+4*i,4)}, {c}")
    for st in range(NST):
        s = st & 1
        sl = st % D2
        if st + 1 < NST:
            a(f"s_waitcnt vmcnt({wait_for(st+1)})")
            trread(st + 1)
            a("s_waitcnt lgkmcnt(4)")
        else:
            a("s_waitcnt lgkmcnt(0)")
        mm = []
        for aa in range(2):
            for b in range(2):
                d = vr(ACC + 16 * (aa + 2 * b), 16)
                c = "0" if st == 0 else d
                mm.append(f"v_mfma_f32_32x32x16_bf16 {d}, {vr(WF + s*8 + aa*4, 4)}, {vr(HR + sl*8 + 4*b, 4)}, {c}")
        a(mm[0]); a(mm[1])
        if st + D2 < NST:
            issue_w(st + D2)
        a(mm[2]); a(mm[3])
        if st + D2 < NST:
            issue_h(st + D2)
    stamp(a, 3, 36)
    for idx in range(1, 4):
        a(f"s_xor_b32 s30, s3, {idx}")
        a("s_mul_i32 s30, s30, 12288")
        a(f"s_add_u32 s30, s30, {XCH + (idx-1)*4096}")
        a(f"v_add_u32 v{idx+7}, s30, v5")
    a("s_mul_i32 s30, s3, 12288")
    a(f"s_add_u32 s30, s30, {XCH}")
    a("v_add_u32 v11, s30, v5")
    for idx in (2, 1, 3):
        for qd in range(4):
            a(f"ds_write_b128 v{idx+7}, {vr(ACC + 16*idx + 4*qd, 4)} offset:{qd*1024}")
    a(f"v_sub_f32 v{GV+1}, 1.0, v{GV}")
    a(f"v_cvt_pk_bf16_f32 v{GV+1}, v{GV+1}, v{GV+1}")
    a(f"v_lshlrev_b32 v{GV+1}, 16, v{GV+1}")
    for r in range(16):
        a(f"v_mul_f32 v{YA+r}, v{GV}, v{YA+r}")
    a("s_waitcnt lgkmcnt(0)")
    a("s_barrier")
    for idx in range(3):
        for qd in range(4):
            a(f"ds_read_b128 {vr(HR + 16*idx + 4*qd, 4)}, v11 offset:{idx*4096 + qd*1024}")
    for idx in range(3):
        a(f"s_waitcnt lgkmcnt({8 - 4*idx})")
        for r in range(16):
            a(f"v_add_f32 v{ACC+r}, v{ACC+r}, v{HR + 16*idx + r}")
    for r in range(16):
        a(f"v_fma_f32 v{YA+r}, v{GV+1}, v{ACC+r}, v{YA+r}")
    for i in range(8):
        a(f"v_cvt_pk_bf16_f32 v{HR+i}, v{YA+2*i}, v{YA+2*i+1}")
    a("s_nop 1")
    for k in (0, 4):
        a(f"v_permlane32_swap_b32 v{HR+k}, v{HR+k+2}")
        a(f"v_permlane32_swap_b32 v{HR+k+1}, v{HR+k+3}")
    a(f"buffer_store_dwordx4 {vr(HR,4)}, v12, s[48:51], 0 offen")
    a(f"buffer_store_dwordx4 {vr(HR+4,4)}, v12, s[48:51], 0 offen offset:32")
    stamp(a, 4, 36)
    if SPIN:
        a("s_or_b32 s30, s2, s3")
        a("s_cmp_lg_u32 s30, 0")
        a("s_cbranch_scc1 P2_END")
        a.lab("SPIN_L")
        a("s_memrealtime s[92:93]")
        a("s_waitcnt lgkmcnt(0)")
        a("s_sub_u32 s92, s92, s90")
        a(f"s_cmp_lt_u32 s92, {SPIN}")
        a("s_cbranch_scc1 SPIN_L")
    a.lab("P2_END")
    a("s_endpgm")

HEADER = open("cdna_kernels/" + NAME + ".s.ref").read().split("; Override launch")[0]

def desc(name, vgpr):
    return f""".amdhsa_kernel {name}
  .amdhsa_next_free_vgpr {vgpr}
  .amdhsa_next_free_sgpr 96
  .amdhsa_accum_offset {vgpr}
  .amdhsa_group_segment_fixed_size 0
  .amdhsa_kernarg_size 104
  .amdhsa_user_sgpr_count 2
  .amdhsa_user_sgpr_kernarg_segment_ptr 1
  .amdhsa_system_sgpr_workgroup_id_x 1
.end_amdhsa_kernel
"""

def main():
    out = HEADER
    nm = NAME + "_kernel"
    if opt("list", 0):
        out += f"; @launch kernel={nm} grid=(256,1,1) block=(512,1,1) lds={4*SLOT}\n"
    else:
        out += f"; @launch grid=(256,1,1) block=(512,1,1) lds={4*SLOT}\n"
    out += '.amdgcn_target "amdgcn-amd-amdhsa--gfx950"\n.text\n'
    a = Asm()
    out += f".globl {nm}\n.p2align 8\n.type {nm},@function\n"
    k1(a); k2(a)
    out += a.text()
    out += '.section .rodata,"a"\n.p2align 6\n' + desc(nm, 256)
    path = [x for x in sys.argv[1:] if not x.startswith("--")][0]
    open(path, "w").write(out)

main()
```

```python
import sys, math, struct

NAME = "gated_mix__spectral_fnet__geglu_ffn__prompt"
STAMP = "--stamp" in sys.argv
def opt(name, default):
    for x in sys.argv:
        if x.startswith("--" + name + "="):
            return int(x.split("=")[1])
    return default
RA = opt("ra", 1); RB = opt("rb", 2); RM = opt("rm", 6)
RJ = opt("rj", 3); RI = opt("ri", 5)
NPRE = opt("npre", 0)
D2 = opt("d2", 7)
WTH = opt("wth", 64)
PRIO = opt("prio", 3)
KB = opt("kb", 8)
LA2 = opt("la2", 9)
N0A = opt("n0a", 3)
N0B = opt("n0b", 2)
WNT = "nt" if opt("wnt", 0) else ""
XNT = "nt" if opt("xnt", 0) else ""
PK = opt("pk", 1)
LAI = opt("lai", 7)
LAS = opt("las", 9)
BPOS = opt("bpos", 0)
GATE = opt("gate", 0)
GDEL = opt("gdel", 0)
CPF = opt("cpf", 1)
PFW = opt("pfw", 1)
LSLEEP = opt("lsleep", 2)
SPINMAX = 400000

NKS = 86
EP = 264
C_OFF = 0x600000
G_OFF = 0x900000
FL_OFF = 0x910000
CT_H, CT_G, CT_C = 0, 64, 128
WS_USED = 0x918000
ST_OFF = 0x1000000

def f32(x):
    return "0x%08x" % struct.unpack("<I", struct.pack("<f", x))[0]

class Asm:
    def __init__(self):
        self.l = []
    def __call__(self, s):
        self.l.append("    " + s)
    def lab(self, s):
        self.l.append(s + ":")
    def text(self):
        return "\n".join(self.l) + "\n"

def vr(b, n=1):
    return f"v{b}" if n == 1 else f"v[{b}:{b+n-1}]"

def srd(a, d, lo, hi, nbytes):
    a(f"s_mov_b32 s{d}, s{lo}")
    a(f"s_mov_b32 s{d+1}, s{hi}")
    a(f"s_mov_b32 s{d+2}, 0x{nbytes:x}")
    a(f"s_mov_b32 s{d+3}, 0x20000")

SV = 15
def stamp(a, idx):
    if not STAMP:
        return
    a("s_memrealtime s[62:63]")
    a("s_waitcnt lgkmcnt(0)")
    a(f"v_writelane_b32 v{SV}, s62, {idx}")

def stamp_flush(a):
    if not STAMP:
        return
    a("s_lshl_b32 s60, s2, 3")
    a("s_add_u32 s60, s60, s95")
    a("s_lshl_b32 s60, s60, 8")
    a(f"s_add_u32 s60, s60, 0x{ST_OFF:x}")
    a("v_lshlrev_b32 v14, 2, v0")
    a(f"buffer_store_dword v{SV}, v14, s[44:47], s60 offen")

def weave(a, mf, fill, start=0, per=1):
    fi = 0
    for i, m in enumerate(mf):
        a(m)
        if i >= start:
            for _ in range(per):
                if fi < len(fill):
                    a(fill[fi]); fi += 1
    while fi < len(fill):
        a(fill[fi]); fi += 1

C1 = -2.0 * math.sqrt(2.0 / math.pi) * math.log2(math.e)
C2 = C1 * 0.044715

def gelu_pair(a, g0, u0, g1, u1, t, dst):
    G = [g0 + i for i in range(4)] + [g1 + i for i in range(4)]
    U = [u0 + i for i in range(4)] + [u1 + i for i in range(4)]
    if PK:
        for i in range(0, 8, 2): a(f"v_pk_mul_f32 {vr(t+i,2)}, {vr(G[i],2)}, {vr(G[i],2)}")
        for i in range(0, 8, 2): a(f"v_pk_fma_f32 {vr(t+i,2)}, {vr(t+i,2)}, s[72:73], v[10:11] op_sel_hi:[1,0,0]")
        for i in range(0, 8, 2): a(f"v_pk_mul_f32 {vr(t+i,2)}, {vr(t+i,2)}, {vr(G[i],2)}")
        for i in range(8):
            a(f"v_exp_f32 v{t+i}, v{t+i}")
            if i & 1: a(f"v_pk_mul_f32 {vr(G[i-1],2)}, {vr(G[i-1],2)}, {vr(U[i-1],2)}")
        for i in range(0, 8, 2): a(f"v_pk_add_f32 {vr(t+i,2)}, {vr(t+i,2)}, 1.0 op_sel_hi:[1,0]")
        for i in range(8): a(f"v_rcp_f32 v{t+i}, v{t+i}")
        for i in range(0, 8, 2): a(f"v_pk_mul_f32 {vr(G[i],2)}, {vr(G[i],2)}, {vr(t+i,2)}")
        for i in range(4): a(f"v_cvt_pk_bf16_f32 v{dst+i}, v{G[2*i]}, v{G[2*i+1]}")
        a("s_nop 1")
        a(f"v_permlane16_swap_b32 v{dst}, v{dst+2}")
        a(f"v_permlane16_swap_b32 v{dst+1}, v{dst+3}")
        return
    for i in range(8): a(f"v_mul_f32 v{t+i}, v{G[i]}, v{G[i]}")
    for i in range(8): a(f"v_fma_f32 v{t+i}, v{t+i}, s72, v10")
    for i in range(8): a(f"v_mul_f32 v{t+i}, v{t+i}, v{G[i]}")
    for i in range(8):
        a(f"v_exp_f32 v{t+i}, v{t+i}")
        a(f"v_mul_f32 v{G[i]}, v{G[i]}, v{U[i]}")
    for i in range(8): a(f"v_add_f32 v{t+i}, 1.0, v{t+i}")
    for i in range(8): a(f"v_rcp_f32 v{t+i}, v{t+i}")
    for i in range(8): a(f"v_mul_f32 v{G[i]}, v{G[i]}, v{t+i}")
    for i in range(4): a(f"v_cvt_pk_bf16_f32 v{dst+i}, v{G[2*i]}, v{G[2*i+1]}")
    a("s_nop 1")
    a(f"v_permlane16_swap_b32 v{dst}, v{dst+2}")
    a(f"v_permlane16_swap_b32 v{dst+1}, v{dst+3}")

SLOT = 40960
XB = 16384
WB = 12288
F1_LDS = 3 * SLOT + 36864
NST = 22
PIECE = 10240


def p2_ids(a):
    a("s_and_b32 s30, s2, 7")
    a("s_lshr_b32 s31, s2, 3")
    a("s_lshr_b32 s93, s31, 2")
    a("s_and_b32 s31, s31, 3")
    a(f"s_mul_i32 s94, s31, {RI}")
    a("s_sub_u32 s61, 0, s30")
    a("s_bitcmp1_b32 s31, 0")
    a("s_cselect_b32 s92, s61, s30")
    a("s_cselect_b32 s61, 8, 0")
    a("s_cmp_eq_u32 s30, 0")
    a("s_cselect_b32 s92, s61, s92")
    a("s_lshr_b32 s31, s31, 1")
    a("s_lshl_b32 s31, s31, 4")
    a("s_add_u32 s92, s92, s31")
    a("s_and_b32 s92, s92, 31")
    a(f"s_mul_i32 s30, s93, {RJ}")
    a("s_add_u32 s94, s94, s30")
    a(f"s_sub_u32 s30, s94, {NST}")
    a(f"s_cmp_ge_u32 s94, {NST}")
    a("s_cselect_b32 s94, s30, s94")

def req_nonce():
    return ["s_load_dword s88, s[26:27], 0"]

def get_nonce(a, tag, vt):
    a("s_waitcnt lgkmcnt(0)")
    a("s_cmp_lg_u32 s88, 0")
    a(f"s_cbranch_scc1 NOK{tag}")
    srd(a, 48, 26, 27, 256)
    a("s_mov_b32 s61, 0")
    a.lab(f"NL{tag}")
    a(f"buffer_load_dword v{vt}, off, s[48:51], 0 sc1")
    a("s_add_u32 s61, s61, 1")
    a("s_waitcnt vmcnt(0)")
    a(f"v_readfirstlane_b32 s88, v{vt}")
    a(f"s_cmp_gt_u32 s61, {SPINMAX}")
    a(f"s_cbranch_scc1 NOK{tag}")
    a("s_cmp_eq_u32 s88, 0")
    a(f"s_cbranch_scc1 NL{tag}")
    a.lab(f"NOK{tag}")

def signal(a, vt, sidx, smask=None):
    a(f"s_lshl_b32 s30, {sidx}, 7")
    a(f"s_add_u32 s30, s30, 0x{FL_OFF:x}")
    a(f"v_mov_b32 v{vt}, 1")
    a(f"v_lshlrev_b32 v{vt+1}, 7, v0")
    a("s_waitcnt vmcnt(0)")
    if smask is None:
        a("s_mov_b64 exec, 1")
    else:
        a(f"s_mov_b32 exec_lo, {smask}")
        a("s_mov_b32 exec_hi, 0")
    a(f"s_setprio {PRIO}")
    a(f"buffer_atomic_add v{vt}, v{vt+1}, s[44:47], s30 offen sc1")
    a("s_setprio 0")
    a("s_mov_b64 exec, -1")

def poll(a, tag, vaddr, vexp, vt, sleep=0):
    a(f"s_mov_b32 s30, 0x{FL_OFF:x}")
    a("s_mov_b32 s61, 0")
    a.lab(f"PL{tag}")
    a(f"buffer_load_dword v{vt}, v{vaddr}, s[44:47], s30 offen sc1")
    a("s_add_u32 s61, s61, 1")
    a(f"s_cmp_gt_u32 s61, {SPINMAX}")
    a("s_waitcnt vmcnt(0)")
    a(f"s_cbranch_scc1 PD{tag}")
    a(f"v_cmp_ne_u32 vcc, v{vt}, v{vexp}")
    if sleep:
        a(f"s_cbranch_vccz PD{tag}")
        a(f"s_sleep {sleep}")
        a(f"s_branch PL{tag}")
    else:
        a(f"s_cbranch_vccnz PL{tag}")
    a.lab(f"PD{tag}")

def kernel(a):
    a.lab(NAME + "_kernel")
    a("s_cmp_ge_u32 s2, 256")
    a("s_cbranch_scc1 K_END")
    a("s_load_dwordx16 s[4:19], s[0:1], 0")
    a("s_load_dwordx8 s[20:27], s[0:1], 64")
    a("s_load_dwordx2 s[28:29], s[0:1], 96")
    a("s_memrealtime s[90:91]")
    a("v_lshrrev_b32 v1, 6, v0")
    a("v_and_b32 v0, 63, v0")
    a("v_readfirstlane_b32 s95, v1")
    a("s_lshr_b32 s31, s2, 3")
    a("s_and_b32 s56, s2, 1")
    a("s_lshl_b32 s56, s56, 3")
    a("s_and_b32 s74, s31, 7")
    a("s_add_u32 s56, s56, s74")
    a("s_and_b32 s57, s2, 6")
    a("s_lshl_b32 s57, s57, 1")
    a("s_lshr_b32 s75, s31, 3")
    a("s_add_u32 s57, s57, s75")
    a(f"s_mul_i32 s74, s74, {RA}")
    a(f"s_mul_i32 s75, s75, {RB}")
    a("s_add_u32 s74, s74, s75")
    a(f"s_and_b32 s74, s74, {RM}")
    a("s_and_b32 s30, s57, 7")
    a("s_cmp_eq_u32 s30, 3")
    a("s_cselect_b32 s58, 1, 0")
    a("s_lshr_b32 s59, s57, 3")
    a("s_cmp_gt_u32 s30, 3")
    a("s_cselect_b32 s30, 1, 0")
    a("s_add_u32 s30, s30, s59")
    a("s_sub_u32 s78, s57, s30")
    a("s_and_b32 s3, s95, 3")
    if STAMP:
        a(f"v_mov_b32 v{SV}, -1")
    a("s_cmp_ge_u32 s95, 4")
    a("s_cbranch_scc1 P1_CONS")
    a("v_lshrrev_b32 v3, 3, v0")
    a("v_and_b32 v8, 7, v0")
    a("v_lshrrev_b32 v9, 4, v0")
    a("s_lshl_b32 s30, s56, 2")
    a("s_add_u32 s30, s30, s3")
    a("s_lshl_b32 s79, s30, 10")
    a("s_lshl_b32 s66, s3, 12")
    a("s_lshl_b32 s70, s74, 7")
    a("s_cmp_eq_u32 s58, 1")
    a("s_cbranch_scc1 P1_LSP")

    def stamp0():
        if STAMP:
            a(f"v_writelane_b32 v{SV}, s90, 0")
            stamp(a, 1)

    def gload(ops):
        srd(a, 48, 22, 23, 1024)
        a("s_lshl_b32 s30, s57, 3")
        a("s_lshl_b32 s31, s3, 1")
        a("s_add_u32 s30, s30, s31")
        a("s_lshr_b32 s31, s30, 5")
        a("s_and_b32 s30, s30, 31")
        a("s_lshl_b32 s30, s30, 6")
        a("s_add_u32 s30, s30, s31")
        a("s_lshl_b32 s31, s56, 2")
        a("s_add_u32 s64, s30, s31")
        a("s_lshl_b32 s30, s64, 10")
        a("s_add_u32 s31, s30, 0x10000")
        a("v_lshlrev_b32 v12, 4, v0")
        a("buffer_load_dwordx4 v[64:67], v12, s[48:51], 0 offen")
        a("buffer_load_dwordx4 v[68:71], v12, s[32:35], s30 offen")
        a("buffer_load_dwordx4 v[72:75], v12, s[32:35], s31 offen")
        ops.extend(["g"] * 3)

    def gcalc(ops):
        T = 76
        waitfor(ops, "g")
        for rr in range(2):
            xb = 68 + 4 * rr
            acc = T + 4 + rr
            for d in range(4):
                a(f"v_lshlrev_b32 v{T}, 16, v{xb+d}")
                a(f"v_and_b32 v{T+1}, 0xffff0000, v{xb+d}")
                a(f"v_lshlrev_b32 v{T+2}, 16, v{64+d}")
                a(f"v_and_b32 v{T+3}, 0xffff0000, v{64+d}")
                a(f"v_mul_f32 v{T}, v{T}, v{T+2}")
                a(f"v_mul_f32 v{T+1}, v{T+1}, v{T+3}")
                a(f"v_cvt_pk_bf16_f32 v{T}, v{T}, v{T+1}")
                a(f"v_and_b32 v{T+1}, 0xffff0000, v{T}")
                a(f"v_lshlrev_b32 v{T}, 16, v{T}")
                if d == 0:
                    a(f"v_add_f32 v{acc}, v{T}, v{T+1}")
                else:
                    a(f"v_add_f32 v{acc}, v{acc}, v{T}")
                    a(f"v_add_f32 v{acc}, v{acc}, v{T+1}")
        A, B = T + 4, T + 5
        for sh in (8, 4, 2, 1):
            a("s_nop 1")
            a(f"v_add_f32_dpp v{A}, v{A}, v{A} row_ror:{sh} row_mask:0xf bank_mask:0xf")
            a(f"v_add_f32_dpp v{B}, v{B}, v{B} row_ror:{sh} row_mask:0xf bank_mask:0xf")
        a("s_nop 1")
        a(f"v_add_f32_dpp v{A}, v{A}, v{A} row_bcast:15 row_mask:0xa bank_mask:0xf")
        a(f"v_add_f32_dpp v{B}, v{B}, v{B} row_bcast:15 row_mask:0xa bank_mask:0xf")
        a("s_nop 1")
        a(f"v_add_f32_dpp v{A}, v{A}, v{A} row_bcast:31 row_mask:0xc bank_mask:0xf")
        a(f"v_add_f32_dpp v{B}, v{B}, v{B} row_bcast:31 row_mask:0xc bank_mask:0xf")
        a("s_nop 1")
        a(f"v_cvt_pk_bf16_f32 v{A}, v{A}, v{B}")
        a(f"v_and_b32 v{B}, 0xffff0000, v{A}")
        a(f"v_lshlrev_b32 v{A}, 16, v{A}")
        a(f"v_mul_f32 v{A}, {f32(-math.log2(math.e))}, v{A}")
        a(f"v_mul_f32 v{B}, {f32(-math.log2(math.e))}, v{B}")
        a(f"v_exp_f32 v{A}, v{A}")
        a(f"v_exp_f32 v{B}, v{B}")
        a("s_nop 0")
        a(f"v_add_f32 v{A}, 1.0, v{A}")
        a(f"v_add_f32 v{B}, 1.0, v{B}")
        a(f"v_rcp_f32 v{A}, v{A}")
        a(f"v_rcp_f32 v{B}, v{B}")
        a("s_nop 0")
        a(f"v_cvt_pk_bf16_f32 v{A}, v{A}, v{B}")
        a(f"v_and_b32 v{B}, 0xffff0000, v{A}")
        a(f"v_lshlrev_b32 v{A}, 16, v{A}")
        a("s_lshl_b32 s30, s64, 2")
        a(f"s_add_u32 s30, s30, 0x{G_OFF:x}")
        a(f"v_mov_b32 v{T}, 0")
        a("v_cmp_eq_u32 vcc, 63, v0")
        a("s_and_saveexec_b64 s[80:81], vcc")
        a(f"buffer_store_dword v{A}, v{T}, s[44:47], s30 offen sc1")
        a(f"buffer_store_dword v{B}, v{T}, s[44:47], s30 offen offset:256 sc1")
        a("s_mov_b64 exec, s[80:81]")
        ops.extend(["gs"] * 2)

    def wd_setup():
        p2_ids(a)
        srd(a, 52, 20, 21, 1376 * 1024)
        a("v_lshlrev_b32 v29, 1, v3")
        a("v_and_b32 v29, 4, v29")
        a("v_xor_b32 v29, v29, v8")
        a("v_lshlrev_b32 v29, 4, v29")
        a("v_lshl_add_u32 v29, v3, 10, v29")
        a(f"s_mul_i32 s30, s3, {NST*16384}")
        a("s_lshl_b32 s31, s93, 7")
        a("s_add_u32 s30, s30, s31")
        a("v_add_u32 v29, s30, v29")
        a("s_mov_b32 s65, s94")
        a(f"s_mul_i32 s77, s3, {PIECE}")

    def wd_lds(st):
        s = st % 20
        return (s // 5) * SLOT + (s % 5) * 2048

    def issue_w(st, ops):
        a(f"s_add_u32 m0, s77, {wd_lds(st)}")
        a("s_lshl_b32 s30, s65, 14")
        a("s_add_u32 s31, s30, 7168")
        a("buffer_load_dwordx4 v29, s[52:55], s30 offen lds")
        a("s_add_u32 s65, s65, 1")
        a(f"s_cmp_eq_u32 s65, {NST}")
        a("s_cselect_b32 s65, 0, s65")
        a("buffer_load_dwordx4 v29, s[52:55], s31 offen offset:1024 lds")
        ops.extend([("w", st)] * 2)

    def waitfor(ops, key):
        last = max(i for i, o in enumerate(ops) if o == key)
        a(f"s_waitcnt vmcnt({len(ops) - 1 - last})")

    def capture(fn):
        save = a.l
        a.l = []
        fn()
        lines, a.l = a.l, save
        groups, cur = [], []
        for ln in lines:
            cur.append(ln)
            if ln.strip().startswith("buffer_"):
                groups.append(cur); cur = []
        if cur:
            groups[-1].extend(cur)
        return groups

    def pf_wd():
        a("s_lshr_b32 s30, s2, 3")
        a("s_lshl_b32 s30, s30, 2")
        a("s_add_u32 s30, s30, s3")
        a(f"s_mul_i32 s30, s30, {86*128}")
        a("v_lshlrev_b32 v12, 7, v0")
        a("buffer_load_dword v82, v12, s[52:55], s30 offen")
        a("s_add_u32 s30, s30, 8192")
        a("s_mov_b64 exec, 0x3fffff")
        a("buffer_load_dword v83, v12, s[52:55], s30 offen")
        a("s_mov_b64 exec, -1")

    def loader_loop(issue, commit, lai):
        items = []
        for s in range(8):
            items += [(("s", s), g) for g in capture(lambda: issue(s, []))]
        items += [("g", g) for g in capture(lambda: gload([]))]
        items += [("pf", g) for g in capture(pf_wd)]
        ops = []
        pos = 0
        for b in range(8):
            last = max(i for i, (k, _) in enumerate(items) if k == ("s", b))
            nnext = len([1 for k, _ in items if k == ("s", b + 1)]) if b < 7 else 99
            upto = min(len(items), last + 1 + min(lai, nnext))
            while pos < upto:
                a.l.extend(items[pos][1]); ops.append(items[pos][0]); pos += 1
            if b == 0:
                wd_setup()
            waitfor(ops, ("s", b))
            commit(b)
            if opt("lstamp", 1): stamp(a, 2 + b)
            a("s_barrier")
        assert pos == len(items)
        for x in req_nonce():
            a(x)
        a("s_barrier")
        a("s_branch P2_LOAD")

    for j in range(4):
        a(f"v_add_u32 v10, {4*j}, v9")
        a("v_and_b32 v10, 7, v10")
        a("v_xor_b32 v10, v10, v8")
        a("v_lshlrev_b32 v10, 4, v10")
        a(f"v_add_u32 v11, {8*j}, v3")
        a("v_lshlrev_b32 v11, 16, v11")
        a(f"v_add3_u32 v{4+j}, v10, v11, s79")
        if j:
            a(f"v_subrev_u32 v{4+j}, {j*1024}, v{4+j}")
    a(f"s_mul_i32 s30, s3, {16*2752}")
    a("s_mul_i32 s31, s78, 192")
    a("s_add_u32 s30, s30, s31")
    for jj in range(3):
        a(f"v_add_u32 v10, {64*jj}, v0")
        a("v_mul_u32_u24 v11, 171, v10")
        a("v_lshrrev_b32 v11, 11, v11")
        a("v_mul_u32_u24 v12, 12, v11")
        a("v_sub_u32 v10, v10, v12")
        a("v_lshrrev_b32 v12, 2, v11")
        a("v_and_b32 v12, 2, v12")
        a("v_xor_b32 v10, v10, v12")
        a("v_lshlrev_b32 v10, 4, v10")
        a("v_mul_u32_u24 v11, 2752, v11")
        a(f"v_add3_u32 v{24+jj}, v10, v11, s30")
        if jj:
            a(f"v_subrev_u32 v{24+jj}, {jj*1024}, v{24+jj}")
    a("s_mul_i32 s67, s3, 3072")
    a(f"s_add_u32 s67, s67, {XB}")
    a(f"s_add_u32 s68, s67, {WB}")
    a(f"s_mul_i32 s71, s74, {64*2752}")
    a("s_waitcnt lgkmcnt(0)")
    srd(a, 36, 16, 17, 512 * 2752)
    srd(a, 32, 4, 5, 2048 * 1024)
    srd(a, 40, 18, 19, 512 * 2752)
    srd(a, 44, 28, 29, 0x2000000 if STAMP else WS_USED)
    stamp0()

    a("s_or_b32 s76, s2, s3")
    a("s_cmp_lg_u32 s76, 0")
    a("s_cbranch_scc1 NOINIT")
    a("s_lshl_b32 s30, s90, 6")
    a("s_or_b32 s30, s30, 32")
    a("v_mov_b32 v16, s30")
    a("v_lshlrev_b32 v17, 7, v0")
    for i in range(3):
        a(f"s_mov_b32 s30, 0x{FL_OFF + i*8192:x}")
        if i == 2:
            a("s_mov_b64 exec, 0xff")
        a("buffer_store_dword v16, v17, s[44:47], s30 offen sc0 sc1")
    a("s_mov_b64 exec, -1")
    a.lab("NOINIT")

    def publishF(b):
        if b != 2:
            return
        a("s_cmp_lg_u32 s76, 0")
        a("s_cbranch_scc1 NOPUB")
        srd(a, 48, 26, 27, 256)
        a("s_mov_b64 exec, 1")
        a("buffer_store_dword v16, off, s[48:51], 0 sc0 sc1")
        a("s_mov_b64 exec, -1")
        a.lab("NOPUB")

    def issueF(stage, ops):
        sl = (stage % 4) * SLOT
        a(f"s_add_u32 m0, s67, {sl}")
        a("s_add_u32 s74, s74, 1")
        for jj in range(3):
            a(f"buffer_load_dwordx4 v{24+jj}, s[36:39], s71 offen offset:{jj*1024} {WNT} lds")
        a(f"s_add_u32 m0, s66, {sl}")
        a("s_and_b32 s74, s74, 7")
        for j in range(4):
            a(f"buffer_load_dwordx4 v{4+j}, s[32:35], s70 offen offset:{j*1024} {XNT} lds")
        a(f"s_add_u32 m0, s68, {sl}")
        a("s_lshl_b32 s70, s74, 7")
        for jj in range(3):
            a(f"buffer_load_dwordx4 v{24+jj}, s[40:43], s71 offen offset:{jj*1024} {WNT} lds")
        a(f"s_mul_i32 s71, s74, {64*2752}")
        ops.extend([("s", stage)] * 10)

    loader_loop(issueF, publishF, LAI)

    a.lab("P1_LSP")
    a("v_lshlrev_b32 v10, 4, v8")
    a("v_lshlrev_b32 v11, 16, v3")
    a("v_add3_u32 v4, v10, v11, s79")
    a("s_and_b32 s30, s3, 1")
    a("s_lshl_b32 s30, s30, 5")
    a("s_lshr_b32 s31, s3, 1")
    a("s_add_u32 s30, s30, s31")
    a("s_lshl_b32 s30, s30, 10")
    a("s_lshl_b32 s31, s59, 7")
    a("s_add_u32 s30, s30, s31")
    a("v_and_b32 v10, 2, v3")
    a("v_xor_b32 v10, v10, v8")
    a("v_lshlrev_b32 v10, 4, v10")
    a("v_lshlrev_b32 v11, 11, v3")
    a("v_add3_u32 v24, v10, v11, s30")
    a("v_xor_b32 v25, 64, v24")
    a(f"v_add_u32 v25, {16*1024 - 1024}, v25")
    a("v_lshrrev_b32 v10, 1, v0")
    a("v_lshrrev_b32 v11, 2, v0")
    a("v_and_b32 v11, 4, v11")
    a("v_xor_b32 v10, v10, v11")
    a(f"v_mul_u32_u24 v10, {2*2752}, v10")
    a("v_and_b32 v11, 1, v0")
    a("v_lshlrev_b32 v11, 4, v11")
    a("s_and_b32 s30, s3, 1")
    a("s_mul_i32 s30, s30, 2752")
    a("s_lshl_b32 s31, s59, 5")
    a("s_add_u32 s30, s30, s31")
    a(f"s_add_u32 s30, s30, {1344*2}")
    a("v_add3_u32 v26, v10, v11, s30")
    a("s_lshl_b32 s67, s3, 11")
    a(f"s_add_u32 s67, s67, {XB}")
    a("s_add_u32 s68, s67, 8192")
    a("s_lshl_b32 s69, s3, 10")
    a(f"s_add_u32 s69, s69, {XB + 16384}")
    a("s_lshl_b32 s71, s74, 16")
    a(f"s_mul_i32 s75, s74, {64*2752}")
    a("s_waitcnt lgkmcnt(0)")
    srd(a, 32, 4, 5, 2048 * 1024)
    srd(a, 36, 10, 11, 512 * 1024)
    srd(a, 40, 12, 13, 512 * 1024)
    a("s_cmp_ge_u32 s3, 2")
    a("s_cselect_b32 s84, s18, s16")
    a("s_cselect_b32 s85, s19, s17")
    a(f"s_mov_b32 s86, 0x{512*2752:x}")
    a("s_mov_b32 s87, 0x20000")
    srd(a, 44, 28, 29, 0x2000000 if STAMP else WS_USED)
    stamp0()

    def issueS(stage, ops):
        sl = (stage % 4) * SLOT
        xr = 32 + 16 * (stage & 1)
        n = 0
        for j in range(4):
            if j:
                a(f"s_add_u32 s30, s70, {j * 8 * 65536}")
            a(f"buffer_load_dwordx4 {vr(xr+4*j,4)}, v4, s[32:35], {'s30' if j else 's70'} offen")
            n += 1
        a("s_add_u32 s74, s74, 1")
        if stage < 4:
            a(f"s_add_u32 m0, s67, {sl}")
            a("s_nop 0")
            for jj in range(2):
                a(f"buffer_load_dwordx4 v{24+jj}, s[36:39], s71 offen offset:{jj*1024} lds")
            a(f"s_add_u32 m0, s68, {sl}")
            a("s_nop 0")
            for jj in range(2):
                a(f"buffer_load_dwordx4 v{24+jj}, s[40:43], s71 offen offset:{jj*1024} lds")
            n += 4
        a(f"s_add_u32 m0, s69, {sl}")
        a("s_and_b32 s74, s74, 7")
        if not opt("nof", 0):
            a("buffer_load_dwordx4 v26, s[84:87], s75 offen lds")
            n += 1
        a("s_lshl_b32 s70, s74, 7")
        a("s_lshl_b32 s71, s74, 16")
        a(f"s_mul_i32 s75, s74, {64*2752}")
        ops.extend([("s", stage)] * n)
        if stage == 0:
            a("v_lshrrev_b32 v10, 1, v8")
            a("v_xor_b32 v10, v10, v9")
            a("v_lshlrev_b32 v10, 4, v10")
            a("v_and_b32 v11, 1, v8")
            a("v_lshl_add_u32 v10, v11, 3, v10")
            a("v_lshl_add_u32 v10, v3, 7, v10")
            a("v_add_u32 v5, s66, v10")
            a("v_and_b32 v11, 1, v3")
            a("v_lshlrev_b32 v10, 6, v11")
            a("v_xor_b32 v5, v5, v10")
            a("v_xor_b32 v6, 64, v5")
            a("v_mul_u32_u24 v30, 0x0202, v11")
            a("v_lshl_or_b32 v30, v30, 16, v30")
            a("v_xor_b32 v31, 0x07060302, v30")
            a("v_xor_b32 v30, 0x05040100, v30")
            a("v_and_b32 v10, 2, v0")
            a("v_lshrrev_b32 v11, 1, v0")
            a("v_and_b32 v11, 4, v11")
            a("v_or_b32 v10, v10, v11")
            a("v_lshlrev_b32 v10, 4, v10")
            a("v_lshl_add_u32 v10, v0, 7, v10")
            a("v_add_u32 v27, s68, v10")
            a("s_lshr_b32 s30, s3, 1")
            a("v_xor_b32 v28, s30, v0")
            a("v_and_b32 v28, 1, v28")
            a("v_lshlrev_b32 v28, 15, v28")
            a("v_or_b32 v28, 0x3f80, v28")


    def commitS(stage):
        if opt("nocommit", 0): return
        sl = (stage % 4) * SLOT
        xr = 32 + 16 * (stage & 1)
        a(f"v_add_u32 v7, {sl}, v5")
        a(f"v_add_u32 v2, {sl}, v6")
        for j in range(4):
            r = xr + 4 * j
            t = 16 + 4 * (j & 1)
            a(f"v_perm_b32 v{t}, v{r+1}, v{r}, v30")
            a(f"v_perm_b32 v{t+1}, v{r+3}, v{r+2}, v30")
            a(f"v_perm_b32 v{t+2}, v{r+1}, v{r}, v31")
            a(f"v_perm_b32 v{t+3}, v{r+3}, v{r+2}, v31")
            e, o = (7, 2) if (j & 1) == 0 else (2, 7)
            a(f"ds_write_b64 v{e}, {vr(t,2)} offset:{j*1024}")
            a(f"ds_write_b64 v{o}, {vr(t+2,2)} offset:{j*1024}")
        if stage < 4:
            a("s_cmp_lg_u32 s59, 0")
            a(f"s_cbranch_scc1 P1_NP{stage}")
            a(f"v_add_u32 v7, {sl}, v27")
            a("s_mov_b64 exec, 0xffff")
            a("ds_write_b16 v7, v28")
            a("s_mov_b64 exec, -1")
            a.lab(f"P1_NP{stage}")
        a("s_waitcnt lgkmcnt(0)")

    loader_loop(issueS, commitS, LAS)

    a.lab("P2_LOAD")
    NPRE = 0
    ops = ["g"] * 3 + ["pf"] * 2
    stamp(a, 16)
    gcalc(ops)
    if opt("diagpf", 0):
        a("s_waitcnt vmcnt(0)")
        stamp(a, 17)
    for st in range(NPRE, 20):
        issue_w(st, ops)
        if st % 5 == 4:
            stamp(a, 18 + st // 5)
        if 2 * (st + 1) > WTH:
            a(f"s_waitcnt vmcnt({WTH - 2})")
    HR = 32
    WF = HR + D2 * 8
    WP = WF + 16
    ACC = WP + 16
    assert ACC + 64 <= 256
    a("v_lshrrev_b32 v8, 5, v0")
    a("v_and_b32 v9, 15, v0")
    a("v_lshrrev_b32 v10, 2, v9")
    a("v_lshl_add_u32 v10, v8, 3, v10")
    a("v_lshlrev_b32 v10, 7, v10")
    a("v_lshrrev_b32 v11, 3, v9")
    a("v_lshl_add_u32 v10, v11, 6, v10")
    a("v_and_b32 v11, 16, v0")
    a("v_lshl_add_u32 v10, v11, 1, v10")
    a("v_and_b32 v11, 3, v0")
    a("v_lshl_add_u32 v10, v11, 3, v10")
    a("v_add_u32 v4, s77, v10")
    a("v_xor_b32 v5, 64, v4")
    a(f"v_add_u32 v6, {2*SLOT}, v4")
    a(f"v_add_u32 v7, {2*SLOT}, v5")
    def trread(st, dst):
        off = wd_lds(st)
        hi = off >= 2 * SLOT
        if hi: off -= 2 * SLOT
        for ct in range(2):
            for hf in range(2):
                a(f"ds_read_b64_tr_b16 {vr(dst + ct*4 + hf*2, 2)}, v{4 + 2*hi + ct} offset:{off + hf*512}")
    waitfor(ops, ("w", 1))
    trread(0, WP)
    trread(1, WP + 8)
    a(f"s_mul_i32 s61, s3, {NST}")
    a(f"s_mul_i32 s66, s92, {NKS}")
    a("s_add_u32 s66, s66, s61")
    a("s_lshl_b32 s66, s66, 10")
    a("v_lshlrev_b32 v12, 4, v0")
    a("v_add_u32 v2, s66, v12")
    a(f"v_add_u32 v3, {32*NKS*1024}, v2")
    a("s_cmp_eq_u32 s3, 3")
    a(f"s_cselect_b32 s72, 20, {NST}")
    get_nonce(a, "L", 30)
    issue_w(20, ops)
    issue_w(21, ops)
    stamp(a, 10)
    a("s_lshl_b32 s61, s56, 2")
    a("s_lshr_b32 s31, s57, 2")
    a("s_add_u32 s61, s61, s31")
    a(f"s_add_u32 s61, s61, {CT_G}")
    signal(a, 30, "s61")
    stamp(a, 11)
    a("s_lshr_b32 s30, s92, 1")
    a("s_lshl_b32 s30, s30, 2")
    a("s_add_u32 s30, s30, s3")
    a("s_lshl_b32 s30, s30, 7")
    a("v_mov_b32 v16, s30")
    a("s_cmp_eq_u32 s3, 3")
    a("s_cselect_b32 s30, 20, 16")
    a("s_add_u32 s30, s30, s88")
    a("v_mov_b32 v17, s30")
    if GATE:
        a("s_barrier")
    if GDEL:
        a(f"s_sleep {GDEL}")
    poll(a, "L", 16, 17, 22, sleep=LSLEEP)
    stamp(a, 12)
    ops = []
    a("s_mov_b32 s65, s94")
    def issue_h(st):
        sl = st % D2
        a("s_lshl_b32 s30, s65, 10")
        a("s_cmp_ge_u32 s65, s72")
        a("s_cselect_b32 s30, 0x10000000, s30")
        a("s_add_u32 s65, s65, 1")
        a(f"buffer_load_dwordx4 {vr(HR + sl*8, 4)}, v2, s[44:47], s30 offen sc1")
        a(f"s_cmp_eq_u32 s65, {NST}")
        a("s_cselect_b32 s65, 0, s65")
        a(f"buffer_load_dwordx4 {vr(HR + sl*8 + 4, 4)}, v3, s[44:47], s30 offen sc1")
        ops.extend([("h", st)] * 2)
    for st in range(D2):
        issue_h(st)
    def wfr(st):
        return WP + 8 * st if st < 2 else WF + 8 * (st & 1)
    for st in range(NST):
        sl = st % D2
        if 2 <= st + 1 < NST:
            trread(st + 1, wfr(st + 1))
            if st >= 2:
                a("s_waitcnt lgkmcnt(4)")
        elif st == NST - 1:
            a("s_waitcnt lgkmcnt(0)")
        waitfor(ops, ("h", st))
        if st == 0:
            stamp(a, 13)
        for rt in range(2):
            for ct in range(2):
                d = vr(ACC + 16 * (ct + 2 * rt), 16)
                c = "0" if st == 0 else d
                a(f"v_mfma_f32_32x32x16_bf16 {d}, {vr(wfr(st) + ct*4, 4)}, {vr(HR + sl*8 + 4*rt, 4)}, {c}")
        if st + D2 < NST:
            issue_h(st + D2)
        if st == KB:
            a("s_barrier")
    stamp(a, 14)
    a("v_add_u32 v4, s77, v12")
    a(f"v_add_u32 v5, {2*SLOT}, v4")
    a("s_nop 7")
    for k in range(4):
        for qd in range(4):
            a(f"ds_write_b128 v{4 + (k >> 1)}, {vr(ACC + 16*k + 4*qd, 4)} offset:{(k & 1)*SLOT + qd*1024}")
    a("s_waitcnt lgkmcnt(0)")
    a("s_barrier")
    stamp(a, 15)
    stamp_flush(a)
    a("s_endpgm")

    a.lab("P1_CONS")
    if CPF:
        a("s_cmp_lg_u32 s3, 0")
        a("s_cbranch_scc1 NOCPF")
        a("s_getpc_b64 s[84:85]")
        a.lab("CPF_PC")
        a(f"s_sub_u32 s84, s84, CPF_PC-{NAME}_kernel")
        a("s_subb_u32 s85, s85, 0")
        a(f"s_mov_b32 s86, K_END-{NAME}_kernel")
        a("s_mov_b32 s87, 0x20000")
        a("s_lshr_b32 s30, s2, 3")
        a("s_lshl_b32 s30, s30, 10")
        a("v_lshlrev_b32 v1, 7, v0")
        a("s_mov_b64 exec, 0xff")
        a("buffer_load_dword v13, v1, s[84:87], s30 offen")
        a("s_mov_b64 exec, -1")
        a.lab("NOCPF")
    a("s_lshr_b32 s66, s3, 1")
    a("s_and_b32 s67, s3, 1")
    a("v_and_b32 v1, 15, v0")
    a("v_lshrrev_b32 v2, 4, v0")
    a("v_lshrrev_b32 v3, 1, v1")
    a("v_xor_b32 v3, v3, v2")
    a("v_lshlrev_b32 v3, 4, v3")
    a("v_lshl_add_u32 v4, v1, 7, v3")
    a("v_lshrrev_b32 v3, 2, v1")
    a("v_lshl_add_u32 v3, v2, 3, v3")
    a("v_and_b32 v11, 3, v0")
    a(f"s_mov_b32 s72, {f32(C2)}")
    a(f"v_mov_b32 v10, {f32(C1)}")
    a("s_mov_b32 s68, 0")
    a(f"s_mov_b32 s82, {(-3*SLOT) & 0xffffffff}")
    a(f"s_mov_b32 s83, {SLOT}")

    def advance(regs):
        f = ["s_add_u32 s68, s68, 1",
             "s_and_b32 s30, s68, 3",
             "s_cmp_eq_u32 s30, 0",
             "s_cselect_b32 s30, s82, s83"]
        f += [f"v_add_u32 v{v}, s30, v{v}" for v in regs]
        f += ["s_cmp_eq_u32 s68, 8"]
        return f

    def cons_start():
        a("s_waitcnt lgkmcnt(0)")
        srd(a, 44, 28, 29, 0x2000000 if STAMP else WS_USED)
        stamp0()

    a("s_cmp_eq_u32 s58, 1")
    a("s_cbranch_scc1 P1_CSP")
    FS = [16, 56]
    ACC = 96
    def xf(s, rt): return FS[s] + 4 * rt
    def wf(s, i): return FS[s] + 16 + 4 * i
    a("s_lshl_b32 s30, s66, 13")
    a("v_add_u32 v4, s30, v4")
    a("v_xor_b32 v5, 64, v4")
    a("v_mul_u32_u24 v3, 192, v3")
    a("v_lshl_add_u32 v3, v11, 3, v3")
    a("s_mul_i32 s30, s67, 96")
    a(f"s_add_u32 s30, s30, {XB}")
    a("v_add_u32 v3, s30, v3")
    a("v_and_b32 v8, 1, v2")
    a("v_lshlrev_b32 v8, 5, v8")
    a("v_add_u32 v6, v3, v8")
    a("v_sub_u32 v7, v3, v8")
    a("s_cmp_eq_u32 s67, 0")
    a("s_cbranch_scc1 P1_NOSWAP")
    a("v_swap_b32 v6, v7")
    a.lab("P1_NOSWAP")
    def accF(rt, ul, mat): return ACC + 4 * ((rt * 3 + ul) * 2 + mat)
    def readsF(s, st):
        r = []
        order = [("w", 0, 0), ("x", 0, 0), ("w", 1, 0), ("x", 1, 0), ("x", 2, 0), ("x", 3, 0),
                 ("w", 0, 1), ("w", 1, 1), ("w", 0, 2), ("w", 1, 2)]
        for kind, p, ul in order:
            if kind == "x":
                r.append(f"ds_read_b128 {vr(xf(s, p), 4)}, v{4+st} offset:{p*2048}")
            else:
                base = 7 if ul == 1 else 6
                for hf in range(2):
                    off = p * WB + st * 6144 + hf * 768 + ul * 32
                    r.append(f"ds_read_b64_tr_b16 {vr(wf(s, 3*p+ul) + 2*hf, 2)}, v{base} offset:{off}")
        if opt("noread", 0): r = r[:1]
        return r
    def mfmasF(s):
        m = []
        for ul in range(3):
            for rt in range(4):
                for mat in range(2):
                    d = vr(accF(rt, ul, mat), 4)
                    m.append(f"v_mfma_f32_16x16x32_bf16 {d}, {vr(wf(s, 3*mat+ul), 4)}, {vr(xf(s, rt), 4)}, {d}")
        if opt("nomfma", 0): m = ["s_nop 0"] * len(m)
        return m
    for i in range(96):
        a(f"v_mov_b32 v{ACC+i}, 0")
    a("v_lshlrev_b32 v3, 4, v0")
    a("s_mul_i32 s69, s78, 6")
    a("s_mul_i32 s30, s67, 3")
    a("s_add_u32 s69, s69, s30")
    a("s_lshl_b32 s30, s56, 2")
    a("s_lshl_b32 s31, s66, 1")
    a("s_add_u32 s30, s30, s31")
    a(f"s_mul_i32 s30, s30, {NKS}")
    a("s_add_u32 s30, s30, s69")
    a("s_lshl_b32 s70, s30, 10")
    a(f"s_add_u32 s71, s70, {NKS*1024}")
    cons_start()
    a("s_barrier")
    stamp(a, 2)
    for r in readsF(0, 0):
        a(r)
    a.lab("P1_LOOPF")
    a("s_waitcnt lgkmcnt(0)")
    weave(a, mfmasF(0), readsF(1, 1) + advance((4, 5, 6, 7)))
    a("s_waitcnt lgkmcnt(0)")
    a("s_cbranch_scc1 P1_LASTF")
    if BPOS:
        weave(a, mfmasF(1), ["s_barrier"] + readsF(0, 0), start=BPOS, per=2)
    else:
        weave(a, mfmasF(1), ["s_barrier"] + readsF(0, 0))
    a("s_branch P1_LOOPF")
    a.lab("P1_LASTF")
    weave(a, mfmasF(1), ["s_barrier"] + req_nonce())
    stamp(a, 3)
    k = 0
    for ul in range(3):
        for uu in range(2):
            dst = 32 + 4 * k
            gelu_pair(a, accF(2*uu, ul, 0), accF(2*uu, ul, 1), accF(2*uu+1, ul, 0), accF(2*uu+1, ul, 1), 16 + 8 * (k & 1), dst)
            a(f"s_setprio {PRIO}")
            a(f"buffer_store_dwordx4 {vr(dst,4)}, v3, s[44:47], s{70 + uu} offen offset:{ul*1024} sc1")
            a("s_setprio 0")
            k += 1
    stamp(a, 4)
    get_nonce(a, "F", 12)
    a("s_mul_i32 s61, s69, 47")
    a("s_lshr_b32 s61, s61, 10")
    a("s_add_u32 s31, s69, 2")
    a("s_mul_i32 s31, s31, 47")
    a("s_lshr_b32 s31, s31, 10")
    a("s_cmp_eq_u32 s31, s61")
    a("s_cselect_b32 s64, 1, 3")
    a("s_and_b32 s31, s56, 7")
    a("s_lshl_b32 s31, s31, 3")
    a("s_add_u32 s61, s61, s31")
    a("s_lshl_b32 s31, s66, 2")
    a("s_add_u32 s61, s61, s31")
    signal(a, 12, "s61", "s64")
    if GATE:
        a("s_barrier")
    a("s_branch P2_CONS")

    a.lab("P1_CSP")
    FS = [16, 64]
    ACC = 112
    def xs(s, rt): return FS[s] + 4 * rt
    def ws_(s, i): return FS[s] + 32 + 4 * i
    a("v_xor_b32 v5, 64, v4")
    a("v_lshrrev_b32 v8, 3, v1")
    a("v_and_b32 v9, 1, v2")
    a("v_lshl_or_b32 v8, v9, 1, v8")
    a("v_xor_b32 v8, s3, v8")
    a("v_lshlrev_b32 v8, 5, v8")
    a("v_lshl_add_u32 v8, v3, 7, v8")
    a("v_lshl_add_u32 v8, v11, 3, v8")
    a(f"v_add_u32 v6, {XB}, v8")
    a("v_lshlrev_b32 v8, 5, v3")
    a("v_lshl_add_u32 v8, v9, 7, v8")
    a("v_lshl_add_u32 v8, v11, 3, v8")
    a(f"v_add_u32 v8, {XB + 16384}, v8")
    a("v_xor_b32 v9, 0x80, v8")
    a("v_and_b32 v14, 1, v0")
    a("v_mul_u32_u24 v14, 0x8000, v14")
    a("v_lshl_or_b32 v14, v14, 16, v14")
    a("v_mov_b32 v7, 0")
    def accD(st, rt, mat): return ACC + 4 * ((st * 8 + rt) * 2 + mat)
    def accS(rr, mat): return ACC + 128 + 4 * (rr * 2 + mat)
    def readsS(s, st):
        r = []
        for mat in range(2):
            for hf in range(2):
                r.append(f"ds_read_b64_tr_b16 {vr(ws_(s, mat) + 2*hf, 2)}, v6 offset:{mat*8192 + st*4096 + hf*512}")
        for mat in range(2):
            for hf in range(2):
                r.append(f"ds_read_b64_tr_b16 {vr(ws_(s, 2+mat) + 2*hf, 2)}, v{8+hf} offset:{mat*2048 + st*1024}")
        for p in range(8):
            r.append(f"ds_read_b128 {vr(xs(s, p), 4)}, v{4+st} offset:{p*2048}")
        return r
    def mfmasS(s, st):
        m = []
        for rt in range(8):
            for mat in range(2):
                d = vr(accD(st, rt, mat), 4)
                m.append(f"v_mfma_f32_16x16x32_bf16 {d}, {vr(xs(s, rt), 4)}, {vr(ws_(s, mat), 4)}, {d}")
        return m
    def allS(s, st, cw, ffn_first=False):
        m = mfmasS(s, st)
        f = []
        for rr in range(2):
            for mat in range(2):
                d = vr(accS(rr, mat), 4)
                f.append(f"v_mfma_f32_16x16x32_bf16 {d}, {vr(ws_(s, 2+mat), 4)}, {vr(xs(s, 2*cw+rr), 4)}, {d}")
        return f + m if ffn_first else m + f
    def xors(s):
        if opt("noxor", 0): return []
        return ["s_waitcnt lgkmcnt(12)"] + [f"v_xor_b32 v{ws_(s,0)+i}, v7, v{ws_(s,0)+i}" for i in range(8)]
    def weave2(mf, fill):
        n = len(mf) - 1
        fi = 0
        for i, m in enumerate(mf):
            a(m)
            want = min(len(fill), -(-len(fill) * (i + 1) // n))
            while fi < want:
                a(fill[fi]); fi += 1
    for i in range(144):
        a(f"v_mov_b32 v{ACC+i}, 0")
    a("v_cvt_f32_u32 v16, v1")
    a(f"v_mul_f32 v16, {f32(1.0/32)}, v16")
    a("v_add_f32 v17, 0.5, v16")
    a("v_lshlrev_b32 v18, 2, v2")
    a("v_cvt_f32_u32 v18, v18")
    for mt in range(2):
        for i in range(8):
            s1 = i if i < 4 else 12 + i
            a(f"v_add_f32 v19, {f32(float(s1))}, v18")
            a(f"v_mul_f32 v19, v19, v{16+mt}")
            a(f"v_cos_f32 v{20+i}, v19")
            a(f"v_sin_f32 v{28+i}, v19")
        a("s_nop 0")
        for i in range(4):
            a(f"v_cvt_pk_bf16_f32 v{40+4*mt+i}, v{20+2*i}, v{21+2*i}")
            a(f"v_cvt_pk_bf16_f32 v{48+4*mt+i}, v{28+2*i}, v{29+2*i}")
    a("v_lshlrev_b32 v3, 4, v0")
    a(f"v_add_u32 v11, {F1_LDS}, v3")
    for i in range(4):
        a(f"ds_write_b128 v11, {vr(40+4*i,4)} offset:{i*1024}")
    cons_start()
    a("s_waitcnt lgkmcnt(0)")
    a("s_barrier")
    stamp(a, 2)
    for r in readsS(0, 0):
        a(r)
    F1 = 16
    for cw in (1, 2, 3):
        a(f"s_cmp_eq_u32 s3, {cw}")
        a(f"s_cbranch_scc1 P1_LOOPS{cw}")
    for cw in range(4):
        a.lab(f"P1_LOOPS{cw}")
        a("s_waitcnt lgkmcnt(0)")
        adv = advance((4, 5, 6, 8, 9))
        weave2(allS(0, 0, cw), readsS(1, 1) + xors(1) + adv)
        a("s_waitcnt lgkmcnt(0)")
        a(f"s_cbranch_scc1 P1_LASTS{cw}")
        weave2(allS(1, 1, cw), ["s_barrier", "s_cmp_ge_u32 s68, 4", "s_cselect_b32 s30, -1, 0", "v_and_b32 v7, s30, v14"] + readsS(0, 0) + xors(0))
        a(f"s_branch P1_LOOPS{cw}")
        a.lab(f"P1_LASTS{cw}")
        for m in allS(1, 1, cw, True)[:4]:
            a(m)
        if cw != 3:
            a("s_branch P1_LASTS")
    a.lab("P1_LASTS")
    weave(a, mfmasS(1, 1), [f"ds_read_b128 {vr(F1+4*i,4)}, v11 offset:{i*1024}" for i in range(4)] + req_nonce() +
          ["s_waitcnt lgkmcnt(0)", "s_barrier"] + [f"v_xor_b32 v{F1+16+i}, 0x80008000, v{F1+i}" for i in range(8)])
    stamp(a, 3)
    a("s_lshl_b32 s30, s56, 2")
    a("s_add_u32 s30, s30, s3")
    a(f"s_mul_i32 s30, s30, {NKS}")
    a("s_add_u32 s30, s30, s59")
    a("s_add_u32 s30, s30, 84")
    a("s_lshl_b32 s70, s30, 10")
    gelu_pair(a, accS(0, 0), accS(0, 1), accS(1, 0), accS(1, 1), 40, 48)
    a(f"s_setprio {PRIO}")
    a("buffer_store_dwordx4 v[48:51], v3, s[44:47], s70 offen sc1")
    a("s_setprio 0")
    stamp(a, 10)
    a(f"s_mov_b32 s30, {4*16*EP*16}")
    a("v_mul_lo_u32 v4, v2, s30")
    a("s_lshl_b32 s30, s59, 6")
    a("s_lshl_b32 s31, s3, 4")
    a("s_add_u32 s30, s30, s31")
    a(f"v_add_u32 v6, {256*16}, v4")
    a("v_add_u32 v5, s30, v1")
    a("v_lshl_add_u32 v4, v5, 4, v4")
    a(f"s_mul_i32 s69, s56, {EP*16}")
    a(f"s_add_u32 s69, s69, 0x{C_OFF:x}")
    a("s_cmp_eq_u32 s30, 0")
    a("s_cselect_b32 s71, 1, 0")
    a("s_cselect_b32 s80, 0x00010001, 0")
    a("s_mov_b32 s81, s80")
    TM = 40
    XF = 64
    def bfr(u, sg, mat): return accD(sg, 2 * u, 0) + 4 * mat
    OUT = [None, None]
    def butterfly(u):
        r_ = []
        for st in range(2):
            for hh in range(2):
                E = accD(st, 2 * u + hh, 1)
                r_.append(f"v_cvt_pk_bf16_f32 v{XF+8*u+4*st+2*hh}, v{E}, v{E+1}")
                r_.append(f"v_cvt_pk_bf16_f32 v{XF+8*u+4*st+2*hh+1}, v{E+2}, v{E+3}")
        return r_
    def bfly(u):
        r_ = []
        for mat in range(2):
            for hh in range(2):
                E = accD(0, 2 * u + hh, mat)
                T = accD(1, 2 * u + hh, mat)
                for r in range(4):
                    r_.append(f"v_add_f32 v{TM+r}, v{E+r}, v{T+r}")
                    if mat == 0:
                        r_.append(f"v_sub_f32 v{TM+4+r}, v{E+r}, v{T+r}")
                    else:
                        r_.append(f"v_sub_f32 v{TM+4+r}, v{T+r}, v{E+r}")
                for sg in range(2):
                    b = bfr(u, sg, mat) + 2 * hh
                    r_.append(f"v_cvt_pk_bf16_f32 v{b}, v{TM+4*sg}, v{TM+4*sg+1}")
                    r_.append(f"v_cvt_pk_bf16_f32 v{b+1}, v{TM+4*sg+2}, v{TM+4*sg+3}")
        for sg in range(2):
            for i in range(4):
                b = bfr(u, sg, 1) + i
                r_.append(f"v_cndmask_b32 v{b}, v{b}, 0, s[80:81]")
        return r_
    a("s_cmp_eq_u32 s71, 0")
    a("s_cbranch_scc1 P1_NOX")
    for u in range(4):
        for x in butterfly(u):
            a(x)
    a.lab("P1_NOX")
    def outr(u, comp, mt): return accD(comp, 2 * u + 1, 0) + 4 * mt
    def st1(u, fa, fb):
        m = []
        for mt in range(2):
            m.append(f"v_mfma_f32_16x16x32_bf16 {vr(outr(u,0,mt),4)}, {vr(F1+4*mt,4)}, {vr(fa,4)}, 0")
            m.append(f"v_mfma_f32_16x16x32_bf16 {vr(outr(u,1,mt),4)}, {vr(F1+8+4*mt,4)}, {vr(fa,4)}, 0")
        for mt in range(2):
            m.append(f"v_mfma_f32_16x16x32_bf16 {vr(outr(u,0,mt),4)}, {vr(F1+8+4*mt,4)}, {vr(fb,4)}, {vr(outr(u,0,mt),4)}")
            m.append(f"v_mfma_f32_16x16x32_bf16 {vr(outr(u,1,mt),4)}, {vr(F1+16+4*mt,4)}, {vr(fb,4)}, {vr(outr(u,1,mt),4)}")
        return m
    def pack_store(addr, imm, PK):
        for mt in range(2):
            for r in range(4):
                d = PK + 4 * (r & 3) if mt == 0 else PK + 16 + 4 * (r & 3)
                a(f"v_cvt_pk_bf16_f32 v{d}, v{outr(0,0,mt)+r}, v{outr(1,0,mt)+r}")
                a(f"v_cvt_pk_bf16_f32 v{d+1}, v{outr(2,0,mt)+r}, v{outr(3,0,mt)+r}")
                a(f"v_cvt_pk_bf16_f32 v{d+2}, v{outr(0,1,mt)+r}, v{outr(1,1,mt)+r}")
                a(f"v_cvt_pk_bf16_f32 v{d+3}, v{outr(2,1,mt)+r}, v{outr(3,1,mt)+r}")
                a(f"s_add_u32 s30, s69, {(16*mt + r)*16*EP*16}")
                a(f"s_setprio {PRIO}")
                a(f"buffer_store_dwordx4 {vr(d,4)}, v{addr}, s[44:47], s30 offen offset:{imm} sc1")
                a("s_setprio 0")
    for x in bfly(0):
        a(x)
    for u in range(4):
        a("s_nop 1")
        weave(a, st1(u, bfr(u, 0, 0), bfr(u, 0, 1)), bfly(u + 1) if u < 3 else [], per=7)
    stamp(a, 11)
    get_nonce(a, "S", 12)
    a("s_and_b32 s61, s56, 7")
    a("s_lshl_b32 s61, s61, 3")
    a("s_lshl_b32 s31, s66, 2")
    a("s_add_u32 s61, s61, s31")
    a("s_add_u32 s61, s61, 3")
    signal(a, 12, "s61")
    PKA = 96
    def pack_store2(addr, imm):
        for mt in range(2):
            for r in range(4):
                d = (96 if mt == 0 else 240) + 4 * r
                a(f"v_cvt_pk_bf16_f32 v{d}, v{outr(0,0,mt)+r}, v{outr(1,0,mt)+r}")
                a(f"v_cvt_pk_bf16_f32 v{d+1}, v{outr(2,0,mt)+r}, v{outr(3,0,mt)+r}")
                a(f"v_cvt_pk_bf16_f32 v{d+2}, v{outr(0,1,mt)+r}, v{outr(1,1,mt)+r}")
                a(f"v_cvt_pk_bf16_f32 v{d+3}, v{outr(2,1,mt)+r}, v{outr(3,1,mt)+r}")
                a(f"s_add_u32 s30, s69, {(16*mt + r)*16*EP*16}")
                a(f"s_setprio {PRIO}")
                a(f"buffer_store_dwordx4 {vr(d,4)}, v{addr}, s[44:47], s30 offen offset:{imm} sc1")
                a("s_setprio 0")
    stamp(a, 12)
    pack_store2(4, 0)
    stamp(a, 13)
    for u in range(4):
        for m in st1(u, bfr(u, 1, 0), bfr(u, 1, 1)):
            a(m)
    a("s_nop 7")
    stamp(a, 14)
    pack_store2(4, 2048)
    stamp(a, 15)
    a("s_cmp_eq_u32 s71, 0")
    a("s_cbranch_scc1 P1_SEND")
    a("v_mov_b32 v7, 0x10000000")
    a("v_cndmask_b32 v6, v7, v6, s[80:81]")
    for u in range(4):
        for m in st1(u, XF + 8 * u, XF + 8 * u + 4):
            a(m)
    a("s_nop 7")
    pack_store2(6, 0)
    a.lab("P1_SEND")
    stamp(a, 4)
    a("s_lshl_b32 s61, s59, 2")
    a("s_add_u32 s61, s61, s3")
    a(f"s_add_u32 s61, s61, {CT_C}")
    signal(a, 12, "s61")
    if GATE:
        a("s_barrier")

    a.lab("P2_CONS")
    a("s_add_u32 s30, s88, 16")
    a("v_mov_b32 v56, s30")
    stamp(a, 5)
    p2_ids(a)
    srd(a, 48, 24, 25, 2048 * 1024)
    YA, CF, MF, PR, GV = 64, 80, 112, 144, 60
    a("v_lshrrev_b32 v8, 5, v0")
    a("v_and_b32 v9, 31, v0")
    a("s_lshl_b32 s31, s93, 6")
    a("s_lshl_b32 s61, s67, 5")
    a("s_add_u32 s31, s31, s61")
    a("s_lshl_b32 s30, s66, 5")
    a("s_add_u32 s30, s30, s92")
    a("v_lshlrev_b32 v12, 6, v9")
    a("v_add_u32 v12, s30, v12")
    a("v_lshlrev_b32 v11, 2, v12")
    a("s_lshr_b32 s64, s30, 2")
    a("s_sub_u32 s61, 32, s92")
    a("s_and_b32 s61, s61, 31")
    a("s_sub_u32 s65, 481, s31")
    a("s_cmp_ge_u32 s93, 4")
    a("s_cselect_b32 s69, s61, s92")
    a("s_cselect_b64 vcc, -1, 0")
    a("s_cselect_b32 s73, 1.0, -1.0")
    a("s_cselect_b32 s65, s65, s31")
    a("v_add_u32 v4, s31, v9")
    a("v_sub_u32 v5, 0x200, v4")
    a("v_cndmask_b32 v4, v4, v5, vcc")
    a("v_lshrrev_b32 v6, 4, v0")
    a("v_lshlrev_b32 v6, 4, v6")
    a("v_min_u32 v6, 31, v6")
    a("v_add_u32 v6, s65, v6")
    for v in (4, 6):
        a(f"v_sub_u32 v5, 384, v{v}")
        a(f"v_cmp_gt_u32 vcc, 128, v{v}")
        a("s_nop 1")
        a(f"v_cndmask_b32 v{v}, v5, v{v}, vcc")
    a(f"v_mul_u32_u24 v5, {8*EP}, v8")
    a("v_add_u32 v4, v4, v5")
    a("v_lshlrev_b32 v4, 4, v4")
    a(f"s_mul_i32 s69, s69, {16*EP*16}")
    a(f"s_add_u32 s69, s69, 0x{C_OFF:x}")
    a("v_bfe_u32 v6, v6, 4, 3")
    a(f"v_add_u32 v6, {CT_C}, v6")
    a(f"s_add_u32 s61, s30, {CT_G}")
    a("v_mov_b32 v5, s61")
    a("v_cmp_gt_u32 vcc, 48, v0")
    a("s_nop 1")
    a("v_cndmask_b32 v6, v5, v6, vcc")
    a("v_lshlrev_b32 v6, 7, v6")
    a("v_cvt_f32_u32 v9, v12")
    a(f"v_mul_f32 v9, {f32(1.0/2048)}, v9")
    a("v_mul_f32 v9, s73, v9")
    a("v_lshlrev_b32 v10, 5, v8")
    a("v_cvt_f32_u32 v10, v10")
    a("v_mul_f32 v10, v10, v9")
    T = 16
    for i in range(8):
        for c in range(4):
            a(f"v_cos_f32 v{T+c}, v10")
            a(f"v_sin_f32 v{T+4+c}, v10")
            a("v_add_f32 v10, v10, v9")
        for c in range(4):
            a(f"v_cvt_pk_bf16_f32 v{MF+4*i+c}, v{T+2*c}, v{T+2*c+1}")
    a("v_lshlrev_b32 v12, 10, v12")
    a("v_lshl_add_u32 v12, v8, 4, v12")
    a("s_lshl_b32 s31, s31, 1")
    a("v_add_u32 v12, s31, v12")
    a(f"s_mul_i32 s30, s3, {SLOT}")
    a("v_lshlrev_b32 v5, 4, v0")
    a("v_add_u32 v5, s30, v5")
    stamp(a, 6)
    a("s_barrier")
    poll(a, "C", 6, 56, 58, sleep=opt("csleep", 4))
    stamp(a, 7)
    for i in range(8):
        a(f"s_add_u32 s70, s69, {i*EP*16}")
        a(f"buffer_load_dwordx4 {vr(CF + 4*i, 4)}, v4, s[44:47], s70 offen sc1")
    a(f"s_mov_b32 s70, 0x{G_OFF:x}")
    a(f"buffer_load_dword v{GV}, v11, s[44:47], s70 offen sc1")
    for i in range(8):
        a(f"s_waitcnt vmcnt({8 - i})")
        c = "0" if i == 0 else vr(YA, 16)
        a(f"v_mfma_f32_32x32x16_bf16 {vr(YA,16)}, {vr(CF+4*i,4)}, {vr(MF+4*i,4)}, {c}")
    a("s_waitcnt vmcnt(0)")
    a(f"v_sub_f32 v{GV+1}, 1.0, v{GV}")
    a(f"v_cvt_pk_bf16_f32 v{GV+1}, v{GV+1}, v{GV+1}")
    a(f"v_lshlrev_b32 v{GV+1}, 16, v{GV+1}")
    a("s_nop 7")
    for r in range(16):
        a(f"v_mul_f32 v{YA+r}, v{GV}, v{YA+r}")
    stamp(a, 8)
    a("s_barrier")
    for qd in range(4):
        for w in range(4):
            a(f"ds_read_b128 {vr(PR + 16*w + 4*qd, 4)}, v5 offset:{w*PIECE + qd*1024}")
    for qd in range(4):
        a(f"s_waitcnt lgkmcnt({12 - 4*qd})")
        for r in range(4*qd, 4*qd + 4):
            a(f"v_add_f32 v{PR+r}, v{PR+r}, v{PR+16+r}")
            a(f"v_add_f32 v{PR+32+r}, v{PR+32+r}, v{PR+48+r}")
        for r in range(4*qd, 4*qd + 4):
            a(f"v_add_f32 v{PR+r}, v{PR+r}, v{PR+32+r}")
        for r in range(4*qd, 4*qd + 4):
            a(f"v_fma_f32 v{YA+r}, v{GV+1}, v{PR+r}, v{YA+r}")
        a(f"v_cvt_pk_bf16_f32 v{16+2*qd}, v{YA+4*qd}, v{YA+4*qd+1}")
        a(f"v_cvt_pk_bf16_f32 v{17+2*qd}, v{YA+4*qd+2}, v{YA+4*qd+3}")
        if qd & 1:
            k = 16 + 2 * (qd - 1)
            a("s_nop 1")
            a(f"v_permlane32_swap_b32 v{k}, v{k+2}")
            a(f"v_permlane32_swap_b32 v{k+1}, v{k+3}")
            a(f"buffer_store_dwordx4 {vr(k,4)}, v12, s[48:51], 0 offen offset:{16*(qd-1)}")
    stamp(a, 9)
    stamp_flush(a)
    a.lab("K_END")
    a("s_endpgm")

HEADER = open("cdna_kernels/" + NAME + ".s.ref").read().split("; Override launch")[0]

def main():
    nm = NAME + "_kernel"
    out = HEADER
    out += f"; @launch grid=(256,1,1) block=(512,1,1) lds={4*SLOT}\n"
    out += '.amdgcn_target "amdgcn-amd-amdhsa--gfx950"\n.text\n'
    a = Asm()
    out += f".globl {nm}\n.p2align 8\n.type {nm},@function\n"
    kernel(a)
    out += a.text()
    out += f""".section .rodata,"a"
.p2align 6
.amdhsa_kernel {nm}
  .amdhsa_next_free_vgpr 256
  .amdhsa_next_free_sgpr 102
  .amdhsa_accum_offset 256
  .amdhsa_group_segment_fixed_size 0
  .amdhsa_kernarg_size 104
  .amdhsa_user_sgpr_count 2
  .amdhsa_user_sgpr_kernarg_segment_ptr 1
  .amdhsa_system_sgpr_workgroup_id_x 1
.end_amdhsa_kernel
"""
    path = [x for x in sys.argv[1:] if not x.startswith("--")][0]
    open(path, "w").write(out)

main()
```

```python
import sys, math, struct

NAME = "gated_mix__spectral_fnet__geglu_ffn__prompt"
STAMP = "--stamp" in sys.argv
def opt(name, default):
    for x in sys.argv:
        if x.startswith("--" + name + "="):
            return int(x.split("=")[1])
    return default
RA = opt("ra", 1); RB = opt("rb", 2); RM = opt("rm", 6)
RJ = opt("rj", 3); RI = opt("ri", 6)
NPRE = opt("npre", 0)
D2 = opt("d2", 7)
WTH = opt("wth", 64)
PRIO = opt("prio", 3)
EPRIO = opt("eprio", 1)
KB = opt("kb", 10)
LA2 = opt("la2", 9)
N0A = opt("n0a", 3)
N0B = opt("n0b", 2)
WNT = "nt" if opt("wnt", 0) else ""
XNT = "nt" if opt("xnt", 0) else ""
PK = opt("pk", 1)
N1 = opt("n1", 20)
DIRECT = opt("direct", 4)
TAILV = opt("tailv", 1)
LAI = opt("lai", 7)
LAS = opt("las", 9)
BPOS = opt("bpos", 8)
GATE = opt("gate", 0)
GDEL = opt("gdel", 0)
CPF = opt("cpf", 1)
PFW = opt("pfw", 1)
LSLEEP = opt("lsleep", 2)
SPINMAX = 400000

NKS = 86
EP = 264
C_OFF = 0x600000
G_OFF = 0x8e0000
FL_OFF = 0x910000
CT_H, CT_G, CT_C = 0, 64, 128
NREP = 32
WS_USED = 0x920000
ST_OFF = 0x1000000

def f32(x):
    return "0x%08x" % struct.unpack("<I", struct.pack("<f", x))[0]

class Asm:
    def __init__(self):
        self.l = []
    def __call__(self, s):
        self.l.append("    " + s)
    def lab(self, s):
        self.l.append(s + ":")
    def text(self):
        return "\n".join(self.l) + "\n"

def vr(b, n=1):
    return f"v{b}" if n == 1 else f"v[{b}:{b+n-1}]"

def srd(a, d, lo, hi, nbytes):
    a(f"s_mov_b32 s{d}, s{lo}")
    a(f"s_mov_b32 s{d+1}, s{hi}")
    a(f"s_mov_b32 s{d+2}, 0x{nbytes:x}")
    a(f"s_mov_b32 s{d+3}, 0x20000")

SV = 15
def stamp(a, idx):
    if not STAMP:
        return
    a("s_memrealtime s[62:63]")
    a("s_waitcnt lgkmcnt(0)")
    a(f"v_writelane_b32 v{SV}, s62, {idx}")

def stamp_flush(a):
    if not STAMP:
        return
    a("s_lshl_b32 s60, s2, 3")
    a("s_add_u32 s60, s60, s95")
    a("s_lshl_b32 s60, s60, 8")
    a(f"s_add_u32 s60, s60, 0x{ST_OFF:x}")
    a("v_lshlrev_b32 v14, 2, v0")
    a(f"buffer_store_dword v{SV}, v14, s[44:47], s60 offen")

def weave(a, mf, fill, start=0, per=1):
    fi = 0
    for i, m in enumerate(mf):
        a(m)
        if i >= start:
            for _ in range(per):
                if fi < len(fill):
                    a(fill[fi]); fi += 1
    while fi < len(fill):
        a(fill[fi]); fi += 1

C1 = -2.0 * math.sqrt(2.0 / math.pi) * math.log2(math.e)
C2 = C1 * 0.044715

def gelu8(G, U, t, dst, swap):
    r = []
    for i in range(0, 8, 2): r.append(f"v_pk_mul_f32 {vr(t+i,2)}, {vr(G[i],2)}, {vr(G[i],2)}")
    for i in range(0, 8, 2): r.append(f"v_pk_fma_f32 {vr(t+i,2)}, {vr(t+i,2)}, s[72:73], v[10:11] op_sel_hi:[1,0,0]")
    for i in range(0, 8, 2): r.append(f"v_pk_mul_f32 {vr(t+i,2)}, {vr(t+i,2)}, {vr(G[i],2)}")
    for i in range(8):
        r.append(f"v_exp_f32 v{t+i}, v{t+i}")
        if i & 1: r.append(f"v_pk_mul_f32 {vr(G[i-1],2)}, {vr(G[i-1],2)}, {vr(U[i-1],2)}")
    for i in range(0, 8, 2): r.append(f"v_pk_add_f32 {vr(t+i,2)}, {vr(t+i,2)}, 1.0 op_sel_hi:[1,0]")
    for i in range(8): r.append(f"v_rcp_f32 v{t+i}, v{t+i}")
    for i in range(0, 8, 2): r.append(f"v_pk_mul_f32 {vr(G[i],2)}, {vr(G[i],2)}, {vr(t+i,2)}")
    for i in range(4): r.append(f"v_cvt_pk_bf16_f32 v{dst+i}, v{G[2*i]}, v{G[2*i+1]}")
    r.append("s_nop 1")
    r.append(f"v_permlane{swap}_swap_b32 v{dst}, v{dst+2}")
    r.append(f"v_permlane{swap}_swap_b32 v{dst+1}, v{dst+3}")
    return r

def gelu_pair(a, g0, u0, g1, u1, t, dst):
    G = [g0 + i for i in range(4)] + [g1 + i for i in range(4)]
    U = [u0 + i for i in range(4)] + [u1 + i for i in range(4)]
    for x in gelu8(G, U, t, dst, 16):
        a(x)

SLOT = 40960
XB = 16384
WB = 12288
F1_LDS = 3 * SLOT + 36864
NST = 22
PIECE = 10240


def p2_ids(a):
    a("s_and_b32 s30, s2, 7")
    a("s_lshr_b32 s31, s2, 3")
    a("s_lshr_b32 s93, s31, 2")
    a("s_and_b32 s31, s31, 3")
    a(f"s_mul_i32 s94, s31, {RI}")
    a("s_sub_u32 s61, 0, s30")
    a("s_bitcmp1_b32 s31, 0")
    a("s_cselect_b32 s92, s61, s30")
    a("s_cselect_b32 s61, 8, 0")
    a("s_cmp_eq_u32 s30, 0")
    a("s_cselect_b32 s92, s61, s92")
    a("s_lshr_b32 s31, s31, 1")
    a("s_lshl_b32 s31, s31, 4")
    a("s_add_u32 s92, s92, s31")
    a("s_and_b32 s92, s92, 31")
    a(f"s_mul_i32 s30, s93, {RJ}")
    a("s_add_u32 s94, s94, s30")
    a(f"s_sub_u32 s30, s94, {NST}")
    a(f"s_cmp_ge_u32 s94, {NST}")
    a("s_cselect_b32 s94, s30, s94")

def req_nonce():
    return ["s_load_dword s88, s[26:27], 0"]

def get_nonce(a, tag, vt):
    a("s_waitcnt lgkmcnt(0)")
    a("s_cmp_lg_u32 s88, 0")
    a(f"s_cbranch_scc1 NOK{tag}")
    srd(a, 48, 26, 27, 256)
    a("s_mov_b32 s61, 0")
    a.lab(f"NL{tag}")
    a(f"buffer_load_dword v{vt}, off, s[48:51], 0 sc1")
    a("s_add_u32 s61, s61, 1")
    a("s_waitcnt vmcnt(0)")
    a(f"v_readfirstlane_b32 s88, v{vt}")
    a(f"s_cmp_gt_u32 s61, {SPINMAX}")
    a(f"s_cbranch_scc1 NOK{tag}")
    a("s_cmp_eq_u32 s88, 0")
    a(f"s_cbranch_scc1 NL{tag}")
    a.lab(f"NOK{tag}")

def signal(a, vt, sidx, smask=None, cnt=0, lo=None):
    a(f"s_lshl_b32 s30, {sidx}, 7")
    a(f"s_add_u32 s30, s30, 0x{FL_OFF:x}")
    a(f"v_mov_b32 v{vt}, 1")
    a(f"v_lshlrev_b32 v{vt+1}, 7, v0")
    a(f"s_waitcnt vmcnt({cnt})")
    if smask is None:
        a("s_mov_b64 exec, 1")
    else:
        a(f"s_mov_b32 exec_lo, {smask}")
        a("s_mov_b32 exec_hi, 0")
    a(f"s_setprio {PRIO}")
    a(f"buffer_atomic_add v{vt}, v{vt+1}, s[44:47], s30 offen sc1")
    a(f"s_setprio {EPRIO if lo is None else lo}")
    a("s_mov_b64 exec, -1")

def poll(a, tag, vaddr, vexp, vt, mask, sleep=0):
    a(f"s_mov_b32 s30, 0x{FL_OFF:x}")
    a("s_mov_b32 s61, 0")
    a(f"s_mov_b32 exec_lo, 0x{mask & 0xffffffff:x}")
    a(f"s_mov_b32 exec_hi, 0x{mask >> 32:x}")
    a.lab(f"PL{tag}")
    a(f"v_mov_b32 v{vt}, 0")
    a(f"buffer_atomic_add v{vt}, v{vaddr}, s[44:47], s30 offen sc0 sc1")
    a("s_add_u32 s61, s61, 1")
    a(f"s_cmp_gt_u32 s61, {SPINMAX}")
    a("s_waitcnt vmcnt(0)")
    a(f"s_cbranch_scc1 PD{tag}")
    a(f"v_cmp_ne_u32 vcc, v{vt}, v{vexp}")
    if sleep:
        a(f"s_cbranch_vccz PD{tag}")
        a(f"s_sleep {sleep}")
        a(f"s_branch PL{tag}")
    else:
        a(f"s_cbranch_vccnz PL{tag}")
    a.lab(f"PD{tag}")
    a("s_mov_b64 exec, -1")

def kernel(a):
    a.lab(NAME + "_kernel")
    a("s_cmp_ge_u32 s2, 256")
    a("s_cbranch_scc1 K_END")
    a("s_load_dwordx2 s[32:33], s[0:1], 0")
    a("s_load_dwordx16 s[4:19], s[0:1], 0")
    a("s_load_dwordx8 s[20:27], s[0:1], 64")
    a("s_load_dwordx2 s[28:29], s[0:1], 96")
    if STAMP:
        a("s_memrealtime s[90:91]")
    a("v_lshrrev_b32 v1, 6, v0")
    a("v_and_b32 v0, 63, v0")
    a("v_readfirstlane_b32 s95, v1")
    a("s_lshr_b32 s31, s2, 3")
    a("s_and_b32 s56, s2, 1")
    a("s_lshl_b32 s56, s56, 3")
    a("s_and_b32 s74, s31, 7")
    a("s_add_u32 s56, s56, s74")
    a("s_and_b32 s57, s2, 6")
    a("s_lshl_b32 s57, s57, 1")
    a("s_lshr_b32 s75, s31, 3")
    a("s_add_u32 s57, s57, s75")
    a(f"s_mul_i32 s74, s74, {RA}")
    a(f"s_mul_i32 s75, s75, {RB}")
    a("s_add_u32 s74, s74, s75")
    a(f"s_and_b32 s74, s74, {RM}")
    a("s_and_b32 s30, s57, 7")
    a("s_cmp_eq_u32 s30, 3")
    a("s_cselect_b32 s58, 1, 0")
    a("s_lshr_b32 s59, s57, 3")
    a("s_cmp_gt_u32 s30, 3")
    a("s_cselect_b32 s30, 1, 0")
    a("s_add_u32 s30, s30, s59")
    a("s_sub_u32 s78, s57, s30")
    a("s_and_b32 s3, s95, 3")
    if STAMP:
        a(f"v_mov_b32 v{SV}, -1")
    a("s_cmp_ge_u32 s95, 4")
    a("s_cbranch_scc1 P1_CONS")
    a("v_lshrrev_b32 v3, 3, v0")
    a("v_and_b32 v8, 7, v0")
    a("v_lshrrev_b32 v9, 4, v0")
    a("s_lshl_b32 s30, s56, 2")
    a("s_add_u32 s30, s30, s3")
    a("s_lshl_b32 s79, s30, 10")
    a("s_lshl_b32 s66, s3, 12")
    a("s_lshl_b32 s70, s74, 7")
    a("s_cmp_eq_u32 s58, 1")
    a("s_cbranch_scc1 P1_LSP")

    def stamp0():
        if STAMP:
            a(f"v_writelane_b32 v{SV}, s90, 0")
            stamp(a, 1)

    def gload(ops):
        srd(a, 48, 22, 23, 1024)
        a("s_lshl_b32 s30, s57, 3")
        a("s_lshl_b32 s31, s3, 1")
        a("s_add_u32 s30, s30, s31")
        a("s_lshr_b32 s31, s30, 5")
        a("s_and_b32 s30, s30, 31")
        a("s_lshl_b32 s30, s30, 6")
        a("s_add_u32 s30, s30, s31")
        a("s_lshl_b32 s31, s56, 2")
        a("s_add_u32 s64, s30, s31")
        a("s_lshl_b32 s30, s64, 10")
        a("s_add_u32 s31, s30, 0x10000")
        a("v_lshlrev_b32 v12, 4, v0")
        a("buffer_load_dwordx4 v[64:67], v12, s[48:51], 0 offen")
        a("buffer_load_dwordx4 v[68:71], v12, s[32:35], s30 offen")
        a("buffer_load_dwordx4 v[72:75], v12, s[32:35], s31 offen")
        ops.extend(["g"] * 3)

    def gcalc(ops):
        T = 76
        waitfor(ops, "g")
        for rr in range(2):
            xb = 68 + 4 * rr
            acc = T + 4 + rr
            for d in range(4):
                a(f"v_lshlrev_b32 v{T}, 16, v{xb+d}")
                a(f"v_and_b32 v{T+1}, 0xffff0000, v{xb+d}")
                a(f"v_lshlrev_b32 v{T+2}, 16, v{64+d}")
                a(f"v_and_b32 v{T+3}, 0xffff0000, v{64+d}")
                a(f"v_mul_f32 v{T}, v{T}, v{T+2}")
                a(f"v_mul_f32 v{T+1}, v{T+1}, v{T+3}")
                a(f"v_cvt_pk_bf16_f32 v{T}, v{T}, v{T+1}")
                a(f"v_and_b32 v{T+1}, 0xffff0000, v{T}")
                a(f"v_lshlrev_b32 v{T}, 16, v{T}")
                if d == 0:
                    a(f"v_add_f32 v{acc}, v{T}, v{T+1}")
                else:
                    a(f"v_add_f32 v{acc}, v{acc}, v{T}")
                    a(f"v_add_f32 v{acc}, v{acc}, v{T+1}")
        A, B = T + 4, T + 5
        for sh in (8, 4, 2, 1):
            a("s_nop 1")
            a(f"v_add_f32_dpp v{A}, v{A}, v{A} row_ror:{sh} row_mask:0xf bank_mask:0xf")
            a(f"v_add_f32_dpp v{B}, v{B}, v{B} row_ror:{sh} row_mask:0xf bank_mask:0xf")
        a("s_nop 1")
        a(f"v_add_f32_dpp v{A}, v{A}, v{A} row_bcast:15 row_mask:0xa bank_mask:0xf")
        a(f"v_add_f32_dpp v{B}, v{B}, v{B} row_bcast:15 row_mask:0xa bank_mask:0xf")
        a("s_nop 1")
        a(f"v_add_f32_dpp v{A}, v{A}, v{A} row_bcast:31 row_mask:0xc bank_mask:0xf")
        a(f"v_add_f32_dpp v{B}, v{B}, v{B} row_bcast:31 row_mask:0xc bank_mask:0xf")
        a("s_nop 1")
        a(f"v_cvt_pk_bf16_f32 v{A}, v{A}, v{B}")
        a(f"v_and_b32 v{B}, 0xffff0000, v{A}")
        a(f"v_lshlrev_b32 v{A}, 16, v{A}")
        a(f"v_mul_f32 v{A}, {f32(-math.log2(math.e))}, v{A}")
        a(f"v_mul_f32 v{B}, {f32(-math.log2(math.e))}, v{B}")
        a(f"v_exp_f32 v{A}, v{A}")
        a(f"v_exp_f32 v{B}, v{B}")
        a("s_nop 0")
        a(f"v_add_f32 v{A}, 1.0, v{A}")
        a(f"v_add_f32 v{B}, 1.0, v{B}")
        a(f"v_rcp_f32 v{A}, v{A}")
        a(f"v_rcp_f32 v{B}, v{B}")
        a("s_nop 0")
        a(f"v_cvt_pk_bf16_f32 v{A}, v{A}, v{B}")
        a(f"v_and_b32 v{B}, 0xffff0000, v{A}")
        a(f"v_lshlrev_b32 v{A}, 16, v{A}")

    def gstore():
        a("s_lshl_b32 s30, s56, 4")
        a("s_add_u32 s30, s30, s57")
        a("s_lshl_b32 s30, s30, 2")
        a("s_add_u32 s30, s30, s3")
        a("s_lshl_b32 s30, s30, 7")
        a(f"s_add_u32 s30, s30, 0x{G_OFF:x}")
        a("s_mov_b32 exec_lo, 0")
        a("s_brev_b32 exec_hi, 1")
        a("buffer_store_dwordx2 v[80:81], off, s[44:47], s30 sc1")
        a("s_mov_b64 exec, -1")

    def wd_setup():
        p2_ids(a)
        srd(a, 52, 20, 21, 1376 * 1024)
        a("v_lshlrev_b32 v29, 1, v3")
        a("v_and_b32 v29, 4, v29")
        a("v_xor_b32 v29, v29, v8")
        a("v_lshlrev_b32 v29, 4, v29")
        a("v_lshl_add_u32 v29, v3, 10, v29")
        a(f"s_mul_i32 s30, s3, {NST*16384}")
        a("s_lshl_b32 s31, s93, 7")
        a("s_add_u32 s30, s30, s31")
        a("v_add_u32 v29, s30, v29")
        a("s_mov_b32 s65, s94")
        a(f"s_mul_i32 s77, s3, {PIECE}")

    def wd_lds(st):
        s = st % 20
        return (s // 5) * SLOT + (s % 5) * 2048

    def issue_w(st, ops):
        a(f"s_add_u32 m0, s77, {wd_lds(st)}")
        a("s_lshl_b32 s30, s65, 14")
        a("s_add_u32 s31, s30, 7168")
        a("buffer_load_dwordx4 v29, s[52:55], s30 offen lds")
        a("s_add_u32 s65, s65, 1")
        a(f"s_cmp_eq_u32 s65, {NST}")
        a("s_cselect_b32 s65, 0, s65")
        a("buffer_load_dwordx4 v29, s[52:55], s31 offen offset:1024 lds")
        ops.extend([("w", st)] * 2)

    def waitfor(ops, key):
        last = max(i for i, o in enumerate(ops) if o == key)
        a(f"s_waitcnt vmcnt({len(ops) - 1 - last})")

    def capture(fn):
        save = a.l
        a.l = []
        fn()
        lines, a.l = a.l, save
        groups, cur = [], []
        for ln in lines:
            cur.append(ln)
            if ln.strip().startswith("buffer_"):
                groups.append(cur); cur = []
        if cur:
            groups[-1].extend(cur)
        return groups

    def pf_wd():
        a("s_lshr_b32 s30, s2, 3")
        a("s_lshl_b32 s30, s30, 2")
        a("s_add_u32 s30, s30, s3")
        a(f"s_mul_i32 s30, s30, {86*128}")
        a("v_lshlrev_b32 v12, 7, v0")
        a("buffer_load_dword v82, v12, s[52:55], s30 offen")
        a("s_add_u32 s30, s30, 8192")
        a("s_mov_b64 exec, 0x3fffff")
        a("buffer_load_dword v83, v12, s[52:55], s30 offen")
        a("s_mov_b64 exec, -1")

    def merge(groups):
        return [sum(groups, [])]

    def loader_loop(issue, commit, lai):
        items = []
        for s in range(8):
            items += [(("s", s), 1, g) for g in capture(lambda: issue(s, []))]
        if DIRECT:
            for st in range(DIRECT):
                items += [(("w", st), 2, g) for g in merge(capture(lambda: issue_w(st, [])))]
        else:
            items += [("pf", 2, g) for g in merge(capture(pf_wd))]
        ops = []
        pos = 0
        for b in range(8):
            DG = opt("diag5", 0) and b == 5
            if DG: a("s_memtime s[96:97]")
            nxt = [i for i, it in enumerate(items) if it[0] == ("s", b + 1)]
            upto = len(items) if b == 7 else nxt[min(lai, len(nxt)) - 1] + 1
            while pos < upto:
                a.l.extend(items[pos][2]); ops.extend([items[pos][0]] * items[pos][1]); pos += 1
            if b == 0:
                wd_setup()
            if DG: a("s_memtime s[98:99]")
            waitfor(ops, ("s", b))
            if DG: a("s_memtime s[100:101]")
            commit(b)
            if DG: a("s_memtime s[62:63]")
            if opt("lstamp", 1): stamp(a, 2 + b)
            a("s_barrier")
            if DG:
                a("s_memtime s[82:83]")
                a("s_waitcnt lgkmcnt(0)")
                a("s_sub_u32 s82, s82, s62"); a("s_sub_u32 s62, s62, s100"); a("s_sub_u32 s100, s100, s98"); a("s_sub_u32 s98, s98, s96")
                for k, r in enumerate((98, 100, 62, 82)):
                    a(f"s_add_u32 s{r}, s{r}, s90")
                    a(f"v_writelane_b32 v{SV}, s{r}, {24+k}")
            if b == 5:
                for x in req_nonce():
                    a(x)
        assert pos == len(items)
        a("s_branch P2_LOAD")

    a("v_xor_b32 v10, v9, v8")
    a("v_lshlrev_b32 v10, 4, v10")
    a("v_lshlrev_b32 v11, 16, v3")
    a("v_add3_u32 v4, v10, v11, s79")
    a("v_xor_b32 v5, 64, v4")
    a(f"v_add_u32 v5, {(8 << 16) - 1024}, v5")
    a(f"v_add_u32 v6, {2*((8 << 16) - 1024)}, v4")
    a(f"v_add_u32 v7, {2*((8 << 16) - 1024)}, v5")
    a(f"s_mov_b32 s34, 0x{2048*1024:x}")
    a("s_mov_b32 s35, 0x20000")
    a("s_mov_b32 m0, s66")
    def wsetup():
        a(f"s_mul_i32 s30, s3, {16*2752}")
        a("s_mul_i32 s31, s78, 192")
        a("s_add_u32 s30, s30, s31")
        a("s_movk_i32 s31, 2560")
        a("v_mul_u32_u24 v11, 171, v0")
        a("v_lshl_add_u32 v10, v0, 4, s30")
        a("v_lshrrev_b32 v12, 11, v11")
        a("v_mad_u32_u24 v24, v12, s31, v10")
        a(f"v_add_u32 v12, {64*171}, v11")
        a("v_lshrrev_b32 v12, 11, v12")
        a("v_and_b32 v25, 32, v0")
        a("v_xor_b32 v25, v25, v10")
        a("v_mad_u32_u24 v25, v12, s31, v25")
        a(f"v_add_u32 v12, {128*171}, v11")
        a("v_lshrrev_b32 v12, 11, v12")
        a("v_xor_b32 v26, 32, v10")
        a("v_mad_u32_u24 v26, v12, s31, v26")
        a("s_mul_i32 s67, s3, 3072")
        a(f"s_add_u32 s67, s67, {XB}")
        a(f"s_add_u32 s68, s67, {WB}")
        a(f"s_mul_i32 s71, s74, {64*2752}")
    wsetup()
    a("s_waitcnt lgkmcnt(0)")
    stamp0()

    def publishF(b):
        if b != 1:
            return
        a("s_or_b32 s76, s2, s3")
        a("s_cbranch_scc1 NOPUB")
        a("v_mov_b32 v16, 1")
        srd(a, 48, 26, 27, 256)
        a("s_mov_b64 exec, 1")
        a("buffer_store_dword v16, off, s[48:51], 0 sc0 sc1")
        a("s_mov_b64 exec, -1")
        a.lab("NOPUB")

    def issueF(stage, ops):
        sl = (stage % 4) * SLOT
        if stage:
            a(f"s_add_u32 m0, s66, {sl}")
            a("s_nop 0")
        for j in range(4):
            a(f"buffer_load_dwordx4 v{4+j}, s[32:35], s70 offen offset:{j*1024} {XNT} lds")
        if stage == 0:
            srd(a, 36, 16, 17, 512 * 2752)
        a(f"s_add_u32 m0, s67, {sl}")
        a("s_add_u32 s74, s74, 1")
        for jj in range(3):
            a(f"buffer_load_dwordx4 v{24+jj}, s[36:39], s71 offen offset:{jj*1024} {WNT} lds")
        if stage == 0:
            srd(a, 40, 18, 19, 512 * 2752)
        a(f"s_add_u32 m0, s68, {sl}")
        a("s_and_b32 s74, s74, 7")
        for jj in range(3):
            a(f"buffer_load_dwordx4 v{24+jj}, s[40:43], s71 offen offset:{jj*1024} {WNT} lds")
        a("s_lshl_b32 s70, s74, 7")
        a(f"s_mul_i32 s71, s74, {64*2752}")
        if stage == 0:
            srd(a, 44, 28, 29, 0x2000000 if STAMP else WS_USED)
        ops.extend([("s", stage)] * 10)

    loader_loop(issueF, publishF, LAI)

    a.lab("P1_LSP")
    a("v_lshlrev_b32 v10, 4, v8")
    a("v_lshlrev_b32 v11, 16, v3")
    a("v_add3_u32 v4, v10, v11, s79")
    a("s_and_b32 s30, s3, 1")
    a("s_lshl_b32 s30, s30, 5")
    a("s_lshr_b32 s31, s3, 1")
    a("s_add_u32 s30, s30, s31")
    a("s_lshl_b32 s30, s30, 10")
    a("s_lshl_b32 s31, s59, 7")
    a("s_add_u32 s30, s30, s31")
    a("v_and_b32 v10, 2, v3")
    a("v_xor_b32 v10, v10, v8")
    a("v_lshlrev_b32 v10, 4, v10")
    a("v_lshlrev_b32 v11, 11, v3")
    a("v_add3_u32 v24, v10, v11, s30")
    a("v_xor_b32 v25, 64, v24")
    a("v_lshrrev_b32 v10, 1, v0")
    a("s_lshl_b32 s30, s3, 1")
    a("s_and_b32 s30, s30, 4")
    a("v_xor_b32 v10, s30, v10")
    a(f"v_mul_u32_u24 v10, {2*2752}, v10")
    a("v_and_b32 v11, 1, v0")
    a("v_lshlrev_b32 v11, 4, v11")
    a("s_and_b32 s30, s3, 1")
    a("s_mul_i32 s30, s30, 2752")
    a("s_lshl_b32 s31, s59, 5")
    a("s_add_u32 s30, s30, s31")
    a(f"s_add_u32 s30, s30, {1344*2}")
    a("v_add3_u32 v26, v10, v11, s30")
    a("s_lshl_b32 s67, s3, 11")
    a(f"s_add_u32 s67, s67, {XB}")
    a("s_add_u32 s68, s67, 8192")
    a("s_lshl_b32 s69, s3, 10")
    a(f"s_add_u32 s69, s69, {XB + 16384}")
    a("s_lshl_b32 s71, s74, 16")
    a(f"s_mul_i32 s75, s74, {64*2752}")
    a(f"s_mov_b32 s34, 0x{2048*1024:x}")
    a("s_mov_b32 s35, 0x20000")
    a("s_waitcnt lgkmcnt(0)")
    stamp0()

    def issueS(stage, ops):
        sl = (stage % 4) * SLOT
        xr = 32 + 16 * (stage & 1)
        n = 0
        for j in range(4):
            if j:
                a(f"s_add_u32 s30, s70, {j * 8 * 65536}")
            a(f"buffer_load_dwordx4 {vr(xr+4*j,4)}, v4, s[32:35], {'s30' if j else 's70'} offen")
            n += 1
        a("s_add_u32 s74, s74, 1")
        if stage == 0:
            srd(a, 36, 10, 11, 512 * 1024)
            srd(a, 40, 12, 13, 512 * 1024)
            a("s_cmp_ge_u32 s3, 2")
            a("s_cselect_b32 s84, s18, s16")
            a("s_cselect_b32 s85, s19, s17")
            a(f"s_mov_b32 s86, 0x{512*2752:x}")
            a("s_mov_b32 s87, 0x20000")
            srd(a, 44, 28, 29, 0x2000000 if STAMP else WS_USED)
        if stage < 4:
            a(f"s_add_u32 m0, s67, {sl}")
            a(f"s_add_u32 s76, s71, {16*1024 - 1024}")
            a("buffer_load_dwordx4 v24, s[36:39], s71 offen lds")
            a("buffer_load_dwordx4 v24, s[36:39], s76 offen offset:1024 lds")
            a(f"s_add_u32 m0, s68, {sl}")
            a("s_nop 0")
            a("buffer_load_dwordx4 v25, s[40:43], s71 offen lds")
            a("buffer_load_dwordx4 v25, s[40:43], s76 offen offset:1024 lds")
            n += 4
        a(f"s_add_u32 m0, s69, {sl}")
        a("s_and_b32 s74, s74, 7")
        if not opt("nof", 0):
            a("buffer_load_dwordx4 v26, s[84:87], s75 offen lds")
            n += 1
        a("s_lshl_b32 s70, s74, 7")
        a("s_lshl_b32 s71, s74, 16")
        a(f"s_mul_i32 s75, s74, {64*2752}")
        ops.extend([("s", stage)] * n)
        if stage == 0:
            a("v_lshrrev_b32 v10, 1, v8")
            a("v_xor_b32 v10, v10, v9")
            a("v_lshlrev_b32 v10, 4, v10")
            a("v_and_b32 v11, 1, v8")
            a("v_lshl_add_u32 v10, v11, 3, v10")
            a("v_lshl_add_u32 v10, v3, 7, v10")
            a("v_add_u32 v5, s66, v10")
            a("v_and_b32 v11, 1, v3")
            a("v_lshlrev_b32 v10, 6, v11")
            a("v_xor_b32 v5, v5, v10")
            a("v_xor_b32 v6, 64, v5")
            a("v_mul_u32_u24 v30, 0x0202, v11")
            a("v_lshl_or_b32 v30, v30, 16, v30")
            a("v_xor_b32 v31, 0x07060302, v30")
            a("v_xor_b32 v30, 0x05040100, v30")
            a("v_and_b32 v10, 2, v0")
            a("v_or_b32 v10, 4, v10")
            a("v_lshlrev_b32 v10, 4, v10")
            a("v_lshl_add_u32 v10, v0, 7, v10")
            a("v_add_u32 v27, s68, v10")
            a("s_lshr_b32 s30, s3, 1")
            a("v_xor_b32 v28, s30, v0")
            a("v_and_b32 v28, 1, v28")
            a("v_lshlrev_b32 v28, 15, v28")
            a("v_or_b32 v28, 0x3f80, v28")


    def commitS(stage):
        if opt("nocommit", 0): return
        sl = (stage % 4) * SLOT
        xr = 32 + 16 * (stage & 1)
        a(f"v_add_u32 v7, {sl}, v5")
        a(f"v_add_u32 v2, {sl}, v6")
        for j in range(4):
            r = xr + 4 * j
            t = 16 + 4 * (j & 1)
            a(f"v_perm_b32 v{t}, v{r+1}, v{r}, v30")
            a(f"v_perm_b32 v{t+1}, v{r+3}, v{r+2}, v30")
            a(f"v_perm_b32 v{t+2}, v{r+1}, v{r}, v31")
            a(f"v_perm_b32 v{t+3}, v{r+3}, v{r+2}, v31")
            e, o = (7, 2) if (j & 1) == 0 else (2, 7)
            a(f"ds_write_b64 v{e}, {vr(t,2)} offset:{j*1024}")
            a(f"ds_write_b64 v{o}, {vr(t+2,2)} offset:{j*1024}")
        if stage < 4:
            a("s_cmp_lg_u32 s59, 0")
            a(f"s_cbranch_scc1 P1_NP{stage}")
            a(f"v_add_u32 v7, {sl}, v27")
            a("s_mov_b64 exec, 0xffff")
            a("ds_write_b16 v7, v28")
            a("s_mov_b64 exec, -1")
            a.lab(f"P1_NP{stage}")
        a("s_waitcnt lgkmcnt(0)")

    loader_loop(issueS, commitS, LAS)

    a.lab("P2_LOAD")
    NPRE = DIRECT
    ops = ["pf"] * 2 if not DIRECT else [("w", st) for st in range(DIRECT) for _ in range(2)]
    get_nonce(a, "L", 30)
    a("s_barrier")
    stamp(a, 16)
    if opt("shold", 0):
        a("s_cmp_eq_u32 s58, 0")
        a("s_cbranch_scc1 NOHOLD")
        a("s_barrier")
        a.lab("NOHOLD")
    for st in range(NPRE, N1):
        if st == NPRE + opt("wpf", 99):
            waitfor(ops, "pf" if not DIRECT else ("w", DIRECT - 1))
            stamp(a, 17)
        issue_w(st, ops)
        if st == NPRE + 2:
            gload(ops)
        if 2 * (st + 1) > WTH:
            a(f"s_waitcnt vmcnt({WTH - 2})")
    gcalc(ops)
    gstore()
    HR = 32
    WF = HR + D2 * 8
    ACC = WF + 16
    assert ACC + 64 <= 256
    a("v_lshrrev_b32 v8, 5, v0")
    a("v_and_b32 v9, 15, v0")
    a("v_lshrrev_b32 v10, 2, v9")
    a("v_lshl_add_u32 v10, v8, 3, v10")
    a("v_lshlrev_b32 v10, 7, v10")
    a("v_lshrrev_b32 v11, 3, v9")
    a("v_lshl_add_u32 v10, v11, 6, v10")
    a("v_and_b32 v11, 16, v0")
    a("v_lshl_add_u32 v10, v11, 1, v10")
    a("v_and_b32 v11, 3, v0")
    a("v_lshl_add_u32 v10, v11, 3, v10")
    a("v_add_u32 v4, s77, v10")
    a("v_xor_b32 v5, 64, v4")
    a(f"v_add_u32 v6, {2*SLOT}, v4")
    a(f"v_add_u32 v7, {2*SLOT}, v5")
    def trread(st):
        off = wd_lds(st)
        hi = off >= 2 * SLOT
        if hi: off -= 2 * SLOT
        for ct in range(2):
            for hf in range(2):
                a(f"ds_read_b64_tr_b16 {vr(WF + 8*(st & 1) + ct*4 + hf*2, 2)}, v{4 + 2*hi + ct} offset:{off + hf*512}")
    a(f"s_mul_i32 s61, s3, {NST}")
    a(f"s_mul_i32 s66, s92, {NKS}")
    a("s_add_u32 s66, s66, s61")
    a("s_lshl_b32 s66, s66, 10")
    a("v_lshlrev_b32 v12, 4, v0")
    a("v_add_u32 v2, s66, v12")
    a(f"v_add_u32 v3, {32*NKS*1024}, v2")
    a("s_cmp_eq_u32 s3, 3")
    a(f"s_cselect_b32 s72, 20, {NST}")
    stamp(a, 10)
    stamp(a, 11)
    a("s_lshr_b32 s30, s92, 1")
    a("s_lshl_b32 s30, s30, 2")
    a("s_add_u32 s30, s30, s3")
    a("s_lshl_b32 s30, s30, 7")
    a("v_mov_b32 v16, s30")
    a("s_cmp_eq_u32 s3, 3")
    a("s_cselect_b32 s30, 20, 16")
    a("v_mov_b32 v17, s30")
    if GATE:
        a("s_barrier")
    if GDEL:
        a(f"s_sleep {GDEL}")
    poll(a, "L", 16, 17, 22, 1, sleep=LSLEEP)
    stamp(a, 12)
    ops = []
    a("s_mov_b32 s64, s94")
    def issue_h(st):
        sl = st % D2
        a("s_lshl_b32 s30, s64, 10")
        a("s_cmp_ge_u32 s64, s72")
        a("s_cselect_b32 s30, 0x10000000, s30")
        a("s_add_u32 s64, s64, 1")
        a(f"buffer_load_dwordx4 {vr(HR + sl*8, 4)}, v2, s[44:47], s30 offen sc1")
        a(f"s_cmp_eq_u32 s64, {NST}")
        a("s_cselect_b32 s64, 0, s64")
        a(f"buffer_load_dwordx4 {vr(HR + sl*8 + 4, 4)}, v3, s[44:47], s30 offen sc1")
        ops.extend([("h", st)] * 2)
    trread(0)
    for st in range(D2):
        issue_h(st)
        if st == KB - 100:
            a("s_barrier")
        if st == 2:
            a("s_lshl_b32 s61, s56, 2")
            a("s_lshr_b32 s31, s57, 2")
            a("s_add_u32 s61, s61, s31")
            a(f"s_add_u32 s61, s61, {CT_G}")
            signal(a, 30, "s61", cnt=63, lo=0)
            ops.append("sig")
    def mf(st, k):
        ct, rt = k & 1, k >> 1
        d = vr(ACC + 16 * k, 16)
        c = "0" if st == 0 else d
        a(f"v_mfma_f32_32x32x16_bf16 {d}, {vr(WF + 8*(st & 1) + ct*4, 4)}, {vr(HR + (st % D2)*8 + 4*rt, 4)}, {c}")
    def need(keys):
        idx = [i for i, o in enumerate(ops) if o in keys]
        if idx:
            a(f"s_waitcnt vmcnt({len(ops) - 1 - max(idx)})")
    for st in range(NST):
        if st + 1 < NST:
            need([("w", st + 1)])
            trread(st + 1)
            a("s_waitcnt lgkmcnt(4)")
        else:
            a("v_add_u32 v4, s77, v12")
            a(f"v_add_u32 v5, {2*SLOT}, v4")
            a("s_waitcnt lgkmcnt(0)")
        need([("h", st)])
        if st == 0:
            stamp(a, 13)
        mf(st, 0); mf(st, 1)
        if N1 + st < NST:
            issue_w(N1 + st, ops)
        mf(st, 2); mf(st, 3)
        if st + D2 < NST:
            issue_h(st + D2)
        if st == KB:
            a("s_barrier")
    stamp(a, 14)
    a("s_nop 7")
    def wr(k, qd):
        a(f"ds_write_b128 v{4 + (k >> 1)}, {vr(ACC + 16*k + 4*qd, 4)} offset:{(k & 1)*SLOT + qd*1024}")
    if TAILV:
        for half in range(2):
            for k in range(4):
                wr(k, 2 * half); wr(k, 2 * half + 1)
                if half == 1 and k == 0:
                    a("s_waitcnt lgkmcnt(2)")
                    a("s_barrier")
        a("s_waitcnt lgkmcnt(0)")
        a("s_barrier")
    else:
        for k in range(4):
            for qd in range(4):
                wr(k, qd)
        a("s_waitcnt lgkmcnt(0)")
        a("s_barrier")
    stamp(a, 15)
    stamp_flush(a)
    a("s_endpgm")

    a.lab("P1_CONS")
    if CPF:
        a("s_cmp_lg_u32 s3, 0")
        a("s_cbranch_scc1 NOCPF")
        a("s_getpc_b64 s[84:85]")
        a.lab("CPF_PC")
        a(f"s_sub_u32 s84, s84, CPF_PC-{NAME}_kernel")
        a("s_subb_u32 s85, s85, 0")
        a(f"s_mov_b32 s86, K_END-{NAME}_kernel")
        a("s_mov_b32 s87, 0x20000")
        a("s_lshr_b32 s30, s2, 3")
        a("s_lshl_b32 s30, s30, 10")
        a("v_lshlrev_b32 v1, 7, v0")
        a("s_mov_b64 exec, 0xff")
        a("buffer_load_dword v13, v1, s[84:87], s30 offen")
        a("s_mov_b64 exec, -1")
        a.lab("NOCPF")
    a("s_lshr_b32 s66, s3, 1")
    a("s_and_b32 s67, s3, 1")
    a("v_and_b32 v1, 15, v0")
    a("v_lshrrev_b32 v2, 4, v0")
    a("v_lshrrev_b32 v3, 1, v1")
    a("v_xor_b32 v3, v3, v2")
    a("v_lshlrev_b32 v3, 4, v3")
    a("v_lshl_add_u32 v4, v1, 7, v3")
    a("v_lshrrev_b32 v3, 2, v1")
    a("v_lshl_add_u32 v3, v2, 3, v3")
    a("v_and_b32 v11, 3, v0")
    a(f"s_mov_b32 s72, {f32(C2)}")
    a(f"v_mov_b32 v10, {f32(C1)}")
    a("s_mov_b32 s68, 0")
    a(f"s_mov_b32 s82, {(-3*SLOT) & 0xffffffff}")
    a(f"s_mov_b32 s83, {SLOT}")

    def advance(regs):
        f = ["s_add_u32 s68, s68, 1",
             "s_and_b32 s30, s68, 3",
             "s_cmp_eq_u32 s30, 0",
             "s_cselect_b32 s30, s82, s83"]
        f += [f"v_add_u32 v{v}, s30, v{v}" for v in regs]
        f += ["s_cmp_eq_u32 s68, 8"]
        return f

    def cons_start():
        a("s_waitcnt lgkmcnt(0)")
        srd(a, 44, 28, 29, 0x2000000 if STAMP else WS_USED)
        stamp0()

    a("s_cmp_eq_u32 s58, 1")
    a("s_cbranch_scc1 P1_CSP")
    a("s_cmp_lg_u32 s2, 0")
    a("s_cbranch_scc1 NOINIT")
    a("s_setprio 3")
    a("v_mov_b32 v16, 0")
    a("v_lshlrev_b32 v17, 7, v0")
    a(f"s_mul_i32 s30, s3, {96*128}")
    a(f"s_add_u32 s30, s30, 0x{FL_OFF:x}")
    a("s_add_u32 s31, s30, 4096")
    a("s_waitcnt lgkmcnt(0)")
    srd(a, 44, 28, 29, 0x2000000 if STAMP else WS_USED)
    a("buffer_store_dword v16, v17, s[44:47], s30 offen sc0 sc1")
    a("buffer_store_dword v16, v17, s[44:47], s31 offen sc0 sc1")
    a("s_setprio 0")
    a.lab("NOINIT")
    FS = [16, 56]
    ACC = 96
    def xf(s, rt): return FS[s] + 4 * rt
    def wf(s, i): return FS[s] + 16 + 4 * i
    a("s_lshl_b32 s30, s66, 13")
    a("v_add_u32 v4, s30, v4")
    a("v_xor_b32 v5, 64, v4")
    a("v_mul_u32_u24 v3, 192, v3")
    a("v_lshl_add_u32 v3, v11, 3, v3")
    a("s_mul_i32 s30, s67, 96")
    a(f"s_add_u32 s30, s30, {XB}")
    a("v_add_u32 v3, s30, v3")
    a("v_and_b32 v8, 1, v2")
    a("v_lshlrev_b32 v8, 5, v8")
    a("v_add_u32 v6, v3, v8")
    a("v_sub_u32 v7, v3, v8")
    a("s_cmp_eq_u32 s67, 0")
    a("s_cbranch_scc1 P1_NOSWAP")
    a("v_swap_b32 v6, v7")
    a.lab("P1_NOSWAP")
    def accF(rt, ul, mat): return ACC + 4 * ((rt * 3 + ul) * 2 + mat)
    def readsF(s, st):
        r = []
        order = [("w", 0, 0), ("x", 0, 0), ("w", 1, 0), ("x", 1, 0), ("x", 2, 0), ("x", 3, 0),
                 ("w", 0, 1), ("w", 1, 1), ("w", 0, 2), ("w", 1, 2)]
        for kind, p, ul in order:
            if kind == "x":
                r.append(f"ds_read_b128 {vr(xf(s, p), 4)}, v{4+st} offset:{p*2048}")
            else:
                base = 7 if ul == 1 else 6
                for hf in range(2):
                    off = p * WB + st * 6144 + hf * 768 + ul * 32
                    r.append(f"ds_read_b64_tr_b16 {vr(wf(s, 3*p+ul) + 2*hf, 2)}, v{base} offset:{off}")
        if opt("noread", 0): r = r[:1]
        return r
    def mfmasF(s):
        m = []
        for ul in range(3):
            for rt in range(4):
                for mat in range(2):
                    d = vr(accF(rt, ul, mat), 4)
                    m.append(f"v_mfma_f32_16x16x32_bf16 {d}, {vr(wf(s, 3*mat+ul), 4)}, {vr(xf(s, rt), 4)}, {d}")
        if opt("nomfma", 0): m = ["s_nop 0"] * len(m)
        return m
    for i in range(96):
        a(f"v_mov_b32 v{ACC+i}, 0")
    a("v_lshlrev_b32 v3, 4, v0")
    a("s_mul_i32 s69, s78, 6")
    a("s_mul_i32 s30, s67, 3")
    a("s_add_u32 s69, s69, s30")
    a("s_lshl_b32 s30, s56, 2")
    a("s_lshl_b32 s31, s66, 1")
    a("s_add_u32 s30, s30, s31")
    a(f"s_mul_i32 s30, s30, {NKS}")
    a("s_add_u32 s30, s30, s69")
    a("s_lshl_b32 s70, s30, 10")
    a(f"s_add_u32 s71, s70, {NKS*1024}")
    cons_start()
    a("s_waitcnt vmcnt(0)")
    if opt("fprio", 1): a(f"s_setprio {opt('fprio', 1)}")
    a("s_barrier")
    stamp(a, 2)
    for r in readsF(0, 0):
        a(r)
    a.lab("P1_LOOPF")
    a("s_waitcnt lgkmcnt(0)")
    weave(a, mfmasF(0), readsF(1, 1) + advance((4, 5, 6, 7)))
    a("s_waitcnt lgkmcnt(0)")
    a("s_cbranch_scc1 P1_LASTF")
    if BPOS:
        weave(a, mfmasF(1), ["s_barrier"] + readsF(0, 0), start=BPOS, per=2)
    else:
        weave(a, mfmasF(1), ["s_barrier"] + readsF(0, 0))
    a("s_branch P1_LOOPF")
    a.lab("P1_LASTF")
    weave(a, mfmasF(1), ["s_barrier"] + req_nonce())
    stamp(a, 3)
    if EPRIO: a(f"s_setprio {EPRIO}")
    k = 0
    pend = []
    for ul in range(3):
        for uu in range(2):
            dst = 32 + 4 * k
            gelu_pair(a, accF(2*uu, ul, 0), accF(2*uu, ul, 1), accF(2*uu+1, ul, 0), accF(2*uu+1, ul, 1), 16 + 8 * (k & 1), dst)
            pend.append(f"buffer_store_dwordx4 {vr(dst,4)}, v3, s[44:47], s{70 + uu} offen offset:{ul*1024} sc1")
            k += 1
            if k > opt("burst", 5):
                a(f"s_setprio {PRIO}")
                for x in pend:
                    a(x)
                pend = []
                a(f"s_setprio {EPRIO}")
    stamp(a, 4)
    get_nonce(a, "F", 12)
    a("s_mul_i32 s61, s69, 47")
    a("s_lshr_b32 s61, s61, 10")
    a("s_add_u32 s31, s69, 2")
    a("s_mul_i32 s31, s31, 47")
    a("s_lshr_b32 s31, s31, 10")
    a("s_cmp_eq_u32 s31, s61")
    a("s_cselect_b32 s64, 1, 3")
    a("s_and_b32 s31, s56, 7")
    a("s_lshl_b32 s31, s31, 3")
    a("s_add_u32 s61, s61, s31")
    a("s_lshl_b32 s31, s66, 2")
    a("s_add_u32 s61, s61, s31")
    signal(a, 12, "s61", "s64")
    if GATE:
        a("s_barrier")
    a("s_branch P2_CONS")

    a.lab("P1_CSP")
    FS = [16, 64]
    ACC = 112
    AS = 240
    def xs(s, kk, u): return FS[s] + 4 * (4 * kk + u)
    def dfr(s, kk): return FS[s] + 32 + 4 * kk
    def ffr(s, kk): return FS[s] + 40 + 4 * kk
    def accD(st, u): return ACC + 16 * (4 * st + u)
    a("v_lshrrev_b32 v2, 5, v0")
    a("v_and_b32 v12, 31, v0")
    a("v_bfe_u32 v4, v0, 1, 3")
    a("v_xor_b32 v4, v4, v2")
    a("v_lshlrev_b32 v4, 4, v4")
    a("v_lshl_add_u32 v4, v12, 7, v4")
    a("v_xor_b32 v5, 32, v4")
    a("v_xor_b32 v6, 64, v4")
    a("v_xor_b32 v7, 0x60, v4")
    a("v_lshrrev_b32 v3, 2, v1")
    a("v_lshl_add_u32 v3, v2, 3, v3")
    a("v_bfe_u32 v14, v0, 4, 1")
    a("v_bfe_u32 v8, v0, 3, 2")
    a("v_xor_b32 v8, s3, v8")
    a("v_lshlrev_b32 v8, 5, v8")
    a("v_lshl_add_u32 v8, v3, 7, v8")
    a("v_lshl_add_u32 v8, v11, 3, v8")
    a("v_lshl_add_u32 v8, v14, 13, v8")
    a(f"v_add_u32 v8, {XB}, v8")
    a("v_lshlrev_b32 v9, 5, v3")
    a("v_lshl_add_u32 v9, v11, 3, v9")
    a(f"v_mul_u32_u24 v3, {2048 + 128}, v14")
    a("v_add_u32 v9, v9, v3")
    a(f"v_add_u32 v9, {XB + 16384}, v9")
    a("v_xor_b32 v3, 0x80, v9")
    a("v_and_b32 v14, 1, v0")
    a("v_mul_u32_u24 v14, 0x8000, v14")
    a("v_lshl_or_b32 v14, v14, 16, v14")
    def readsS(s, st):
        r = []
        for kk in range(2):
            for hf in range(2):
                r.append(f"ds_read_b64_tr_b16 {vr(dfr(s, kk) + 2*hf, 2)}, v8 offset:{(2*st+kk)*2048 + hf*512}")
        for u in range(4):
            r.append(f"ds_read_b128 {vr(xs(s, 0, u), 4)}, v{4+2*st} offset:{u*4096}")
        for kk in range(2):
            for hf in range(2):
                r.append(f"ds_read_b64_tr_b16 {vr(ffr(s, kk) + 2*hf, 2)}, v{9 if hf == 0 else 3} offset:{(2*st+kk)*512}")
        for u in range(4):
            r.append(f"ds_read_b128 {vr(xs(s, 1, u), 4)}, v{5+2*st} offset:{u*4096}")
        return r
    def allS(s, st, cw):
        m = []
        for kk in range(2):
            for u in range(4):
                d = vr(accD(st, u), 16)
                m.append(f"v_mfma_f32_32x32x16_bf16 {d}, {vr(xs(s, kk, u), 4)}, {vr(dfr(s, kk), 4)}, {d}")
            m.append(f"v_mfma_f32_32x32x16_bf16 {vr(AS,16)}, {vr(ffr(s, kk), 4)}, {vr(xs(s, kk, cw), 4)}, {vr(AS,16)}")
        return m
    def xors(s):
        return ["s_waitcnt lgkmcnt(12)"] + [f"v_xor_b32 v{dfr(s,0)+i}, v13, v{dfr(s,0)+i}" for i in range(8)]
    def weave2(mf, fill):
        n = len(mf) - 1
        fi = 0
        for i, m in enumerate(mf):
            a(m)
            want = min(len(fill), -(-len(fill) * (i + 1) // n))
            while fi < want:
                a(fill[fi]); fi += 1
    for i in range(144):
        a(f"v_mov_b32 v{ACC+i}, 0")
    a("v_cvt_f32_u32 v16, v12")
    a(f"v_mul_f32 v16, {f32(1.0/32)}, v16")
    a("v_lshlrev_b32 v18, 2, v2")
    a("v_cvt_f32_u32 v18, v18")
    for k in range(2):
        for j in range(8):
            s1 = 16 * k + 8 * (j >> 2) + (j & 3)
            a(f"v_add_f32 v19, {f32(float(s1))}, v18")
            a("v_mul_f32 v19, v19, v16")
            a(f"v_cos_f32 v{20+j}, v19")
            a(f"v_sin_f32 v{28+j}, v19")
        a("s_nop 0")
        for i in range(4):
            a(f"v_cvt_pk_bf16_f32 v{40+4*k+i}, v{20+2*i}, v{21+2*i}")
            a(f"v_cvt_pk_bf16_f32 v{48+4*k+i}, v{28+2*i}, v{29+2*i}")
    a("v_lshlrev_b32 v11, 4, v0")
    a(f"v_add_u32 v11, {F1_LDS}, v11")
    for i in range(4):
        a(f"ds_write_b128 v11, {vr(40+4*i,4)} offset:{i*1024}")
    cons_start()
    a("s_waitcnt vmcnt(0) lgkmcnt(0)")
    a("v_mov_b32 v13, 0")
    if opt("sprio", 1): a(f"s_setprio {opt('sprio', 1)}")
    a("s_barrier")
    stamp(a, 2)
    for r in readsS(0, 0):
        a(r)
    F1 = 16
    for cw in (1, 2, 3):
        a(f"s_cmp_eq_u32 s3, {cw}")
        a(f"s_cbranch_scc1 P1_LOOPS{cw}")
    lastfill = ([f"ds_read_b128 {vr(F1+4*i,4)}, v11 offset:{i*1024}" for i in range(4)] +
                ["s_lshl_b32 s30, s56, 2", "s_add_u32 s30, s30, s3", f"s_mul_i32 s30, s30, {NKS}", "s_add_u32 s30, s30, s59",
                 "s_add_u32 s30, s30, 84", "s_lshl_b32 s70, s30, 10",
                 f"s_mul_i32 s69, s56, {EP*16}", f"s_add_u32 s69, s69, 0x{C_OFF:x}",
                 "s_waitcnt lgkmcnt(0)", "s_barrier"] + req_nonce() + [f"v_xor_b32 v{F1+16+i}, 0x80008000, v{F1+i}" for i in range(8)])
    for cw in range(4):
        a.lab(f"P1_LOOPS{cw}")
        a("s_waitcnt lgkmcnt(0)")
        weave2(allS(0, 0, cw), readsS(1, 1) + xors(1) + advance((3, 4, 5, 6, 7, 8, 9)))
        a("s_waitcnt lgkmcnt(0)")
        a(f"s_cbranch_scc1 P1_LASTS{cw}")
        weave2(allS(1, 1, cw), ["s_cmp_ge_u32 s68, 4", "s_cselect_b32 s30, -1, 0", "v_and_b32 v13, s30, v14", "s_barrier"] + readsS(0, 0) + xors(0))
        a(f"s_branch P1_LOOPS{cw}")
        a.lab(f"P1_LASTS{cw}")
        weave2(allS(1, 1, cw), lastfill)
        if cw != 3:
            a("s_branch P1_LASTS")
    a.lab("P1_LASTS")
    stamp(a, 3)
    if EPRIO: a(f"s_setprio {EPRIO}")
    TS = 16 * EP * 16
    a("v_lshlrev_b32 v3, 4, v0")
    a("s_lshl_b32 s30, s59, 6")
    a("s_lshl_b32 s31, s3, 4")
    a("s_add_u32 s30, s30, s31")
    a("v_bfe_u32 v5, v0, 4, 1")
    a("v_lshl_add_u32 v4, v5, 7, v1")
    a("v_add_u32 v4, s30, v4")
    a(f"s_mov_b32 s31, {4*TS}")
    a("v_mul_lo_u32 v6, v2, s31")
    a("v_lshl_add_u32 v4, v4, 4, v6")
    a("v_mul_u32_u24 v5, 0x8000, v5")
    a("v_lshl_or_b32 v5, v5, 16, v5")
    a("v_mov_b32 v6, -1")
    BF, TM, XF, CK, TM2, HD = 40, 72, 80, 96, 80, 100
    for x in gelu8([AS+i for i in range(8)], [AS+8+i for i in range(8)], TM, HD, 32):
        a(x)
    a(f"s_setprio {PRIO}")
    a(f"buffer_store_dwordx4 {vr(HD,4)}, v3, s[44:47], s70 offen sc1")
    a(f"s_setprio {EPRIO}")
    a("s_cmp_lg_u32 s30, 0")
    a("s_cbranch_scc1 P1_NOX")
    a("v_cmp_ne_u32 vcc, 0, v1")
    a(f"s_mov_b32 s31, {TS}")
    a("v_mul_lo_u32 v7, v0, s31")
    a("v_cndmask_b32 v6, 0, v6, vcc")
    for u in range(4):
        for st in range(2):
            dst = XF + 8 * st if u == 0 else TM
            for i in range(8):
                a(f"v_cvt_pk_bf16_f32 v{dst+i}, v{accD(st,u)+2*i}, v{accD(st,u)+2*i+1}")
            if u:
                for i in range(8):
                    a(f"v_mov_b32_dpp v{XF+8*st+i}, v{TM+i} row_shr:{u} row_mask:0xa bank_mask:0x1")
    a("s_nop 1")
    for comp in range(2):
        o = vr(BF + 16 * comp, 16)
        for half in range(2):
            for k in range(2):
                c = "0" if (half == 0 and k == 0) else o
                a(f"v_mfma_f32_32x32x16_bf16 {o}, {vr(XF+8*half+4*k,4)}, {vr(F1+8*(comp+half)+4*k,4)}, {c}")
    a(f"s_add_u32 s30, s69, {256*16}")
    a("s_nop 11")
    for comp in range(2):
        a(f"v_cvt_pk_bf16_f32 v{CK+2*comp}, v{BF+16*comp+8}, v{BF+16*comp+9}")
        a(f"v_cvt_pk_bf16_f32 v{CK+2*comp+1}, v{BF+16*comp+10}, v{BF+16*comp+11}")
    a("s_mov_b32 exec_hi, 0")
    a(f"buffer_store_dwordx4 {vr(CK,4)}, v7, s[44:47], s30 offen sc1")
    a("s_mov_b32 exec_hi, -1")
    a.lab("P1_NOX")
    def bfly(u):
        r_ = []
        A = BF + 16 * (u & 1)
        B = A + 8
        E, T = accD(0, u), accD(1, u)
        for r in range(0, 16, 2):
            r_.append(f"v_pk_add_f32 {vr(TM2+r,2)}, {vr(E+r,2)}, {vr(T+r,2)}")
            r_.append(f"v_pk_add_f32 {vr(T+r,2)}, {vr(E+r,2)}, {vr(T+r,2)} neg_lo:[0,1] neg_hi:[0,1]")
        for i in range(8):
            r_.append(f"v_cvt_pk_bf16_f32 v{A+i}, v{TM2+2*i}, v{TM2+2*i+1}")
            r_.append(f"v_cvt_pk_bf16_f32 v{B+i}, v{T+2*i}, v{T+2*i+1}")
        for i in range(8):
            r_.append(f"v_permlane16_swap_b32 v{A+i}, v{B+i}")
        for i in range(8):
            r_.append(f"v_bitop3_b32 v{B+i}, v{B+i}, v5, v6 bitop3:0x28")
        return r_
    def st1(u):
        m = []
        A = BF + 16 * (u & 1)
        for half in range(2):
            for k in range(2):
                for comp in range(2):
                    o = vr(accD(comp, u), 16)
                    c = "0" if (half == 0 and k == 0) else o
                    m.append(f"v_mfma_f32_32x32x16_bf16 {o}, {vr(F1+8*(comp+half)+4*k,4)}, {vr(A+8*half+4*k,4)}, {c}")
        return m
    for x in bfly(0):
        a(x)
    for u in range(4):
        weave(a, st1(u), bfly(u + 1) if u < 3 else [], per=6)
        if u == 1:
            get_nonce(a, "S", 12)
            a("s_and_b32 s61, s56, 7")
            a("s_lshl_b32 s61, s61, 3")
            a("s_lshl_b32 s31, s66, 2")
            a("s_add_u32 s61, s61, s31")
            a("s_add_u32 s61, s61, 3")
            signal(a, 12, "s61")
    a(f"s_setprio {PRIO}")
    stamp(a, 11)
    a("s_nop 8")
    for r in range(16):
        d = BF + 4 * (r & 7)
        a(f"v_cvt_pk_bf16_f32 v{d}, v{accD(0,0)+r}, v{accD(0,1)+r}")
        a(f"v_cvt_pk_bf16_f32 v{d+1}, v{accD(0,2)+r}, v{accD(0,3)+r}")
        a(f"v_cvt_pk_bf16_f32 v{d+2}, v{accD(1,0)+r}, v{accD(1,1)+r}")
        a(f"v_cvt_pk_bf16_f32 v{d+3}, v{accD(1,2)+r}, v{accD(1,3)+r}")
        a(f"s_add_u32 s30, s69, {(8*(r >> 2) + (r & 3))*TS}")
        a(f"buffer_store_dwordx4 {vr(d,4)}, v4, s[44:47], s30 offen sc1")
    stamp(a, 4)
    if opt("shold", 0):
        a("s_barrier")
    a("s_lshl_b32 s61, s59, 2")
    a("s_add_u32 s61, s61, s3")
    a(f"s_mul_i32 s61, s61, {NREP}")
    a(f"s_add_u32 s61, s61, {CT_C}")
    signal(a, 12, "s61", "-1")

    a.lab("P2_CONS")
    a("v_mov_b32 v56, 16")
    if EPRIO: a("s_setprio 0")
    stamp(a, 5)
    p2_ids(a)
    srd(a, 48, 24, 25, 2048 * 1024)
    YA, CF, MF, PR, GV = 64, 80, 112, 144, 60
    a("v_lshrrev_b32 v8, 5, v0")
    a("v_and_b32 v9, 31, v0")
    a("s_lshl_b32 s31, s93, 6")
    a("s_lshl_b32 s61, s67, 5")
    a("s_add_u32 s31, s31, s61")
    a("s_lshl_b32 s30, s66, 5")
    a("s_add_u32 s30, s30, s92")
    a("v_lshlrev_b32 v12, 6, v9")
    a("v_add_u32 v12, s30, v12")
    a("v_lshrrev_b32 v11, 1, v9")
    a("v_lshlrev_b32 v11, 7, v11")
    a("v_and_b32 v4, 1, v9")
    a("v_lshl_add_u32 v11, v4, 2, v11")
    a("s_lshl_b32 s61, s30, 11")
    a("v_add_u32 v11, s61, v11")
    a("s_lshr_b32 s64, s30, 2")
    a("s_sub_u32 s61, 32, s92")
    a("s_and_b32 s61, s61, 31")
    a("s_sub_u32 s65, 481, s31")
    a("s_cmp_ge_u32 s93, 4")
    a("s_cselect_b32 s69, s61, s92")
    a("s_cselect_b64 vcc, -1, 0")
    a("s_cselect_b32 s73, 1.0, -1.0")
    a("s_cselect_b32 s65, s65, s31")
    a("v_add_u32 v4, s31, v9")
    a("v_sub_u32 v5, 0x200, v4")
    a("v_cndmask_b32 v4, v4, v5, vcc")
    a("v_lshrrev_b32 v6, 4, v0")
    a("v_lshlrev_b32 v6, 4, v6")
    a("v_min_u32 v6, 31, v6")
    a("v_add_u32 v6, s65, v6")
    for v in (4, 6):
        a(f"v_sub_u32 v5, 384, v{v}")
        a(f"v_cmp_gt_u32 vcc, 128, v{v}")
        a("s_nop 1")
        a(f"v_cndmask_b32 v{v}, v5, v{v}, vcc")
    a(f"v_mul_u32_u24 v5, {8*EP}, v8")
    a("v_add_u32 v4, v4, v5")
    a("v_lshlrev_b32 v4, 4, v4")
    a(f"s_mul_i32 s69, s69, {16*EP*16}")
    a(f"s_add_u32 s69, s69, 0x{C_OFF:x}")
    a("v_bfe_u32 v6, v6, 4, 3")
    a("s_lshr_b32 s61, s2, 1")
    a("s_xor_b32 s61, s61, s2")
    a("s_lshl_b32 s64, s66, 4")
    a("s_add_u32 s61, s61, s64")
    a(f"s_and_b32 s61, s61, {NREP-1}")
    a(f"s_add_u32 s61, s61, {CT_C}")
    a("v_lshl_add_u32 v6, v6, 5, s61")
    a(f"s_add_u32 s61, s30, {CT_G}")
    a("v_mov_b32 v5, s61")
    a("v_cmp_gt_u32 vcc, 48, v0")
    a("s_nop 1")
    a("v_cndmask_b32 v6, v5, v6, vcc")
    a("v_lshlrev_b32 v6, 7, v6")
    a("v_cvt_f32_u32 v9, v12")
    a(f"v_mul_f32 v9, {f32(1.0/2048)}, v9")
    a("v_mul_f32 v9, s73, v9")
    a("v_lshlrev_b32 v10, 5, v8")
    a("v_cvt_f32_u32 v10, v10")
    a("v_mul_f32 v10, v10, v9")
    T = 16
    for i in range(8):
        for c in range(4):
            a(f"v_cos_f32 v{T+c}, v10")
            a(f"v_sin_f32 v{T+4+c}, v10")
            a("v_add_f32 v10, v10, v9")
        for c in range(4):
            a(f"v_cvt_pk_bf16_f32 v{MF+4*i+c}, v{T+2*c}, v{T+2*c+1}")
    a("v_lshlrev_b32 v12, 10, v12")
    a("v_lshl_add_u32 v12, v8, 4, v12")
    a("s_lshl_b32 s31, s31, 1")
    a("v_add_u32 v12, s31, v12")
    a(f"s_mul_i32 s30, s3, {SLOT}")
    a("v_lshlrev_b32 v5, 4, v0")
    a("v_add_u32 v5, s30, v5")
    stamp(a, 6)
    if not opt("pollfirst", 0) and KB >= 0:
        a("s_barrier")
    a(f"s_setprio {opt('cprio', 3)}")
    poll(a, "C", 6, 56, 58, 0x0001000100010001, sleep=opt("csleep", 4))
    stamp(a, 7)
    if opt("pollfirst", 0):
        a("s_barrier")
    for i in range(8):
        a(f"s_add_u32 s70, s69, {i*EP*16}")
        a(f"buffer_load_dwordx4 {vr(CF + 4*i, 4)}, v4, s[44:47], s70 offen sc1")
    a(f"s_mov_b32 s70, 0x{G_OFF:x}")
    a(f"buffer_load_dword v{GV}, v11, s[44:47], s70 offen sc1")
    for i in range(8):
        a(f"s_waitcnt vmcnt({8 - i})")
        c = "0" if i == 0 else vr(YA, 16)
        a(f"v_mfma_f32_32x32x16_bf16 {vr(YA,16)}, {vr(CF+4*i,4)}, {vr(MF+4*i,4)}, {c}")
    a("s_waitcnt vmcnt(0)")
    a(f"v_sub_f32 v{GV+1}, 1.0, v{GV}")
    a(f"v_cvt_pk_bf16_f32 v{GV+1}, v{GV+1}, v{GV+1}")
    a(f"v_lshlrev_b32 v{GV+1}, 16, v{GV+1}")
    a("s_nop 7")
    for r in range(16):
        a(f"v_mul_f32 v{YA+r}, v{GV}, v{YA+r}")
    stamp(a, 8)
    def rdq(qd):
        for w in range(4):
            a(f"ds_read_b128 {vr(PR + 16*w + 4*qd, 4)}, v5 offset:{w*PIECE + qd*1024}")
    def fin(qd):
        for r in range(4*qd, 4*qd + 4):
            a(f"v_add_f32 v{PR+r}, v{PR+r}, v{PR+16+r}")
            a(f"v_add_f32 v{PR+32+r}, v{PR+32+r}, v{PR+48+r}")
        for r in range(4*qd, 4*qd + 4):
            a(f"v_add_f32 v{PR+r}, v{PR+r}, v{PR+32+r}")
        for r in range(4*qd, 4*qd + 4):
            a(f"v_fma_f32 v{YA+r}, v{GV+1}, v{PR+r}, v{YA+r}")
        a(f"v_cvt_pk_bf16_f32 v{16+2*qd}, v{YA+4*qd}, v{YA+4*qd+1}")
        a(f"v_cvt_pk_bf16_f32 v{17+2*qd}, v{YA+4*qd+2}, v{YA+4*qd+3}")
        if qd & 1:
            k = 16 + 2 * (qd - 1)
            a("s_nop 1")
            a(f"v_permlane32_swap_b32 v{k}, v{k+2}")
            a(f"v_permlane32_swap_b32 v{k+1}, v{k+3}")
            a(f"buffer_store_dwordx4 {vr(k,4)}, v12, s[48:51], 0 offen offset:{16*(qd-1)} {['', 'sc1', 'nt', 'sc0 sc1', 'sc1 nt'][opt('osc', 0)]}")
    a("s_barrier")
    if TAILV:
        for half in range(2):
            if half:
                a("s_barrier")
            rdq(2 * half); rdq(2 * half + 1)
            a("s_waitcnt lgkmcnt(4)")
            fin(2 * half)
            a("s_waitcnt lgkmcnt(0)")
            fin(2 * half + 1)
    else:
        for qd in range(4):
            rdq(qd)
        for qd in range(4):
            a(f"s_waitcnt lgkmcnt({12 - 4*qd})")
            fin(qd)
    stamp(a, 9)
    stamp_flush(a)
    a.lab("K_END")
    a("s_endpgm")

HEADER = open("cdna_kernels/" + NAME + ".s.ref").read().split("; Override launch")[0]

def main():
    nm = NAME + "_kernel"
    out = HEADER
    out += f"; @launch grid=(256,1,1) block=(512,1,1) lds={4*SLOT}\n"
    out += '.amdgcn_target "amdgcn-amd-amdhsa--gfx950"\n.text\n'
    a = Asm()
    out += f".globl {nm}\n.p2align 8\n.type {nm},@function\n"
    kernel(a)
    out += a.text()
    out += f""".section .rodata,"a"
.p2align 6
.amdhsa_kernel {nm}
  .amdhsa_next_free_vgpr 256
  .amdhsa_next_free_sgpr 102
  .amdhsa_accum_offset 256
  .amdhsa_group_segment_fixed_size 0
  .amdhsa_kernarg_size 104
  .amdhsa_user_sgpr_count 2
  .amdhsa_user_sgpr_kernarg_segment_ptr 1
  .amdhsa_system_sgpr_workgroup_id_x 1
.end_amdhsa_kernel
"""
    path = [x for x in sys.argv[1:] if not x.startswith("--")][0]
    open(path, "w").write(out)

main()
```

```python
import sys, math, struct

NAME = "gated_mix__spectral_fnet__geglu_ffn__prompt"
STAMP = "--stamp" in sys.argv
def opt(name, default):
    for x in sys.argv:
        if x.startswith("--" + name + "="):
            return int(x.split("=")[1])
    return default
RA = opt("ra", 1); RB = opt("rb", 2); RM = opt("rm", 6)
RJ = opt("rj", 2); RI = opt("ri", 6)
NPRE = opt("npre", 0)
D2 = opt("d2", 8)
WTH = opt("wth", 64)
PRIO = opt("prio", 3)
EPRIO = opt("eprio", 1)
KB = opt("kb", 10)
LA2 = opt("la2", 9)
N0A = opt("n0a", 3)
N0B = opt("n0b", 2)
WNT = "nt" if opt("wnt", 0) else ""
XNT = "nt" if opt("xnt", 0) else ""
PK = opt("pk", 1)
N1 = opt("n1", 20)
DIRECT = opt("direct", 4)
TAILV = opt("tailv", 1)
LAI = opt("lai", 7)
LAS = opt("las", 9)
BPOS = opt("bpos", 8)
SG = opt("sg", 0)
GATE = opt("gate", 0)
GDEL = opt("gdel", 0)
CPF = opt("cpf", 1)
PFW = opt("pfw", 1)
LSLEEP = opt("lsleep", 2)
SPINMAX = 400000

NKS = 86
EP = 264
C_OFF = 0x600000
G_OFF = 0x8e0000
FL_OFF = 0x910000
CT_H, CT_G, CT_C = 0, 64, 128
NCT = 384
NREP = 32
WS_USED = 0x920000
ST_OFF = 0x1000000

def f32(x):
    return "0x%08x" % struct.unpack("<I", struct.pack("<f", x))[0]

class Asm:
    def __init__(self):
        self.l = []
    def __call__(self, s):
        self.l.append("    " + s)
    def lab(self, s):
        self.l.append(s + ":")
    def text(self):
        return "\n".join(self.l) + "\n"

def vr(b, n=1):
    return f"v{b}" if n == 1 else f"v[{b}:{b+n-1}]"

def srd(a, d, lo, hi, nbytes):
    a(f"s_mov_b32 s{d}, s{lo}")
    a(f"s_mov_b32 s{d+1}, s{hi}")
    a(f"s_mov_b32 s{d+2}, 0x{nbytes:x}")
    a(f"s_mov_b32 s{d+3}, 0x20000")

SV = 15
def stamp(a, idx):
    if not STAMP:
        return
    a("s_memrealtime s[62:63]")
    a("s_waitcnt lgkmcnt(0)")
    a(f"v_writelane_b32 v{SV}, s62, {idx}")

def stamp_flush(a):
    if not STAMP:
        return
    a("s_lshl_b32 s60, s2, 3")
    a("s_add_u32 s60, s60, s95")
    a("s_lshl_b32 s60, s60, 8")
    a(f"s_add_u32 s60, s60, 0x{ST_OFF:x}")
    a("v_lshlrev_b32 v14, 2, v0")
    a(f"buffer_store_dword v{SV}, v14, s[44:47], s60 offen")

def weave(a, mf, fill, start=0, per=1):
    fi = 0
    for i, m in enumerate(mf):
        a(m)
        if i >= start:
            for _ in range(per):
                if fi < len(fill):
                    a(fill[fi]); fi += 1
    while fi < len(fill):
        a(fill[fi]); fi += 1

C1 = -2.0 * math.sqrt(2.0 / math.pi) * math.log2(math.e)
C2 = C1 * 0.044715

def gelu8(G, U, t, dst, swap):
    r = []
    for i in range(0, 8, 2): r.append(f"v_pk_mul_f32 {vr(t+i,2)}, {vr(G[i],2)}, {vr(G[i],2)}")
    for i in range(0, 8, 2): r.append(f"v_pk_fma_f32 {vr(t+i,2)}, {vr(t+i,2)}, s[72:73], v[10:11] op_sel_hi:[1,0,0]")
    for i in range(0, 8, 2): r.append(f"v_pk_mul_f32 {vr(t+i,2)}, {vr(t+i,2)}, {vr(G[i],2)}")
    for i in range(8):
        r.append(f"v_exp_f32 v{t+i}, v{t+i}")
        if i & 1: r.append(f"v_pk_mul_f32 {vr(G[i-1],2)}, {vr(G[i-1],2)}, {vr(U[i-1],2)}")
    for i in range(0, 8, 2): r.append(f"v_pk_add_f32 {vr(t+i,2)}, {vr(t+i,2)}, 1.0 op_sel_hi:[1,0]")
    for i in range(8): r.append(f"v_rcp_f32 v{t+i}, v{t+i}")
    for i in range(0, 8, 2): r.append(f"v_pk_mul_f32 {vr(G[i],2)}, {vr(G[i],2)}, {vr(t+i,2)}")
    for i in range(4): r.append(f"v_cvt_pk_bf16_f32 v{dst+i}, v{G[2*i]}, v{G[2*i+1]}")
    r.append("s_nop 1")
    r.append(f"v_permlane{swap}_swap_b32 v{dst}, v{dst+2}")
    r.append(f"v_permlane{swap}_swap_b32 v{dst+1}, v{dst+3}")
    return r

def gelu_pair(a, g0, u0, g1, u1, t, dst):
    G = [g0 + i for i in range(4)] + [g1 + i for i in range(4)]
    U = [u0 + i for i in range(4)] + [u1 + i for i in range(4)]
    for x in gelu8(G, U, t, dst, 16):
        a(x)

SLOT = 40960
XB = 16384
WB = 12288
F1_LDS = 3 * SLOT + 36864
NST = 22
PIECE = 10240


def p2_ids(a):
    a("s_and_b32 s30, s2, 7")
    a("s_lshr_b32 s31, s2, 3")
    a("s_lshr_b32 s93, s31, 2")
    a("s_and_b32 s31, s31, 3")
    a(f"s_mul_i32 s94, s31, {RI}")
    a("s_sub_u32 s61, 0, s30")
    a("s_bitcmp1_b32 s31, 0")
    a("s_cselect_b32 s92, s61, s30")
    a("s_cselect_b32 s61, 8, 0")
    a("s_cmp_eq_u32 s30, 0")
    a("s_cselect_b32 s92, s61, s92")
    a("s_lshr_b32 s31, s31, 1")
    a("s_lshl_b32 s31, s31, 4")
    a("s_add_u32 s92, s92, s31")
    a("s_and_b32 s92, s92, 31")
    a(f"s_mul_i32 s30, s93, {RJ}")
    a("s_add_u32 s94, s94, s30")
    a(f"s_sub_u32 s30, s94, {NST}")
    a(f"s_cmp_ge_u32 s94, {NST}")
    a("s_cselect_b32 s94, s30, s94")

def req_nonce():
    return ["s_load_dwordx8 s[4:11], s[26:27], 0"]

def get_nonce(a, tag, vt):
    a("s_waitcnt lgkmcnt(0)")
    a("s_and_b64 s[4:5], s[4:5], s[6:7]")
    a("s_and_b64 s[8:9], s[8:9], s[10:11]")
    a("s_and_b64 s[4:5], s[4:5], s[8:9]")
    a("s_and_b32 s4, s4, s5")
    a(f"s_cbranch_scc1 NOK{tag}")
    srd(a, 48, 26, 27, 256)
    a("s_mov_b32 s61, 0")
    a(f"v_lshlrev_b32 v{vt+1}, 2, v0")
    a("s_mov_b64 exec, 0xff")
    a.lab(f"NL{tag}")
    a(f"v_mov_b32 v{vt}, 0")
    a(f"buffer_atomic_add v{vt}, v{vt+1}, s[48:51], 0 offen sc0 sc1")
    a("s_add_u32 s61, s61, 1")
    a(f"s_cmp_gt_u32 s61, {SPINMAX}")
    a("s_waitcnt vmcnt(0)")
    a(f"s_cbranch_scc1 NX{tag}")
    a("s_sleep 4")
    a(f"v_cmp_eq_u32 vcc, 0, v{vt}")
    a(f"s_cbranch_vccnz NL{tag}")
    a.lab(f"NX{tag}")
    a("s_mov_b64 exec, -1")
    a.lab(f"NOK{tag}")

def signal(a, vt, sidx, smask=None, cnt=0, lo=None):
    a(f"s_lshl_b32 s30, {sidx}, 7")
    a(f"s_add_u32 s30, s30, 0x{FL_OFF:x}")
    a(f"v_mov_b32 v{vt}, 1")
    a(f"v_lshlrev_b32 v{vt+1}, 7, v0")
    a(f"s_waitcnt vmcnt({cnt})")
    if smask is None:
        a("s_mov_b64 exec, 1")
    else:
        a(f"s_mov_b32 exec_lo, {smask}")
        a("s_mov_b32 exec_hi, 0")
    a(f"s_setprio {PRIO}")
    a(f"buffer_atomic_add v{vt}, v{vt+1}, s[44:47], s30 offen sc1")
    a(f"s_setprio {EPRIO if lo is None else lo}")
    a("s_mov_b64 exec, -1")

def poll(a, tag, vaddr, vexp, vt, mask, sleep=0):
    a(f"s_mov_b32 s30, 0x{FL_OFF:x}")
    a("s_mov_b32 s61, 0")
    a(f"s_mov_b32 exec_lo, 0x{mask & 0xffffffff:x}")
    a(f"s_mov_b32 exec_hi, 0x{mask >> 32:x}")
    a.lab(f"PL{tag}")
    a(f"v_mov_b32 v{vt}, 0")
    a(f"buffer_atomic_add v{vt}, v{vaddr}, s[44:47], s30 offen sc0 sc1")
    a("s_add_u32 s61, s61, 1")
    a(f"s_cmp_gt_u32 s61, {SPINMAX}")
    a("s_waitcnt vmcnt(0)")
    a(f"s_cbranch_scc1 PD{tag}")
    a(f"v_cmp_ne_u32 vcc, v{vt}, v{vexp}")
    if sleep:
        a(f"s_cbranch_vccz PD{tag}")
        a(f"s_sleep {sleep}")
        a(f"s_branch PL{tag}")
    else:
        a(f"s_cbranch_vccnz PL{tag}")
    a.lab(f"PD{tag}")
    a("s_mov_b64 exec, -1")

def kernel(a):
    a.lab(NAME + "_kernel")
    a("s_cmp_ge_u32 s2, 256")
    a("s_cbranch_scc1 K_END")
    a("s_load_dwordx2 s[32:33], s[0:1], 0")
    a("s_load_dwordx16 s[4:19], s[0:1], 0")
    a("s_load_dwordx8 s[20:27], s[0:1], 64")
    a("s_load_dwordx2 s[28:29], s[0:1], 96")
    if STAMP:
        a("s_memrealtime s[90:91]")
    a("v_lshrrev_b32 v1, 6, v0")
    a("v_and_b32 v0, 63, v0")
    a("v_readfirstlane_b32 s95, v1")
    a("s_lshr_b32 s31, s2, 3")
    a("s_and_b32 s56, s2, 1")
    a("s_lshl_b32 s56, s56, 3")
    a("s_and_b32 s74, s31, 7")
    a("s_add_u32 s56, s56, s74")
    a("s_and_b32 s57, s2, 6")
    a("s_lshl_b32 s57, s57, 1")
    a("s_lshr_b32 s75, s31, 3")
    a("s_add_u32 s57, s57, s75")
    a(f"s_mul_i32 s74, s74, {RA}")
    a(f"s_mul_i32 s75, s75, {RB}")
    a("s_add_u32 s74, s74, s75")
    a(f"s_and_b32 s74, s74, {RM}")
    a("s_and_b32 s30, s57, 7")
    a("s_cselect_b32 s58, 0, 1")
    a("s_lshr_b32 s59, s57, 3")
    a("s_sub_u32 s78, s57, s59")
    a("s_sub_u32 s78, s78, 1")
    a("s_and_b32 s3, s95, 3")
    if STAMP:
        a(f"v_mov_b32 v{SV}, -1")
    a("s_cmp_ge_u32 s95, 4")
    a("s_cbranch_scc1 P1_CONS")
    a("v_lshrrev_b32 v3, 3, v0")
    a("v_and_b32 v8, 7, v0")
    a("v_lshrrev_b32 v9, 4, v0")
    a("s_lshl_b32 s30, s56, 2")
    a("s_add_u32 s30, s30, s3")
    a("s_lshl_b32 s79, s30, 10")
    a("s_lshl_b32 s66, s3, 12")
    a("s_lshl_b32 s70, s74, 7")
    a("s_cmp_eq_u32 s58, 1")
    a("s_cbranch_scc1 P1_LSP")

    def stamp0():
        if STAMP:
            a(f"v_writelane_b32 v{SV}, s90, 0")
            stamp(a, 1)

    def gload(ops):
        srd(a, 48, 22, 23, 1024)
        a("s_lshl_b32 s30, s57, 3")
        a("s_lshl_b32 s31, s3, 1")
        a("s_add_u32 s30, s30, s31")
        a("s_lshr_b32 s31, s30, 5")
        a("s_and_b32 s30, s30, 31")
        a("s_lshl_b32 s30, s30, 6")
        a("s_add_u32 s30, s30, s31")
        a("s_lshl_b32 s31, s56, 2")
        a("s_add_u32 s64, s30, s31")
        a("s_lshl_b32 s30, s64, 10")
        a("s_add_u32 s31, s30, 0x10000")
        a("v_lshlrev_b32 v12, 4, v0")
        a("buffer_load_dwordx4 v[64:67], v12, s[48:51], 0 offen")
        a("buffer_load_dwordx4 v[68:71], v12, s[32:35], s30 offen")
        a("buffer_load_dwordx4 v[72:75], v12, s[32:35], s31 offen")
        ops.extend(["g"] * 3)

    def gcalc(ops, parts=(0, 1, 2)):
        T = 76
        if 0 in parts:
            waitfor(ops, "g")
        for rr in range(2):
            if rr not in parts:
                continue
            xb = 68 + 4 * rr
            acc = T + 4 + rr
            for d in range(4):
                a(f"v_lshlrev_b32 v{T}, 16, v{xb+d}")
                a(f"v_and_b32 v{T+1}, 0xffff0000, v{xb+d}")
                a(f"v_lshlrev_b32 v{T+2}, 16, v{64+d}")
                a(f"v_and_b32 v{T+3}, 0xffff0000, v{64+d}")
                a(f"v_mul_f32 v{T}, v{T}, v{T+2}")
                a(f"v_mul_f32 v{T+1}, v{T+1}, v{T+3}")
                a(f"v_cvt_pk_bf16_f32 v{T}, v{T}, v{T+1}")
                a(f"v_and_b32 v{T+1}, 0xffff0000, v{T}")
                a(f"v_lshlrev_b32 v{T}, 16, v{T}")
                if d == 0:
                    a(f"v_add_f32 v{acc}, v{T}, v{T+1}")
                else:
                    a(f"v_add_f32 v{acc}, v{acc}, v{T}")
                    a(f"v_add_f32 v{acc}, v{acc}, v{T+1}")
        if 2 not in parts:
            return
        A, B = T + 4, T + 5
        for sh in (8, 4, 2, 1):
            a("s_nop 1")
            a(f"v_add_f32_dpp v{A}, v{A}, v{A} row_ror:{sh} row_mask:0xf bank_mask:0xf")
            a(f"v_add_f32_dpp v{B}, v{B}, v{B} row_ror:{sh} row_mask:0xf bank_mask:0xf")
        a("s_nop 1")
        a(f"v_add_f32_dpp v{A}, v{A}, v{A} row_bcast:15 row_mask:0xa bank_mask:0xf")
        a(f"v_add_f32_dpp v{B}, v{B}, v{B} row_bcast:15 row_mask:0xa bank_mask:0xf")
        a("s_nop 1")
        a(f"v_add_f32_dpp v{A}, v{A}, v{A} row_bcast:31 row_mask:0xc bank_mask:0xf")
        a(f"v_add_f32_dpp v{B}, v{B}, v{B} row_bcast:31 row_mask:0xc bank_mask:0xf")
        a("s_nop 1")
        a(f"v_cvt_pk_bf16_f32 v{A}, v{A}, v{B}")
        a(f"v_and_b32 v{B}, 0xffff0000, v{A}")
        a(f"v_lshlrev_b32 v{A}, 16, v{A}")
        a(f"v_mul_f32 v{A}, {f32(-math.log2(math.e))}, v{A}")
        a(f"v_mul_f32 v{B}, {f32(-math.log2(math.e))}, v{B}")
        a(f"v_exp_f32 v{A}, v{A}")
        a(f"v_exp_f32 v{B}, v{B}")
        a("s_nop 0")
        a(f"v_add_f32 v{A}, 1.0, v{A}")
        a(f"v_add_f32 v{B}, 1.0, v{B}")
        a(f"v_rcp_f32 v{A}, v{A}")
        a(f"v_rcp_f32 v{B}, v{B}")
        a("s_nop 0")
        a(f"v_cvt_pk_bf16_f32 v{A}, v{A}, v{B}")
        a(f"v_and_b32 v{B}, 0xffff0000, v{A}")
        a(f"v_lshlrev_b32 v{A}, 16, v{A}")

    def gstore():
        a("s_lshl_b32 s30, s56, 4")
        a("s_add_u32 s30, s30, s57")
        a("s_lshl_b32 s30, s30, 2")
        a("s_add_u32 s30, s30, s3")
        a("s_lshl_b32 s30, s30, 7")
        a(f"s_add_u32 s30, s30, 0x{G_OFF:x}")
        a("s_mov_b32 exec_lo, 0")
        a("s_brev_b32 exec_hi, 1")
        a("buffer_store_dwordx2 v[80:81], off, s[44:47], s30 sc1")
        a("s_mov_b64 exec, -1")

    def wd_setup():
        p2_ids(a)
        srd(a, 52, 20, 21, 1376 * 1024)
        a("v_lshlrev_b32 v29, 1, v3")
        a("v_and_b32 v29, 4, v29")
        a("v_xor_b32 v29, v29, v8")
        a("v_lshlrev_b32 v29, 4, v29")
        a("v_lshl_add_u32 v29, v3, 10, v29")
        a(f"s_mul_i32 s30, s3, {NST*16384}")
        a("s_lshl_b32 s31, s93, 7")
        a("s_add_u32 s30, s30, s31")
        a("v_add_u32 v29, s30, v29")
        a("s_mov_b32 s65, s94")
        a(f"s_mul_i32 s77, s3, {PIECE}")

    def wd_lds(st):
        s = st % 20
        return (s // 5) * SLOT + (s % 5) * 2048

    def issue_w(st, ops):
        a(f"s_add_u32 m0, s77, {wd_lds(st)}")
        a("s_lshl_b32 s30, s65, 14")
        a("s_add_u32 s31, s30, 7168")
        a("buffer_load_dwordx4 v29, s[52:55], s30 offen lds")
        a("s_add_u32 s65, s65, 1")
        a(f"s_cmp_eq_u32 s65, {NST}")
        a("s_cselect_b32 s65, 0, s65")
        a("buffer_load_dwordx4 v29, s[52:55], s31 offen offset:1024 lds")
        ops.extend([("w", st)] * 2)

    def waitfor(ops, key):
        last = max(i for i, o in enumerate(ops) if o == key)
        a(f"s_waitcnt vmcnt({len(ops) - 1 - last})")

    def capture(fn):
        save = a.l
        a.l = []
        fn()
        lines, a.l = a.l, save
        groups, cur = [], []
        for ln in lines:
            cur.append(ln)
            if ln.strip().startswith("buffer_"):
                groups.append(cur); cur = []
        if cur:
            groups[-1].extend(cur)
        return groups

    def pf_wd():
        a("s_lshr_b32 s30, s2, 3")
        a("s_lshl_b32 s30, s30, 2")
        a("s_add_u32 s30, s30, s3")
        a(f"s_mul_i32 s30, s30, {86*128}")
        a("v_lshlrev_b32 v12, 7, v0")
        a("buffer_load_dword v82, v12, s[52:55], s30 offen")
        a("s_add_u32 s30, s30, 8192")
        a("s_mov_b64 exec, 0x3fffff")
        a("buffer_load_dword v83, v12, s[52:55], s30 offen")
        a("s_mov_b64 exec, -1")

    def merge(groups):
        return [sum(groups, [])]

    def loader_loop(issue, commit, lai, early_g=False):
        items = []
        for s in range(8):
            items += [(("s", s), 1, g) for g in capture(lambda: issue(s, []))]
            if early_g and s == 3:
                items += [("g", 3, g) for g in merge(capture(lambda: gload([])))]
        if DIRECT:
            for st in range(DIRECT):
                items += [(("w", st), 2, g) for g in merge(capture(lambda: issue_w(st, [])))]
        else:
            items += [("pf", 2, g) for g in merge(capture(pf_wd))]
        ops = []
        pos = 0
        for b in range(8):
            DG = opt("diag5", 0) and b == 5
            if DG: a("s_memtime s[96:97]")
            nxt = [i for i, it in enumerate(items) if it[0] == ("s", b + 1)]
            upto = len(items) if b == 7 else nxt[min(lai, len(nxt)) - 1] + 1
            while pos < upto:
                a.l.extend(items[pos][2]); ops.extend([items[pos][0]] * items[pos][1]); pos += 1
            if b == 0:
                wd_setup()
            if DG: a("s_memtime s[98:99]")
            waitfor(ops, ("s", b))
            if DG: a("s_memtime s[100:101]")
            commit(b)
            if DG: a("s_memtime s[62:63]")
            if early_g and b in (4, 5, 6):
                gcalc(ops, (b - 4,))
            if opt("lstamp", 1): stamp(a, 2 + b)
            a("s_barrier")
            if DG:
                a("s_memtime s[82:83]")
                a("s_waitcnt lgkmcnt(0)")
                a("s_sub_u32 s82, s82, s62"); a("s_sub_u32 s62, s62, s100"); a("s_sub_u32 s100, s100, s98"); a("s_sub_u32 s98, s98, s96")
                for k, r in enumerate((98, 100, 62, 82)):
                    a(f"s_add_u32 s{r}, s{r}, s90")
                    a(f"v_writelane_b32 v{SV}, s{r}, {24+k}")
            if b == 5:
                for x in req_nonce():
                    a(x)
        assert pos == len(items)
        a("s_branch P2_LOAD")

    a("v_xor_b32 v10, v9, v8")
    a("v_lshlrev_b32 v10, 4, v10")
    a("v_lshlrev_b32 v11, 16, v3")
    a("v_add3_u32 v4, v10, v11, s79")
    a("v_xor_b32 v5, 64, v4")
    a(f"v_add_u32 v5, {(8 << 16) - 1024}, v5")
    a(f"v_add_u32 v6, {2*((8 << 16) - 1024)}, v4")
    a(f"v_add_u32 v7, {2*((8 << 16) - 1024)}, v5")
    a(f"s_mov_b32 s34, 0x{2048*1024:x}")
    a("s_mov_b32 s35, 0x20000")
    a("s_mov_b32 m0, s66")
    def wsetup():
        a(f"s_mul_i32 s30, s3, {16*2752}")
        a("s_mul_i32 s31, s78, 192")
        a("s_add_u32 s30, s30, s31")
        a("s_movk_i32 s31, 2560")
        a("v_mul_u32_u24 v11, 171, v0")
        a("v_lshl_add_u32 v10, v0, 4, s30")
        a("v_lshrrev_b32 v12, 11, v11")
        a("v_mad_u32_u24 v24, v12, s31, v10")
        a(f"v_add_u32 v12, {64*171}, v11")
        a("v_lshrrev_b32 v12, 11, v12")
        a("v_and_b32 v25, 32, v0")
        a("v_xor_b32 v25, v25, v10")
        a("v_mad_u32_u24 v25, v12, s31, v25")
        a(f"v_add_u32 v12, {128*171}, v11")
        a("v_lshrrev_b32 v12, 11, v12")
        a("v_xor_b32 v26, 32, v10")
        a("v_mad_u32_u24 v26, v12, s31, v26")
        a("s_mul_i32 s67, s3, 3072")
        a(f"s_add_u32 s67, s67, {XB}")
        a(f"s_add_u32 s68, s67, {WB}")
        a(f"s_mul_i32 s71, s74, {64*2752}")
    wsetup()
    a("s_waitcnt lgkmcnt(0)")
    stamp0()

    def issueF(stage, ops):
        sl = (stage % 4) * SLOT
        if stage:
            a(f"s_add_u32 m0, s66, {sl}")
            a("s_nop 0")
        for j in range(4):
            a(f"buffer_load_dwordx4 v{4+j}, s[32:35], s70 offen offset:{j*1024} {XNT} lds")
        if stage == 0:
            srd(a, 36, 16, 17, 512 * 2752)
        a(f"s_add_u32 m0, s67, {sl}")
        a("s_add_u32 s74, s74, 1")
        for jj in range(3):
            a(f"buffer_load_dwordx4 v{24+jj}, s[36:39], s71 offen offset:{jj*1024} {WNT} lds")
        if stage == 0:
            srd(a, 40, 18, 19, 512 * 2752)
        a(f"s_add_u32 m0, s68, {sl}")
        a("s_and_b32 s74, s74, 7")
        for jj in range(3):
            a(f"buffer_load_dwordx4 v{24+jj}, s[40:43], s71 offen offset:{jj*1024} {WNT} lds")
        a("s_lshl_b32 s70, s74, 7")
        a(f"s_mul_i32 s71, s74, {64*2752}")
        if stage == 0:
            srd(a, 44, 28, 29, 0x2000000 if STAMP else WS_USED)
        ops.extend([("s", stage)] * 10)

    loader_loop(issueF, lambda b: None, LAI)

    a.lab("P1_LSP")
    a("v_lshlrev_b32 v10, 4, v8")
    a("v_lshlrev_b32 v11, 16, v3")
    a("v_add3_u32 v4, v10, v11, s79")
    a("s_and_b32 s30, s3, 1")
    a("s_lshl_b32 s30, s30, 5")
    a("s_lshr_b32 s31, s3, 1")
    a("s_add_u32 s30, s30, s31")
    a("s_lshl_b32 s30, s30, 10")
    a("s_lshl_b32 s31, s59, 7")
    a("s_add_u32 s30, s30, s31")
    a("v_and_b32 v10, 2, v3")
    a("v_xor_b32 v10, v10, v8")
    a("v_lshlrev_b32 v10, 4, v10")
    a("v_lshlrev_b32 v11, 11, v3")
    a("v_add3_u32 v24, v10, v11, s30")
    a("v_xor_b32 v25, 64, v24")
    a("v_lshrrev_b32 v10, 1, v0")
    a("s_lshl_b32 s30, s3, 1")
    a("s_and_b32 s30, s30, 4")
    a("v_xor_b32 v10, s30, v10")
    a(f"v_mul_u32_u24 v10, {2*2752}, v10")
    a("v_and_b32 v11, 1, v0")
    a("v_lshlrev_b32 v11, 4, v11")
    a("s_and_b32 s30, s3, 1")
    a("s_mul_i32 s30, s30, 2752")
    a("s_lshl_b32 s31, s59, 5")
    a("s_add_u32 s30, s30, s31")
    a(f"s_add_u32 s30, s30, {1344*2}")
    a("v_add3_u32 v26, v10, v11, s30")
    a("s_lshl_b32 s67, s3, 11")
    a(f"s_add_u32 s67, s67, {XB}")
    a("s_add_u32 s68, s67, 8192")
    a("s_lshl_b32 s69, s3, 10")
    a(f"s_add_u32 s69, s69, {XB + 16384}")
    a("s_lshl_b32 s71, s74, 16")
    a(f"s_mul_i32 s75, s74, {64*2752}")
    a(f"s_mov_b32 s34, 0x{2048*1024:x}")
    a("s_mov_b32 s35, 0x20000")
    a("s_waitcnt lgkmcnt(0)")
    stamp0()

    def issueS(stage, ops):
        sl = (stage % 4) * SLOT
        xr = 32 + 16 * (stage & 1)
        n = 0
        for j in range(4):
            if j:
                a(f"s_add_u32 s30, s70, {j * 8 * 65536}")
            a(f"buffer_load_dwordx4 {vr(xr+4*j,4)}, v4, s[32:35], {'s30' if j else 's70'} offen")
            n += 1
        a("s_add_u32 s74, s74, 1")
        if stage == 0:
            srd(a, 36, 10, 11, 512 * 1024)
            srd(a, 40, 12, 13, 512 * 1024)
            a("s_cmp_ge_u32 s3, 2")
            a("s_cselect_b32 s84, s18, s16")
            a("s_cselect_b32 s85, s19, s17")
            a(f"s_mov_b32 s86, 0x{512*2752:x}")
            a("s_mov_b32 s87, 0x20000")
            srd(a, 44, 28, 29, 0x2000000 if STAMP else WS_USED)
        if stage < 4:
            a(f"s_add_u32 m0, s67, {sl}")
            a(f"s_add_u32 s76, s71, {16*1024 - 1024}")
            a("buffer_load_dwordx4 v24, s[36:39], s71 offen lds")
            a("buffer_load_dwordx4 v24, s[36:39], s76 offen offset:1024 lds")
            a(f"s_add_u32 m0, s68, {sl}")
            a("s_nop 0")
            a("buffer_load_dwordx4 v25, s[40:43], s71 offen lds")
            a("buffer_load_dwordx4 v25, s[40:43], s76 offen offset:1024 lds")
            n += 4
        a(f"s_add_u32 m0, s69, {sl}")
        a("s_and_b32 s74, s74, 7")
        if not opt("nof", 0):
            a("buffer_load_dwordx4 v26, s[84:87], s75 offen lds")
            n += 1
        a("s_lshl_b32 s70, s74, 7")
        a("s_lshl_b32 s71, s74, 16")
        a(f"s_mul_i32 s75, s74, {64*2752}")
        ops.extend([("s", stage)] * n)
        if stage == 0:
            a("v_lshrrev_b32 v10, 1, v8")
            a("v_xor_b32 v10, v10, v9")
            a("v_lshlrev_b32 v10, 4, v10")
            a("v_and_b32 v11, 1, v8")
            a("v_lshl_add_u32 v10, v11, 3, v10")
            a("v_lshl_add_u32 v10, v3, 7, v10")
            a("v_add_u32 v5, s66, v10")
            a("v_and_b32 v11, 1, v3")
            a("v_lshlrev_b32 v10, 6, v11")
            a("v_xor_b32 v5, v5, v10")
            a("v_xor_b32 v6, 64, v5")
            a("v_mul_u32_u24 v30, 0x0202, v11")
            a("v_lshl_or_b32 v30, v30, 16, v30")
            a("v_xor_b32 v31, 0x07060302, v30")
            a("v_xor_b32 v30, 0x05040100, v30")
            a("v_and_b32 v10, 2, v0")
            a("v_or_b32 v10, 4, v10")
            a("v_lshlrev_b32 v10, 4, v10")
            a("v_lshl_add_u32 v10, v0, 7, v10")
            a("v_add_u32 v27, s68, v10")
            a("s_lshr_b32 s30, s3, 1")
            a("v_xor_b32 v28, s30, v0")
            a("v_and_b32 v28, 1, v28")
            a("v_lshlrev_b32 v28, 15, v28")
            a("v_or_b32 v28, 0x3f80, v28")


    def commitS(stage):
        if opt("nocommit", 0): return
        sl = (stage % 4) * SLOT
        xr = 32 + 16 * (stage & 1)
        a(f"v_add_u32 v7, {sl}, v5")
        a(f"v_add_u32 v2, {sl}, v6")
        for j in range(4):
            r = xr + 4 * j
            t = 16 + 4 * (j & 1)
            a(f"v_perm_b32 v{t}, v{r+1}, v{r}, v30")
            a(f"v_perm_b32 v{t+1}, v{r+3}, v{r+2}, v30")
            a(f"v_perm_b32 v{t+2}, v{r+1}, v{r}, v31")
            a(f"v_perm_b32 v{t+3}, v{r+3}, v{r+2}, v31")
            e, o = (7, 2) if (j & 1) == 0 else (2, 7)
            a(f"ds_write_b64 v{e}, {vr(t,2)} offset:{j*1024}")
            a(f"ds_write_b64 v{o}, {vr(t+2,2)} offset:{j*1024}")
        if stage < 4:
            a("s_cmp_lg_u32 s59, 0")
            a(f"s_cbranch_scc1 P1_NP{stage}")
            a(f"v_add_u32 v7, {sl}, v27")
            a("s_mov_b64 exec, 0xffff")
            a("ds_write_b16 v7, v28")
            a("s_mov_b64 exec, -1")
            a.lab(f"P1_NP{stage}")
        a("s_waitcnt lgkmcnt(0)")

    loader_loop(issueS, commitS, LAS, SG)

    a.lab("P2_LOAD")
    NPRE = DIRECT
    ops = ["pf"] * 2 if not DIRECT else [("w", st) for st in range(DIRECT) for _ in range(2)]
    get_nonce(a, "L", 30)
    a("s_barrier")
    stamp(a, 16)
    if opt("shold", 0):
        a("s_cmp_eq_u32 s58, 0")
        a("s_cbranch_scc1 NOHOLD")
        a("s_barrier")
        a.lab("NOHOLD")
    for st in range(NPRE, N1):
        if st == NPRE + opt("wpf", 99):
            waitfor(ops, "pf" if not DIRECT else ("w", DIRECT - 1))
            stamp(a, 17)
        issue_w(st, ops)
        if st == NPRE + 2:
            gload(ops)
        if 2 * (st + 1) > WTH:
            a(f"s_waitcnt vmcnt({WTH - 2})")
    if SG:
        a("s_cmp_eq_u32 s58, 1")
        a("s_cbranch_scc1 NOGC")
    gcalc(ops)
    a.lab("NOGC")
    gstore()
    HR = 32
    TMJ = opt("tmj", 0)
    NWF = max(2, TMJ + 1)
    WF = HR + D2 * 8
    ACC = WF + 8 * NWF
    assert ACC + 64 <= 256
    a("v_lshrrev_b32 v8, 5, v0")
    a("v_and_b32 v9, 15, v0")
    a("v_lshrrev_b32 v10, 2, v9")
    a("v_lshl_add_u32 v10, v8, 3, v10")
    a("v_lshlrev_b32 v10, 7, v10")
    a("v_lshrrev_b32 v11, 3, v9")
    a("v_lshl_add_u32 v10, v11, 6, v10")
    a("v_and_b32 v11, 16, v0")
    a("v_lshl_add_u32 v10, v11, 1, v10")
    a("v_and_b32 v11, 3, v0")
    a("v_lshl_add_u32 v10, v11, 3, v10")
    a("v_add_u32 v4, s77, v10")
    a("v_xor_b32 v5, 64, v4")
    a(f"v_add_u32 v6, {2*SLOT}, v4")
    a(f"v_add_u32 v7, {2*SLOT}, v5")
    def trread(st):
        off = wd_lds(st)
        hi = off >= 2 * SLOT
        if hi: off -= 2 * SLOT
        for ct in range(2):
            for hf in range(2):
                a(f"ds_read_b64_tr_b16 {vr(WF + 8*(st % NWF) + ct*4 + hf*2, 2)}, v{4 + 2*hi + ct} offset:{off + hf*512}")
    a(f"s_mul_i32 s61, s3, {NST}")
    a(f"s_mul_i32 s66, s92, {NKS}")
    a("s_add_u32 s66, s66, s61")
    a("s_lshl_b32 s66, s66, 10")
    a("v_lshlrev_b32 v12, 4, v0")
    a("v_add_u32 v2, s66, v12")
    a(f"v_add_u32 v3, {32*NKS*1024}, v2")
    a("s_cmp_eq_u32 s3, 3")
    a(f"s_cselect_b32 s72, 20, {NST}")
    stamp(a, 10)
    stamp(a, 11)
    a("s_lshr_b32 s30, s92, 1")
    a("s_lshl_b32 s30, s30, 2")
    a("s_add_u32 s30, s30, s3")
    a("s_lshl_b32 s30, s30, 7")
    a("v_mov_b32 v16, s30")
    a("s_cmp_eq_u32 s3, 3")
    a("s_cselect_b32 s30, 20, 16")
    a("v_mov_b32 v17, s30")
    if GATE:
        a("s_barrier")
    if GDEL:
        a(f"s_sleep {GDEL}")
    poll(a, "L", 16, 17, 22, 1, sleep=LSLEEP)
    stamp(a, 12)
    ops = []
    a("s_mov_b32 s64, s94")
    def issue_h(st):
        sl = st % D2
        a("s_lshl_b32 s30, s64, 10")
        a("s_cmp_ge_u32 s64, s72")
        a("s_cselect_b32 s30, 0x10000000, s30")
        a("s_add_u32 s64, s64, 1")
        a(f"buffer_load_dwordx4 {vr(HR + sl*8, 4)}, v2, s[44:47], s30 offen sc1")
        a(f"s_cmp_eq_u32 s64, {NST}")
        a("s_cselect_b32 s64, 0, s64")
        a(f"buffer_load_dwordx4 {vr(HR + sl*8 + 4, 4)}, v3, s[44:47], s30 offen sc1")
        ops.extend([("h", st)] * 2)
    def mf(st, k):
        ct, rt = k & 1, k >> 1
        d = vr(ACC + 16 * k, 16)
        c = "0" if st == 0 else d
        a(f"v_mfma_f32_32x32x16_bf16 {d}, {vr(WF + 8*(st % NWF) + ct*4, 4)}, {vr(HR + (st % D2)*8 + 4*rt, 4)}, {c}")
    def need(keys, extra=""):
        idx = [i for i, o in enumerate(ops) if o in keys]
        if idx:
            a(f"s_waitcnt vmcnt({len(ops) - 1 - max(idx)}) {extra}")
        elif extra:
            a(f"s_waitcnt {extra}")
    trread(0)
    for st in range(D2 - 1):
        issue_h(st)
        if st == 2:
            a("s_lshl_b32 s61, s56, 2")
            a("s_lshr_b32 s31, s57, 2")
            a("s_add_u32 s61, s61, s31")
            a(f"s_add_u32 s61, s61, {CT_G}")
            signal(a, 30, "s61", cnt=63, lo=0)
            ops.append("sig")
    assert TMJ <= D2 - 1
    a("v_add_u32 v10, s77, v12")
    a(f"v_add_u32 v11, {2*SLOT}, v10")
    def wr(k, qd):
        a(f"ds_write_b128 v{10 + (k >> 1)}, {vr(ACC + 16*k + 4*qd, 4)} offset:{(k & 1)*SLOT + qd*1024}")
    for st in range(NST - TMJ):
        need([("h", st), ("w", st + 1)], "lgkmcnt(0)")
        if st == 0:
            stamp(a, 13)
        mf(st, 0)
        if st + 1 < NST:
            trread(st + 1)
        mf(st, 1)
        hg = capture(lambda: issue_h(st + D2 - 1)) if st + D2 - 1 < NST else [[], []]
        a.l.extend(hg[0])
        mf(st, 2)
        a.l.extend(hg[1])
        mf(st, 3)
        if N1 + st < NST:
            issue_w(N1 + st, ops)
        if st == KB:
            a("s_barrier")
            if TMJ: assert KB < NST - TMJ
    S0 = NST - TMJ
    if TMJ:
        need([("w", NST - 1)])
        for st in range(S0 + 1, min(NST, S0 + 3)):
            trread(st)
        for k in range(4):
            for n, st in enumerate(range(S0, NST)):
                if k == 0:
                    left = min(NST - 1, st + 2) - st
                    need([("h", st)], f"lgkmcnt({4 * left})")
                mf(st, k)
                if k == 0 and st + 3 < NST:
                    trread(st + 3)
                if k > 0:
                    if n == 0:
                        a("s_nop 7"); a("s_nop 2")
                    if n < 4:
                        wr(k - 1, n)
            if k > 0:
                for qd in range(min(4, TMJ), 4):
                    wr(k - 1, qd)
        stamp(a, 14)
        a("s_nop 7"); a("s_nop 3")
        for qd in range(4):
            wr(3, qd)
        a("s_waitcnt lgkmcnt(0)")
        a("s_barrier")
    else:
        stamp(a, 14)
        a("s_nop 8")
        for half in range(2):
            for k in range(4):
                wr(k, 2 * half); wr(k, 2 * half + 1)
                if half == 1 and k == 0:
                    a("s_waitcnt lgkmcnt(2)")
                    a("s_barrier")
        a("s_waitcnt lgkmcnt(0)")
        a("s_barrier")
    stamp(a, 15)
    stamp_flush(a)
    a("s_endpgm")

    a.lab("P1_CONS")
    if CPF:
        a("s_cmp_lg_u32 s3, 0")
        a("s_cbranch_scc1 NOCPF")
        a("s_getpc_b64 s[84:85]")
        a.lab("CPF_PC")
        a(f"s_sub_u32 s84, s84, CPF_PC-{NAME}_kernel")
        a("s_subb_u32 s85, s85, 0")
        a(f"s_mov_b32 s86, K_END-{NAME}_kernel")
        a("s_mov_b32 s87, 0x20000")
        a("s_lshr_b32 s30, s2, 3")
        a("s_lshl_b32 s30, s30, 10")
        a("v_lshlrev_b32 v1, 7, v0")
        a("s_mov_b64 exec, 0xff")
        a("buffer_load_dword v13, v1, s[84:87], s30 offen")
        a("s_mov_b64 exec, -1")
        a.lab("NOCPF")
    a("s_lshr_b32 s66, s3, 1")
    a("s_and_b32 s67, s3, 1")
    a("v_and_b32 v1, 15, v0")
    a("v_lshrrev_b32 v2, 4, v0")
    a("v_lshrrev_b32 v3, 1, v1")
    a("v_xor_b32 v3, v3, v2")
    a("v_lshlrev_b32 v3, 4, v3")
    a("v_lshl_add_u32 v4, v1, 7, v3")
    a("v_lshrrev_b32 v3, 2, v1")
    a("v_lshl_add_u32 v3, v2, 3, v3")
    a("v_and_b32 v11, 3, v0")
    a(f"s_mov_b32 s72, {f32(C2)}")
    a(f"v_mov_b32 v10, {f32(C1)}")
    a("s_mov_b32 s68, 0")
    a(f"s_mov_b32 s82, {(-3*SLOT) & 0xffffffff}")
    a(f"s_mov_b32 s83, {SLOT}")

    def advance(regs):
        f = ["s_add_u32 s68, s68, 1",
             "s_and_b32 s30, s68, 3",
             "s_cmp_eq_u32 s30, 0",
             "s_cselect_b32 s30, s82, s83"]
        f += [f"v_add_u32 v{v}, s30, v{v}" for v in regs]
        f += ["s_cmp_eq_u32 s68, 8"]
        return f

    def cons_start():
        a("s_waitcnt lgkmcnt(0)")
        srd(a, 44, 28, 29, 0x2000000 if STAMP else WS_USED)
        stamp0()

    a("s_cmp_eq_u32 s58, 1")
    a("s_cbranch_scc1 P1_CSP")
    a("s_lshr_b32 s30, s2, 3")
    a("s_xor_b32 s30, s30, 8")
    a("s_xor_b32 s31, s3, 1")
    a("s_or_b32 s30, s30, s31")
    a("s_cbranch_scc1 NOINIT")
    a("s_setprio 3")
    a("v_mov_b32 v16, 0")
    a("v_lshlrev_b32 v17, 7, v0")
    a("s_and_b32 s31, s2, 7")
    a(f"s_mul_i32 s30, s31, {NCT // 8 * 128}")
    a(f"s_add_u32 s30, s30, 0x{FL_OFF:x}")
    a(f"s_mov_b32 exec_hi, 0x{(1 << (NCT // 8 - 32)) - 1:x}")
    a("s_waitcnt lgkmcnt(0)")
    srd(a, 44, 28, 29, 0x2000000 if STAMP else WS_USED)
    a("buffer_store_dword v16, v17, s[44:47], s30 offen sc0 sc1")
    srd(a, 48, 26, 27, 256)
    a("v_mov_b32 v16, 1")
    a("s_lshl_b32 s30, s31, 2")
    a("s_mov_b64 exec, 1")
    a("s_waitcnt vmcnt(0)")
    a("buffer_store_dword v16, off, s[48:51], s30 sc0 sc1")
    a("s_mov_b64 exec, -1")
    a("s_setprio 0")
    a.lab("NOINIT")
    FS = [16, 56]
    ACC = 96
    def xf(s, rt): return FS[s] + 4 * rt
    def wf(s, i): return FS[s] + 16 + 4 * i
    a("s_lshl_b32 s30, s66, 13")
    a("v_add_u32 v4, s30, v4")
    a("v_xor_b32 v5, 64, v4")
    a("v_mul_u32_u24 v3, 192, v3")
    a("v_lshl_add_u32 v3, v11, 3, v3")
    a("s_mul_i32 s30, s67, 96")
    a(f"s_add_u32 s30, s30, {XB}")
    a("v_add_u32 v3, s30, v3")
    a("v_and_b32 v8, 1, v2")
    a("v_lshlrev_b32 v8, 5, v8")
    a("v_add_u32 v6, v3, v8")
    a("v_sub_u32 v7, v3, v8")
    a("s_cmp_eq_u32 s67, 0")
    a("s_cbranch_scc1 P1_NOSWAP")
    a("v_swap_b32 v6, v7")
    a.lab("P1_NOSWAP")
    def accF(rt, ul, mat): return ACC + 4 * ((rt * 3 + ul) * 2 + mat)
    def readsF(s, st):
        r = []
        order = [("w", 0, 0), ("x", 0, 0), ("w", 1, 0), ("x", 1, 0), ("x", 2, 0), ("x", 3, 0),
                 ("w", 0, 1), ("w", 1, 1), ("w", 0, 2), ("w", 1, 2)]
        for kind, p, ul in order:
            if kind == "x":
                r.append(f"ds_read_b128 {vr(xf(s, p), 4)}, v{4+st} offset:{p*2048}")
            else:
                base = 7 if ul == 1 else 6
                for hf in range(2):
                    off = p * WB + st * 6144 + hf * 768 + ul * 32
                    r.append(f"ds_read_b64_tr_b16 {vr(wf(s, 3*p+ul) + 2*hf, 2)}, v{base} offset:{off}")
        if opt("noread", 0): r = r[:1]
        return r
    def mfmasF(s):
        m = []
        for ul in range(3):
            for rt in range(4):
                for mat in range(2):
                    d = vr(accF(rt, ul, mat), 4)
                    m.append(f"v_mfma_f32_16x16x32_bf16 {d}, {vr(wf(s, 3*mat+ul), 4)}, {vr(xf(s, rt), 4)}, {d}")
        if opt("nomfma", 0): m = ["s_nop 0"] * len(m)
        return m
    for i in range(96):
        a(f"v_mov_b32 v{ACC+i}, 0")
    a("v_lshlrev_b32 v3, 4, v0")
    a("s_mul_i32 s69, s78, 6")
    a("s_mul_i32 s30, s67, 3")
    a("s_add_u32 s69, s69, s30")
    a("s_lshl_b32 s30, s56, 2")
    a("s_lshl_b32 s31, s66, 1")
    a("s_add_u32 s30, s30, s31")
    a(f"s_mul_i32 s30, s30, {NKS}")
    a("s_add_u32 s30, s30, s69")
    a("s_lshl_b32 s70, s30, 10")
    a(f"s_add_u32 s71, s70, {NKS*1024}")
    cons_start()
    if opt("fprio", 1): a(f"s_setprio {opt('fprio', 1)}")
    a("s_barrier")
    stamp(a, 2)
    for r in readsF(0, 0):
        a(r)
    a.lab("P1_LOOPF")
    a("s_waitcnt lgkmcnt(0)")
    weave(a, mfmasF(0), readsF(1, 1) + advance((4, 5, 6, 7)))
    a("s_waitcnt lgkmcnt(0)")
    a("s_cbranch_scc1 P1_LASTF")
    if BPOS:
        weave(a, mfmasF(1), ["s_barrier"] + readsF(0, 0), start=BPOS, per=2)
    else:
        weave(a, mfmasF(1), ["s_barrier"] + readsF(0, 0))
    a("s_branch P1_LOOPF")
    a.lab("P1_LASTF")
    weave(a, mfmasF(1), ["s_barrier"] + req_nonce() + ["s_waitcnt vmcnt(0)"])
    stamp(a, 3)
    if EPRIO: a(f"s_setprio {EPRIO}")
    k = 0
    pend = []
    for ul in range(3):
        for uu in range(2):
            dst = 32 + 4 * k
            gelu_pair(a, accF(2*uu, ul, 0), accF(2*uu, ul, 1), accF(2*uu+1, ul, 0), accF(2*uu+1, ul, 1), 16 + 8 * (k & 1), dst)
            pend.append(f"buffer_store_dwordx4 {vr(dst,4)}, v3, s[44:47], s{70 + uu} offen offset:{ul*1024} sc1")
            k += 1
            if k > opt("burst", 5):
                a(f"s_setprio {PRIO}")
                for x in pend:
                    a(x)
                pend = []
                a(f"s_setprio {EPRIO}")
    stamp(a, 4)
    get_nonce(a, "F", 12)
    a("s_mul_i32 s61, s69, 47")
    a("s_lshr_b32 s61, s61, 10")
    a("s_add_u32 s31, s69, 2")
    a("s_mul_i32 s31, s31, 47")
    a("s_lshr_b32 s31, s31, 10")
    a("s_cmp_eq_u32 s31, s61")
    a("s_cselect_b32 s64, 1, 3")
    a("s_and_b32 s31, s56, 7")
    a("s_lshl_b32 s31, s31, 3")
    a("s_add_u32 s61, s61, s31")
    a("s_lshl_b32 s31, s66, 2")
    a("s_add_u32 s61, s61, s31")
    signal(a, 12, "s61", "s64")
    if GATE:
        a("s_barrier")
    a("s_branch P2_CONS")

    a.lab("P1_CSP")
    FS = [16, 64]
    ACC = 112
    AS = 240
    def xs(s, kk, u): return FS[s] + 4 * (4 * kk + u)
    def dfr(s, kk): return FS[s] + 32 + 4 * kk
    def ffr(s, kk): return FS[s] + 40 + 4 * kk
    def accD(st, u): return ACC + 16 * (4 * st + u)
    a("v_lshrrev_b32 v2, 5, v0")
    a("v_and_b32 v12, 31, v0")
    a("v_bfe_u32 v4, v0, 1, 3")
    a("v_xor_b32 v4, v4, v2")
    a("v_lshlrev_b32 v4, 4, v4")
    a("v_lshl_add_u32 v4, v12, 7, v4")
    a("v_xor_b32 v5, 32, v4")
    a("v_xor_b32 v6, 64, v4")
    a("v_xor_b32 v7, 0x60, v4")
    a("v_lshrrev_b32 v3, 2, v1")
    a("v_lshl_add_u32 v3, v2, 3, v3")
    a("v_bfe_u32 v14, v0, 4, 1")
    a("v_bfe_u32 v8, v0, 3, 2")
    a("v_xor_b32 v8, s3, v8")
    a("v_lshlrev_b32 v8, 5, v8")
    a("v_lshl_add_u32 v8, v3, 7, v8")
    a("v_lshl_add_u32 v8, v11, 3, v8")
    a("v_lshl_add_u32 v8, v14, 13, v8")
    a(f"v_add_u32 v8, {XB}, v8")
    a("v_lshlrev_b32 v9, 5, v3")
    a("v_lshl_add_u32 v9, v11, 3, v9")
    a(f"v_mul_u32_u24 v3, {2048 + 128}, v14")
    a("v_add_u32 v9, v9, v3")
    a(f"v_add_u32 v9, {XB + 16384}, v9")
    a("v_xor_b32 v3, 0x80, v9")
    a("v_and_b32 v14, 1, v0")
    a("v_mul_u32_u24 v14, 0x8000, v14")
    a("v_lshl_or_b32 v14, v14, 16, v14")
    def readsS(s, st):
        r = []
        for kk in range(2):
            for hf in range(2):
                r.append(f"ds_read_b64_tr_b16 {vr(dfr(s, kk) + 2*hf, 2)}, v8 offset:{(2*st+kk)*2048 + hf*512}")
        for u in range(4):
            r.append(f"ds_read_b128 {vr(xs(s, 0, u), 4)}, v{4+2*st} offset:{u*4096}")
        for kk in range(2):
            for hf in range(2):
                r.append(f"ds_read_b64_tr_b16 {vr(ffr(s, kk) + 2*hf, 2)}, v{9 if hf == 0 else 3} offset:{(2*st+kk)*512}")
        for u in range(4):
            r.append(f"ds_read_b128 {vr(xs(s, 1, u), 4)}, v{5+2*st} offset:{u*4096}")
        return r
    def allS(s, st, cw):
        m = []
        for kk in range(2):
            for u in range(4):
                d = vr(accD(st, u), 16)
                m.append(f"v_mfma_f32_32x32x16_bf16 {d}, {vr(xs(s, kk, u), 4)}, {vr(dfr(s, kk), 4)}, {d}")
            m.append(f"v_mfma_f32_32x32x16_bf16 {vr(AS,16)}, {vr(ffr(s, kk), 4)}, {vr(xs(s, kk, cw), 4)}, {vr(AS,16)}")
        return m
    def xors(s):
        return ["s_waitcnt lgkmcnt(12)"] + [f"v_xor_b32 v{dfr(s,0)+i}, v13, v{dfr(s,0)+i}" for i in range(8)]
    def weave2(mf, fill):
        n = len(mf) - 1
        fi = 0
        for i, m in enumerate(mf):
            a(m)
            want = min(len(fill), -(-len(fill) * (i + 1) // n))
            while fi < want:
                a(fill[fi]); fi += 1
    for i in range(144):
        a(f"v_mov_b32 v{ACC+i}, 0")
    a("v_cvt_f32_u32 v16, v12")
    a(f"v_mul_f32 v16, {f32(1.0/32)}, v16")
    a("v_lshlrev_b32 v18, 2, v2")
    a("v_cvt_f32_u32 v18, v18")
    for k in range(2):
        for j in range(8):
            s1 = 16 * k + 8 * (j >> 2) + (j & 3)
            a(f"v_add_f32 v19, {f32(float(s1))}, v18")
            a("v_mul_f32 v19, v19, v16")
            a(f"v_cos_f32 v{20+j}, v19")
            a(f"v_sin_f32 v{28+j}, v19")
        a("s_nop 0")
        for i in range(4):
            a(f"v_cvt_pk_bf16_f32 v{40+4*k+i}, v{20+2*i}, v{21+2*i}")
            a(f"v_cvt_pk_bf16_f32 v{48+4*k+i}, v{28+2*i}, v{29+2*i}")
    a("v_lshlrev_b32 v11, 4, v0")
    a(f"v_add_u32 v11, {F1_LDS}, v11")
    for i in range(4):
        a(f"ds_write_b128 v11, {vr(40+4*i,4)} offset:{i*1024}")
    cons_start()
    a("s_waitcnt vmcnt(0) lgkmcnt(0)")
    a("v_mov_b32 v13, 0")
    if opt("sprio", 1): a(f"s_setprio {opt('sprio', 1)}")
    a("s_barrier")
    stamp(a, 2)
    for r in readsS(0, 0):
        a(r)
    F1 = 16
    for cw in (1, 2, 3):
        a(f"s_cmp_eq_u32 s3, {cw}")
        a(f"s_cbranch_scc1 P1_LOOPS{cw}")
    lastfill = ([f"ds_read_b128 {vr(F1+4*i,4)}, v11 offset:{i*1024}" for i in range(4)] +
                ["s_lshl_b32 s30, s56, 2", "s_add_u32 s30, s30, s3", f"s_mul_i32 s30, s30, {NKS}", "s_add_u32 s30, s30, s59",
                 "s_add_u32 s30, s30, 84", "s_lshl_b32 s70, s30, 10",
                 f"s_mul_i32 s69, s56, {EP*16}", f"s_add_u32 s69, s69, 0x{C_OFF:x}",
                 "s_waitcnt lgkmcnt(0)", "s_barrier"] + req_nonce() + [f"v_xor_b32 v{F1+16+i}, 0x80008000, v{F1+i}" for i in range(8)])
    for cw in range(4):
        a.lab(f"P1_LOOPS{cw}")
        a("s_waitcnt lgkmcnt(0)")
        weave2(allS(0, 0, cw), readsS(1, 1) + xors(1) + advance((3, 4, 5, 6, 7, 8, 9)))
        a("s_waitcnt lgkmcnt(0)")
        a(f"s_cbranch_scc1 P1_LASTS{cw}")
        weave2(allS(1, 1, cw), ["s_cmp_ge_u32 s68, 4", "s_cselect_b32 s30, -1, 0", "v_and_b32 v13, s30, v14", "s_barrier"] + readsS(0, 0) + xors(0))
        a(f"s_branch P1_LOOPS{cw}")
        a.lab(f"P1_LASTS{cw}")
        weave2(allS(1, 1, cw), lastfill)
        if cw != 3:
            a("s_branch P1_LASTS")
    a.lab("P1_LASTS")
    stamp(a, 3)
    if EPRIO: a(f"s_setprio {EPRIO}")
    TS = 16 * EP * 16
    a("v_lshlrev_b32 v3, 4, v0")
    a("s_lshl_b32 s30, s59, 6")
    a("s_lshl_b32 s31, s3, 4")
    a("s_add_u32 s30, s30, s31")
    a("v_bfe_u32 v5, v0, 4, 1")
    a("v_lshl_add_u32 v4, v5, 7, v1")
    a("v_add_u32 v4, s30, v4")
    a(f"s_mov_b32 s31, {4*TS}")
    a("v_mul_lo_u32 v6, v2, s31")
    a("v_lshl_add_u32 v4, v4, 4, v6")
    a("v_mul_u32_u24 v5, 0x8000, v5")
    a("v_lshl_or_b32 v5, v5, 16, v5")
    a("v_mov_b32 v6, -1")
    BF, TM, XF, CK, TM2, HD = 40, 72, 80, 96, 80, 100
    for x in gelu8([AS+i for i in range(8)], [AS+8+i for i in range(8)], TM, HD, 32):
        a(x)
    a(f"s_setprio {PRIO}")
    a(f"buffer_store_dwordx4 {vr(HD,4)}, v3, s[44:47], s70 offen sc1")
    a(f"s_setprio {EPRIO}")
    a("s_cmp_lg_u32 s30, 0")
    a("s_cbranch_scc1 P1_NOX")
    a("v_cmp_ne_u32 vcc, 0, v1")
    a(f"s_mov_b32 s31, {TS}")
    a("v_mul_lo_u32 v7, v0, s31")
    a("v_cndmask_b32 v6, 0, v6, vcc")
    for u in range(4):
        for st in range(2):
            dst = XF + 8 * st if u == 0 else TM
            for i in range(8):
                a(f"v_cvt_pk_bf16_f32 v{dst+i}, v{accD(st,u)+2*i}, v{accD(st,u)+2*i+1}")
            if u:
                for i in range(8):
                    a(f"v_mov_b32_dpp v{XF+8*st+i}, v{TM+i} row_shr:{u} row_mask:0xa bank_mask:0x1")
    a("s_nop 1")
    for comp in range(2):
        o = vr(BF + 16 * comp, 16)
        for half in range(2):
            for k in range(2):
                c = "0" if (half == 0 and k == 0) else o
                a(f"v_mfma_f32_32x32x16_bf16 {o}, {vr(XF+8*half+4*k,4)}, {vr(F1+8*(comp+half)+4*k,4)}, {c}")
    a(f"s_add_u32 s30, s69, {256*16}")
    a("s_nop 11")
    for comp in range(2):
        a(f"v_cvt_pk_bf16_f32 v{CK+2*comp}, v{BF+16*comp+8}, v{BF+16*comp+9}")
        a(f"v_cvt_pk_bf16_f32 v{CK+2*comp+1}, v{BF+16*comp+10}, v{BF+16*comp+11}")
    a("s_mov_b32 exec_hi, 0")
    a(f"buffer_store_dwordx4 {vr(CK,4)}, v7, s[44:47], s30 offen sc1")
    a("s_mov_b32 exec_hi, -1")
    a.lab("P1_NOX")
    def bfly(u):
        r_ = []
        A = BF + 16 * (u & 1)
        B = A + 8
        E, T = accD(0, u), accD(1, u)
        for r in range(0, 16, 2):
            r_.append(f"v_pk_add_f32 {vr(TM2+r,2)}, {vr(E+r,2)}, {vr(T+r,2)}")
            r_.append(f"v_pk_add_f32 {vr(T+r,2)}, {vr(E+r,2)}, {vr(T+r,2)} neg_lo:[0,1] neg_hi:[0,1]")
        for i in range(8):
            r_.append(f"v_cvt_pk_bf16_f32 v{A+i}, v{TM2+2*i}, v{TM2+2*i+1}")
            r_.append(f"v_cvt_pk_bf16_f32 v{B+i}, v{T+2*i}, v{T+2*i+1}")
        for i in range(8):
            r_.append(f"v_permlane16_swap_b32 v{A+i}, v{B+i}")
        for i in range(8):
            r_.append(f"v_bitop3_b32 v{B+i}, v{B+i}, v5, v6 bitop3:0x28")
        return r_
    def st1(u):
        m = []
        A = BF + 16 * (u & 1)
        for half in range(2):
            for k in range(2):
                for comp in range(2):
                    o = vr(accD(comp, u), 16)
                    c = "0" if (half == 0 and k == 0) else o
                    m.append(f"v_mfma_f32_32x32x16_bf16 {o}, {vr(F1+8*(comp+half)+4*k,4)}, {vr(A+8*half+4*k,4)}, {c}")
        return m
    for x in bfly(0):
        a(x)
    for u in range(4):
        weave(a, st1(u), bfly(u + 1) if u < 3 else [], per=6)
        if u == 1:
            get_nonce(a, "S", 12)
            a("s_and_b32 s61, s56, 7")
            a("s_lshl_b32 s61, s61, 3")
            a("s_lshl_b32 s31, s66, 2")
            a("s_add_u32 s61, s61, s31")
            a("s_add_u32 s61, s61, 3")
            signal(a, 12, "s61")
    a(f"s_setprio {PRIO}")
    stamp(a, 11)
    a("s_nop 8")
    for r in range(16):
        d = BF + 4 * (r & 7)
        a(f"v_cvt_pk_bf16_f32 v{d}, v{accD(0,0)+r}, v{accD(0,1)+r}")
        a(f"v_cvt_pk_bf16_f32 v{d+1}, v{accD(0,2)+r}, v{accD(0,3)+r}")
        a(f"v_cvt_pk_bf16_f32 v{d+2}, v{accD(1,0)+r}, v{accD(1,1)+r}")
        a(f"v_cvt_pk_bf16_f32 v{d+3}, v{accD(1,2)+r}, v{accD(1,3)+r}")
        a(f"s_add_u32 s30, s69, {(8*(r >> 2) + (r & 3))*TS}")
        a(f"buffer_store_dwordx4 {vr(d,4)}, v4, s[44:47], s30 offen sc1")
    stamp(a, 4)
    if opt("shold", 0):
        a("s_barrier")
    a("s_lshl_b32 s61, s59, 2")
    a("s_add_u32 s61, s61, s3")
    a(f"s_mul_i32 s61, s61, {NREP}")
    a(f"s_add_u32 s61, s61, {CT_C}")
    signal(a, 12, "s61", "-1")

    a.lab("P2_CONS")
    a("v_mov_b32 v56, 16")
    if EPRIO: a("s_setprio 0")
    stamp(a, 5)
    p2_ids(a)
    srd(a, 48, 24, 25, 2048 * 1024)
    YA, CF, MF, PR, GV = 64, 80, 112, 144, 60
    a("v_lshrrev_b32 v8, 5, v0")
    a("v_and_b32 v9, 31, v0")
    a("s_lshl_b32 s31, s93, 6")
    a("s_lshl_b32 s61, s67, 5")
    a("s_add_u32 s31, s31, s61")
    a("s_lshl_b32 s30, s66, 5")
    a("s_add_u32 s30, s30, s92")
    a("v_lshlrev_b32 v12, 6, v9")
    a("v_add_u32 v12, s30, v12")
    a("v_lshrrev_b32 v11, 1, v9")
    a("v_lshlrev_b32 v11, 7, v11")
    a("v_and_b32 v4, 1, v9")
    a("v_lshl_add_u32 v11, v4, 2, v11")
    a("s_lshl_b32 s61, s30, 11")
    a("v_add_u32 v11, s61, v11")
    a("s_lshr_b32 s64, s30, 2")
    a("s_sub_u32 s61, 32, s92")
    a("s_and_b32 s61, s61, 31")
    a("s_sub_u32 s65, 481, s31")
    a("s_cmp_ge_u32 s93, 4")
    a("s_cselect_b32 s69, s61, s92")
    a("s_cselect_b64 vcc, -1, 0")
    a("s_cselect_b32 s73, 1.0, -1.0")
    a("s_cselect_b32 s65, s65, s31")
    a("v_add_u32 v4, s31, v9")
    a("v_sub_u32 v5, 0x200, v4")
    a("v_cndmask_b32 v4, v4, v5, vcc")
    a("v_lshrrev_b32 v6, 4, v0")
    a("v_lshlrev_b32 v6, 4, v6")
    a("v_min_u32 v6, 31, v6")
    a("v_add_u32 v6, s65, v6")
    for v in (4, 6):
        a(f"v_sub_u32 v5, 384, v{v}")
        a(f"v_cmp_gt_u32 vcc, 128, v{v}")
        a("s_nop 1")
        a(f"v_cndmask_b32 v{v}, v5, v{v}, vcc")
    a(f"v_mul_u32_u24 v5, {8*EP}, v8")
    a("v_add_u32 v4, v4, v5")
    a("v_lshlrev_b32 v4, 4, v4")
    a(f"s_mul_i32 s69, s69, {16*EP*16}")
    a(f"s_add_u32 s69, s69, 0x{C_OFF:x}")
    a("v_bfe_u32 v6, v6, 4, 3")
    a("s_lshr_b32 s61, s2, 1")
    a("s_xor_b32 s61, s61, s2")
    a("s_lshl_b32 s64, s66, 4")
    a("s_add_u32 s61, s61, s64")
    a(f"s_and_b32 s61, s61, {NREP-1}")
    a(f"s_add_u32 s61, s61, {CT_C}")
    a("v_lshl_add_u32 v6, v6, 5, s61")
    a(f"s_add_u32 s61, s30, {CT_G}")
    a("v_mov_b32 v5, s61")
    a("v_cmp_gt_u32 vcc, 48, v0")
    a("s_nop 1")
    a("v_cndmask_b32 v6, v5, v6, vcc")
    a("v_lshlrev_b32 v6, 7, v6")
    a("v_cvt_f32_u32 v9, v12")
    a(f"v_mul_f32 v9, {f32(1.0/2048)}, v9")
    a("v_mul_f32 v9, s73, v9")
    a("v_lshlrev_b32 v10, 5, v8")
    a("v_cvt_f32_u32 v10, v10")
    a("v_mul_f32 v10, v10, v9")
    T = 16
    for i in range(8):
        for c in range(4):
            a(f"v_cos_f32 v{T+c}, v10")
            a(f"v_sin_f32 v{T+4+c}, v10")
            a("v_add_f32 v10, v10, v9")
        for c in range(4):
            a(f"v_cvt_pk_bf16_f32 v{MF+4*i+c}, v{T+2*c}, v{T+2*c+1}")
    a("v_lshlrev_b32 v12, 10, v12")
    a("v_lshl_add_u32 v12, v8, 4, v12")
    a("s_lshl_b32 s31, s31, 1")
    a("v_add_u32 v12, s31, v12")
    a(f"s_mul_i32 s30, s3, {SLOT}")
    a("v_lshlrev_b32 v5, 4, v0")
    a("v_add_u32 v5, s30, v5")
    stamp(a, 6)
    if not opt("pollfirst", 0) and KB >= 0:
        a("s_barrier")
    a(f"s_setprio {opt('cprio', 3)}")
    poll(a, "C", 6, 56, 58, 0x0001000100010001, sleep=opt("csleep", 4))
    stamp(a, 7)
    if opt("pollfirst", 0):
        a("s_barrier")
    for i in range(8):
        a(f"s_add_u32 s70, s69, {i*EP*16}")
        a(f"buffer_load_dwordx4 {vr(CF + 4*i, 4)}, v4, s[44:47], s70 offen sc1")
    a(f"s_mov_b32 s70, 0x{G_OFF:x}")
    a(f"buffer_load_dword v{GV}, v11, s[44:47], s70 offen sc1")
    def rdq(qd):
        for w in range(4):
            a(f"ds_read_b128 {vr(PR + 16*w + 4*qd, 4)}, v5 offset:{w*PIECE + qd*1024}")
    def adds(qd):
        for r in range(4*qd, 4*qd + 4, 2):
            a(f"v_pk_add_f32 {vr(PR+r,2)}, {vr(PR+r,2)}, {vr(PR+16+r,2)}")
            a(f"v_pk_add_f32 {vr(PR+32+r,2)}, {vr(PR+32+r,2)}, {vr(PR+48+r,2)}")
        for r in range(4*qd, 4*qd + 4, 2):
            a(f"v_pk_add_f32 {vr(PR+r,2)}, {vr(PR+r,2)}, {vr(PR+32+r,2)}")
    def ym(i):
        a(f"s_waitcnt vmcnt({8 - i})")
        c = "0" if i == 0 else vr(YA, 16)
        a(f"v_mfma_f32_32x32x16_bf16 {vr(YA,16)}, {vr(CF+4*i,4)}, {vr(MF+4*i,4)}, {c}")
    YE = opt("ye", 0)
    for i in range(YE):
        ym(i)
    rest = list(range(YE, 8))
    if TMJ:
        for i in rest:
            ym(i)
        a("s_barrier")
        for qd in range(4):
            rdq(qd)
        for qd in range(4):
            a(f"s_waitcnt lgkmcnt({12 - 4*qd})")
            adds(qd)
    for half in range(0 if TMJ else 2):
        a("s_barrier")
        rdq(2 * half); rdq(2 * half + 1)
        for i in (rest[:len(rest)//2] if half == 0 else rest[len(rest)//2:]):
            ym(i)
        a("s_waitcnt lgkmcnt(4)")
        adds(2 * half)
        a("s_waitcnt lgkmcnt(0)")
        adds(2 * half + 1)
    a("s_waitcnt vmcnt(0)")
    a(f"v_sub_f32 v{GV+2}, 1.0, v{GV}")
    a(f"v_cvt_pk_bf16_f32 v{GV+2}, v{GV+2}, v{GV+2}")
    a(f"v_lshlrev_b32 v{GV+2}, 16, v{GV+2}")
    stamp(a, 8)
    for r in range(0, 16, 2):
        a(f"v_pk_mul_f32 {vr(PR+r,2)}, {vr(PR+r,2)}, {vr(GV+2,2)} op_sel_hi:[1,0]")
    for qd in range(4):
        for r in range(4*qd, 4*qd + 4, 2):
            a(f"v_pk_fma_f32 {vr(YA+r,2)}, {vr(YA+r,2)}, {vr(GV,2)}, {vr(PR+r,2)} op_sel_hi:[1,0,1]")
        a(f"v_cvt_pk_bf16_f32 v{16+2*qd}, v{YA+4*qd}, v{YA+4*qd+1}")
        a(f"v_cvt_pk_bf16_f32 v{17+2*qd}, v{YA+4*qd+2}, v{YA+4*qd+3}")
        if qd & 1:
            k = 16 + 2 * (qd - 1)
            a("s_nop 1")
            a(f"v_permlane32_swap_b32 v{k}, v{k+2}")
            a(f"v_permlane32_swap_b32 v{k+1}, v{k+3}")
            a(f"buffer_store_dwordx4 {vr(k,4)}, v12, s[48:51], 0 offen offset:{16*(qd-1)}")
    stamp(a, 9)
    stamp_flush(a)
    a.lab("K_END")
    a("s_endpgm")

HEADER = open("cdna_kernels/" + NAME + ".s.ref").read().split("; Override launch")[0]

def main():
    nm = NAME + "_kernel"
    out = HEADER
    out += f"; @launch grid=(256,1,1) block=(512,1,1) lds={4*SLOT}\n"
    out += '.amdgcn_target "amdgcn-amd-amdhsa--gfx950"\n.text\n'
    a = Asm()
    out += f".globl {nm}\n.p2align 8\n.type {nm},@function\n"
    kernel(a)
    out += a.text()
    out += f""".section .rodata,"a"
.p2align 6
.amdhsa_kernel {nm}
  .amdhsa_next_free_vgpr 256
  .amdhsa_next_free_sgpr 102
  .amdhsa_accum_offset 256
  .amdhsa_group_segment_fixed_size 0
  .amdhsa_kernarg_size 104
  .amdhsa_user_sgpr_count 2
  .amdhsa_user_sgpr_kernarg_segment_ptr 1
  .amdhsa_system_sgpr_workgroup_id_x 1
.end_amdhsa_kernel
"""
    path = [x for x in sys.argv[1:] if not x.startswith("--")][0]
    open(path, "w").write(out)

main()
```

```python
import sys
NAME = "gated_mix__spectral_fnet__geglu_ffn__prompt"
src = open(sys.argv[1]).read()
wave, idx, op = int(sys.argv[3]), int(sys.argv[4]), sys.argv[5]
BASE = 4000
lines = src.split("\n")
li = [i for i, l in enumerate(lines) if l.startswith("; @launch")][0]
lines[li] = lines[li].replace("; @launch ", f"; @launch kernel={NAME}_kernel ")
lines[li+1:li+1] = ["; @launch kernel=e_kernel grid=(1,1,1) block=(64,1,1) lds=0"]
vop = {"max": "v_max_u32", "min": "v_min_u32", "avg": "v_add_u32", "zero": "v_max_u32"}[op]
sop = {"max": "s_max_u32", "min": "s_min_u32", "avg": "s_add_u32", "zero": "s_max_u32"}[op]
b = ["s_cmp_ge_u32 s2, 1", "s_cbranch_scc1 E_END", "s_load_dwordx2 s[28:29], s[0:1], 96", "v_lshlrev_b32 v1, 11, v0", "s_waitcnt lgkmcnt(0)",
     "s_mov_b32 s32, s28", "s_mov_b32 s33, s29", "s_mov_b32 s34, 0x2000000", "s_mov_b32 s35, 0x20000"]
for k in range(4):
    b += [f"s_mov_b32 s30, {0x1000000 + k*131072}", f"buffer_load_dword v{2+k}, v1, s[32:35], s30 offen"]
    b += [f"s_mov_b32 s30, {0x1000000 + k*131072 + wave*256 + idx*4}", f"buffer_load_dword v{6+k}, v1, s[32:35], s30 offen"]
b += ["s_waitcnt vmcnt(0)", "v_min_u32 v2, v2, v3", "v_min_u32 v4, v4, v5", "v_min_u32 v2, v2, v4"]
for sh in (8, 4, 2, 1):
    b += ["s_nop 1", f"v_min_u32_dpp v2, v2, v2 row_ror:{sh} row_mask:0xf bank_mask:0xf"]
b += ["s_nop 1"] + [f"v_readlane_b32 s{40+i}, v2, {16*i}" for i in range(4)]
b += ["s_nop 3", "s_min_u32 s40, s40, s41", "s_min_u32 s42, s42, s43", "s_min_u32 s40, s40, s42"]
b += [f"v_subrev_u32 v{6+k}, s40, v{6+k}" for k in range(4)]
b += [f"{vop} v6, v6, v7", f"{vop} v8, v8, v9", f"{vop} v6, v6, v8"]
for sh in (8, 4, 2, 1):
    b += ["s_nop 1", f"{vop}_dpp v6, v6, v6 row_ror:{sh} row_mask:0xf bank_mask:0xf"]
b += ["s_nop 1"] + [f"v_readlane_b32 s{44+i}, v6, {16*i}" for i in range(4)]
b += ["s_nop 3", f"{sop} s44, s44, s45", f"{sop} s46, s46, s47", f"{sop} s44, s44, s46"]
if op == "avg": b += ["s_lshr_b32 s44, s44, 8"]
if op == "zero": b += ["s_mov_b32 s44, 0"]
b += ["s_min_u32 s44, s44, 5000", f"s_lshl_b32 s44, s44, {int(sys.argv[6]) if len(sys.argv) > 6 else 1}", f"s_add_u32 s44, s44, {BASE}",
      "E_L:", "s_memrealtime s[36:37]", "s_waitcnt lgkmcnt(0)", "s_sub_u32 s36, s36, s40", "s_cmp_lt_u32 s36, s44", "s_cbranch_scc1 E_L", "E_END:", "s_endpgm"]
body = "".join(("    " + x if not x.endswith(":") else x) + "\n" for x in b)
src = "\n".join(lines)
src = src.replace('.section .rodata,"a"', '.globl e_kernel\n.p2align 8\n.type e_kernel,@function\ne_kernel:\n' + body + '.section .rodata,"a"')
src += """.p2align 6
.amdhsa_kernel e_kernel
  .amdhsa_next_free_vgpr 16
  .amdhsa_next_free_sgpr 56
  .amdhsa_accum_offset 16
  .amdhsa_group_segment_fixed_size 0
  .amdhsa_kernarg_size 104
  .amdhsa_user_sgpr_count 2
  .amdhsa_user_sgpr_kernarg_segment_ptr 1
  .amdhsa_system_sgpr_workgroup_id_x 1
.end_amdhsa_kernel
"""
open(sys.argv[2], "w").write(src)
```

```python
import sys, math, struct

NAME = "gated_mix__spectral_fnet__geglu_ffn__prompt"
STAMP = "--stamp" in sys.argv
def opt(name, default):
    for x in sys.argv:
        if x.startswith("--" + name + "="):
            return int(x.split("=")[1])
    return default
RA = opt("ra", 1); RB = opt("rb", 2); RM = opt("rm", 6)
RJ = opt("rj", 2); RI = opt("ri", 6)
NPRE = opt("npre", 0)
D2 = opt("d2", 8)
WTH = opt("wth", 64)
PRIO = opt("prio", 3)
EPRIO = opt("eprio", 1)
KB = opt("kb", 10)
LA2 = opt("la2", 9)
N0A = opt("n0a", 3)
N0B = opt("n0b", 2)
WNT = "nt" if opt("wnt", 0) else ""
XNT = "nt" if opt("xnt", 0) else ""
PK = opt("pk", 1)
N1 = opt("n1", 20)
DIRECT = opt("direct", 4)
TAILV = opt("tailv", 1)
LAI = opt("lai", 7)
LAS = opt("las", 9)
BPOS = opt("bpos", 8)
SG = opt("sg", 0)
GATE = opt("gate", 0)
GDEL = opt("gdel", 0)
CPF = opt("cpf", 1)
PFW = opt("pfw", 1)
LSLEEP = opt("lsleep", 2)
SPINMAX = 400000

NKS = 86
EP = 264
C_OFF = 0x600000
G_OFF = 0x8e0000
FL_OFF = 0x910000
CT_H, CT_G, CT_C = 0, 64, 128
NCT = 384
NREP = 32
WS_USED = 0x920000
ST_OFF = 0x1000000

def f32(x):
    return "0x%08x" % struct.unpack("<I", struct.pack("<f", x))[0]

class Asm:
    def __init__(self):
        self.l = []
    def __call__(self, s):
        self.l.append("    " + s)
    def lab(self, s):
        self.l.append(s + ":")
    def text(self):
        return "\n".join(self.l) + "\n"

def vr(b, n=1):
    return f"v{b}" if n == 1 else f"v[{b}:{b+n-1}]"

def srd(a, d, lo, hi, nbytes):
    a(f"s_mov_b32 s{d}, s{lo}")
    a(f"s_mov_b32 s{d+1}, s{hi}")
    a(f"s_mov_b32 s{d+2}, 0x{nbytes:x}")
    a(f"s_mov_b32 s{d+3}, 0x20000")

SV = 15
def stamp(a, idx):
    if not STAMP:
        return
    a("s_memrealtime s[62:63]")
    a("s_waitcnt lgkmcnt(0)")
    a(f"v_writelane_b32 v{SV}, s62, {idx}")

def stamp_flush(a):
    if not STAMP:
        return
    a("s_lshl_b32 s60, s2, 3")
    a("s_add_u32 s60, s60, s95")
    a("s_lshl_b32 s60, s60, 8")
    a(f"s_add_u32 s60, s60, 0x{ST_OFF:x}")
    a("v_lshlrev_b32 v14, 2, v0")
    a(f"buffer_store_dword v{SV}, v14, s[44:47], s60 offen")

def weave(a, mf, fill, start=0, per=1):
    fi = 0
    for i, m in enumerate(mf):
        a(m)
        if i >= start:
            for _ in range(per):
                if fi < len(fill):
                    a(fill[fi]); fi += 1
    while fi < len(fill):
        a(fill[fi]); fi += 1

C1 = -2.0 * math.sqrt(2.0 / math.pi) * math.log2(math.e)
C2 = C1 * 0.044715

def gelu8(G, U, t, dst, swap):
    r = []
    for i in range(0, 8, 2): r.append(f"v_pk_mul_f32 {vr(t+i,2)}, {vr(G[i],2)}, {vr(G[i],2)}")
    for i in range(0, 8, 2): r.append(f"v_pk_fma_f32 {vr(t+i,2)}, {vr(t+i,2)}, s[72:73], v[10:11] op_sel_hi:[1,0,0]")
    for i in range(0, 8, 2): r.append(f"v_pk_mul_f32 {vr(t+i,2)}, {vr(t+i,2)}, {vr(G[i],2)}")
    for i in range(8):
        r.append(f"v_exp_f32 v{t+i}, v{t+i}")
        if i & 1: r.append(f"v_pk_mul_f32 {vr(G[i-1],2)}, {vr(G[i-1],2)}, {vr(U[i-1],2)}")
    for i in range(0, 8, 2): r.append(f"v_pk_add_f32 {vr(t+i,2)}, {vr(t+i,2)}, 1.0 op_sel_hi:[1,0]")
    for i in range(8): r.append(f"v_rcp_f32 v{t+i}, v{t+i}")
    for i in range(0, 8, 2): r.append(f"v_pk_mul_f32 {vr(G[i],2)}, {vr(G[i],2)}, {vr(t+i,2)}")
    for i in range(4): r.append(f"v_cvt_pk_bf16_f32 v{dst+i}, v{G[2*i]}, v{G[2*i+1]}")
    r.append("s_nop 1")
    r.append(f"v_permlane{swap}_swap_b32 v{dst}, v{dst+2}")
    r.append(f"v_permlane{swap}_swap_b32 v{dst+1}, v{dst+3}")
    return r

def gelu_pair(a, g0, u0, g1, u1, t, dst):
    G = [g0 + i for i in range(4)] + [g1 + i for i in range(4)]
    U = [u0 + i for i in range(4)] + [u1 + i for i in range(4)]
    for x in gelu8(G, U, t, dst, 16):
        a(x)

SLOT = 40960
XB = 16384
WB = 12288
F1_LDS = 3 * SLOT + 36864
NST = 22
PIECE = 10240


def p2_ids(a):
    a("s_and_b32 s30, s2, 7")
    a("s_lshr_b32 s31, s2, 3")
    a("s_lshr_b32 s93, s31, 2")
    if opt("jx", 6): a(f"s_xor_b32 s93, s93, {opt('jx', 6)}")
    a("s_and_b32 s31, s31, 3")
    a(f"s_mul_i32 s94, s31, {RI}")
    a("s_sub_u32 s61, 0, s30")
    a("s_bitcmp1_b32 s31, 0")
    a("s_cselect_b32 s92, s61, s30")
    a("s_cselect_b32 s61, 8, 0")
    a("s_cmp_eq_u32 s30, 0")
    a("s_cselect_b32 s92, s61, s92")
    a("s_lshr_b32 s31, s31, 1")
    a("s_lshl_b32 s31, s31, 4")
    a("s_add_u32 s92, s92, s31")
    a("s_and_b32 s92, s92, 31")
    a(f"s_mul_i32 s30, s93, {RJ}")
    a("s_add_u32 s94, s94, s30")
    a(f"s_sub_u32 s30, s94, {NST}")
    a(f"s_cmp_ge_u32 s94, {NST}")
    a("s_cselect_b32 s94, s30, s94")

def req_nonce():
    return ["s_load_dwordx8 s[4:11], s[26:27], 0"]

def get_nonce(a, tag, vt):
    a("s_waitcnt lgkmcnt(0)")
    a("s_and_b64 s[4:5], s[4:5], s[6:7]")
    a("s_and_b64 s[8:9], s[8:9], s[10:11]")
    a("s_and_b64 s[4:5], s[4:5], s[8:9]")
    a("s_and_b32 s4, s4, s5")
    a(f"s_cbranch_scc1 NOK{tag}")
    srd(a, 48, 26, 27, 256)
    a("s_mov_b32 s61, 0")
    a(f"v_lshlrev_b32 v{vt+1}, 2, v0")
    a("s_mov_b64 exec, 0xff")
    a.lab(f"NL{tag}")
    a(f"v_mov_b32 v{vt}, 0")
    a(f"buffer_atomic_add v{vt}, v{vt+1}, s[48:51], 0 offen sc0 sc1")
    a("s_add_u32 s61, s61, 1")
    a(f"s_cmp_gt_u32 s61, {SPINMAX}")
    a("s_waitcnt vmcnt(0)")
    a(f"s_cbranch_scc1 NX{tag}")
    a("s_sleep 4")
    a(f"v_cmp_eq_u32 vcc, 0, v{vt}")
    a(f"s_cbranch_vccnz NL{tag}")
    a.lab(f"NX{tag}")
    a("s_mov_b64 exec, -1")
    a.lab(f"NOK{tag}")

def signal(a, vt, sidx, smask=None, cnt=0, lo=None, val="1"):
    a(f"s_lshl_b32 s30, {sidx}, 7")
    a(f"s_add_u32 s30, s30, 0x{FL_OFF:x}")
    a(f"v_mov_b32 v{vt}, {val}")
    a(f"v_lshlrev_b32 v{vt+1}, 7, v0")
    a(f"s_waitcnt vmcnt({cnt})")
    if smask is None:
        a("s_mov_b64 exec, 1")
    else:
        a(f"s_mov_b32 exec_lo, {smask}")
        a("s_mov_b32 exec_hi, 0")
    a(f"s_setprio {PRIO}")
    a(f"buffer_atomic_add v{vt}, v{vt+1}, s[44:47], s30 offen sc1")
    a(f"s_setprio {EPRIO if lo is None else lo}")
    a("s_mov_b64 exec, -1")

def poll(a, tag, vaddr, vexp, vt, mask, sleep=0):
    a(f"s_mov_b32 s30, 0x{FL_OFF:x}")
    a("s_mov_b32 s61, 0")
    a(f"s_mov_b32 exec_lo, 0x{mask & 0xffffffff:x}")
    a(f"s_mov_b32 exec_hi, 0x{mask >> 32:x}")
    a.lab(f"PL{tag}")
    a(f"v_mov_b32 v{vt}, 0")
    a(f"buffer_atomic_add v{vt}, v{vaddr}, s[44:47], s30 offen sc0 sc1")
    a("s_add_u32 s61, s61, 1")
    a(f"s_cmp_gt_u32 s61, {SPINMAX}")
    a("s_waitcnt vmcnt(0)")
    a(f"s_cbranch_scc1 PD{tag}")
    a(f"v_cmp_ne_u32 vcc, v{vt}, v{vexp}")
    if sleep:
        a(f"s_cbranch_vccz PD{tag}")
        a(f"s_sleep {sleep}")
        a(f"s_branch PL{tag}")
    else:
        a(f"s_cbranch_vccnz PL{tag}")
    a.lab(f"PD{tag}")
    a("s_mov_b64 exec, -1")

def kernel(a):
    a.lab(NAME + "_kernel")
    a("s_cmp_ge_u32 s2, 256")
    a("s_cbranch_scc1 K_END")
    a("s_load_dwordx2 s[32:33], s[0:1], 0")
    a("s_load_dwordx16 s[4:19], s[0:1], 0")
    a("s_load_dwordx8 s[20:27], s[0:1], 64")
    a("s_load_dwordx2 s[28:29], s[0:1], 96")
    if STAMP:
        a("s_memrealtime s[90:91]")
    a("v_lshrrev_b32 v1, 6, v0")
    a("v_and_b32 v0, 63, v0")
    a("v_readfirstlane_b32 s95, v1")
    a("s_lshr_b32 s31, s2, 3")
    a("s_and_b32 s56, s2, 1")
    a("s_lshl_b32 s56, s56, 3")
    a("s_and_b32 s74, s31, 7")
    a("s_add_u32 s56, s56, s74")
    a("s_and_b32 s57, s2, 6")
    a("s_lshl_b32 s57, s57, 1")
    a("s_lshr_b32 s75, s31, 3")
    a("s_add_u32 s57, s57, s75")
    a(f"s_mul_i32 s74, s74, {RA}")
    a(f"s_mul_i32 s75, s75, {RB}")
    a("s_add_u32 s74, s74, s75")
    a(f"s_and_b32 s74, s74, {RM}")
    if opt("ro", 0): a(f"s_or_b32 s74, s74, {opt('ro', 0)}")
    a("s_and_b32 s30, s57, 7")
    a("s_cselect_b32 s58, 0, 1")
    a("s_lshr_b32 s59, s57, 3")
    a("s_sub_u32 s78, s57, s59")
    a("s_sub_u32 s78, s78, 1")
    a("s_and_b32 s3, s95, 3")
    if STAMP:
        a(f"v_mov_b32 v{SV}, -1")
    a("s_cmp_ge_u32 s95, 4")
    a("s_cbranch_scc1 P1_CONS")
    a("v_lshrrev_b32 v3, 3, v0")
    a("v_and_b32 v8, 7, v0")
    a("v_lshrrev_b32 v9, 4, v0")
    a("s_lshl_b32 s30, s56, 2")
    a("s_add_u32 s30, s30, s3")
    a("s_lshl_b32 s79, s30, 10")
    a("s_lshl_b32 s66, s3, 12")
    a("s_lshl_b32 s70, s74, 7")
    a("s_cmp_eq_u32 s58, 1")
    a("s_cbranch_scc1 P1_LSP")

    def stamp0():
        if STAMP:
            a(f"v_writelane_b32 v{SV}, s90, 0")
            stamp(a, 1)

    def gload(ops, sl="s57", xb=68, gw=True):
        srd(a, 48, 22, 23, 1024)
        a(f"s_lshl_b32 s30, {sl}, 3")
        a("s_lshl_b32 s31, s3, 1")
        a("s_add_u32 s30, s30, s31")
        a("s_lshr_b32 s31, s30, 5")
        a("s_and_b32 s30, s30, 31")
        a("s_lshl_b32 s30, s30, 6")
        a("s_add_u32 s30, s30, s31")
        a("s_lshl_b32 s31, s56, 2")
        a("s_add_u32 s64, s30, s31")
        a("s_lshl_b32 s30, s64, 10")
        a("s_add_u32 s31, s30, 0x10000")
        a("v_lshlrev_b32 v12, 4, v0")
        if gw:
            a("buffer_load_dwordx4 v[64:67], v12, s[48:51], 0 offen")
        a(f"buffer_load_dwordx4 {vr(xb,4)}, v12, s[32:35], s30 offen")
        a(f"buffer_load_dwordx4 {vr(xb+4,4)}, v12, s[32:35], s31 offen")
        ops.extend(["g"] * 3)

    def gcalc(ops, parts=(0, 1, 2), x0=68):
        T = 76
        if 0 in parts and ops is not None:
            waitfor(ops, "g")
        for rr in range(2):
            if rr not in parts:
                continue
            xb = x0 + 4 * rr
            acc = T + 4 + rr
            for d in range(4):
                a(f"v_lshlrev_b32 v{T}, 16, v{xb+d}")
                a(f"v_and_b32 v{T+1}, 0xffff0000, v{xb+d}")
                a(f"v_lshlrev_b32 v{T+2}, 16, v{64+d}")
                a(f"v_and_b32 v{T+3}, 0xffff0000, v{64+d}")
                a(f"v_mul_f32 v{T}, v{T}, v{T+2}")
                a(f"v_mul_f32 v{T+1}, v{T+1}, v{T+3}")
                a(f"v_cvt_pk_bf16_f32 v{T}, v{T}, v{T+1}")
                a(f"v_and_b32 v{T+1}, 0xffff0000, v{T}")
                a(f"v_lshlrev_b32 v{T}, 16, v{T}")
                if d == 0:
                    a(f"v_add_f32 v{acc}, v{T}, v{T+1}")
                else:
                    a(f"v_add_f32 v{acc}, v{acc}, v{T}")
                    a(f"v_add_f32 v{acc}, v{acc}, v{T+1}")
        if 2 not in parts:
            return
        A, B = T + 4, T + 5
        for sh in (8, 4, 2, 1):
            a("s_nop 1")
            a(f"v_add_f32_dpp v{A}, v{A}, v{A} row_ror:{sh} row_mask:0xf bank_mask:0xf")
            a(f"v_add_f32_dpp v{B}, v{B}, v{B} row_ror:{sh} row_mask:0xf bank_mask:0xf")
        a("s_nop 1")
        a(f"v_add_f32_dpp v{A}, v{A}, v{A} row_bcast:15 row_mask:0xa bank_mask:0xf")
        a(f"v_add_f32_dpp v{B}, v{B}, v{B} row_bcast:15 row_mask:0xa bank_mask:0xf")
        a("s_nop 1")
        a(f"v_add_f32_dpp v{A}, v{A}, v{A} row_bcast:31 row_mask:0xc bank_mask:0xf")
        a(f"v_add_f32_dpp v{B}, v{B}, v{B} row_bcast:31 row_mask:0xc bank_mask:0xf")
        a("s_nop 1")
        a(f"v_cvt_pk_bf16_f32 v{A}, v{A}, v{B}")
        a(f"v_and_b32 v{B}, 0xffff0000, v{A}")
        a(f"v_lshlrev_b32 v{A}, 16, v{A}")
        a(f"v_mul_f32 v{A}, {f32(-math.log2(math.e))}, v{A}")
        a(f"v_mul_f32 v{B}, {f32(-math.log2(math.e))}, v{B}")
        a(f"v_exp_f32 v{A}, v{A}")
        a(f"v_exp_f32 v{B}, v{B}")
        a("s_nop 0")
        a(f"v_add_f32 v{A}, 1.0, v{A}")
        a(f"v_add_f32 v{B}, 1.0, v{B}")
        a(f"v_rcp_f32 v{A}, v{A}")
        a(f"v_rcp_f32 v{B}, v{B}")
        a("s_nop 0")
        a(f"v_cvt_pk_bf16_f32 v{A}, v{A}, v{B}")
        a(f"v_and_b32 v{B}, 0xffff0000, v{A}")
        a(f"v_lshlrev_b32 v{A}, 16, v{A}")

    def gsignal(sl, vt, val):
        a("s_lshl_b32 s61, s56, 2")
        a(f"s_lshr_b32 s31, {sl}, 2")
        a("s_add_u32 s61, s61, s31")
        a(f"s_add_u32 s61, s61, {CT_G}")
        signal(a, vt, "s61", cnt=63, lo=0, val=val)

    def gstore(sl="s57"):
        a("s_lshl_b32 s30, s56, 4")
        a(f"s_add_u32 s30, s30, {sl}")
        a("s_lshl_b32 s30, s30, 2")
        a("s_add_u32 s30, s30, s3")
        a("s_lshl_b32 s30, s30, 7")
        a(f"s_add_u32 s30, s30, 0x{G_OFF:x}")
        a("s_mov_b32 exec_lo, 0")
        a("s_brev_b32 exec_hi, 1")
        a("buffer_store_dwordx2 v[80:81], off, s[44:47], s30 sc1")
        a("s_mov_b64 exec, -1")

    def wd_setup():
        p2_ids(a)
        srd(a, 52, 20, 21, 1376 * 1024)
        a("v_lshlrev_b32 v29, 1, v3")
        a("v_and_b32 v29, 4, v29")
        a("v_xor_b32 v29, v29, v8")
        a("v_lshlrev_b32 v29, 4, v29")
        a("v_lshl_add_u32 v29, v3, 10, v29")
        a(f"s_mul_i32 s30, s3, {NST*16384}")
        a("s_lshl_b32 s31, s93, 7")
        a("s_add_u32 s30, s30, s31")
        a("v_add_u32 v29, s30, v29")
        a("s_mov_b32 s65, s94")
        a(f"s_mul_i32 s77, s3, {PIECE}")

    def wd_lds(st):
        s = st % 20
        return (s // 5) * SLOT + (s % 5) * 2048

    def issue_w(st, ops):
        a(f"s_add_u32 m0, s77, {wd_lds(st)}")
        a("s_lshl_b32 s30, s65, 14")
        a("s_add_u32 s31, s30, 7168")
        a("buffer_load_dwordx4 v29, s[52:55], s30 offen lds")
        a("s_add_u32 s65, s65, 1")
        a(f"s_cmp_eq_u32 s65, {NST}")
        a("s_cselect_b32 s65, 0, s65")
        a("buffer_load_dwordx4 v29, s[52:55], s31 offen offset:1024 lds")
        ops.extend([("w", st)] * 2)

    def waitfor(ops, key):
        last = max(i for i, o in enumerate(ops) if o == key)
        a(f"s_waitcnt vmcnt({len(ops) - 1 - last})")

    def capture(fn):
        save = a.l
        a.l = []
        fn()
        lines, a.l = a.l, save
        groups, cur = [], []
        for ln in lines:
            cur.append(ln)
            if ln.strip().startswith("buffer_"):
                groups.append(cur); cur = []
        if cur:
            groups[-1].extend(cur)
        return groups

    def pf_wd():
        a("s_lshr_b32 s30, s2, 3")
        a("s_lshl_b32 s30, s30, 2")
        a("s_add_u32 s30, s30, s3")
        a(f"s_mul_i32 s30, s30, {86*128}")
        a("v_lshlrev_b32 v12, 7, v0")
        a("buffer_load_dword v82, v12, s[52:55], s30 offen")
        a("s_add_u32 s30, s30, 8192")
        a("s_mov_b64 exec, 0x3fffff")
        a("buffer_load_dword v83, v12, s[52:55], s30 offen")
        a("s_mov_b64 exec, -1")

    def merge(groups):
        return [sum(groups, [])]

    def loader_loop(issue, commit, lai, direct, dpre, tag):
        items = []
        for s in range(8):
            items += [(("s", s), 1, g) for g in capture(lambda: issue(s, []))]
        assert dpre <= 5 and direct <= 10
        for st in range(direct):
            items += [(("w", st), 2, g) for g in merge(capture(lambda: issue_w(st, [])))]
        ops = []
        pos = 0
        for b in range(8):
            nxt = [i for i, it in enumerate(items) if it[0] == ("s", b + 1)]
            upto = len(items) - (direct - min(direct, dpre)) if b == 7 else nxt[min(lai, len(nxt)) - 1] + 1
            while pos < upto:
                a.l.extend(items[pos][2]); ops.extend([items[pos][0]] * items[pos][1]); pos += 1
            if b == 0:
                wd_setup()
            waitfor(ops, ("s", b))
            commit(b)
            if opt("lstamp", 1): stamp(a, 2 + b)
            a("s_barrier")
            if b == 5:
                for x in req_nonce():
                    a(x)
        while pos < len(items):
            a.l.extend(items[pos][2]); pos += 1
        get_nonce(a, "L" + tag, 30)
        a("s_barrier")
        stamp(a, 16)
        a(f"s_branch P2_W{direct}")

    a("v_xor_b32 v10, v9, v8")
    a("v_lshlrev_b32 v10, 4, v10")
    a("v_lshlrev_b32 v11, 16, v3")
    a("v_add3_u32 v4, v10, v11, s79")
    a("v_xor_b32 v5, 64, v4")
    a(f"v_add_u32 v5, {(8 << 16) - 1024}, v5")
    a(f"v_add_u32 v6, {2*((8 << 16) - 1024)}, v4")
    a(f"v_add_u32 v7, {2*((8 << 16) - 1024)}, v5")
    a(f"s_mov_b32 s34, 0x{2048*1024:x}")
    a("s_mov_b32 s35, 0x20000")
    a("s_mov_b32 m0, s66")
    def wsetup():
        a(f"s_mul_i32 s30, s3, {16*2752}")
        a("s_mul_i32 s31, s78, 192")
        a("s_add_u32 s30, s30, s31")
        a("s_movk_i32 s31, 2560")
        a("v_mul_u32_u24 v11, 171, v0")
        a("v_lshl_add_u32 v10, v0, 4, s30")
        a("v_lshrrev_b32 v12, 11, v11")
        a("v_mad_u32_u24 v24, v12, s31, v10")
        a(f"v_add_u32 v12, {64*171}, v11")
        a("v_lshrrev_b32 v12, 11, v12")
        a("v_and_b32 v25, 32, v0")
        a("v_xor_b32 v25, v25, v10")
        a("v_mad_u32_u24 v25, v12, s31, v25")
        a(f"v_add_u32 v12, {128*171}, v11")
        a("v_lshrrev_b32 v12, 11, v12")
        a("v_xor_b32 v26, 32, v10")
        a("v_mad_u32_u24 v26, v12, s31, v26")
        a("s_mul_i32 s67, s3, 3072")
        a(f"s_add_u32 s67, s67, {XB}")
        a(f"s_add_u32 s68, s67, {WB}")
        a(f"s_mul_i32 s71, s74, {64*2752}")
    wsetup()
    a("s_waitcnt lgkmcnt(0)")
    stamp0()

    XP = opt("xpair", 0)
    def issueF(stage, ops):
        sl = (stage % 4) * SLOT
        if stage and not (XP and stage == 1):
            a(f"s_add_u32 m0, s66, {sl}")
            a("s_nop 0")
        if not (XP and stage == 1):
            for j in range(4):
                a(f"buffer_load_dwordx4 v{4+j}, s[32:35], s70 offen offset:{j*1024} {XNT} lds")
                if XP and stage == 0:
                    if j == 0:
                        a("s_add_u32 s30, s74, 1")
                        a("s_and_b32 s30, s30, 7")
                        a("s_lshl_b32 s30, s30, 7")
                    a(f"s_add_u32 m0, s66, {SLOT}")
                    a("s_nop 0")
                    a(f"buffer_load_dwordx4 v{4+j}, s[32:35], s30 offen offset:{j*1024} {XNT} lds")
                    a("s_mov_b32 m0, s66")
                    a("s_nop 0")
        if stage == 0:
            srd(a, 36, 16, 17, 512 * 2752)
        a(f"s_add_u32 m0, s67, {sl}")
        a("s_add_u32 s74, s74, 1")
        for jj in range(3):
            a(f"buffer_load_dwordx4 v{24+jj}, s[36:39], s71 offen offset:{jj*1024} {WNT} lds")
        if stage == 0:
            srd(a, 40, 18, 19, 512 * 2752)
        a(f"s_add_u32 m0, s68, {sl}")
        a("s_and_b32 s74, s74, 7")
        for jj in range(3):
            a(f"buffer_load_dwordx4 v{24+jj}, s[40:43], s71 offen offset:{jj*1024} {WNT} lds")
        a("s_lshl_b32 s70, s74, 7")
        a(f"s_mul_i32 s71, s74, {64*2752}")
        if stage == 0:
            srd(a, 44, 28, 29, 0x2000000 if STAMP else WS_USED)

    loader_loop(issueF, lambda b: None, LAI, DIRECT, opt("dpre", 2), "F")

    a.lab("P1_LSP")
    a("v_lshlrev_b32 v10, 4, v8")
    a("v_lshlrev_b32 v11, 16, v3")
    a("v_add3_u32 v4, v10, v11, s79")
    a("s_and_b32 s30, s3, 1")
    a("s_lshl_b32 s30, s30, 5")
    a("s_lshr_b32 s31, s3, 1")
    a("s_add_u32 s30, s30, s31")
    a("s_lshl_b32 s30, s30, 10")
    a("s_lshl_b32 s31, s59, 7")
    a("s_add_u32 s30, s30, s31")
    a("v_and_b32 v10, 2, v3")
    a("v_xor_b32 v10, v10, v8")
    a("v_lshlrev_b32 v10, 4, v10")
    a("v_lshlrev_b32 v11, 11, v3")
    a("v_add3_u32 v24, v10, v11, s30")
    a("v_xor_b32 v25, 64, v24")
    a("v_lshrrev_b32 v10, 1, v0")
    a("s_lshl_b32 s30, s3, 1")
    a("s_and_b32 s30, s30, 4")
    a("v_xor_b32 v10, s30, v10")
    a(f"v_mul_u32_u24 v10, {2*2752}, v10")
    a("v_and_b32 v11, 1, v0")
    a("v_lshlrev_b32 v11, 4, v11")
    a("s_and_b32 s30, s3, 1")
    a("s_mul_i32 s30, s30, 2752")
    a("s_lshl_b32 s31, s59, 5")
    a("s_add_u32 s30, s30, s31")
    a(f"s_add_u32 s30, s30, {1344*2}")
    a("v_add3_u32 v26, v10, v11, s30")
    a("s_lshl_b32 s67, s3, 11")
    a(f"s_add_u32 s67, s67, {XB}")
    a("s_add_u32 s68, s67, 8192")
    a("s_lshl_b32 s69, s3, 10")
    a(f"s_add_u32 s69, s69, {XB + 16384}")
    a("s_lshl_b32 s71, s74, 16")
    a(f"s_mul_i32 s75, s74, {64*2752}")
    a(f"s_mov_b32 s34, 0x{2048*1024:x}")
    a("s_mov_b32 s35, 0x20000")
    a("s_waitcnt lgkmcnt(0)")
    stamp0()

    def issueS(stage, ops):
        sl = (stage % 4) * SLOT
        xr = 32 + 16 * (stage & 1)
        n = 0
        for j in range(4):
            if j:
                a(f"s_add_u32 s30, s70, {j * 8 * 65536}")
            a(f"buffer_load_dwordx4 {vr(xr+4*j,4)}, v4, s[32:35], {'s30' if j else 's70'} offen")
            n += 1
        a("s_add_u32 s74, s74, 1")
        if stage == 0:
            srd(a, 36, 10, 11, 512 * 1024)
            srd(a, 40, 12, 13, 512 * 1024)
            a("s_cmp_ge_u32 s3, 2")
            a("s_cselect_b32 s84, s18, s16")
            a("s_cselect_b32 s85, s19, s17")
            a(f"s_mov_b32 s86, 0x{512*2752:x}")
            a("s_mov_b32 s87, 0x20000")
            srd(a, 44, 28, 29, 0x2000000 if STAMP else WS_USED)
        if stage < 4:
            a(f"s_add_u32 m0, s67, {sl}")
            a(f"s_add_u32 s76, s71, {16*1024 - 1024}")
            a("buffer_load_dwordx4 v24, s[36:39], s71 offen lds")
            a("buffer_load_dwordx4 v24, s[36:39], s76 offen offset:1024 lds")
            a(f"s_add_u32 m0, s68, {sl}")
            a("s_nop 0")
            a("buffer_load_dwordx4 v25, s[40:43], s71 offen lds")
            a("buffer_load_dwordx4 v25, s[40:43], s76 offen offset:1024 lds")
            n += 4
        a(f"s_add_u32 m0, s69, {sl}")
        a("s_and_b32 s74, s74, 7")
        if not opt("nof", 0):
            a("buffer_load_dwordx4 v26, s[84:87], s75 offen lds")
            n += 1
        a("s_lshl_b32 s70, s74, 7")
        a("s_lshl_b32 s71, s74, 16")
        a(f"s_mul_i32 s75, s74, {64*2752}")
        ops.extend([("s", stage)] * n)
        if stage == 0:
            a("v_lshrrev_b32 v10, 1, v8")
            a("v_xor_b32 v10, v10, v9")
            a("v_lshlrev_b32 v10, 4, v10")
            a("v_and_b32 v11, 1, v8")
            a("v_lshl_add_u32 v10, v11, 3, v10")
            a("v_lshl_add_u32 v10, v3, 7, v10")
            a("v_add_u32 v5, s66, v10")
            a("v_and_b32 v11, 1, v3")
            a("v_lshlrev_b32 v10, 6, v11")
            a("v_xor_b32 v5, v5, v10")
            a("v_xor_b32 v6, 64, v5")
            a("v_mul_u32_u24 v30, 0x0202, v11")
            a("v_lshl_or_b32 v30, v30, 16, v30")
            a("v_xor_b32 v31, 0x07060302, v30")
            a("v_xor_b32 v30, 0x05040100, v30")
            a("v_and_b32 v10, 2, v0")
            a("v_or_b32 v10, 4, v10")
            a("v_lshlrev_b32 v10, 4, v10")
            a("v_lshl_add_u32 v10, v0, 7, v10")
            a("v_add_u32 v27, s68, v10")
            a("s_lshr_b32 s30, s3, 1")
            a("v_xor_b32 v28, s30, v0")
            a("v_and_b32 v28, 1, v28")
            a("v_lshlrev_b32 v28, 15, v28")
            a("v_or_b32 v28, 0x3f80, v28")


    def commitS(stage):
        if opt("nocommit", 0): return
        sl = (stage % 4) * SLOT
        xr = 32 + 16 * (stage & 1)
        a(f"v_add_u32 v7, {sl}, v5")
        a(f"v_add_u32 v2, {sl}, v6")
        for j in range(4):
            r = xr + 4 * j
            t = 16 + 4 * (j & 1)
            a(f"v_perm_b32 v{t}, v{r+1}, v{r}, v30")
            a(f"v_perm_b32 v{t+1}, v{r+3}, v{r+2}, v30")
            a(f"v_perm_b32 v{t+2}, v{r+1}, v{r}, v31")
            a(f"v_perm_b32 v{t+3}, v{r+3}, v{r+2}, v31")
            e, o = (7, 2) if (j & 1) == 0 else (2, 7)
            a(f"ds_write_b64 v{e}, {vr(t,2)} offset:{j*1024}")
            a(f"ds_write_b64 v{o}, {vr(t+2,2)} offset:{j*1024}")
        if stage < 4:
            a("s_cmp_lg_u32 s59, 0")
            a(f"s_cbranch_scc1 P1_NP{stage}")
            a(f"v_add_u32 v7, {sl}, v27")
            a("s_mov_b64 exec, 0xffff")
            a("ds_write_b16 v7, v28")
            a("s_mov_b64 exec, -1")
            a.lab(f"P1_NP{stage}")
        a("s_waitcnt lgkmcnt(0)")

    loader_loop(issueS, commitS, LAS, opt("ds", 8), opt("dspre", 4), "S")

    DS = opt("ds", 8)
    assert DS > DIRECT + 2
    ops = []
    for st in range(DIRECT, N1):
        a.lab(f"P2_W{st}")
        issue_w(st, ops)
        if st == DIRECT + 2:
            a("s_and_b32 s76, s57, 7")
            a("s_cmp_lg_u32 s76, 1")
            a("s_cbranch_scc1 NOG2A")
            a("s_sub_u32 s73, s57, 1")
            gload([], "s73", 84, False)
            a.lab("NOG2A")
            gload(ops)
        if 2 * (st + 1) > WTH:
            a(f"s_waitcnt vmcnt({WTH - 2})")
    a("s_mov_b32 s75, 0")
    a("s_cmp_eq_u32 s58, 1")
    a("s_cbranch_scc1 NOGC")
    gcalc(ops)
    gstore()
    a("s_mov_b32 s75, 1")
    a("s_cmp_lg_u32 s76, 1")
    a("s_cbranch_scc1 NOGC")
    gcalc(None, x0=84)
    gstore("s73")
    a("s_mov_b32 s75, 2")
    a.lab("NOGC")
    HR = 32
    TMJ = opt("tmj", 0)
    NWF = max(2, TMJ + 1)
    WF = HR + D2 * 8
    ACC = WF + 8 * NWF
    assert ACC + 64 <= 256
    a("v_lshrrev_b32 v8, 5, v0")
    a("v_and_b32 v9, 15, v0")
    a("v_lshrrev_b32 v10, 2, v9")
    a("v_lshl_add_u32 v10, v8, 3, v10")
    a("v_lshlrev_b32 v10, 7, v10")
    a("v_lshrrev_b32 v11, 3, v9")
    a("v_lshl_add_u32 v10, v11, 6, v10")
    a("v_and_b32 v11, 16, v0")
    a("v_lshl_add_u32 v10, v11, 1, v10")
    a("v_and_b32 v11, 3, v0")
    a("v_lshl_add_u32 v10, v11, 3, v10")
    a("v_add_u32 v4, s77, v10")
    a("v_xor_b32 v5, 64, v4")
    a(f"v_add_u32 v6, {2*SLOT}, v4")
    a(f"v_add_u32 v7, {2*SLOT}, v5")
    def trread(st):
        off = wd_lds(st)
        hi = off >= 2 * SLOT
        if hi: off -= 2 * SLOT
        for ct in range(2):
            for hf in range(2):
                a(f"ds_read_b64_tr_b16 {vr(WF + 8*(st % NWF) + ct*4 + hf*2, 2)}, v{4 + 2*hi + ct} offset:{off + hf*512}")
    a(f"s_mul_i32 s61, s3, {NST}")
    a(f"s_mul_i32 s66, s92, {NKS}")
    a("s_add_u32 s66, s66, s61")
    a("s_lshl_b32 s66, s66, 10")
    a("v_lshlrev_b32 v12, 4, v0")
    a("v_add_u32 v2, s66, v12")
    a(f"v_add_u32 v3, {32*NKS*1024}, v2")
    a("s_cmp_eq_u32 s3, 3")
    a(f"s_cselect_b32 s72, 20, {NST}")
    stamp(a, 10)
    stamp(a, 11)
    a("s_lshr_b32 s30, s92, 1")
    a("s_lshl_b32 s30, s30, 2")
    a("s_add_u32 s30, s30, s3")
    a("s_lshl_b32 s30, s30, 7")
    a("v_mov_b32 v16, s30")
    a("s_cmp_eq_u32 s3, 3")
    a("s_cselect_b32 s30, 20, 16")
    a("v_mov_b32 v17, s30")
    if GATE:
        a("s_barrier")
    if GDEL:
        a(f"s_sleep {GDEL}")
    poll(a, "L", 16, 17, 22, 1, sleep=LSLEEP)
    stamp(a, 12)
    ops = []
    a("s_mov_b32 s64, s94")
    def issue_h(st):
        sl = st % D2
        a("s_lshl_b32 s30, s64, 10")
        a("s_cmp_ge_u32 s64, s72")
        a("s_cselect_b32 s30, 0x10000000, s30")
        a("s_add_u32 s64, s64, 1")
        a(f"buffer_load_dwordx4 {vr(HR + sl*8, 4)}, v2, s[44:47], s30 offen sc1")
        a(f"s_cmp_eq_u32 s64, {NST}")
        a("s_cselect_b32 s64, 0, s64")
        a(f"buffer_load_dwordx4 {vr(HR + sl*8 + 4, 4)}, v3, s[44:47], s30 offen sc1")
        ops.extend([("h", st)] * 2)
    def mf(st, k):
        ct, rt = k & 1, k >> 1
        d = vr(ACC + 16 * k, 16)
        c = "0" if st == 0 else d
        a(f"v_mfma_f32_32x32x16_bf16 {d}, {vr(WF + 8*(st % NWF) + ct*4, 4)}, {vr(HR + (st % D2)*8 + 4*rt, 4)}, {c}")
    def need(keys, extra=""):
        idx = [i for i, o in enumerate(ops) if o in keys]
        if idx:
            a(f"s_waitcnt vmcnt({len(ops) - 1 - max(idx)}) {extra}")
        elif extra:
            a(f"s_waitcnt {extra}")
    trread(0)
    for st in range(D2 - 1):
        issue_h(st)
        if st == 2:
            gsignal("s57", 30, "s75")
            ops.append("sig")
    assert TMJ <= D2 - 1
    a("v_add_u32 v10, s77, v12")
    a(f"v_add_u32 v11, {2*SLOT}, v10")
    def wr(k, qd):
        a(f"ds_write_b128 v{10 + (k >> 1)}, {vr(ACC + 16*k + 4*qd, 4)} offset:{(k & 1)*SLOT + qd*1024}")
    for st in range(NST - TMJ):
        need([("h", st), ("w", st + 1)], "lgkmcnt(0)")
        if st == 0:
            stamp(a, 13)
        mf(st, 0)
        if st + 1 < NST:
            trread(st + 1)
        mf(st, 1)
        hg = capture(lambda: issue_h(st + D2 - 1)) if st + D2 - 1 < NST else [[], []]
        a.l.extend(hg[0])
        mf(st, 2)
        a.l.extend(hg[1])
        mf(st, 3)
        if N1 + st < NST:
            issue_w(N1 + st, ops)
        if st == KB:
            a("s_barrier")
            if TMJ: assert KB < NST - TMJ
    S0 = NST - TMJ
    if TMJ:
        need([("w", NST - 1)])
        for st in range(S0 + 1, min(NST, S0 + 3)):
            trread(st)
        for k in range(4):
            for n, st in enumerate(range(S0, NST)):
                if k == 0:
                    left = min(NST - 1, st + 2) - st
                    need([("h", st)], f"lgkmcnt({4 * left})")
                mf(st, k)
                if k == 0 and st + 3 < NST:
                    trread(st + 3)
                if k > 0:
                    if n == 0:
                        a("s_nop 7"); a("s_nop 2")
                    if n < 4:
                        wr(k - 1, n)
            if k > 0:
                for qd in range(min(4, TMJ), 4):
                    wr(k - 1, qd)
        stamp(a, 14)
        a("s_nop 7"); a("s_nop 3")
        for qd in range(4):
            wr(3, qd)
        a("s_waitcnt lgkmcnt(0)")
        a("s_barrier")
    else:
        stamp(a, 14)
        a("s_nop 8")
        for half in range(2):
            for k in range(4):
                wr(k, 2 * half); wr(k, 2 * half + 1)
                if half == 1 and k == 0:
                    a("s_waitcnt lgkmcnt(2)")
                    a("s_barrier")
        a("s_waitcnt lgkmcnt(0)")
        a("s_barrier")
    stamp(a, 15)
    stamp_flush(a)
    a("s_endpgm")

    a.lab("P1_CONS")
    if CPF:
        a("s_cmp_lg_u32 s3, 0")
        a("s_cbranch_scc1 NOCPF")
        a("s_getpc_b64 s[84:85]")
        a.lab("CPF_PC")
        a(f"s_sub_u32 s84, s84, CPF_PC-{NAME}_kernel")
        a("s_subb_u32 s85, s85, 0")
        a(f"s_mov_b32 s86, K_END-{NAME}_kernel")
        a("s_mov_b32 s87, 0x20000")
        a("s_lshr_b32 s30, s2, 3")
        a("s_lshl_b32 s30, s30, 10")
        a("v_lshlrev_b32 v1, 7, v0")
        a("s_mov_b64 exec, 0xff")
        a("buffer_load_dword v13, v1, s[84:87], s30 offen")
        a("s_mov_b64 exec, -1")
        a.lab("NOCPF")
    a("s_lshr_b32 s66, s3, 1")
    a("s_and_b32 s67, s3, 1")
    a("v_and_b32 v1, 15, v0")
    a("v_lshrrev_b32 v2, 4, v0")
    a("v_lshrrev_b32 v3, 1, v1")
    a("v_xor_b32 v3, v3, v2")
    a("v_lshlrev_b32 v3, 4, v3")
    a("v_lshl_add_u32 v4, v1, 7, v3")
    a("v_lshrrev_b32 v3, 2, v1")
    a("v_lshl_add_u32 v3, v2, 3, v3")
    a("v_and_b32 v11, 3, v0")
    a(f"s_mov_b32 s72, {f32(C2)}")
    a(f"v_mov_b32 v10, {f32(C1)}")
    a("s_mov_b32 s68, 0")
    a(f"s_mov_b32 s82, {(-3*SLOT) & 0xffffffff}")
    a(f"s_mov_b32 s83, {SLOT}")

    def advance(regs):
        f = ["s_add_u32 s68, s68, 1",
             "s_and_b32 s30, s68, 3",
             "s_cmp_eq_u32 s30, 0",
             "s_cselect_b32 s30, s82, s83"]
        f += [f"v_add_u32 v{v}, s30, v{v}" for v in regs]
        f += ["s_cmp_eq_u32 s68, 8"]
        return f

    def cons_start():
        a("s_waitcnt lgkmcnt(0)")
        srd(a, 44, 28, 29, 0x2000000 if STAMP else WS_USED)
        stamp0()

    a("s_cmp_eq_u32 s58, 1")
    a("s_cbranch_scc1 P1_CSP")
    a("s_lshr_b32 s30, s2, 3")
    a("s_xor_b32 s30, s30, 8")
    a("s_xor_b32 s31, s3, 1")
    a("s_or_b32 s30, s30, s31")
    a("s_cbranch_scc1 NOINIT")
    a("s_setprio 3")
    a("v_mov_b32 v16, 0")
    a("v_lshlrev_b32 v17, 7, v0")
    a("s_and_b32 s31, s2, 7")
    a(f"s_mul_i32 s30, s31, {NCT // 8 * 128}")
    a(f"s_add_u32 s30, s30, 0x{FL_OFF:x}")
    a(f"s_mov_b32 exec_hi, 0x{(1 << (NCT // 8 - 32)) - 1:x}")
    a("s_waitcnt lgkmcnt(0)")
    srd(a, 44, 28, 29, 0x2000000 if STAMP else WS_USED)
    a("buffer_store_dword v16, v17, s[44:47], s30 offen sc0 sc1")
    srd(a, 48, 26, 27, 256)
    a("v_mov_b32 v16, 1")
    a("s_lshl_b32 s30, s31, 2")
    a("s_mov_b64 exec, 1")
    a("s_waitcnt vmcnt(0)")
    a("buffer_store_dword v16, off, s[48:51], s30 sc0 sc1")
    a("s_mov_b64 exec, -1")
    a("s_setprio 0")
    a.lab("NOINIT")
    FS = [16, 56]
    ACC = 96
    def xf(s, rt): return FS[s] + 4 * rt
    def wf(s, i): return FS[s] + 16 + 4 * i
    a("s_lshl_b32 s30, s66, 13")
    a("v_add_u32 v4, s30, v4")
    a("v_xor_b32 v5, 64, v4")
    a("v_mul_u32_u24 v3, 192, v3")
    a("v_lshl_add_u32 v3, v11, 3, v3")
    a("s_mul_i32 s30, s67, 96")
    a(f"s_add_u32 s30, s30, {XB}")
    a("v_add_u32 v3, s30, v3")
    a("v_and_b32 v8, 1, v2")
    a("v_lshlrev_b32 v8, 5, v8")
    a("v_add_u32 v6, v3, v8")
    a("v_sub_u32 v7, v3, v8")
    a("s_cmp_eq_u32 s67, 0")
    a("s_cbranch_scc1 P1_NOSWAP")
    a("v_swap_b32 v6, v7")
    a.lab("P1_NOSWAP")
    def accF(rt, ul, mat): return ACC + 4 * ((rt * 3 + ul) * 2 + mat)
    def readsF(s, st):
        r = []
        order = [("w", 0, 0), ("x", 0, 0), ("w", 1, 0), ("x", 1, 0), ("x", 2, 0), ("x", 3, 0),
                 ("w", 0, 1), ("w", 1, 1), ("w", 0, 2), ("w", 1, 2)]
        for kind, p, ul in order:
            if kind == "x":
                r.append(f"ds_read_b128 {vr(xf(s, p), 4)}, v{4+st} offset:{p*2048}")
            else:
                base = 7 if ul == 1 else 6
                for hf in range(2):
                    off = p * WB + st * 6144 + hf * 768 + ul * 32
                    r.append(f"ds_read_b64_tr_b16 {vr(wf(s, 3*p+ul) + 2*hf, 2)}, v{base} offset:{off}")
        if opt("noread", 0): r = r[:1]
        return r
    def mfmasF(s):
        m = []
        for ul in range(3):
            for rt in range(4):
                for mat in range(2):
                    d = vr(accF(rt, ul, mat), 4)
                    m.append(f"v_mfma_f32_16x16x32_bf16 {d}, {vr(wf(s, 3*mat+ul), 4)}, {vr(xf(s, rt), 4)}, {d}")
        if opt("nomfma", 0): m = ["s_nop 0"] * len(m)
        return m
    for i in range(96):
        a(f"v_mov_b32 v{ACC+i}, 0")
    a("v_lshlrev_b32 v3, 4, v0")
    a("s_mul_i32 s69, s78, 6")
    a("s_mul_i32 s30, s67, 3")
    a("s_add_u32 s69, s69, s30")
    a("s_lshl_b32 s30, s56, 2")
    a("s_lshl_b32 s31, s66, 1")
    a("s_add_u32 s30, s30, s31")
    a(f"s_mul_i32 s30, s30, {NKS}")
    a("s_add_u32 s30, s30, s69")
    a("s_lshl_b32 s70, s30, 10")
    a(f"s_add_u32 s71, s70, {NKS*1024}")
    cons_start()
    if opt("fprio", 1): a(f"s_setprio {opt('fprio', 1)}")
    a("s_barrier")
    stamp(a, 2)
    LAD = opt("lad", 13)
    if LAD:
        r0 = readsF(0, 0)
        for r in r0[:8]:
            a(r)
        a.lab("P1_LOOPF")
        m = mfmasF(0)
        r1 = readsF(1, 1)
        adv = advance((4, 5, 6, 7))
        gaps = [[] for _ in range(24)]
        for i in range(8):
            gaps[i // 2].append(r0[8 + i])
        for i in range(16):
            gaps[4 + i].append(r1[i])
        for i, x in enumerate(adv[:4]):
            gaps[12 + i].append(x)
        for i, x in enumerate(adv[4:]):
            gaps[20 + min(i // 2, 3)].append(x)
        a("s_waitcnt lgkmcnt(3)")
        for i in range(24):
            if i == 2: a("s_waitcnt lgkmcnt(4)")
            if i == 8: a("s_waitcnt lgkmcnt(4)")
            a(m[i])
            for x in gaps[i]:
                a(x)
        a("s_waitcnt lgkmcnt(0)")
        a("s_cbranch_scc1 P1_LASTF")
        weave(a, mfmasF(1), ["s_barrier"] + r0[:8], start=LAD, per=1)
        a("s_branch P1_LOOPF")
    else:
        for r in readsF(0, 0):
            a(r)
        a.lab("P1_LOOPF")
        a("s_waitcnt lgkmcnt(0)")
        weave(a, mfmasF(0), readsF(1, 1) + advance((4, 5, 6, 7)))
        a("s_waitcnt lgkmcnt(0)")
        a("s_cbranch_scc1 P1_LASTF")
        if BPOS:
            weave(a, mfmasF(1), ["s_barrier"] + readsF(0, 0), start=BPOS, per=2)
        else:
            weave(a, mfmasF(1), ["s_barrier"] + readsF(0, 0))
        a("s_branch P1_LOOPF")
    a.lab("P1_LASTF")
    weave(a, mfmasF(1), ["s_barrier"] + req_nonce() + ["s_waitcnt vmcnt(0)"])
    stamp(a, 3)
    if EPRIO: a(f"s_setprio {EPRIO}")
    k = 0
    pend = []
    for ul in range(3):
        for uu in range(2):
            dst = 32 + 4 * k
            if k >= opt("skipg", 0): gelu_pair(a, accF(2*uu, ul, 0), accF(2*uu, ul, 1), accF(2*uu+1, ul, 0), accF(2*uu+1, ul, 1), 16 + 8 * (k & 1), dst)
            pend.append(f"buffer_store_dwordx4 {vr(dst,4)}, v3, s[44:47], s{70 + uu} offen offset:{ul*1024} sc1")
            k += 1
            if k > opt("burst", 5):
                a(f"s_setprio {PRIO}")
                for x in pend:
                    a(x)
                pend = []
                a(f"s_setprio {EPRIO}")
    stamp(a, 4)
    get_nonce(a, "F", 12)
    a("s_mul_i32 s61, s69, 47")
    a("s_lshr_b32 s61, s61, 10")
    a("s_add_u32 s31, s69, 2")
    a("s_mul_i32 s31, s31, 47")
    a("s_lshr_b32 s31, s31, 10")
    a("s_cmp_eq_u32 s31, s61")
    a("s_cselect_b32 s64, 1, 3")
    a("s_and_b32 s31, s56, 7")
    a("s_lshl_b32 s31, s31, 3")
    a("s_add_u32 s61, s61, s31")
    a("s_lshl_b32 s31, s66, 2")
    a("s_add_u32 s61, s61, s31")
    signal(a, 12, "s61", "s64")
    if GATE:
        a("s_barrier")
    a("s_branch P2_CONS")

    a.lab("P1_CSP")
    FS = [16, 64]
    ACC = 112
    AS = 240
    def xs(s, kk, u): return FS[s] + 4 * (4 * kk + u)
    def dfr(s, kk): return FS[s] + 32 + 4 * kk
    def ffr(s, kk): return FS[s] + 40 + 4 * kk
    def accD(st, u): return ACC + 16 * (4 * st + u)
    a("v_lshrrev_b32 v2, 5, v0")
    a("v_and_b32 v12, 31, v0")
    a("v_bfe_u32 v4, v0, 1, 3")
    a("v_xor_b32 v4, v4, v2")
    a("v_lshlrev_b32 v4, 4, v4")
    a("v_lshl_add_u32 v4, v12, 7, v4")
    a("v_xor_b32 v5, 32, v4")
    a("v_xor_b32 v6, 64, v4")
    a("v_xor_b32 v7, 0x60, v4")
    a("v_lshrrev_b32 v3, 2, v1")
    a("v_lshl_add_u32 v3, v2, 3, v3")
    a("v_bfe_u32 v14, v0, 4, 1")
    a("v_bfe_u32 v8, v0, 3, 2")
    a("v_xor_b32 v8, s3, v8")
    a("v_lshlrev_b32 v8, 5, v8")
    a("v_lshl_add_u32 v8, v3, 7, v8")
    a("v_lshl_add_u32 v8, v11, 3, v8")
    a("v_lshl_add_u32 v8, v14, 13, v8")
    a(f"v_add_u32 v8, {XB}, v8")
    a("v_lshlrev_b32 v9, 5, v3")
    a("v_lshl_add_u32 v9, v11, 3, v9")
    a(f"v_mul_u32_u24 v3, {2048 + 128}, v14")
    a("v_add_u32 v9, v9, v3")
    a(f"v_add_u32 v9, {XB + 16384}, v9")
    a("v_xor_b32 v3, 0x80, v9")
    a("v_and_b32 v14, 1, v0")
    a("v_mul_u32_u24 v14, 0x8000, v14")
    a("v_lshl_or_b32 v14, v14, 16, v14")
    def readsS(s, st):
        r = []
        for kk in range(2):
            for hf in range(2):
                r.append(f"ds_read_b64_tr_b16 {vr(dfr(s, kk) + 2*hf, 2)}, v8 offset:{(2*st+kk)*2048 + hf*512}")
        for u in range(4):
            r.append(f"ds_read_b128 {vr(xs(s, 0, u), 4)}, v{4+2*st} offset:{u*4096}")
        for kk in range(2):
            for hf in range(2):
                r.append(f"ds_read_b64_tr_b16 {vr(ffr(s, kk) + 2*hf, 2)}, v{9 if hf == 0 else 3} offset:{(2*st+kk)*512}")
        for u in range(4):
            r.append(f"ds_read_b128 {vr(xs(s, 1, u), 4)}, v{5+2*st} offset:{u*4096}")
        return r
    def allS(s, st, cw):
        m = []
        for kk in range(2):
            for u in range(4):
                d = vr(accD(st, u), 16)
                m.append(f"v_mfma_f32_32x32x16_bf16 {d}, {vr(xs(s, kk, u), 4)}, {vr(dfr(s, kk), 4)}, {d}")
            m.append(f"v_mfma_f32_32x32x16_bf16 {vr(AS,16)}, {vr(ffr(s, kk), 4)}, {vr(xs(s, kk, cw), 4)}, {vr(AS,16)}")
        return m
    def xors(s):
        return ["s_waitcnt lgkmcnt(12)"] + [f"v_xor_b32 v{dfr(s,0)+i}, v13, v{dfr(s,0)+i}" for i in range(8)]
    def weave2(mf, fill):
        n = len(mf) - 1
        fi = 0
        for i, m in enumerate(mf):
            a(m)
            want = min(len(fill), -(-len(fill) * (i + 1) // n))
            while fi < want:
                a(fill[fi]); fi += 1
    for i in range(144):
        a(f"v_mov_b32 v{ACC+i}, 0")
    a("v_cvt_f32_u32 v16, v12")
    a(f"v_mul_f32 v16, {f32(1.0/32)}, v16")
    a("v_lshlrev_b32 v18, 2, v2")
    a("v_cvt_f32_u32 v18, v18")
    for k in range(2):
        for j in range(8):
            s1 = 16 * k + 8 * (j >> 2) + (j & 3)
            a(f"v_add_f32 v19, {f32(float(s1))}, v18")
            a("v_mul_f32 v19, v19, v16")
            a(f"v_cos_f32 v{20+j}, v19")
            a(f"v_sin_f32 v{28+j}, v19")
        a("s_nop 0")
        for i in range(4):
            a(f"v_cvt_pk_bf16_f32 v{40+4*k+i}, v{20+2*i}, v{21+2*i}")
            a(f"v_cvt_pk_bf16_f32 v{48+4*k+i}, v{28+2*i}, v{29+2*i}")
    a("v_lshlrev_b32 v11, 4, v0")
    a(f"v_add_u32 v11, {F1_LDS}, v11")
    for i in range(4):
        a(f"ds_write_b128 v11, {vr(40+4*i,4)} offset:{i*1024}")
    cons_start()
    a("s_waitcnt vmcnt(0) lgkmcnt(0)")
    a("v_mov_b32 v13, 0")
    if opt("sprio", 1): a(f"s_setprio {opt('sprio', 1)}")
    a("s_barrier")
    stamp(a, 2)
    def kreads(ks):
        s, kk = ks >> 1, ks & 1
        r = [f"ds_read_b64_tr_b16 {vr(dfr(s, kk) + 2*hf, 2)}, v8 offset:{ks*2048 + hf*512}" for hf in range(2)]
        r += [f"ds_read_b128 {vr(xs(s, kk, u), 4)}, v{4+ks} offset:{u*4096}" for u in range(4)]
        r += [f"ds_read_b64_tr_b16 {vr(ffr(s, kk) + 2*hf, 2)}, v{9 if hf == 0 else 3} offset:{ks*512}" for hf in range(2)]
        return r
    def kmf(ks, cw):
        return allS(ks >> 1, ks >> 1, cw)[5 * (ks & 1): 5 * (ks & 1) + 5]
    def kxor(ks):
        d = dfr(ks >> 1, ks & 1)
        return [f"v_xor_b32 v{d+i}, v13, v{d+i}" for i in range(4)]
    def kstep(ks, cw, reads, pre, extra, wait0, xr=True):
        m = kmf(ks, cw)
        a(f"s_waitcnt lgkmcnt({wait0})")
        cnt = [2, 2, 2, 1, 1]
        ri = 0
        for g in range(5):
            a(m[g])
            if g == 0:
                for x in pre: a(x)
            for _ in range(cnt[g]):
                if ri < len(reads):
                    a(reads[ri]); ri += 1
            if g == 2 and xr:
                a(f"s_waitcnt lgkmcnt({6 + ri})")
                for x in kxor((ks + 1) & 3)[:2]: a(x)
            if g == 3 and xr:
                for x in kxor((ks + 1) & 3)[2:]: a(x)
            for x in extra[g]: a(x)
    for r in kreads(0) + kreads(1):
        a(r)
    F1 = 16
    for cw in (1, 2, 3):
        a(f"s_cmp_eq_u32 s3, {cw}")
        a(f"s_cbranch_scc1 P1_LOOPS{cw}")
    lastfill = ([f"ds_read_b128 {vr(F1+4*i,4)}, v11 offset:{i*1024}" for i in range(4)] +
                ["s_lshl_b32 s30, s56, 2", "s_add_u32 s30, s30, s3", f"s_mul_i32 s30, s30, {NKS}", "s_add_u32 s30, s30, s59",
                 "s_add_u32 s30, s30, 84", "s_lshl_b32 s70, s30, 10",
                 f"s_mul_i32 s69, s56, {EP*16}", f"s_add_u32 s69, s69, 0x{C_OFF:x}",
                 "s_waitcnt lgkmcnt(0)", "s_barrier"] + req_nonce() + [f"v_xor_b32 v{F1+16+i}, 0x80008000, v{F1+i}" for i in range(8)])
    E = lambda *l: list(l)
    for cw in range(4):
        a.lab(f"P1_LOOPS{cw}")
        kstep(0, cw, kreads(2), [], [E("s_add_u32 s68, s68, 1"), E("s_and_b32 s30, s68, 3"), E(), E("s_cmp_eq_u32 s30, 0"),
                                     E("s_cselect_b32 s30, s82, s83", "v_add_u32 v4, s30, v4")], 8)
        kstep(1, cw, kreads(3), [], [E("v_add_u32 v5, s30, v5"), E("v_add_u32 v8, s30, v8"), E(), E("v_add_u32 v6, s30, v6"),
                                     E("v_add_u32 v9, s30, v9", "v_add_u32 v3, s30, v3", "s_cmp_eq_u32 s68, 8")], 8)
        a(f"s_cbranch_scc1 P1_LASTS{cw}")
        kstep(2, cw, kreads(0), ["s_barrier"], [E(), E("v_add_u32 v7, s30, v7"), E(), E("s_cmp_ge_u32 s68, 4"),
                                                E("s_cselect_b32 s31, -1, 0", "v_and_b32 v13, s31, v14")], 8)
        kstep(3, cw, kreads(1), [], [E(), E(), E(), E(), E()], 8)
        a(f"s_branch P1_LOOPS{cw}")
        a.lab(f"P1_LASTS{cw}")
        kstep(2, cw, lastfill[:4], [], [E(), lastfill[4:8], E(), E(), lastfill[8:12]], 8)
        kstep(3, cw, [], lastfill[13:15], [E(), lastfill[15:19], lastfill[19:23], E(), E()], 0, xr=False)
        if cw != 3:
            a("s_branch P1_LASTS")
    a.lab("P1_LASTS")
    stamp(a, 3)
    if EPRIO: a(f"s_setprio {EPRIO}")
    TS = 16 * EP * 16
    a("v_lshlrev_b32 v3, 4, v0")
    a("s_lshl_b32 s30, s59, 6")
    a("s_lshl_b32 s31, s3, 4")
    a("s_add_u32 s30, s30, s31")
    a("v_bfe_u32 v5, v0, 4, 1")
    a("v_lshl_add_u32 v4, v5, 7, v1")
    a("v_add_u32 v4, s30, v4")
    a(f"s_mov_b32 s31, {4*TS}")
    a("v_mul_lo_u32 v6, v2, s31")
    a("v_lshl_add_u32 v4, v4, 4, v6")
    a("v_mul_u32_u24 v5, 0x8000, v5")
    a("v_lshl_or_b32 v5, v5, 16, v5")
    a("v_mov_b32 v6, -1")
    BF, TM, XF, CK, TM2, HD = 40, 72, 80, 96, 80, 100
    for x in gelu8([AS+i for i in range(8)], [AS+8+i for i in range(8)], TM, HD, 32):
        a(x)
    a(f"s_setprio {PRIO}")
    a(f"buffer_store_dwordx4 {vr(HD,4)}, v3, s[44:47], s70 offen sc1")
    a(f"s_setprio {EPRIO}")
    a("s_cmp_lg_u32 s30, 0")
    a("s_cbranch_scc1 P1_NOX")
    a("v_cmp_ne_u32 vcc, 0, v1")
    a(f"s_mov_b32 s31, {TS}")
    a("v_mul_lo_u32 v7, v0, s31")
    a("v_cndmask_b32 v6, 0, v6, vcc")
    for u in range(4):
        for st in range(2):
            dst = XF + 8 * st if u == 0 else TM
            for i in range(8):
                a(f"v_cvt_pk_bf16_f32 v{dst+i}, v{accD(st,u)+2*i}, v{accD(st,u)+2*i+1}")
            if u:
                for i in range(8):
                    a(f"v_mov_b32_dpp v{XF+8*st+i}, v{TM+i} row_shr:{u} row_mask:0xa bank_mask:0x1")
    a("s_nop 1")
    for comp in range(2):
        o = vr(BF + 16 * comp, 16)
        for half in range(2):
            for k in range(2):
                c = "0" if (half == 0 and k == 0) else o
                a(f"v_mfma_f32_32x32x16_bf16 {o}, {vr(XF+8*half+4*k,4)}, {vr(F1+8*(comp+half)+4*k,4)}, {c}")
    a(f"s_add_u32 s30, s69, {256*16}")
    a("s_nop 11")
    for comp in range(2):
        a(f"v_cvt_pk_bf16_f32 v{CK+2*comp}, v{BF+16*comp+8}, v{BF+16*comp+9}")
        a(f"v_cvt_pk_bf16_f32 v{CK+2*comp+1}, v{BF+16*comp+10}, v{BF+16*comp+11}")
    a("s_mov_b32 exec_hi, 0")
    a(f"buffer_store_dwordx4 {vr(CK,4)}, v7, s[44:47], s30 offen sc1")
    a("s_mov_b32 exec_hi, -1")
    a.lab("P1_NOX")
    def bfly(u):
        r_ = []
        A = BF + 16 * (u & 1)
        B = A + 8
        E, T = accD(0, u), accD(1, u)
        for r in range(0, 16, 2):
            r_.append(f"v_pk_add_f32 {vr(TM2+r,2)}, {vr(E+r,2)}, {vr(T+r,2)}")
            r_.append(f"v_pk_add_f32 {vr(T+r,2)}, {vr(E+r,2)}, {vr(T+r,2)} neg_lo:[0,1] neg_hi:[0,1]")
        for i in range(8):
            r_.append(f"v_cvt_pk_bf16_f32 v{A+i}, v{TM2+2*i}, v{TM2+2*i+1}")
            r_.append(f"v_cvt_pk_bf16_f32 v{B+i}, v{T+2*i}, v{T+2*i+1}")
        for i in range(8):
            r_.append(f"v_permlane16_swap_b32 v{A+i}, v{B+i}")
        for i in range(8):
            r_.append(f"v_bitop3_b32 v{B+i}, v{B+i}, v5, v6 bitop3:0x28")
        return r_
    def st1(u):
        m = []
        A = BF + 16 * (u & 1)
        for half in range(2):
            for k in range(2):
                for comp in range(2):
                    o = vr(accD(comp, u), 16)
                    c = "0" if (half == 0 and k == 0) else o
                    m.append(f"v_mfma_f32_32x32x16_bf16 {o}, {vr(F1+8*(comp+half)+4*k,4)}, {vr(A+8*half+4*k,4)}, {c}")
        return m
    for x in bfly(0):
        a(x)
    for u in range(4):
        weave(a, st1(u), bfly(u + 1) if u < 3 else [], per=6)
        if u == 1:
            get_nonce(a, "S", 12)
            a("s_and_b32 s61, s56, 7")
            a("s_lshl_b32 s61, s61, 3")
            a("s_lshl_b32 s31, s66, 2")
            a("s_add_u32 s61, s61, s31")
            a("s_add_u32 s61, s61, 3")
            signal(a, 12, "s61")
    a(f"s_setprio {PRIO}")
    stamp(a, 11)
    a("s_nop 8")
    for r in range(16):
        d = BF + 4 * (r & 7)
        a(f"v_cvt_pk_bf16_f32 v{d}, v{accD(0,0)+r}, v{accD(0,1)+r}")
        a(f"v_cvt_pk_bf16_f32 v{d+1}, v{accD(0,2)+r}, v{accD(0,3)+r}")
        a(f"v_cvt_pk_bf16_f32 v{d+2}, v{accD(1,0)+r}, v{accD(1,1)+r}")
        a(f"v_cvt_pk_bf16_f32 v{d+3}, v{accD(1,2)+r}, v{accD(1,3)+r}")
        a(f"s_add_u32 s30, s69, {(8*(r >> 2) + (r & 3))*TS}")
        a(f"buffer_store_dwordx4 {vr(d,4)}, v4, s[44:47], s30 offen sc1")
    stamp(a, 4)
    if opt("shold", 0):
        a("s_barrier")
    a("s_lshl_b32 s61, s59, 2")
    a("s_add_u32 s61, s61, s3")
    a(f"s_mul_i32 s61, s61, {NREP}")
    a(f"s_add_u32 s61, s61, {CT_C}")
    signal(a, 12, "s61", "-1")

    a.lab("P2_CONS")
    a("v_mov_b32 v56, 16")
    if EPRIO: a("s_setprio 0")
    stamp(a, 5)
    p2_ids(a)
    srd(a, 48, 24, 25, 2048 * 1024)
    YA, CF, MF, PR, GV = 64, 80, 112, 144, 60
    a("v_lshrrev_b32 v8, 5, v0")
    a("v_and_b32 v9, 31, v0")
    a("s_lshl_b32 s31, s93, 6")
    a("s_lshl_b32 s61, s67, 5")
    a("s_add_u32 s31, s31, s61")
    a("s_lshl_b32 s30, s66, 5")
    a("s_add_u32 s30, s30, s92")
    a("v_lshlrev_b32 v12, 6, v9")
    a("v_add_u32 v12, s30, v12")
    a("v_lshrrev_b32 v11, 1, v9")
    a("v_lshlrev_b32 v11, 7, v11")
    a("v_and_b32 v4, 1, v9")
    a("v_lshl_add_u32 v11, v4, 2, v11")
    a("s_lshl_b32 s61, s30, 11")
    a("v_add_u32 v11, s61, v11")
    a("s_lshr_b32 s64, s30, 2")
    a("s_sub_u32 s61, 32, s92")
    a("s_and_b32 s61, s61, 31")
    a("s_sub_u32 s65, 481, s31")
    a("s_cmp_ge_u32 s93, 4")
    a("s_cselect_b32 s69, s61, s92")
    a("s_cselect_b64 vcc, -1, 0")
    a("s_cselect_b32 s73, 1.0, -1.0")
    a("s_cselect_b32 s65, s65, s31")
    a("v_add_u32 v4, s31, v9")
    a("v_sub_u32 v5, 0x200, v4")
    a("v_cndmask_b32 v4, v4, v5, vcc")
    a("v_lshrrev_b32 v6, 4, v0")
    a("v_lshlrev_b32 v6, 4, v6")
    a("v_min_u32 v6, 31, v6")
    a("v_add_u32 v6, s65, v6")
    for v in (4, 6):
        a(f"v_sub_u32 v5, 384, v{v}")
        a(f"v_cmp_gt_u32 vcc, 128, v{v}")
        a("s_nop 1")
        a(f"v_cndmask_b32 v{v}, v5, v{v}, vcc")
    a(f"v_mul_u32_u24 v5, {8*EP}, v8")
    a("v_add_u32 v4, v4, v5")
    a("v_lshlrev_b32 v4, 4, v4")
    a(f"s_mul_i32 s69, s69, {16*EP*16}")
    a(f"s_add_u32 s69, s69, 0x{C_OFF:x}")
    a("v_bfe_u32 v6, v6, 4, 3")
    a("s_lshr_b32 s61, s2, 1")
    a("s_xor_b32 s61, s61, s2")
    a("s_lshl_b32 s64, s66, 4")
    a("s_add_u32 s61, s61, s64")
    a(f"s_and_b32 s61, s61, {NREP-1}")
    a(f"s_add_u32 s61, s61, {CT_C}")
    a("v_lshl_add_u32 v6, v6, 5, s61")
    a(f"s_add_u32 s61, s30, {CT_G}")
    a("v_mov_b32 v5, s61")
    a("v_cmp_gt_u32 vcc, 48, v0")
    a("s_nop 1")
    a("v_cndmask_b32 v6, v5, v6, vcc")
    a("v_lshlrev_b32 v6, 7, v6")
    a("v_cvt_f32_u32 v9, v12")
    a(f"v_mul_f32 v9, {f32(1.0/2048)}, v9")
    a("v_mul_f32 v9, s73, v9")
    a("v_lshlrev_b32 v10, 5, v8")
    a("v_cvt_f32_u32 v10, v10")
    a("v_mul_f32 v10, v10, v9")
    T = 16
    for i in range(8):
        for c in range(4):
            a(f"v_cos_f32 v{T+c}, v10")
            a(f"v_sin_f32 v{T+4+c}, v10")
            a("v_add_f32 v10, v10, v9")
        for c in range(4):
            a(f"v_cvt_pk_bf16_f32 v{MF+4*i+c}, v{T+2*c}, v{T+2*c+1}")
    OW = opt("ow", 2)
    if OW == 0:
        a("v_lshlrev_b32 v12, 10, v12")
        a("v_lshl_add_u32 v12, v8, 4, v12")
        a("s_lshl_b32 s31, s31, 1")
        a("v_add_u32 v12, s31, v12")
    elif OW == 1:
        a("v_and_b32 v12, 0x3ff, v12")
        a("v_lshlrev_b32 v12, 10, v12")
        a("v_lshl_add_u32 v12, v8, 4, v12")
        a("v_and_b32 v9, 16, v0")
        a("v_lshl_add_u32 v12, v9, 1, v12")
        a("s_lshl_b32 s31, s31, 1")
        a("v_add_u32 v12, s31, v12")
        a("s_mov_b32 s71, 0x100000")
    else:
        a("v_and_b32 v9, 31, v0")
        a("s_lshl_b32 s61, s67, 2")
        a("v_add_u32 v10, s61, v8")
        a("v_and_b32 v12, 7, v0")
        a("v_xor_b32 v10, v10, v12")
        a("v_lshlrev_b32 v10, 4, v10")
        a("v_lshl_add_u32 v9, v9, 7, v10")
        a(f"s_mul_i32 s61, s66, {PIECE}")
        a("s_add_u32 s61, s61, 4096")
        a("v_add_u32 v9, s61, v9")
        a("v_xor_b32 v10, 32, v9")
        a("v_lshrrev_b32 v8, 3, v0")
        a("v_xor_b32 v7, v8, v12")
        a("v_lshlrev_b32 v7, 4, v7")
        a("v_lshlrev_b32 v12, 4, v12")
        a("v_lshl_add_u32 v12, v8, 16, v12")
        a("v_lshl_add_u32 v8, v8, 7, v7")
        a("s_lshl_b32 s64, s67, 11")
        a("s_add_u32 s61, s61, s64")
        a("v_add_u32 v8, s61, v8")
        a("s_lshl_b32 s61, s30, 10")
        a("s_lshl_b32 s64, s67, 20")
        a("s_add_u32 s61, s61, s64")
        a("s_lshl_b32 s64, s93, 7")
        a("s_add_u32 s61, s61, s64")
        a("v_add_u32 v12, s61, v12")
        a("s_mov_b32 s71, 0x80000")
    a(f"s_mul_i32 s30, s3, {SLOT}")
    a("v_lshlrev_b32 v5, 4, v0")
    a("v_add_u32 v5, s30, v5")
    stamp(a, 6)
    if not opt("pollfirst", 0) and KB >= 0:
        a("s_barrier")
    a(f"s_setprio {opt('cprio', 3)}")
    poll(a, "C", 6, 56, 58, 0x0001000100010001, sleep=opt("csleep", 4))
    stamp(a, 7)
    if opt("pollfirst", 0):
        a("s_barrier")
    for i in range(8):
        a(f"s_add_u32 s70, s69, {i*EP*16}")
        a(f"buffer_load_dwordx4 {vr(CF + 4*i, 4)}, v4, s[44:47], s70 offen sc1")
    a(f"s_mov_b32 s70, 0x{G_OFF:x}")
    a(f"buffer_load_dword v{GV}, v11, s[44:47], s70 offen sc1")
    def rdq(qd):
        for w in range(4):
            a(f"ds_read_b128 {vr(PR + 16*w + 4*qd, 4)}, v5 offset:{w*PIECE + qd*1024}")
    def adds(qd):
        for r in range(4*qd, 4*qd + 4, 2):
            a(f"v_pk_add_f32 {vr(PR+r,2)}, {vr(PR+r,2)}, {vr(PR+16+r,2)}")
            a(f"v_pk_add_f32 {vr(PR+32+r,2)}, {vr(PR+32+r,2)}, {vr(PR+48+r,2)}")
        for r in range(4*qd, 4*qd + 4, 2):
            a(f"v_pk_add_f32 {vr(PR+r,2)}, {vr(PR+r,2)}, {vr(PR+32+r,2)}")
    def ym(i):
        a(f"s_waitcnt vmcnt({8 - i})")
        c = "0" if i == 0 else vr(YA, 16)
        a(f"v_mfma_f32_32x32x16_bf16 {vr(YA,16)}, {vr(CF+4*i,4)}, {vr(MF+4*i,4)}, {c}")
    YE = opt("ye", 0)
    for i in range(YE):
        ym(i)
    rest = list(range(YE, 8))
    if TMJ:
        for i in rest:
            ym(i)
        a("s_barrier")
        for qd in range(4):
            rdq(qd)
        for qd in range(4):
            a(f"s_waitcnt lgkmcnt({12 - 4*qd})")
            adds(qd)
    for half in range(0 if TMJ else 2):
        a("s_barrier")
        rdq(2 * half); rdq(2 * half + 1)
        for i in (rest[:len(rest)//2] if half == 0 else rest[len(rest)//2:]):
            ym(i)
        a("s_waitcnt lgkmcnt(4)")
        adds(2 * half)
        a("s_waitcnt lgkmcnt(0)")
        adds(2 * half + 1)
    a("s_waitcnt vmcnt(0)")
    a(f"v_sub_f32 v{GV+2}, 1.0, v{GV}")
    a(f"v_cvt_pk_bf16_f32 v{GV+2}, v{GV+2}, v{GV+2}")
    a(f"v_lshlrev_b32 v{GV+2}, 16, v{GV+2}")
    stamp(a, 8)
    for r in range(0, 16, 2):
        a(f"v_pk_mul_f32 {vr(PR+r,2)}, {vr(PR+r,2)}, {vr(GV+2,2)} op_sel_hi:[1,0]")
    for qd in range(4):
        for r in range(4*qd, 4*qd + 4, 2):
            a(f"v_pk_fma_f32 {vr(YA+r,2)}, {vr(YA+r,2)}, {vr(GV,2)}, {vr(PR+r,2)} op_sel_hi:[1,0,1]")
        a(f"v_cvt_pk_bf16_f32 v{16+2*qd}, v{YA+4*qd}, v{YA+4*qd+1}")
        a(f"v_cvt_pk_bf16_f32 v{17+2*qd}, v{YA+4*qd+2}, v{YA+4*qd+3}")
        if qd & 1:
            k = 16 + 2 * (qd - 1)
            a("s_nop 1")
            a(f"v_permlane32_swap_b32 v{k}, v{k+2}")
            a(f"v_permlane32_swap_b32 v{k+1}, v{k+3}")
            if not opt("noout", 0) and not OW:
                a(f"buffer_store_dwordx4 {vr(k,4)}, v12, s[48:51], 0 offen offset:{16*(qd-1)} {['', 'sc1', 'nt', 'sc0 sc1', 'sc1 nt'][opt('osc', 0)]}")
    OSC = ['', 'sc1', 'nt', 'sc0 sc1', 'sc1 nt'][opt('osc', 1)]
    if OW == 1:
        a("s_nop 0")
        for i in range(4):
            a(f"v_permlane16_swap_b32 v{16+i}, v{20+i}")
        a(f"buffer_store_dwordx4 v[16:19], v12, s[48:51], 0 offen {OSC}")
        a(f"buffer_store_dwordx4 v[20:23], v12, s[48:51], s71 offen {OSC}")
    if OW == 2:
        a("ds_write_b128 v9, v[16:19]")
        a("ds_write_b128 v10, v[20:23]")
        a("s_waitcnt lgkmcnt(0)")
        a("s_barrier")
        a("ds_read_b128 v[16:19], v8")
        a("ds_read_b128 v[20:23], v8 offset:1024")
        a("s_waitcnt lgkmcnt(1)")
        a(f"buffer_store_dwordx4 v[16:19], v12, s[48:51], 0 offen {OSC}")
        a("s_waitcnt lgkmcnt(0)")
        a(f"buffer_store_dwordx4 v[20:23], v12, s[48:51], s71 offen {OSC}")
    stamp(a, 9)
    stamp_flush(a)
    a.lab("K_END")
    a("s_endpgm")

HEADER = open("cdna_kernels/" + NAME + ".s.ref").read().split("; Override launch")[0]

def main():
    nm = NAME + "_kernel"
    out = HEADER
    out += f"; @launch grid=(256,1,1) block=(512,1,1) lds={4*SLOT}\n"
    out += '.amdgcn_target "amdgcn-amd-amdhsa--gfx950"\n.text\n'
    a = Asm()
    out += f".globl {nm}\n.p2align 8\n.type {nm},@function\n"
    kernel(a)
    out += a.text()
    out += f""".section .rodata,"a"
.p2align 6
.amdhsa_kernel {nm}
  .amdhsa_next_free_vgpr 256
  .amdhsa_next_free_sgpr 102
  .amdhsa_accum_offset 256
  .amdhsa_group_segment_fixed_size 0
  .amdhsa_kernarg_size 104
  .amdhsa_user_sgpr_count 2
  .amdhsa_user_sgpr_kernarg_segment_ptr 1
  .amdhsa_system_sgpr_workgroup_id_x 1
.end_amdhsa_kernel
"""
    path = [x for x in sys.argv[1:] if not x.startswith("--")][0]
    open(path, "w").write(out)

main()
```

```python
import sys, math, struct

NAME = "gated_mix__spectral_fnet__geglu_ffn__prompt"
STAMP = "--stamp" in sys.argv
def opt(name, default):
    for x in sys.argv:
        if x.startswith("--" + name + "="):
            return int(x.split("=")[1])
    return default
RA = opt("ra", 1); RB = opt("rb", 2); RM = opt("rm", 6)
RJ = opt("rj", 2); RI = opt("ri", 6)
NPRE = opt("npre", 0)
D2 = opt("d2", 8)
WTH = opt("wth", 64)
PRIO = opt("prio", 3)
EPRIO = opt("eprio", 1)
KB = opt("kb", 10)
LA2 = opt("la2", 9)
N0A = opt("n0a", 3)
N0B = opt("n0b", 2)
WNT = "nt" if opt("wnt", 0) else ""
XNT = "nt" if opt("xnt", 0) else ""
PK = opt("pk", 1)
N1 = opt("n1", 20)
DIRECT = opt("direct", 4)
TAILV = opt("tailv", 1)
LAI = opt("lai", 7)
LAS = opt("las", 9)
BPOS = opt("bpos", 8)
SG = opt("sg", 0)
GATE = opt("gate", 0)
GDEL = opt("gdel", 0)
CPF = opt("cpf", 1)
PFW = opt("pfw", 1)
LSLEEP = opt("lsleep", 2)
SPINMAX = 400000

NKS = 86
EP = 264
C_OFF = 0x600000
G_OFF = 0x8e0000
FL_OFF = 0x910000
CT_H, CT_G, CT_C = 0, 64, 128
NCT = 384
NREP = 32
WS_USED = 0x920000
ST_OFF = 0x1000000

def f32(x):
    return "0x%08x" % struct.unpack("<I", struct.pack("<f", x))[0]

class Asm:
    def __init__(self):
        self.l = []
    def __call__(self, s):
        self.l.append("    " + s)
    def lab(self, s):
        self.l.append(s + ":")
    def text(self):
        return "\n".join(self.l) + "\n"

def vr(b, n=1):
    return f"v{b}" if n == 1 else f"v[{b}:{b+n-1}]"

def srd(a, d, lo, hi, nbytes):
    a(f"s_mov_b32 s{d}, s{lo}")
    a(f"s_mov_b32 s{d+1}, s{hi}")
    a(f"s_mov_b32 s{d+2}, 0x{nbytes:x}")
    a(f"s_mov_b32 s{d+3}, 0x20000")

SV = 15
def stamp(a, idx):
    if not STAMP:
        return
    a("s_memrealtime s[62:63]")
    a("s_waitcnt lgkmcnt(0)")
    a(f"v_writelane_b32 v{SV}, s62, {idx}")

def stamp_flush(a):
    if not STAMP:
        return
    a("s_lshl_b32 s60, s2, 3")
    a("s_add_u32 s60, s60, s95")
    a("s_lshl_b32 s60, s60, 8")
    a(f"s_add_u32 s60, s60, 0x{ST_OFF:x}")
    a("v_lshlrev_b32 v14, 2, v0")
    a(f"buffer_store_dword v{SV}, v14, s[44:47], s60 offen")

def weave(a, mf, fill, start=0, per=1):
    fi = 0
    for i, m in enumerate(mf):
        a(m)
        if i >= start:
            for _ in range(per):
                if fi < len(fill):
                    a(fill[fi]); fi += 1
    while fi < len(fill):
        a(fill[fi]); fi += 1

C1 = -2.0 * math.sqrt(2.0 / math.pi) * math.log2(math.e)
C2 = C1 * 0.044715

def gelu8(G, U, t, dst, swap):
    r = []
    for i in range(0, 8, 2): r.append(f"v_pk_mul_f32 {vr(t+i,2)}, {vr(G[i],2)}, {vr(G[i],2)}")
    for i in range(0, 8, 2): r.append(f"v_pk_fma_f32 {vr(t+i,2)}, {vr(t+i,2)}, s[72:73], v[10:11] op_sel_hi:[1,0,0]")
    for i in range(0, 8, 2): r.append(f"v_pk_mul_f32 {vr(t+i,2)}, {vr(t+i,2)}, {vr(G[i],2)}")
    for i in range(8):
        r.append(f"v_exp_f32 v{t+i}, v{t+i}")
        if i & 1: r.append(f"v_pk_mul_f32 {vr(G[i-1],2)}, {vr(G[i-1],2)}, {vr(U[i-1],2)}")
    for i in range(0, 8, 2): r.append(f"v_pk_add_f32 {vr(t+i,2)}, {vr(t+i,2)}, 1.0 op_sel_hi:[1,0]")
    for i in range(8): r.append(f"v_rcp_f32 v{t+i}, v{t+i}")
    for i in range(0, 8, 2): r.append(f"v_pk_mul_f32 {vr(G[i],2)}, {vr(G[i],2)}, {vr(t+i,2)}")
    for i in range(4): r.append(f"v_cvt_pk_bf16_f32 v{dst+i}, v{G[2*i]}, v{G[2*i+1]}")
    r.append("s_nop 1")
    r.append(f"v_permlane{swap}_swap_b32 v{dst}, v{dst+2}")
    r.append(f"v_permlane{swap}_swap_b32 v{dst+1}, v{dst+3}")
    return r

def gelu_pair(a, g0, u0, g1, u1, t, dst):
    G = [g0 + i for i in range(4)] + [g1 + i for i in range(4)]
    U = [u0 + i for i in range(4)] + [u1 + i for i in range(4)]
    for x in gelu8(G, U, t, dst, 16):
        a(x)

SLOT = 40960
XB = 16384
WB = 12288
F1_LDS = 3 * SLOT + 36864
NST = 22
PIECE = 10240


def p2_ids(a):
    if opt("m8", 0):
        a("s_lshr_b32 s31, s2, 3")
        a("s_lshr_b32 s93, s31, 3")
        if opt("jx8", 0): a(f"s_xor_b32 s93, s93, {opt('jx8', 0)}")
        a("s_and_b32 s31, s31, 7")
        a("s_and_b32 s92, s2, 6")
        a("s_lshl_b32 s92, s92, 2")
        a("s_add_u32 s92, s92, s31")
        a(f"s_mul_i32 s94, s31, {opt('ri8', 3)}")
        a(f"s_and_b32 s30, s93, {opt('rm8', 3)}")
        a(f"s_mul_i32 s30, s30, {opt('rj8', 0)}")
        a("s_add_u32 s94, s94, s30")
        a("s_and_b32 s30, s2, 1")
        a("s_lshl_b32 s30, s30, 2")
        a("s_add_u32 s93, s93, s30")
        a(f"s_sub_u32 s30, s94, {NST}")
        a(f"s_cmp_ge_u32 s94, {NST}")
        a("s_cselect_b32 s94, s30, s94")
        return
    a("s_and_b32 s30, s2, 7")
    a("s_lshr_b32 s31, s2, 3")
    a("s_lshr_b32 s93, s31, 2")
    if opt("jx", 5): a(f"s_xor_b32 s93, s93, {opt('jx', 5)}")
    a("s_and_b32 s31, s31, 3")
    a(f"s_mul_i32 s94, s31, {RI}")
    a("s_sub_u32 s61, 0, s30")
    a("s_bitcmp1_b32 s31, 0")
    a("s_cselect_b32 s92, s61, s30")
    a("s_cselect_b32 s61, 8, 0")
    a("s_cmp_eq_u32 s30, 0")
    a("s_cselect_b32 s92, s61, s92")
    a("s_lshr_b32 s31, s31, 1")
    a("s_lshl_b32 s31, s31, 4")
    a("s_add_u32 s92, s92, s31")
    a("s_and_b32 s92, s92, 31")
    a(f"s_mul_i32 s30, s93, {RJ}")
    a("s_add_u32 s94, s94, s30")
    a(f"s_sub_u32 s30, s94, {NST}")
    a(f"s_cmp_ge_u32 s94, {NST}")
    a("s_cselect_b32 s94, s30, s94")

def req_nonce():
    return ["s_load_dwordx8 s[4:11], s[26:27], 0"]

def get_nonce(a, tag, vt):
    a("s_waitcnt lgkmcnt(0)")
    a("s_and_b64 s[4:5], s[4:5], s[6:7]")
    a("s_and_b64 s[8:9], s[8:9], s[10:11]")
    a("s_and_b64 s[4:5], s[4:5], s[8:9]")
    a("s_and_b32 s4, s4, s5")
    a(f"s_cbranch_scc1 NOK{tag}")
    srd(a, 48, 26, 27, 256)
    a("s_mov_b32 s61, 0")
    a(f"v_lshlrev_b32 v{vt+1}, 2, v0")
    a("s_mov_b64 exec, 0xff")
    a.lab(f"NL{tag}")
    a(f"v_mov_b32 v{vt}, 0")
    a(f"buffer_atomic_add v{vt}, v{vt+1}, s[48:51], 0 offen sc0 sc1")
    a("s_add_u32 s61, s61, 1")
    a(f"s_cmp_gt_u32 s61, {SPINMAX}")
    a("s_waitcnt vmcnt(0)")
    a(f"s_cbranch_scc1 NX{tag}")
    a("s_sleep 4")
    a(f"v_cmp_eq_u32 vcc, 0, v{vt}")
    a(f"s_cbranch_vccnz NL{tag}")
    a.lab(f"NX{tag}")
    a("s_mov_b64 exec, -1")
    a.lab(f"NOK{tag}")

def signal(a, vt, sidx, smask=None, cnt=0, lo=None, val="1"):
    a(f"s_lshl_b32 s30, {sidx}, 7")
    a(f"s_add_u32 s30, s30, 0x{FL_OFF:x}")
    a(f"v_mov_b32 v{vt}, {val}")
    a(f"v_lshlrev_b32 v{vt+1}, 7, v0")
    a(f"s_waitcnt vmcnt({cnt})")
    if smask is None:
        a("s_mov_b64 exec, 1")
    else:
        a(f"s_mov_b32 exec_lo, {smask}")
        a("s_mov_b32 exec_hi, 0")
    a(f"s_setprio {PRIO}")
    a(f"buffer_atomic_add v{vt}, v{vt+1}, s[44:47], s30 offen sc1")
    a(f"s_setprio {EPRIO if lo is None else lo}")
    a("s_mov_b64 exec, -1")

def poll(a, tag, vaddr, vexp, vt, mask, sleep=0):
    a(f"s_mov_b32 s30, 0x{FL_OFF:x}")
    a("s_mov_b32 s61, 0")
    a(f"s_mov_b32 exec_lo, 0x{mask & 0xffffffff:x}")
    a(f"s_mov_b32 exec_hi, 0x{mask >> 32:x}")
    a.lab(f"PL{tag}")
    a(f"v_mov_b32 v{vt}, 0")
    a(f"buffer_atomic_add v{vt}, v{vaddr}, s[44:47], s30 offen sc0 sc1")
    a("s_add_u32 s61, s61, 1")
    a(f"s_cmp_gt_u32 s61, {SPINMAX}")
    a("s_waitcnt vmcnt(0)")
    a(f"s_cbranch_scc1 PD{tag}")
    a(f"v_cmp_ne_u32 vcc, v{vt}, v{vexp}")
    if sleep:
        a(f"s_cbranch_vccz PD{tag}")
        a(f"s_sleep {sleep}")
        a(f"s_branch PL{tag}")
    else:
        a(f"s_cbranch_vccnz PL{tag}")
    a.lab(f"PD{tag}")
    a("s_mov_b64 exec, -1")

def kernel(a):
    a.lab(NAME + "_kernel")
    a("s_cmp_ge_u32 s2, 256")
    a("s_cbranch_scc1 K_END")
    a("s_load_dwordx2 s[32:33], s[0:1], 0")
    a("s_load_dwordx16 s[4:19], s[0:1], 0")
    a("s_load_dwordx8 s[20:27], s[0:1], 64")
    a("s_load_dwordx2 s[28:29], s[0:1], 96")
    if STAMP or opt("spin", 0):
        a("s_memrealtime s[90:91]")
    a("v_lshrrev_b32 v1, 6, v0")
    a("v_and_b32 v0, 63, v0")
    a("v_readfirstlane_b32 s95, v1")
    a("s_lshr_b32 s31, s2, 3")
    a("s_and_b32 s56, s2, 1")
    a("s_lshl_b32 s56, s56, 3")
    a("s_and_b32 s74, s31, 7")
    a("s_add_u32 s56, s56, s74")
    a("s_and_b32 s57, s2, 6")
    a("s_lshl_b32 s57, s57, 1")
    a("s_lshr_b32 s75, s31, 3")
    a("s_add_u32 s57, s57, s75")
    a(f"s_mul_i32 s74, s74, {RA}")
    a(f"s_mul_i32 s75, s75, {RB}")
    a("s_add_u32 s74, s74, s75")
    a(f"s_and_b32 s74, s74, {RM}")
    if opt("ro", 0): a(f"s_or_b32 s74, s74, {opt('ro', 0)}")
    a("s_and_b32 s30, s57, 7")
    a("s_cselect_b32 s58, 0, 1")
    a("s_lshr_b32 s59, s57, 3")
    a("s_sub_u32 s78, s57, s59")
    a("s_sub_u32 s78, s78, 1")
    a("s_and_b32 s3, s95, 3")
    if STAMP:
        a(f"v_mov_b32 v{SV}, -1")
    a("s_cmp_ge_u32 s95, 4")
    a("s_cbranch_scc1 P1_CONS")
    a("v_lshrrev_b32 v3, 3, v0")
    a("v_and_b32 v8, 7, v0")
    a("v_lshrrev_b32 v9, 4, v0")
    a("s_lshl_b32 s30, s56, 2")
    a("s_add_u32 s30, s30, s3")
    a("s_lshl_b32 s79, s30, 10")
    a("s_lshl_b32 s66, s3, 12")
    a("s_lshl_b32 s70, s74, 7")
    a("s_cmp_eq_u32 s58, 1")
    a("s_cbranch_scc1 P1_LSP")

    def stamp0():
        if STAMP:
            a(f"v_writelane_b32 v{SV}, s90, 0")
            stamp(a, 1)

    def gload(ops, sl="s57", xb=68, gw=True):
        srd(a, 48, 22, 23, 1024)
        a(f"s_lshl_b32 s30, {sl}, 3")
        a("s_lshl_b32 s31, s3, 1")
        a("s_add_u32 s30, s30, s31")
        a("s_lshr_b32 s31, s30, 5")
        a("s_and_b32 s30, s30, 31")
        a("s_lshl_b32 s30, s30, 6")
        a("s_add_u32 s30, s30, s31")
        a("s_lshl_b32 s31, s56, 2")
        a("s_add_u32 s64, s30, s31")
        a("s_lshl_b32 s30, s64, 10")
        a("s_add_u32 s31, s30, 0x10000")
        a("v_lshlrev_b32 v12, 4, v0")
        if gw:
            a("buffer_load_dwordx4 v[64:67], v12, s[48:51], 0 offen")
        a(f"buffer_load_dwordx4 {vr(xb,4)}, v12, s[32:35], s30 offen")
        a(f"buffer_load_dwordx4 {vr(xb+4,4)}, v12, s[32:35], s31 offen")
        ops.extend(["g"] * 3)

    def gcalc(ops, parts=(0, 1, 2), x0=68):
        T = 76
        if 0 in parts and ops is not None:
            waitfor(ops, "g")
        for rr in range(2):
            if rr not in parts:
                continue
            xb = x0 + 4 * rr
            acc = T + 4 + rr
            for d in range(4):
                a(f"v_lshlrev_b32 v{T}, 16, v{xb+d}")
                a(f"v_and_b32 v{T+1}, 0xffff0000, v{xb+d}")
                a(f"v_lshlrev_b32 v{T+2}, 16, v{64+d}")
                a(f"v_and_b32 v{T+3}, 0xffff0000, v{64+d}")
                a(f"v_mul_f32 v{T}, v{T}, v{T+2}")
                a(f"v_mul_f32 v{T+1}, v{T+1}, v{T+3}")
                a(f"v_cvt_pk_bf16_f32 v{T}, v{T}, v{T+1}")
                a(f"v_and_b32 v{T+1}, 0xffff0000, v{T}")
                a(f"v_lshlrev_b32 v{T}, 16, v{T}")
                if d == 0:
                    a(f"v_add_f32 v{acc}, v{T}, v{T+1}")
                else:
                    a(f"v_add_f32 v{acc}, v{acc}, v{T}")
                    a(f"v_add_f32 v{acc}, v{acc}, v{T+1}")
        if 2 not in parts:
            return
        A, B = T + 4, T + 5
        for sh in (8, 4, 2, 1):
            a("s_nop 1")
            a(f"v_add_f32_dpp v{A}, v{A}, v{A} row_ror:{sh} row_mask:0xf bank_mask:0xf")
            a(f"v_add_f32_dpp v{B}, v{B}, v{B} row_ror:{sh} row_mask:0xf bank_mask:0xf")
        a("s_nop 1")
        a(f"v_add_f32_dpp v{A}, v{A}, v{A} row_bcast:15 row_mask:0xa bank_mask:0xf")
        a(f"v_add_f32_dpp v{B}, v{B}, v{B} row_bcast:15 row_mask:0xa bank_mask:0xf")
        a("s_nop 1")
        a(f"v_add_f32_dpp v{A}, v{A}, v{A} row_bcast:31 row_mask:0xc bank_mask:0xf")
        a(f"v_add_f32_dpp v{B}, v{B}, v{B} row_bcast:31 row_mask:0xc bank_mask:0xf")
        a("s_nop 1")
        a(f"v_cvt_pk_bf16_f32 v{A}, v{A}, v{B}")
        a(f"v_and_b32 v{B}, 0xffff0000, v{A}")
        a(f"v_lshlrev_b32 v{A}, 16, v{A}")
        a(f"v_mul_f32 v{A}, {f32(-math.log2(math.e))}, v{A}")
        a(f"v_mul_f32 v{B}, {f32(-math.log2(math.e))}, v{B}")
        a(f"v_exp_f32 v{A}, v{A}")
        a(f"v_exp_f32 v{B}, v{B}")
        a("s_nop 0")
        a(f"v_add_f32 v{A}, 1.0, v{A}")
        a(f"v_add_f32 v{B}, 1.0, v{B}")
        a(f"v_rcp_f32 v{A}, v{A}")
        a(f"v_rcp_f32 v{B}, v{B}")
        a("s_nop 0")
        a(f"v_cvt_pk_bf16_f32 v{A}, v{A}, v{B}")
        a(f"v_and_b32 v{B}, 0xffff0000, v{A}")
        a(f"v_lshlrev_b32 v{A}, 16, v{A}")

    def gsignal(sl, vt, val):
        a("s_lshl_b32 s61, s56, 2")
        a(f"s_lshr_b32 s31, {sl}, 2")
        a("s_add_u32 s61, s61, s31")
        a(f"s_add_u32 s61, s61, {CT_G}")
        signal(a, vt, "s61", cnt=63, lo=0, val=val)

    def gstore(sl="s57"):
        a("s_lshl_b32 s30, s56, 4")
        a(f"s_add_u32 s30, s30, {sl}")
        a("s_lshl_b32 s30, s30, 2")
        a("s_add_u32 s30, s30, s3")
        a("s_lshl_b32 s30, s30, 7")
        a(f"s_add_u32 s30, s30, 0x{G_OFF:x}")
        a("s_mov_b32 exec_lo, 0")
        a("s_brev_b32 exec_hi, 1")
        a("buffer_store_dwordx2 v[80:81], off, s[44:47], s30 sc1")
        a("s_mov_b64 exec, -1")

    def wd_setup():
        p2_ids(a)
        srd(a, 52, 20, 21, 1376 * 1024)
        a("v_lshlrev_b32 v29, 1, v3")
        a("v_and_b32 v29, 4, v29")
        a("v_xor_b32 v29, v29, v8")
        a("v_lshlrev_b32 v29, 4, v29")
        a("v_lshl_add_u32 v29, v3, 10, v29")
        a(f"s_mul_i32 s30, s3, {NST*16384}")
        a("s_lshl_b32 s31, s93, 7")
        a("s_add_u32 s30, s30, s31")
        a("v_add_u32 v29, s30, v29")
        a("s_mov_b32 s65, s94")
        a(f"s_mul_i32 s77, s3, {PIECE}")

    def wd_lds(st):
        s = st % 20
        return (s // 5) * SLOT + (s % 5) * 2048

    def issue_w(st, ops):
        a(f"s_add_u32 m0, s77, {wd_lds(st)}")
        a("s_lshl_b32 s30, s65, 14")
        a("s_add_u32 s31, s30, 7168")
        a("buffer_load_dwordx4 v29, s[52:55], s30 offen lds")
        a("s_add_u32 s65, s65, 1")
        a(f"s_cmp_eq_u32 s65, {NST}")
        a("s_cselect_b32 s65, 0, s65")
        a("buffer_load_dwordx4 v29, s[52:55], s31 offen offset:1024 lds")
        ops.extend([("w", st)] * 2)

    def waitfor(ops, key):
        last = max(i for i, o in enumerate(ops) if o == key)
        a(f"s_waitcnt vmcnt({len(ops) - 1 - last})")

    def capture(fn):
        save = a.l
        a.l = []
        fn()
        lines, a.l = a.l, save
        groups, cur = [], []
        for ln in lines:
            cur.append(ln)
            if ln.strip().startswith("buffer_"):
                groups.append(cur); cur = []
        if cur:
            groups[-1].extend(cur)
        return groups

    def pf_wd():
        a("s_lshr_b32 s30, s2, 3")
        a("s_lshl_b32 s30, s30, 2")
        a("s_add_u32 s30, s30, s3")
        a(f"s_mul_i32 s30, s30, {86*128}")
        a("v_lshlrev_b32 v12, 7, v0")
        a("buffer_load_dword v82, v12, s[52:55], s30 offen")
        a("s_add_u32 s30, s30, 8192")
        a("s_mov_b64 exec, 0x3fffff")
        a("buffer_load_dword v83, v12, s[52:55], s30 offen")
        a("s_mov_b64 exec, -1")

    def touch_w3():
        a("s_lshr_b32 s30, s2, 3")
        a("s_lshl_b32 s30, s30, 2")
        a("s_add_u32 s30, s30, s3")
        a(f"s_mul_i32 s30, s30, {11*1024}")
        a("v_lshlrev_b32 v12, 10, v0")
        a("s_mov_b64 exec, 0x7ff")
        a("buffer_load_dword v82, v12, s[52:55], s30 offen offset:384")
        a("s_mov_b64 exec, -1")

    def merge(groups):
        return [sum(groups, [])]

    def loader_loop(issue, commit, lai, direct, dpre, tag):
        items = []
        for s in range(8):
            items += [(("s", s), 1, g) for g in capture(lambda: issue(s, []))]
        assert dpre <= 5 and direct <= 10
        if opt("t3w", 0):
            items += [("t3", 1, g) for g in merge(capture(touch_w3))]
        for st in range(direct):
            items += [(("w", st), 2, g) for g in merge(capture(lambda: issue_w(st, [])))]
        ops = []
        pos = 0
        for b in range(8):
            nxt = [i for i, it in enumerate(items) if it[0] == ("s", b + 1)]
            upto = len(items) - (direct - min(direct, dpre)) if b == 7 else nxt[min(lai, len(nxt)) - 1] + 1
            while pos < upto:
                a.l.extend(items[pos][2]); ops.extend([items[pos][0]] * items[pos][1]); pos += 1
            if b == 0:
                wd_setup()
            waitfor(ops, ("s", b))
            commit(b)
            if opt("lstamp", 1): stamp(a, 2 + b)
            a("s_barrier")
            if b == 5:
                for x in req_nonce():
                    a(x)
        while pos < len(items):
            a.l.extend(items[pos][2]); pos += 1
        get_nonce(a, "L" + tag, 30)
        a("s_barrier")
        stamp(a, 16)
        a(f"s_branch P2_W{direct}")


    def final_setup(VA):
        a("s_lshr_b32 s30, s95, 2")
        a(f"v_lshrrev_b32 v{VA}, 3, v0")
        a("s_lshl_b32 s31, s3, 3")
        a(f"v_add_u32 v{VA}, s31, v{VA}")
        a(f"v_and_b32 v{VA+1}, 3, v0")
        a(f"v_lshlrev_b32 v{VA+2}, 2, v{VA+1}")
        a(f"v_xor_b32 v{VA+2}, v{VA+2}, v{VA}")
        a(f"v_lshlrev_b32 v{VA+2}, 4, v{VA+2}")
        a(f"v_lshl_add_u32 v{VA+2}, v{VA+1}, 10, v{VA+2}")
        a(f"v_bfe_u32 v{VA+1}, v0, 2, 1")
        a("s_lshl_b32 s31, s30, 1")
        a(f"v_add_u32 v{VA+1}, s31, v{VA+1}")
        a(f"v_mul_u32_u24 v{VA+3}, {PIECE}, v{VA+1}")
        a(f"v_add_u32 v{VA+3}, v{VA+3}, v{VA+2}")
        a(f"v_mul_u32_u24 v{VA+1}, {SLOT}, v{VA+1}")
        a(f"v_add_u32 v{VA+1}, v{VA+1}, v{VA+2}")
        a("s_lshl_b32 s31, s30, 7")
        a(f"v_lshl_add_u32 v{VA+2}, v{VA}, 2, s31")
        a("s_lshl_b32 s30, s30, 5")
        a("s_add_u32 s30, s30, s92")
        a("s_lshl_b32 s30, s30, 10")
        a("s_lshl_b32 s31, s93, 7")
        a("s_add_u32 s30, s30, s31")
        a(f"v_lshlrev_b32 v{VA}, 16, v{VA}")
        a(f"v_add_u32 v{VA}, s30, v{VA}")
        a(f"v_and_b32 v{VA+4}, 7, v0")
        a(f"v_lshl_add_u32 v{VA}, v{VA+4}, 4, v{VA}")
        srd(a, 48, 24, 25, 2048 * 1024)

    def final_stage(VA, R):
        a("s_barrier")
        a(f"ds_read_b32 v{VA+4}, v{VA+2} offset:8192")
        for hh in range(2):
            for w in range(4):
                a(f"ds_read_b128 {vr(R + 8*w + 4*hh, 4)}, v{VA+1} offset:{w*PIECE + hh*512}")
            a(f"ds_read_b128 {vr(R + 32 + 4*hh, 4)}, v{VA+3} offset:{4096 + hh*512}")
        for hh in range(2):
            a(f"s_waitcnt lgkmcnt({5 - 5*hh})")
            o = 4 * hh
            for i in (0, 2):
                a(f"v_pk_add_f32 {vr(R+o+i,2)}, {vr(R+o+i,2)}, {vr(R+8+o+i,2)}")
                a(f"v_pk_add_f32 {vr(R+16+o+i,2)}, {vr(R+16+o+i,2)}, {vr(R+24+o+i,2)}")
            for i in (0, 2):
                a(f"v_pk_add_f32 {vr(R+o+i,2)}, {vr(R+o+i,2)}, {vr(R+16+o+i,2)}")
            for i in range(4):
                a(f"v_fma_f32 v{R+o+i}, v{VA+4}, v{R+o+i}, v{R+32+o+i}")
            a(f"v_cvt_pk_bf16_f32 v{R+40+2*hh}, v{R+o}, v{R+o+1}")
            a(f"v_cvt_pk_bf16_f32 v{R+41+2*hh}, v{R+o+2}, v{R+o+3}")
        a(f"buffer_store_dwordx4 {vr(R+40,4)}, v{VA}, s[48:51], 0 offen sc1")

    a("v_xor_b32 v10, v9, v8")
    a("v_lshlrev_b32 v10, 4, v10")
    a("v_lshlrev_b32 v11, 16, v3")
    a("v_add3_u32 v4, v10, v11, s79")
    a("v_xor_b32 v5, 64, v4")
    a(f"v_add_u32 v5, {(8 << 16) - 1024}, v5")
    a(f"v_add_u32 v6, {2*((8 << 16) - 1024)}, v4")
    a(f"v_add_u32 v7, {2*((8 << 16) - 1024)}, v5")
    a(f"s_mov_b32 s34, 0x{2048*1024:x}")
    a("s_mov_b32 s35, 0x20000")
    a("s_mov_b32 m0, s66")
    def wsetup():
        a(f"s_mul_i32 s30, s3, {16*2752}")
        a("s_mul_i32 s31, s78, 192")
        a("s_add_u32 s30, s30, s31")
        a("s_movk_i32 s31, 2560")
        a("v_mul_u32_u24 v11, 171, v0")
        a("v_lshl_add_u32 v10, v0, 4, s30")
        a("v_lshrrev_b32 v12, 11, v11")
        a("v_mad_u32_u24 v24, v12, s31, v10")
        a(f"v_add_u32 v12, {64*171}, v11")
        a("v_lshrrev_b32 v12, 11, v12")
        a("v_and_b32 v25, 32, v0")
        a("v_xor_b32 v25, v25, v10")
        a("v_mad_u32_u24 v25, v12, s31, v25")
        a(f"v_add_u32 v12, {128*171}, v11")
        a("v_lshrrev_b32 v12, 11, v12")
        a("v_xor_b32 v26, 32, v10")
        a("v_mad_u32_u24 v26, v12, s31, v26")
        a("s_mul_i32 s67, s3, 3072")
        a(f"s_add_u32 s67, s67, {XB}")
        a(f"s_add_u32 s68, s67, {WB}")
        a(f"s_mul_i32 s71, s74, {64*2752}")
    wsetup()
    a("s_waitcnt lgkmcnt(0)")
    stamp0()

    XP = opt("xpair", 0)
    def issueF(stage, ops):
        sl = (stage % 4) * SLOT
        if stage and not (XP and stage == 1):
            a(f"s_add_u32 m0, s66, {sl}")
            a("s_nop 0")
        if not (XP and stage == 1):
            for j in range(4):
                a(f"buffer_load_dwordx4 v{4+j}, s[32:35], s70 offen offset:{j*1024} {XNT} lds")
                if XP and stage == 0:
                    if j == 0:
                        a("s_add_u32 s30, s74, 1")
                        a("s_and_b32 s30, s30, 7")
                        a("s_lshl_b32 s30, s30, 7")
                    a(f"s_add_u32 m0, s66, {SLOT}")
                    a("s_nop 0")
                    a(f"buffer_load_dwordx4 v{4+j}, s[32:35], s30 offen offset:{j*1024} {XNT} lds")
                    a("s_mov_b32 m0, s66")
                    a("s_nop 0")
        if stage == 0:
            srd(a, 36, 16, 17, 512 * 2752)
        a(f"s_add_u32 m0, s67, {sl}")
        a("s_add_u32 s74, s74, 1")
        for jj in range(3):
            a(f"buffer_load_dwordx4 v{24+jj}, s[36:39], s71 offen offset:{jj*1024} {WNT} lds")
        if stage == 0:
            srd(a, 40, 18, 19, 512 * 2752)
        a(f"s_add_u32 m0, s68, {sl}")
        a("s_and_b32 s74, s74, 7")
        for jj in range(3):
            a(f"buffer_load_dwordx4 v{24+jj}, s[40:43], s71 offen offset:{jj*1024} {WNT} lds")
        a("s_lshl_b32 s70, s74, 7")
        a(f"s_mul_i32 s71, s74, {64*2752}")
        if stage == 0:
            srd(a, 44, 28, 29, 0x2000000 if STAMP else WS_USED)

    loader_loop(issueF, lambda b: None, LAI, DIRECT, opt("dpre", 2), "F")

    a.lab("P1_LSP")
    a("v_lshlrev_b32 v10, 4, v8")
    a("v_lshlrev_b32 v11, 16, v3")
    a("v_add3_u32 v4, v10, v11, s79")
    a("s_and_b32 s30, s3, 1")
    a("s_lshl_b32 s30, s30, 5")
    a("s_lshr_b32 s31, s3, 1")
    a("s_add_u32 s30, s30, s31")
    a("s_lshl_b32 s30, s30, 10")
    a("s_lshl_b32 s31, s59, 7")
    a("s_add_u32 s30, s30, s31")
    a("v_and_b32 v10, 2, v3")
    a("v_xor_b32 v10, v10, v8")
    a("v_lshlrev_b32 v10, 4, v10")
    a("v_lshlrev_b32 v11, 11, v3")
    a("v_add3_u32 v24, v10, v11, s30")
    a("v_xor_b32 v25, 64, v24")
    a("v_lshrrev_b32 v10, 1, v0")
    a("s_lshl_b32 s30, s3, 1")
    a("s_and_b32 s30, s30, 4")
    a("v_xor_b32 v10, s30, v10")
    a(f"v_mul_u32_u24 v10, {2*2752}, v10")
    a("v_and_b32 v11, 1, v0")
    a("v_lshlrev_b32 v11, 4, v11")
    a("s_and_b32 s30, s3, 1")
    a("s_mul_i32 s30, s30, 2752")
    a("s_lshl_b32 s31, s59, 5")
    a("s_add_u32 s30, s30, s31")
    a(f"s_add_u32 s30, s30, {1344*2}")
    a("v_add3_u32 v26, v10, v11, s30")
    a("s_lshl_b32 s67, s3, 11")
    a(f"s_add_u32 s67, s67, {XB}")
    a("s_add_u32 s68, s67, 8192")
    a("s_lshl_b32 s69, s3, 10")
    a(f"s_add_u32 s69, s69, {XB + 16384}")
    a("s_lshl_b32 s71, s74, 16")
    a(f"s_mul_i32 s75, s74, {64*2752}")
    a(f"s_mov_b32 s34, 0x{2048*1024:x}")
    a("s_mov_b32 s35, 0x20000")
    a("s_waitcnt lgkmcnt(0)")
    stamp0()

    def issueS(stage, ops):
        sl = (stage % 4) * SLOT
        xr = 32 + 16 * (stage & 1)
        n = 0
        for j in range(4):
            if j:
                a(f"s_add_u32 s30, s70, {j * 8 * 65536}")
            a(f"buffer_load_dwordx4 {vr(xr+4*j,4)}, v4, s[32:35], {'s30' if j else 's70'} offen")
            n += 1
        a("s_add_u32 s74, s74, 1")
        if stage == 0:
            srd(a, 36, 10, 11, 512 * 1024)
            srd(a, 40, 12, 13, 512 * 1024)
            a("s_cmp_ge_u32 s3, 2")
            a("s_cselect_b32 s84, s18, s16")
            a("s_cselect_b32 s85, s19, s17")
            a(f"s_mov_b32 s86, 0x{512*2752:x}")
            a("s_mov_b32 s87, 0x20000")
            srd(a, 44, 28, 29, 0x2000000 if STAMP else WS_USED)
        if stage < 4:
            a(f"s_add_u32 m0, s67, {sl}")
            a(f"s_add_u32 s76, s71, {16*1024 - 1024}")
            a("buffer_load_dwordx4 v24, s[36:39], s71 offen lds")
            a("buffer_load_dwordx4 v24, s[36:39], s76 offen offset:1024 lds")
            a(f"s_add_u32 m0, s68, {sl}")
            a("s_nop 0")
            a("buffer_load_dwordx4 v25, s[40:43], s71 offen lds")
            a("buffer_load_dwordx4 v25, s[40:43], s76 offen offset:1024 lds")
            n += 4
        a(f"s_add_u32 m0, s69, {sl}")
        a("s_and_b32 s74, s74, 7")
        if not opt("nof", 0):
            a("buffer_load_dwordx4 v26, s[84:87], s75 offen lds")
            n += 1
        a("s_lshl_b32 s70, s74, 7")
        a("s_lshl_b32 s71, s74, 16")
        a(f"s_mul_i32 s75, s74, {64*2752}")
        ops.extend([("s", stage)] * n)
        if stage == 0:
            a("v_lshrrev_b32 v10, 1, v8")
            a("v_xor_b32 v10, v10, v9")
            a("v_lshlrev_b32 v10, 4, v10")
            a("v_and_b32 v11, 1, v8")
            a("v_lshl_add_u32 v10, v11, 3, v10")
            a("v_lshl_add_u32 v10, v3, 7, v10")
            a("v_add_u32 v5, s66, v10")
            a("v_and_b32 v11, 1, v3")
            a("v_lshlrev_b32 v10, 6, v11")
            a("v_xor_b32 v5, v5, v10")
            a("v_xor_b32 v6, 64, v5")
            a("v_mul_u32_u24 v30, 0x0202, v11")
            a("v_lshl_or_b32 v30, v30, 16, v30")
            a("v_xor_b32 v31, 0x07060302, v30")
            a("v_xor_b32 v30, 0x05040100, v30")
            a("v_and_b32 v10, 2, v0")
            a("v_or_b32 v10, 4, v10")
            a("v_lshlrev_b32 v10, 4, v10")
            a("v_lshl_add_u32 v10, v0, 7, v10")
            a("v_add_u32 v27, s68, v10")
            a("s_lshr_b32 s30, s3, 1")
            a("v_xor_b32 v28, s30, v0")
            a("v_and_b32 v28, 1, v28")
            a("v_lshlrev_b32 v28, 15, v28")
            a("v_or_b32 v28, 0x3f80, v28")


    def commitS(stage):
        if opt("nocommit", 0): return
        sl = (stage % 4) * SLOT
        xr = 32 + 16 * (stage & 1)
        a(f"v_add_u32 v7, {sl}, v5")
        a(f"v_add_u32 v2, {sl}, v6")
        for j in range(4):
            r = xr + 4 * j
            t = 16 + 4 * (j & 1)
            a(f"v_perm_b32 v{t}, v{r+1}, v{r}, v30")
            a(f"v_perm_b32 v{t+1}, v{r+3}, v{r+2}, v30")
            a(f"v_perm_b32 v{t+2}, v{r+1}, v{r}, v31")
            a(f"v_perm_b32 v{t+3}, v{r+3}, v{r+2}, v31")
            e, o = (7, 2) if (j & 1) == 0 else (2, 7)
            a(f"ds_write_b64 v{e}, {vr(t,2)} offset:{j*1024}")
            a(f"ds_write_b64 v{o}, {vr(t+2,2)} offset:{j*1024}")
        if stage < 4:
            a("s_cmp_lg_u32 s59, 0")
            a(f"s_cbranch_scc1 P1_NP{stage}")
            a(f"v_add_u32 v7, {sl}, v27")
            a("s_mov_b64 exec, 0xffff")
            a("ds_write_b16 v7, v28")
            a("s_mov_b64 exec, -1")
            a.lab(f"P1_NP{stage}")
        a("s_waitcnt lgkmcnt(0)")

    loader_loop(issueS, commitS, LAS, opt("ds", 8), opt("dspre", 4), "S")

    DS = opt("ds", 8)
    GL = opt("gl", DIRECT + 2)
    GA = opt("ga", 19)
    assert DS > GL
    ops = []
    for st in range(DIRECT, N1):
        a.lab(f"P2_W{st}")
        if st == GL and not opt("abl_g", 0):
            a("s_and_b32 s76, s57, 7")
            a("s_cmp_lg_u32 s76, 1")
            a("s_cbranch_scc1 NOG2A")
            a("s_sub_u32 s73, s57, 1")
            gload([], "s73", 84, False)
            a.lab("NOG2A")
            gload(ops)
        issue_w(st, ops)
        if 2 * (st + 1) > WTH:
            a(f"s_waitcnt vmcnt({WTH - 2})")
        if st == GA and not opt("abl_g", 0):
            a("s_cmp_eq_u32 s58, 1")
            a("s_cbranch_scc1 NOGC")
            if opt("gprio", 0): a(f"s_setprio {opt('gprio', 0)}")
            gcalc(ops)
            gstore()
            a("s_cmp_lg_u32 s76, 1")
            a("s_cbranch_scc1 NOGC")
            gcalc(None, x0=84)
            gstore("s73")
            a.lab("NOGC")
            if opt("gprio", 0): a("s_setprio 0")
    a("s_and_b32 s75, s57, 7")
    a("s_cmp_eq_u32 s75, 1")
    a("s_cselect_b32 s30, 2, 1")
    a("s_cmp_eq_u32 s75, 0")
    a("s_cselect_b32 s75, 0, s30")
    HR = 32
    TMJ = opt("tmj", 0)
    PRE = opt("pre", 1)
    NWF = 3 if PRE else 2
    WF = HR + D2 * 8
    ACC = WF + 8 * NWF
    assert ACC + 64 <= 256
    a("v_lshrrev_b32 v8, 5, v0")
    a("v_and_b32 v9, 15, v0")
    a("v_lshrrev_b32 v10, 2, v9")
    a("v_lshl_add_u32 v10, v8, 3, v10")
    a("v_lshlrev_b32 v10, 7, v10")
    a("v_lshrrev_b32 v11, 3, v9")
    a("v_lshl_add_u32 v10, v11, 6, v10")
    a("v_and_b32 v11, 16, v0")
    a("v_lshl_add_u32 v10, v11, 1, v10")
    a("v_and_b32 v11, 3, v0")
    a("v_lshl_add_u32 v10, v11, 3, v10")
    a("v_add_u32 v4, s77, v10")
    a("v_xor_b32 v5, 64, v4")
    a(f"v_add_u32 v6, {2*SLOT}, v4")
    a(f"v_add_u32 v7, {2*SLOT}, v5")
    def trread(st):
        off = wd_lds(st)
        hi = off >= 2 * SLOT
        if hi: off -= 2 * SLOT
        for ct in range(2):
            for hf in range(2):
                a(f"ds_read_b64_tr_b16 {vr(WF + 8*(st % NWF) + ct*4 + hf*2, 2)}, v{4 + 2*hi + ct} offset:{off + hf*512}")
    if PRE:
        assert N1 == 20
        a("s_waitcnt vmcnt(20)")
        trread(0)
        trread(1)
        a("s_waitcnt lgkmcnt(0)")
        issue_w(20, [])
        issue_w(21, [])
    a(f"s_mul_i32 s61, s3, {NST}")
    a(f"s_mul_i32 s66, s92, {NKS}")
    a("s_add_u32 s66, s66, s61")
    a("s_lshl_b32 s66, s66, 10")
    a("v_lshlrev_b32 v12, 4, v0")
    a("v_add_u32 v2, s66, v12")
    a(f"v_add_u32 v3, {32*NKS*1024}, v2")
    a("s_cmp_eq_u32 s3, 3")
    a(f"s_cselect_b32 s72, 20, {NST}")
    a("v_add_u32 v240, s77, v12")
    for qd in range(1, 4):
        a(f"v_xor_b32 v{240+qd}, {64*qd}, v240")
    for qd in range(4):
        a(f"v_add_u32 v{244+qd}, {2*SLOT}, v{240+qd}")
    final_setup(248)
    stamp(a, 10)
    if opt("dg2", 0):
        a("s_waitcnt vmcnt(0)")
    stamp(a, 11)
    a("s_lshr_b32 s30, s92, 1")
    a("s_lshl_b32 s30, s30, 2")
    a("s_add_u32 s30, s30, s3")
    a("s_lshl_b32 s30, s30, 7")
    a("v_mov_b32 v16, s30")
    a("s_cmp_eq_u32 s3, 3")
    a("s_cselect_b32 s30, 20, 16")
    a("v_mov_b32 v17, s30")
    if GATE:
        a("s_barrier")
    if GDEL:
        a(f"s_sleep {GDEL}")
    poll(a, "L", 16, 17, 22, 1, sleep=LSLEEP)
    if opt("dg2", 0):
        a("s_mul_i32 s61, s61, 100")
        a("s_add_u32 s61, s61, s90")
        a(f"v_writelane_b32 v{SV}, s61, 20")
    stamp(a, 12)
    ops = []
    a("s_mov_b32 s64, s94")
    def issue_h(st):
        sl = st % D2
        a("s_lshl_b32 s30, s64, 10")
        a("s_cmp_ge_u32 s64, s72")
        a("s_cselect_b32 s30, 0x10000000, s30")
        a("s_add_u32 s64, s64, 1")
        a(f"buffer_load_dwordx4 {vr(HR + sl*8, 4)}, v2, s[44:47], s30 offen sc1")
        a(f"s_cmp_eq_u32 s64, {NST}")
        a("s_cselect_b32 s64, 0, s64")
        a(f"buffer_load_dwordx4 {vr(HR + sl*8 + 4, 4)}, v3, s[44:47], s30 offen sc1")
        ops.extend([("h", st)] * 2)
    def mf(st, k):
        ct, rt = k & 1, k >> 1
        d = vr(ACC + 16 * k, 16)
        c = "0" if st == 0 else d
        a(f"v_mfma_f32_32x32x16_bf16 {d}, {vr(WF + 8*(st % NWF) + ct*4, 4)}, {vr(HR + (st % D2)*8 + 4*rt, 4)}, {c}")
    def need(keys, extra=""):
        idx = [i for i, o in enumerate(ops) if o in keys]
        if idx:
            a(f"s_waitcnt vmcnt({len(ops) - 1 - max(idx)}) {extra}")
        elif extra:
            a(f"s_waitcnt {extra}")
    if not PRE:
        trread(0)
    for st in range(D2 - 1):
        issue_h(st)
        if st == 2:
            gsignal("s57", 30, "s75")
            ops.append("sig")
    assert TMJ <= D2 - 1
    def wr(k, qd):
        a(f"ds_write_b128 v{240 + qd + 4*(k >> 1)}, {vr(ACC + 16*k + 4*qd, 4)} offset:{(k & 1)*SLOT + qd*1024}")
    for st in range(NST - TMJ):
        need([("h", st), ("w", st + 1)], "lgkmcnt(0)")
        if st == 0:
            stamp(a, 13)
        mf(st, 0)
        if st + 1 < NST and not (PRE and st == 0):
            trread(st + 1)
        mf(st, 1)
        hg = capture(lambda: issue_h(st + D2 - 1)) if st + D2 - 1 < NST else [[], []]
        a.l.extend(hg[0])
        mf(st, 2)
        a.l.extend(hg[1])
        mf(st, 3)
        if N1 + st < NST and not PRE:
            issue_w(N1 + st, ops)
        if st == KB:
            a("s_barrier")
            if TMJ: assert KB < NST - TMJ
    S0 = NST - TMJ
    if TMJ:
        need([("w", NST - 1)])
        for st in range(S0 + 1, min(NST, S0 + 3)):
            trread(st)
        for k in range(4):
            for n, st in enumerate(range(S0, NST)):
                if k == 0:
                    left = min(NST - 1, st + 2) - st
                    need([("h", st)], f"lgkmcnt({4 * left})")
                mf(st, k)
                if k == 0 and st + 3 < NST:
                    trread(st + 3)
                if k > 0:
                    if n == 0:
                        a("s_nop 7"); a("s_nop 2")
                    if n < 4:
                        wr(k - 1, n)
            if k > 0:
                for qd in range(min(4, TMJ), 4):
                    wr(k - 1, qd)
        stamp(a, 14)
        a("s_nop 7"); a("s_nop 3")
        for qd in range(4):
            wr(3, qd)
        a("s_waitcnt lgkmcnt(0)")
        a("s_barrier")
    else:
        stamp(a, 14)
        a("s_nop 8")
        for k in range(4):
            for qd in range(4):
                wr(k, qd)
        a("s_waitcnt lgkmcnt(0)")
        final_stage(248, 32)
    stamp(a, 15)
    stamp_flush(a)
    a("s_endpgm")

    a.lab("P1_CONS")
    if CPF:
        a("s_cmp_lg_u32 s3, 0")
        a("s_cbranch_scc1 NOCPF")
        a("s_getpc_b64 s[84:85]")
        a.lab("CPF_PC")
        a(f"s_sub_u32 s84, s84, CPF_PC-{NAME}_kernel")
        a("s_subb_u32 s85, s85, 0")
        a(f"s_mov_b32 s86, K_END-{NAME}_kernel")
        a("s_mov_b32 s87, 0x20000")
        a("s_lshr_b32 s30, s2, 3")
        a("s_lshl_b32 s30, s30, 10")
        a("v_lshlrev_b32 v1, 7, v0")
        a("s_mov_b64 exec, 0xff")
        a("buffer_load_dword v13, v1, s[84:87], s30 offen")
        a("s_mov_b64 exec, -1")
        a.lab("NOCPF")
    if opt("t3x", 0):
        a("s_setprio 3")
        a("s_lshr_b32 s30, s2, 3")
        a("s_lshl_b32 s30, s30, 1")
        a("s_and_b32 s31, s2, 1")
        a("s_add_u32 s30, s30, s31")
        a("s_lshl_b32 s30, s30, 2")
        a("s_add_u32 s30, s30, s3")
        a("s_lshl_b32 s30, s30, 13")
        a("v_lshlrev_b32 v1, 10, v0")
        a(f"s_mov_b32 s34, 0x{2048*1024:x}")
        a("s_mov_b32 s35, 0x20000")
        a("s_mov_b64 exec, 0xff")
        a("s_waitcnt lgkmcnt(0)")
        a("buffer_load_dword v13, v1, s[32:35], s30 offen offset:384")
        a("s_mov_b64 exec, -1")
        a("s_setprio 0")
    a("s_lshr_b32 s66, s3, 1")
    a("s_and_b32 s67, s3, 1")
    a("v_and_b32 v1, 15, v0")
    a("v_lshrrev_b32 v2, 4, v0")
    a("v_lshrrev_b32 v3, 1, v1")
    a("v_xor_b32 v3, v3, v2")
    a("v_lshlrev_b32 v3, 4, v3")
    a("v_lshl_add_u32 v4, v1, 7, v3")
    a("v_lshrrev_b32 v3, 2, v1")
    a("v_lshl_add_u32 v3, v2, 3, v3")
    a("v_and_b32 v11, 3, v0")
    a(f"s_mov_b32 s72, {f32(C2)}")
    a(f"v_mov_b32 v10, {f32(C1)}")
    a("s_mov_b32 s68, 0")
    a(f"s_mov_b32 s82, {(-3*SLOT) & 0xffffffff}")
    a(f"s_mov_b32 s83, {SLOT}")

    def advance(regs):
        f = ["s_add_u32 s68, s68, 1",
             "s_and_b32 s30, s68, 3",
             "s_cmp_eq_u32 s30, 0",
             "s_cselect_b32 s30, s82, s83"]
        f += [f"v_add_u32 v{v}, s30, v{v}" for v in regs]
        f += ["s_cmp_eq_u32 s68, 8"]
        return f

    def cons_start():
        a("s_waitcnt lgkmcnt(0)")
        srd(a, 44, 28, 29, 0x2000000 if STAMP else WS_USED)
        stamp0()

    a("s_cmp_eq_u32 s58, 1")
    a("s_cbranch_scc1 P1_CSP")
    a("s_lshr_b32 s30, s2, 3")
    a("s_xor_b32 s30, s30, 8")
    a("s_xor_b32 s31, s3, 1")
    a("s_or_b32 s30, s30, s31")
    a("s_cbranch_scc1 NOINIT")
    a("s_setprio 3")
    a("v_mov_b32 v16, 0")
    a("v_lshlrev_b32 v17, 7, v0")
    a("s_and_b32 s31, s2, 7")
    a(f"s_mul_i32 s30, s31, {NCT // 8 * 128}")
    a(f"s_add_u32 s30, s30, 0x{FL_OFF:x}")
    a(f"s_mov_b32 exec_hi, 0x{(1 << (NCT // 8 - 32)) - 1:x}")
    a("s_waitcnt lgkmcnt(0)")
    srd(a, 44, 28, 29, 0x2000000 if STAMP else WS_USED)
    a("buffer_store_dword v16, v17, s[44:47], s30 offen sc0 sc1")
    srd(a, 48, 26, 27, 256)
    a("v_mov_b32 v16, 1")
    a("s_lshl_b32 s30, s31, 2")
    a("s_mov_b64 exec, 1")
    a("s_waitcnt vmcnt(0)")
    a("buffer_store_dword v16, off, s[48:51], s30 sc0 sc1")
    a("s_mov_b64 exec, -1")
    a("s_setprio 0")
    a.lab("NOINIT")
    FS = [16, 56]
    ACC = 96
    def xf(s, rt): return FS[s] + 4 * rt
    def wf(s, i): return FS[s] + 16 + 4 * i
    a("s_lshl_b32 s30, s66, 13")
    a("v_add_u32 v4, s30, v4")
    a("v_xor_b32 v5, 64, v4")
    a("v_mul_u32_u24 v3, 192, v3")
    a("v_lshl_add_u32 v3, v11, 3, v3")
    a("s_mul_i32 s30, s67, 96")
    a(f"s_add_u32 s30, s30, {XB}")
    a("v_add_u32 v3, s30, v3")
    a("v_and_b32 v8, 1, v2")
    a("v_lshlrev_b32 v8, 5, v8")
    a("v_add_u32 v6, v3, v8")
    a("v_sub_u32 v7, v3, v8")
    a("s_cmp_eq_u32 s67, 0")
    a("s_cbranch_scc1 P1_NOSWAP")
    a("v_swap_b32 v6, v7")
    a.lab("P1_NOSWAP")
    def accF(rt, ul, mat): return ACC + 4 * ((rt * 3 + ul) * 2 + mat)
    def readsF(s, st):
        r = []
        order = [("w", 0, 0), ("x", 0, 0), ("w", 1, 0), ("x", 1, 0), ("x", 2, 0), ("x", 3, 0),
                 ("w", 0, 1), ("w", 1, 1), ("w", 0, 2), ("w", 1, 2)]
        for kind, p, ul in order:
            if kind == "x":
                r.append(f"ds_read_b128 {vr(xf(s, p), 4)}, v{4+st} offset:{p*2048}")
            else:
                base = 7 if ul == 1 else 6
                for hf in range(2):
                    off = p * WB + st * 6144 + hf * 768 + ul * 32
                    r.append(f"ds_read_b64_tr_b16 {vr(wf(s, 3*p+ul) + 2*hf, 2)}, v{base} offset:{off}")
        if opt("noread", 0): r = r[:1]
        return r
    def mfmasF(s):
        m = []
        for ul in range(3):
            for rt in range(4):
                for mat in range(2):
                    d = vr(accF(rt, ul, mat), 4)
                    m.append(f"v_mfma_f32_16x16x32_bf16 {d}, {vr(wf(s, 3*mat+ul), 4)}, {vr(xf(s, rt), 4)}, {d}")
        if opt("nomfma", 0): m = ["s_nop 0"] * len(m)
        return m
    for i in range(96):
        a(f"v_mov_b32 v{ACC+i}, 0")
    a("v_lshlrev_b32 v3, 4, v0")
    a("s_mul_i32 s69, s78, 6")
    a("s_mul_i32 s30, s67, 3")
    a("s_add_u32 s69, s69, s30")
    a("s_lshl_b32 s30, s56, 2")
    a("s_lshl_b32 s31, s66, 1")
    a("s_add_u32 s30, s30, s31")
    a(f"s_mul_i32 s30, s30, {NKS}")
    a("s_add_u32 s30, s30, s69")
    a("s_lshl_b32 s70, s30, 10")
    a(f"s_add_u32 s71, s70, {NKS*1024}")
    cons_start()
    if opt("fprio", 0): a(f"s_setprio {opt('fprio', 0)}")
    a("s_barrier")
    stamp(a, 2)
    LAD = opt("lad", 13)
    if LAD:
        r0 = readsF(0, 0)
        for r in r0[:8]:
            a(r)
        a.lab("P1_LOOPF")
        m = mfmasF(0)
        r1 = readsF(1, 1)
        adv = advance((4, 5, 6, 7))
        gaps = [[] for _ in range(24)]
        for i in range(8):
            gaps[i // 2].append(r0[8 + i])
        for i in range(16):
            gaps[4 + i].append(r1[i])
        for i, x in enumerate(adv[:4]):
            gaps[12 + i].append(x)
        for i, x in enumerate(adv[4:]):
            gaps[20 + min(i // 2, 3)].append(x)
        a("s_waitcnt lgkmcnt(3)")
        for i in range(24):
            if i == 2: a("s_waitcnt lgkmcnt(4)")
            if i == 8: a("s_waitcnt lgkmcnt(4)")
            a(m[i])
            for x in gaps[i]:
                a(x)
        a("s_waitcnt lgkmcnt(0)")
        a("s_cbranch_scc1 P1_LASTF")
        weave(a, mfmasF(1), ["s_barrier"] + r0[:8], start=LAD, per=1)
        a("s_branch P1_LOOPF")
    else:
        for r in readsF(0, 0):
            a(r)
        a.lab("P1_LOOPF")
        a("s_waitcnt lgkmcnt(0)")
        weave(a, mfmasF(0), readsF(1, 1) + advance((4, 5, 6, 7)))
        a("s_waitcnt lgkmcnt(0)")
        a("s_cbranch_scc1 P1_LASTF")
        if BPOS:
            weave(a, mfmasF(1), ["s_barrier"] + readsF(0, 0), start=BPOS, per=2)
        else:
            weave(a, mfmasF(1), ["s_barrier"] + readsF(0, 0))
        a("s_branch P1_LOOPF")
    a.lab("P1_LASTF")
    weave(a, mfmasF(1), ["s_barrier"] + req_nonce() + ["s_waitcnt vmcnt(0)"])
    stamp(a, 3)
    if EPRIO: a(f"s_setprio {EPRIO}")
    if opt("gsw", 0):
        blocks = []
        st_ = []
        k = 0
        for ul in range(3):
            for uu in range(2):
                G = [accF(2*uu, ul, 0) + i for i in range(4)] + [accF(2*uu+1, ul, 0) + i for i in range(4)]
                U = [accF(2*uu, ul, 1) + i for i in range(4)] + [accF(2*uu+1, ul, 1) + i for i in range(4)]
                t = 56 + 8 * (k % 4)
                dst = 32 + 4 * k
                A = [f"v_pk_mul_f32 {vr(t+i,2)}, {vr(G[i],2)}, {vr(G[i],2)}" for i in range(0, 8, 2)]
                A += [f"v_pk_fma_f32 {vr(t+i,2)}, {vr(t+i,2)}, s[72:73], v[10:11] op_sel_hi:[1,0,0]" for i in range(0, 8, 2)]
                A += [f"v_pk_mul_f32 {vr(t+i,2)}, {vr(t+i,2)}, {vr(G[i],2)}" for i in range(0, 8, 2)]
                Bx = [f"v_exp_f32 v{t+i}, v{t+i}" for i in range(8)]
                C = [f"v_pk_mul_f32 {vr(G[i],2)}, {vr(G[i],2)}, {vr(U[i],2)}" for i in range(0, 8, 2)]
                C += [f"v_pk_add_f32 {vr(t+i,2)}, {vr(t+i,2)}, 1.0 op_sel_hi:[1,0]" for i in range(0, 8, 2)]
                Dx = [f"v_rcp_f32 v{t+i}, v{t+i}" for i in range(8)]
                Ee = [f"v_pk_mul_f32 {vr(G[i],2)}, {vr(G[i],2)}, {vr(t+i,2)}" for i in range(0, 8, 2)]
                Ee += [f"v_cvt_pk_bf16_f32 v{dst+i}, v{G[2*i]}, v{G[2*i+1]}" for i in range(4)]
                F = [f"v_permlane16_swap_b32 v{dst}, v{dst+2}", f"v_permlane16_swap_b32 v{dst+1}, v{dst+3}"]
                blocks.append((A, Bx, C, Dx, Ee, F))
                st_.append(f"buffer_store_dwordx4 {vr(dst,4)}, v3, s[44:47], s{70 + uu} offen offset:{ul*1024} sc1")
                k += 1
        def mix(tr, pl):
            n = max(len(tr), 1)
            pi = 0
            for i, x in enumerate(tr):
                a(x)
                want = len(pl) * (i + 1) // n
                while pi < want:
                    a(pl[pi]); pi += 1
            while pi < len(pl):
                a(pl[pi]); pi += 1
        g = lambda k, p: blocks[k][p] if 0 <= k < 6 else []
        for x in g(0, 0): a(x)
        for k in range(8):
            mix(g(k, 1), g(k - 1, 2) + g(k - 2, 4))
            mix(g(k - 1, 3), g(k + 1, 0) + (["s_nop 1"] if not g(k + 1, 0) and not g(k - 1, 3) else []) + g(k - 2, 5))
        a(f"s_setprio {PRIO}")
        for x in st_: a(x)
        a(f"s_setprio {EPRIO}")
    else:
        k = 0
        pend = []
        for ul in range(3):
            for uu in range(2):
                dst = 32 + 4 * k
                if k >= opt("skipg", 0): gelu_pair(a, accF(2*uu, ul, 0), accF(2*uu, ul, 1), accF(2*uu+1, ul, 0), accF(2*uu+1, ul, 1), 16 + 8 * (k & 1), dst)
                pend.append(f"buffer_store_dwordx4 {vr(dst,4)}, v3, s[44:47], s{70 + uu} offen offset:{ul*1024} sc1")
                k += 1
                if k > opt("burst", 5):
                    a(f"s_setprio {PRIO}")
                    for x in pend:
                        a(x)
                    pend = []
                    a(f"s_setprio {EPRIO}")
    stamp(a, 4)
    get_nonce(a, "F", 12)
    a("s_mul_i32 s61, s69, 47")
    a("s_lshr_b32 s61, s61, 10")
    a("s_add_u32 s31, s69, 2")
    a("s_mul_i32 s31, s31, 47")
    a("s_lshr_b32 s31, s31, 10")
    a("s_cmp_eq_u32 s31, s61")
    a("s_cselect_b32 s64, 1, 3")
    a("s_and_b32 s31, s56, 7")
    a("s_lshl_b32 s31, s31, 3")
    a("s_add_u32 s61, s61, s31")
    a("s_lshl_b32 s31, s66, 2")
    a("s_add_u32 s61, s61, s31")
    signal(a, 12, "s61", "s64")
    if GATE:
        a("s_barrier")
    a("s_branch P2_CONS")

    a.lab("P1_CSP")
    FS = [16, 64]
    ACC = 112
    AS = 240
    def xs(s, kk, u): return FS[s] + 4 * (4 * kk + u)
    def dfr(s, kk): return FS[s] + 32 + 4 * kk
    def ffr(s, kk): return FS[s] + 40 + 4 * kk
    def accD(st, u): return ACC + 16 * (4 * st + u)
    a("v_lshrrev_b32 v2, 5, v0")
    a("v_and_b32 v12, 31, v0")
    a("v_bfe_u32 v4, v0, 1, 3")
    a("v_xor_b32 v4, v4, v2")
    a("v_lshlrev_b32 v4, 4, v4")
    a("v_lshl_add_u32 v4, v12, 7, v4")
    a("v_xor_b32 v5, 32, v4")
    a("v_xor_b32 v6, 64, v4")
    a("v_xor_b32 v7, 0x60, v4")
    a("v_lshrrev_b32 v3, 2, v1")
    a("v_lshl_add_u32 v3, v2, 3, v3")
    a("v_bfe_u32 v14, v0, 4, 1")
    a("v_bfe_u32 v8, v0, 3, 2")
    a("v_xor_b32 v8, s3, v8")
    a("v_lshlrev_b32 v8, 5, v8")
    a("v_lshl_add_u32 v8, v3, 7, v8")
    a("v_lshl_add_u32 v8, v11, 3, v8")
    a("v_lshl_add_u32 v8, v14, 13, v8")
    a(f"v_add_u32 v8, {XB}, v8")
    a("v_lshlrev_b32 v9, 5, v3")
    a("v_lshl_add_u32 v9, v11, 3, v9")
    a(f"v_mul_u32_u24 v3, {2048 + 128}, v14")
    a("v_add_u32 v9, v9, v3")
    a(f"v_add_u32 v9, {XB + 16384}, v9")
    a("v_xor_b32 v3, 0x80, v9")
    a("v_and_b32 v14, 1, v0")
    a("v_mul_u32_u24 v14, 0x8000, v14")
    a("v_lshl_or_b32 v14, v14, 16, v14")
    def readsS(s, st):
        r = []
        for kk in range(2):
            for hf in range(2):
                r.append(f"ds_read_b64_tr_b16 {vr(dfr(s, kk) + 2*hf, 2)}, v8 offset:{(2*st+kk)*2048 + hf*512}")
        for u in range(4):
            r.append(f"ds_read_b128 {vr(xs(s, 0, u), 4)}, v{4+2*st} offset:{u*4096}")
        for kk in range(2):
            for hf in range(2):
                r.append(f"ds_read_b64_tr_b16 {vr(ffr(s, kk) + 2*hf, 2)}, v{9 if hf == 0 else 3} offset:{(2*st+kk)*512}")
        for u in range(4):
            r.append(f"ds_read_b128 {vr(xs(s, 1, u), 4)}, v{5+2*st} offset:{u*4096}")
        return r
    def allS(s, st, cw):
        m = []
        for kk in range(2):
            for u in range(4):
                d = vr(accD(st, u), 16)
                m.append(f"v_mfma_f32_32x32x16_bf16 {d}, {vr(xs(s, kk, u), 4)}, {vr(dfr(s, kk), 4)}, {d}")
            m.append(f"v_mfma_f32_32x32x16_bf16 {vr(AS,16)}, {vr(ffr(s, kk), 4)}, {vr(xs(s, kk, cw), 4)}, {vr(AS,16)}")
        return m
    def xors(s):
        return ["s_waitcnt lgkmcnt(12)"] + [f"v_xor_b32 v{dfr(s,0)+i}, v13, v{dfr(s,0)+i}" for i in range(8)]
    def weave2(mf, fill):
        n = len(mf) - 1
        fi = 0
        for i, m in enumerate(mf):
            a(m)
            want = min(len(fill), -(-len(fill) * (i + 1) // n))
            while fi < want:
                a(fill[fi]); fi += 1
    for i in range(144):
        a(f"v_mov_b32 v{ACC+i}, 0")
    a("v_cvt_f32_u32 v16, v12")
    a(f"v_mul_f32 v16, {f32(1.0/32)}, v16")
    a("v_lshlrev_b32 v18, 2, v2")
    a("v_cvt_f32_u32 v18, v18")
    for k in range(2):
        for j in range(8):
            s1 = 16 * k + 8 * (j >> 2) + (j & 3)
            a(f"v_add_f32 v19, {f32(float(s1))}, v18")
            a("v_mul_f32 v19, v19, v16")
            a(f"v_cos_f32 v{20+j}, v19")
            a(f"v_sin_f32 v{28+j}, v19")
        a("s_nop 0")
        for i in range(4):
            a(f"v_cvt_pk_bf16_f32 v{40+4*k+i}, v{20+2*i}, v{21+2*i}")
            a(f"v_cvt_pk_bf16_f32 v{48+4*k+i}, v{28+2*i}, v{29+2*i}")
    a("v_lshlrev_b32 v11, 4, v0")
    a(f"v_add_u32 v11, {F1_LDS}, v11")
    for i in range(4):
        a(f"ds_write_b128 v11, {vr(40+4*i,4)} offset:{i*1024}")
    cons_start()
    a("s_waitcnt vmcnt(0) lgkmcnt(0)")
    a("v_mov_b32 v13, 0")
    if opt("sprio", 0): a(f"s_setprio {opt('sprio', 0)}")
    a("s_barrier")
    stamp(a, 2)
    def kreads(ks):
        s, kk = ks >> 1, ks & 1
        r = [f"ds_read_b64_tr_b16 {vr(dfr(s, kk) + 2*hf, 2)}, v8 offset:{ks*2048 + hf*512}" for hf in range(2)]
        r += [f"ds_read_b128 {vr(xs(s, kk, u), 4)}, v{4+ks} offset:{u*4096}" for u in range(4)]
        r += [f"ds_read_b64_tr_b16 {vr(ffr(s, kk) + 2*hf, 2)}, v{9 if hf == 0 else 3} offset:{ks*512}" for hf in range(2)]
        return r
    def kmf(ks, cw):
        return allS(ks >> 1, ks >> 1, cw)[5 * (ks & 1): 5 * (ks & 1) + 5]
    def kxor(ks):
        d = dfr(ks >> 1, ks & 1)
        return [f"v_xor_b32 v{d+i}, v13, v{d+i}" for i in range(4)]
    def kstep(ks, cw, reads, pre, extra, wait0, xr=True):
        m = kmf(ks, cw)
        a(f"s_waitcnt lgkmcnt({wait0})")
        cnt = [2, 2, 2, 1, 1]
        ri = 0
        for g in range(5):
            a(m[g])
            if g == 0:
                for x in pre: a(x)
            for _ in range(cnt[g]):
                if ri < len(reads):
                    a(reads[ri]); ri += 1
            if g == 2 and xr:
                a(f"s_waitcnt lgkmcnt({6 + ri})")
                for x in kxor((ks + 1) & 3)[:2]: a(x)
            if g == 3 and xr:
                for x in kxor((ks + 1) & 3)[2:]: a(x)
            for x in extra[g]: a(x)
    for r in kreads(0) + kreads(1):
        a(r)
    F1 = 16
    for cw in (1, 2, 3):
        a(f"s_cmp_eq_u32 s3, {cw}")
        a(f"s_cbranch_scc1 P1_LOOPS{cw}")
    lastfill = ([f"ds_read_b128 {vr(F1+4*i,4)}, v11 offset:{i*1024}" for i in range(4)] +
                ["s_lshl_b32 s30, s56, 2", "s_add_u32 s30, s30, s3", f"s_mul_i32 s30, s30, {NKS}", "s_add_u32 s30, s30, s59",
                 "s_add_u32 s30, s30, 84", "s_lshl_b32 s70, s30, 10",
                 f"s_mul_i32 s69, s56, {EP*16}", f"s_add_u32 s69, s69, 0x{C_OFF:x}",
                 "s_waitcnt lgkmcnt(0)", "s_barrier"] + req_nonce() + [f"v_xor_b32 v{F1+16+i}, 0x80008000, v{F1+i}" for i in range(8)])
    E = lambda *l: list(l)
    for cw in range(4):
        a.lab(f"P1_LOOPS{cw}")
        kstep(0, cw, kreads(2), [], [E("s_add_u32 s68, s68, 1"), E("s_and_b32 s30, s68, 3"), E(), E("s_cmp_eq_u32 s30, 0"),
                                     E("s_cselect_b32 s30, s82, s83", "v_add_u32 v4, s30, v4")], 8)
        kstep(1, cw, kreads(3), [], [E("v_add_u32 v5, s30, v5"), E("v_add_u32 v8, s30, v8"), E(), E("v_add_u32 v6, s30, v6"),
                                     E("v_add_u32 v9, s30, v9", "v_add_u32 v3, s30, v3", "s_cmp_eq_u32 s68, 8")], 8)
        a(f"s_cbranch_scc1 P1_LASTS{cw}")
        kstep(2, cw, kreads(0), ["s_barrier"], [E(), E("v_add_u32 v7, s30, v7"), E(), E("s_cmp_ge_u32 s68, 4"),
                                                E("s_cselect_b32 s31, -1, 0", "v_and_b32 v13, s31, v14")], 8)
        kstep(3, cw, kreads(1), [], [E(), E(), E(), E(), E()], 8)
        a(f"s_branch P1_LOOPS{cw}")
        a.lab(f"P1_LASTS{cw}")
        kstep(2, cw, lastfill[:4], [], [E(), lastfill[4:8], E(), E(), lastfill[8:12]], 8)
        kstep(3, cw, [], lastfill[13:15], [E(), lastfill[15:19], lastfill[19:23], E(), E()], 0, xr=False)
        if cw != 3:
            a("s_branch P1_LASTS")
    a.lab("P1_LASTS")
    stamp(a, 3)
    if EPRIO: a(f"s_setprio {EPRIO}")
    TS = 16 * EP * 16
    a("v_lshlrev_b32 v3, 4, v0")
    a("s_lshl_b32 s30, s59, 6")
    a("s_lshl_b32 s31, s3, 4")
    a("s_add_u32 s30, s30, s31")
    a("v_bfe_u32 v5, v0, 4, 1")
    a("v_lshl_add_u32 v4, v5, 7, v1")
    a("v_add_u32 v4, s30, v4")
    a(f"s_mov_b32 s31, {4*TS}")
    a("v_mul_lo_u32 v6, v2, s31")
    a("v_lshl_add_u32 v4, v4, 4, v6")
    a("v_mul_u32_u24 v5, 0x8000, v5")
    a("v_lshl_or_b32 v5, v5, 16, v5")
    a("v_mov_b32 v6, -1")
    BF, TM, XF, CK, TM2, HD = 40, 72, 80, 96, 80, 100
    for x in gelu8([AS+i for i in range(8)], [AS+8+i for i in range(8)], TM, HD, 32):
        a(x)
    a(f"s_setprio {PRIO}")
    a(f"buffer_store_dwordx4 {vr(HD,4)}, v3, s[44:47], s70 offen sc1")
    a(f"s_setprio {EPRIO}")
    a("s_cmp_lg_u32 s30, 0")
    a("s_cbranch_scc1 P1_NOX")
    a("v_cmp_ne_u32 vcc, 0, v1")
    a(f"s_mov_b32 s31, {TS}")
    a("v_mul_lo_u32 v7, v0, s31")
    a("v_cndmask_b32 v6, 0, v6, vcc")
    for u in range(4):
        for st in range(2):
            dst = XF + 8 * st if u == 0 else TM
            for i in range(8):
                a(f"v_cvt_pk_bf16_f32 v{dst+i}, v{accD(st,u)+2*i}, v{accD(st,u)+2*i+1}")
            if u:
                for i in range(8):
                    a(f"v_mov_b32_dpp v{XF+8*st+i}, v{TM+i} row_shr:{u} row_mask:0xa bank_mask:0x1")
    a("s_nop 1")
    for comp in range(2):
        o = vr(BF + 16 * comp, 16)
        for half in range(2):
            for k in range(2):
                c = "0" if (half == 0 and k == 0) else o
                a(f"v_mfma_f32_32x32x16_bf16 {o}, {vr(XF+8*half+4*k,4)}, {vr(F1+8*(comp+half)+4*k,4)}, {c}")
    a(f"s_add_u32 s30, s69, {256*16}")
    a("s_nop 11")
    for comp in range(2):
        a(f"v_cvt_pk_bf16_f32 v{CK+2*comp}, v{BF+16*comp+8}, v{BF+16*comp+9}")
        a(f"v_cvt_pk_bf16_f32 v{CK+2*comp+1}, v{BF+16*comp+10}, v{BF+16*comp+11}")
    a("s_mov_b32 exec_hi, 0")
    a(f"buffer_store_dwordx4 {vr(CK,4)}, v7, s[44:47], s30 offen sc1")
    a("s_mov_b32 exec_hi, -1")
    a.lab("P1_NOX")
    def bfly(u):
        r_ = []
        A = BF + 16 * (u & 1)
        B = A + 8
        E, T = accD(0, u), accD(1, u)
        for r in range(0, 16, 2):
            r_.append(f"v_pk_add_f32 {vr(TM2+r,2)}, {vr(E+r,2)}, {vr(T+r,2)}")
            r_.append(f"v_pk_add_f32 {vr(T+r,2)}, {vr(E+r,2)}, {vr(T+r,2)} neg_lo:[0,1] neg_hi:[0,1]")
        for i in range(8):
            r_.append(f"v_cvt_pk_bf16_f32 v{A+i}, v{TM2+2*i}, v{TM2+2*i+1}")
            r_.append(f"v_cvt_pk_bf16_f32 v{B+i}, v{T+2*i}, v{T+2*i+1}")
        for i in range(8):
            r_.append(f"v_permlane16_swap_b32 v{A+i}, v{B+i}")
        for i in range(8):
            r_.append(f"v_bitop3_b32 v{B+i}, v{B+i}, v5, v6 bitop3:0x28")
        return r_
    def st1(u):
        m = []
        A = BF + 16 * (u & 1)
        for half in range(2):
            for k in range(2):
                for comp in range(2):
                    o = vr(accD(comp, u), 16)
                    c = "0" if (half == 0 and k == 0) else o
                    m.append(f"v_mfma_f32_32x32x16_bf16 {o}, {vr(F1+8*(comp+half)+4*k,4)}, {vr(A+8*half+4*k,4)}, {c}")
        return m
    for x in bfly(0):
        a(x)
    for u in range(4):
        weave(a, st1(u), bfly(u + 1) if u < 3 else [], per=6)
        if u == 1:
            get_nonce(a, "S", 12)
            a("s_and_b32 s61, s56, 7")
            a("s_lshl_b32 s61, s61, 3")
            a("s_lshl_b32 s31, s66, 2")
            a("s_add_u32 s61, s61, s31")
            a("s_add_u32 s61, s61, 3")
            signal(a, 12, "s61")
    a(f"s_setprio {PRIO}")
    stamp(a, 11)
    a("s_nop 8")
    for r in range(16):
        d = BF + 4 * (r & 7)
        a(f"v_cvt_pk_bf16_f32 v{d}, v{accD(0,0)+r}, v{accD(0,1)+r}")
        a(f"v_cvt_pk_bf16_f32 v{d+1}, v{accD(0,2)+r}, v{accD(0,3)+r}")
        a(f"v_cvt_pk_bf16_f32 v{d+2}, v{accD(1,0)+r}, v{accD(1,1)+r}")
        a(f"v_cvt_pk_bf16_f32 v{d+3}, v{accD(1,2)+r}, v{accD(1,3)+r}")
        a(f"s_add_u32 s30, s69, {(8*(r >> 2) + (r & 3))*TS}")
        if not opt("abl_cs", 0): a(f"buffer_store_dwordx4 {vr(d,4)}, v4, s[44:47], s30 offen sc1")
    stamp(a, 4)
    if opt("shold", 0):
        a("s_barrier")
    a("s_lshl_b32 s61, s59, 2")
    a("s_add_u32 s61, s61, s3")
    a(f"s_mul_i32 s61, s61, {NREP}")
    a(f"s_add_u32 s61, s61, {CT_C}")
    signal(a, 12, "s61", "-1")

    a.lab("P2_CONS")
    a("v_mov_b32 v56, 16")
    if EPRIO: a("s_setprio 0")
    stamp(a, 5)
    p2_ids(a)
    YA, CF, MF, PR, GV = 64, 80, 112, 144, 60
    a("v_lshrrev_b32 v8, 5, v0")
    a("v_and_b32 v9, 31, v0")
    a("s_lshl_b32 s31, s93, 6")
    a("s_lshl_b32 s61, s67, 5")
    a("s_add_u32 s31, s31, s61")
    a("s_lshl_b32 s30, s66, 5")
    a("s_add_u32 s30, s30, s92")
    a("v_lshlrev_b32 v12, 6, v9")
    a("v_add_u32 v12, s30, v12")
    a("v_lshrrev_b32 v11, 1, v9")
    a("v_lshlrev_b32 v11, 7, v11")
    a("v_and_b32 v4, 1, v9")
    a("v_lshl_add_u32 v11, v4, 2, v11")
    a("s_lshl_b32 s61, s30, 11")
    a("v_add_u32 v11, s61, v11")
    a("s_lshr_b32 s64, s30, 2")
    a("s_sub_u32 s61, 32, s92")
    a("s_and_b32 s61, s61, 31")
    a("s_sub_u32 s65, 481, s31")
    a("s_cmp_ge_u32 s93, 4")
    a("s_cselect_b32 s69, s61, s92")
    a("s_cselect_b64 vcc, -1, 0")
    a("s_cselect_b32 s73, 1.0, -1.0")
    a("s_cselect_b32 s65, s65, s31")
    a("v_add_u32 v4, s31, v9")
    a("v_sub_u32 v5, 0x200, v4")
    a("v_cndmask_b32 v4, v4, v5, vcc")
    a("v_lshrrev_b32 v6, 4, v0")
    a("v_lshlrev_b32 v6, 4, v6")
    a("v_min_u32 v6, 31, v6")
    a("v_add_u32 v6, s65, v6")
    for v in (4, 6):
        a(f"v_sub_u32 v5, 384, v{v}")
        a(f"v_cmp_gt_u32 vcc, 128, v{v}")
        a("s_nop 1")
        a(f"v_cndmask_b32 v{v}, v5, v{v}, vcc")
    a(f"v_mul_u32_u24 v5, {8*EP}, v8")
    a("v_add_u32 v4, v4, v5")
    a("v_lshlrev_b32 v4, 4, v4")
    a(f"s_mul_i32 s69, s69, {16*EP*16}")
    a(f"s_add_u32 s69, s69, 0x{C_OFF:x}")
    a("v_bfe_u32 v6, v6, 4, 3")
    a("s_lshr_b32 s61, s2, 1")
    a("s_xor_b32 s61, s61, s2")
    a("s_lshl_b32 s64, s66, 4")
    a("s_add_u32 s61, s61, s64")
    a(f"s_and_b32 s61, s61, {NREP-1}")
    a(f"s_add_u32 s61, s61, {CT_C}")
    a("v_lshl_add_u32 v6, v6, 5, s61")
    a(f"s_add_u32 s61, s30, {CT_G}")
    a("v_mov_b32 v5, s61")
    a("v_cmp_gt_u32 vcc, 48, v0")
    a("s_nop 1")
    a("v_cndmask_b32 v6, v5, v6, vcc")
    a("v_lshlrev_b32 v6, 7, v6")
    a("v_cvt_f32_u32 v9, v12")
    a(f"v_mul_f32 v9, {f32(1.0/2048)}, v9")
    a("v_mul_f32 v9, s73, v9")
    a("v_lshlrev_b32 v10, 5, v8")
    a("v_cvt_f32_u32 v10, v10")
    a("v_mul_f32 v10, v10, v9")
    T = 16
    for i in range(8):
        for c in range(4):
            a(f"v_cos_f32 v{T+c}, v10")
            a(f"v_sin_f32 v{T+4+c}, v10")
            a("v_add_f32 v10, v10, v9")
        for c in range(4):
            a(f"v_cvt_pk_bf16_f32 v{MF+4*i+c}, v{T+2*c}, v{T+2*c+1}")
    final_setup(248)
    a(f"s_mul_i32 s30, s3, {PIECE}")
    a("s_add_u32 s30, s30, 4096")
    a("v_lshlrev_b32 v5, 4, v0")
    a("v_add_u32 v240, s30, v5")
    for qd in range(1, 4):
        a(f"v_xor_b32 v{240+qd}, {64*qd}, v240")
    a("v_and_b32 v5, 31, v0")
    a("s_lshl_b32 s30, s66, 7")
    a("v_lshl_add_u32 v244, v5, 2, s30")
    stamp(a, 6)
    if not opt("pollfirst", 0) and KB >= 0:
        a("s_barrier")
    a(f"s_setprio {opt('cprio', 3)}")
    poll(a, "C", 6, 56, 58, 0x0001000100010001, sleep=opt("csleep", 4))
    stamp(a, 7)
    if opt("pollfirst", 0):
        a("s_barrier")
    for i in range(8):
        a(f"s_add_u32 s70, s69, {i*EP*16}")
        if not opt("abl_cl", 0): a(f"buffer_load_dwordx4 {vr(CF + 4*i, 4)}, v4, s[44:47], s70 offen sc1")
    a(f"s_mov_b32 s70, 0x{G_OFF:x}")
    a(f"buffer_load_dword v{GV}, v11, s[44:47], s70 offen sc1")
    for i in range(8):
        a(f"s_waitcnt vmcnt({8 - i})")
        c = "0" if i == 0 else vr(YA, 16)
        a(f"v_mfma_f32_32x32x16_bf16 {vr(YA,16)}, {vr(CF+4*i,4)}, {vr(MF+4*i,4)}, {c}")
    a("s_waitcnt vmcnt(0)")
    a(f"v_sub_f32 v{GV+2}, 1.0, v{GV}")
    a(f"v_cvt_pk_bf16_f32 v{GV+2}, v{GV+2}, v{GV+2}")
    a(f"v_lshlrev_b32 v{GV+2}, 16, v{GV+2}")
    a(f"ds_write_b32 v244, v{GV+2} offset:8192")
    a("s_nop 6")
    for qd in range(4):
        for r in (4*qd, 4*qd + 2):
            a(f"v_pk_mul_f32 {vr(YA+r,2)}, {vr(YA+r,2)}, {vr(GV,2)} op_sel_hi:[1,0]")
        a(f"ds_write_b128 v{240+qd}, {vr(YA+4*qd,4)} offset:{qd*1024}")
    a("s_waitcnt lgkmcnt(0)")
    stamp(a, 8)
    final_stage(248, 144)
    stamp(a, 9)
    stamp_flush(a)
    if opt("spin", 0):
        if opt("spinall", 0) == 0:
            a("s_or_b32 s30, s2, s3")
            a("s_cbranch_scc1 K_END")
        a.lab("SPIN_L")
        a("s_memrealtime s[92:93]")
        a("s_waitcnt lgkmcnt(0)")
        a("s_sub_u32 s92, s92, s90")
        a(f"s_cmp_lt_u32 s92, {opt('spin', 0)}")
        a("s_cbranch_scc1 SPIN_L")
    a.lab("K_END")
    a("s_endpgm")

HEADER = open("cdna_kernels/" + NAME + ".s.ref").read().split("; Override launch")[0]

def main():
    nm = NAME + "_kernel"
    out = HEADER
    out += f"; @launch grid=(256,1,1) block=(512,1,1) lds={4*SLOT}\n"
    out += '.amdgcn_target "amdgcn-amd-amdhsa--gfx950"\n.text\n'
    a = Asm()
    out += f".globl {nm}\n.p2align 8\n.type {nm},@function\n"
    kernel(a)
    out += a.text()
    out += f""".section .rodata,"a"
.p2align 6
.amdhsa_kernel {nm}
  .amdhsa_next_free_vgpr 256
  .amdhsa_next_free_sgpr 102
  .amdhsa_accum_offset 256
  .amdhsa_group_segment_fixed_size 0
  .amdhsa_kernarg_size 104
  .amdhsa_user_sgpr_count 2
  .amdhsa_user_sgpr_kernarg_segment_ptr 1
  .amdhsa_system_sgpr_workgroup_id_x 1
.end_amdhsa_kernel
"""
    path = [x for x in sys.argv[1:] if not x.startswith("--")][0]
    open(path, "w").write(out)

main()
```

```python
import sys, math, struct

NAME = "gated_mix__spectral_fnet__geglu_ffn__prompt"
STAMP = "--stamp" in sys.argv
def opt(name, default):
    for x in sys.argv:
        if x.startswith("--" + name + "="):
            return int(x.split("=")[1])
    return default
RA = opt("ra", 1); RB = opt("rb", 2); RM = opt("rm", 6)
RJ = opt("rj", 2); RI = opt("ri", 6)
NPRE = opt("npre", 0)
D2 = opt("d2", 8)
WTH = opt("wth", 64)
PRIO = opt("prio", 3)
EPRIO = opt("eprio", 1)
KB = opt("kb", 10)
LA2 = opt("la2", 9)
N0A = opt("n0a", 3)
N0B = opt("n0b", 2)
WNT = "nt" if opt("wnt", 0) else ""
XNT = "nt" if opt("xnt", 0) else ""
PK = opt("pk", 1)
N1 = opt("n1", 20)
DIRECT = opt("direct", 4)
TAILV = opt("tailv", 1)
LAI = opt("lai", 7)
LAS = opt("las", 9)
BPOS = opt("bpos", 8)
SG = opt("sg", 0)
HB = opt("hb", 0)
GATE = opt("gate", 0)
GDEL = opt("gdel", 0)
CPF = opt("cpf", 1)
PFW = opt("pfw", 1)
LSLEEP = opt("lsleep", 0)
SPINMAX = 400000

NKS = 86
EP = 264
C_OFF = 0x600000
G_OFF = 0x8e0000
FL_OFF = 0x910000
CT_H, CT_G, CT_C = 0, 64, 128
NCT = 384
NREP = 32
WS_USED = 0x920000
ST_OFF = 0x1000000

def f32(x):
    return "0x%08x" % struct.unpack("<I", struct.pack("<f", x))[0]

class Asm:
    def __init__(self):
        self.l = []
    def __call__(self, s):
        self.l.append("    " + s)
    def lab(self, s):
        self.l.append(s + ":")
    def text(self):
        return "\n".join(self.l) + "\n"

def vr(b, n=1):
    return f"v{b}" if n == 1 else f"v[{b}:{b+n-1}]"

def srd(a, d, lo, hi, nbytes):
    a(f"s_mov_b32 s{d}, s{lo}")
    a(f"s_mov_b32 s{d+1}, s{hi}")
    a(f"s_mov_b32 s{d+2}, 0x{nbytes:x}")
    a(f"s_mov_b32 s{d+3}, 0x20000")

SV = 15
def stamp(a, idx):
    if not STAMP:
        return
    a("s_memrealtime s[62:63]")
    a("s_waitcnt lgkmcnt(0)")
    a(f"v_writelane_b32 v{SV}, s62, {idx}")

def stamp_flush(a):
    if not STAMP:
        return
    a("s_lshl_b32 s60, s2, 3")
    a("s_add_u32 s60, s60, s95")
    a("s_lshl_b32 s60, s60, 8")
    a(f"s_add_u32 s60, s60, 0x{ST_OFF:x}")
    a("v_lshlrev_b32 v14, 2, v0")
    a(f"buffer_store_dword v{SV}, v14, s[44:47], s60 offen")

def weave(a, mf, fill, start=0, per=1):
    fi = 0
    for i, m in enumerate(mf):
        a(m)
        if i >= start:
            for _ in range(per):
                if fi < len(fill):
                    a(fill[fi]); fi += 1
    while fi < len(fill):
        a(fill[fi]); fi += 1

C1 = -2.0 * math.sqrt(2.0 / math.pi) * math.log2(math.e)
C2 = C1 * 0.044715

def gelu8(G, U, t, dst, swap):
    r = []
    for i in range(0, 8, 2): r.append(f"v_pk_mul_f32 {vr(t+i,2)}, {vr(G[i],2)}, {vr(G[i],2)}")
    for i in range(0, 8, 2): r.append(f"v_pk_fma_f32 {vr(t+i,2)}, {vr(t+i,2)}, s[72:73], v[10:11] op_sel_hi:[1,0,0]")
    for i in range(0, 8, 2): r.append(f"v_pk_mul_f32 {vr(t+i,2)}, {vr(t+i,2)}, {vr(G[i],2)}")
    for i in range(8):
        r.append(f"v_exp_f32 v{t+i}, v{t+i}")
        if i & 1: r.append(f"v_pk_mul_f32 {vr(G[i-1],2)}, {vr(G[i-1],2)}, {vr(U[i-1],2)}")
    for i in range(0, 8, 2): r.append(f"v_pk_add_f32 {vr(t+i,2)}, {vr(t+i,2)}, 1.0 op_sel_hi:[1,0]")
    for i in range(8): r.append(f"v_rcp_f32 v{t+i}, v{t+i}")
    for i in range(0, 8, 2): r.append(f"v_pk_mul_f32 {vr(G[i],2)}, {vr(G[i],2)}, {vr(t+i,2)}")
    for i in range(4): r.append(f"v_cvt_pk_bf16_f32 v{dst+i}, v{G[2*i]}, v{G[2*i+1]}")
    r.append("s_nop 1")
    r.append(f"v_permlane{swap}_swap_b32 v{dst}, v{dst+2}")
    r.append(f"v_permlane{swap}_swap_b32 v{dst+1}, v{dst+3}")
    return r

def gelu_pair(a, g0, u0, g1, u1, t, dst):
    G = [g0 + i for i in range(4)] + [g1 + i for i in range(4)]
    U = [u0 + i for i in range(4)] + [u1 + i for i in range(4)]
    for x in gelu8(G, U, t, dst, 16):
        a(x)

SLOT = 40960
XB = 16384
WB = 12288
F1_LDS = 3 * SLOT + 36864
NST = 22
PIECE = 10240


def p2_ids(a):
    if opt("m8", 0):
        a("s_lshr_b32 s31, s2, 3")
        a("s_lshr_b32 s93, s31, 3")
        if opt("jx8", 0): a(f"s_xor_b32 s93, s93, {opt('jx8', 0)}")
        a("s_and_b32 s31, s31, 7")
        a("s_and_b32 s92, s2, 6")
        a("s_lshl_b32 s92, s92, 2")
        a("s_add_u32 s92, s92, s31")
        a(f"s_mul_i32 s94, s31, {opt('ri8', 3)}")
        a(f"s_and_b32 s30, s93, {opt('rm8', 3)}")
        a(f"s_mul_i32 s30, s30, {opt('rj8', 0)}")
        a("s_add_u32 s94, s94, s30")
        a("s_and_b32 s30, s2, 1")
        a("s_lshl_b32 s30, s30, 2")
        a("s_add_u32 s93, s93, s30")
        a(f"s_sub_u32 s30, s94, {NST}")
        a(f"s_cmp_ge_u32 s94, {NST}")
        a("s_cselect_b32 s94, s30, s94")
        return
    a("s_and_b32 s30, s2, 7")
    a("s_lshr_b32 s31, s2, 3")
    a("s_lshr_b32 s93, s31, 2")
    if opt("jx", 5): a(f"s_xor_b32 s93, s93, {opt('jx', 5)}")
    a("s_and_b32 s31, s31, 3")
    a(f"s_mul_i32 s94, s31, {RI}")
    a("s_sub_u32 s61, 0, s30")
    a("s_bitcmp1_b32 s31, 0")
    a("s_cselect_b32 s92, s61, s30")
    a("s_cselect_b32 s61, 8, 0")
    a("s_cmp_eq_u32 s30, 0")
    a("s_cselect_b32 s92, s61, s92")
    a("s_lshr_b32 s31, s31, 1")
    a("s_lshl_b32 s31, s31, 4")
    a("s_add_u32 s92, s92, s31")
    a("s_and_b32 s92, s92, 31")
    a(f"s_mul_i32 s30, s93, {RJ}")
    a("s_add_u32 s94, s94, s30")
    a(f"s_sub_u32 s30, s94, {NST}")
    a(f"s_cmp_ge_u32 s94, {NST}")
    a("s_cselect_b32 s94, s30, s94")

def req_nonce():
    return ["s_load_dwordx8 s[4:11], s[26:27], 0"]

def get_nonce(a, tag, vt):
    a("s_waitcnt lgkmcnt(0)")
    a("s_and_b64 s[4:5], s[4:5], s[6:7]")
    a("s_and_b64 s[8:9], s[8:9], s[10:11]")
    a("s_and_b64 s[4:5], s[4:5], s[8:9]")
    a("s_and_b32 s4, s4, s5")
    a(f"s_cbranch_scc1 NOK{tag}")
    srd(a, 48, 26, 27, 256)
    a("s_mov_b32 s61, 0")
    a(f"v_lshlrev_b32 v{vt+1}, 2, v0")
    a("s_mov_b64 exec, 0xff")
    a.lab(f"NL{tag}")
    a(f"v_mov_b32 v{vt}, 0")
    a(f"buffer_atomic_add v{vt}, v{vt+1}, s[48:51], 0 offen sc0 sc1")
    a("s_add_u32 s61, s61, 1")
    a(f"s_cmp_gt_u32 s61, {SPINMAX}")
    a("s_waitcnt vmcnt(0)")
    a(f"s_cbranch_scc1 NX{tag}")
    a(f"v_cmp_eq_u32 vcc, 0, v{vt}")
    a(f"s_cbranch_vccnz NL{tag}")
    a.lab(f"NX{tag}")
    a("s_mov_b64 exec, -1")
    a.lab(f"NOK{tag}")

def signal(a, vt, sidx, smask=None, cnt=0, lo=None, val="1"):
    a(f"s_lshl_b32 s30, {sidx}, 7")
    a(f"s_add_u32 s30, s30, 0x{FL_OFF:x}")
    a(f"v_mov_b32 v{vt}, {val}")
    a(f"v_lshlrev_b32 v{vt+1}, 7, v0")
    a(f"s_waitcnt vmcnt({cnt})")
    if smask is None:
        a("s_mov_b64 exec, 1")
    else:
        a(f"s_mov_b32 exec_lo, {smask}")
        a("s_mov_b32 exec_hi, 0")
    a(f"s_setprio {PRIO}")
    a(f"buffer_atomic_add v{vt}, v{vt+1}, s[44:47], s30 offen sc1")
    a(f"s_setprio {EPRIO if lo is None else lo}")
    a("s_mov_b64 exec, -1")

def poll(a, tag, vaddr, vexp, vt, mask, sleep=0):
    a(f"s_mov_b32 s30, 0x{FL_OFF:x}")
    a("s_mov_b32 s61, 0")
    a(f"s_mov_b32 exec_lo, 0x{mask & 0xffffffff:x}")
    a(f"s_mov_b32 exec_hi, 0x{mask >> 32:x}")
    a.lab(f"PL{tag}")
    a(f"v_mov_b32 v{vt}, 0")
    a(f"buffer_atomic_add v{vt}, v{vaddr}, s[44:47], s30 offen sc0 sc1")
    a("s_add_u32 s61, s61, 1")
    a(f"s_cmp_gt_u32 s61, {SPINMAX}")
    a("s_waitcnt vmcnt(0)")
    a(f"s_cbranch_scc1 PD{tag}")
    a(f"v_cmp_ne_u32 vcc, v{vt}, v{vexp}")
    if sleep:
        a(f"s_cbranch_vccz PD{tag}")
        a(f"s_sleep {sleep}")
        a(f"s_branch PL{tag}")
    else:
        a(f"s_cbranch_vccnz PL{tag}")
    a.lab(f"PD{tag}")
    a("s_mov_b64 exec, -1")

def kernel(a):
    a.lab(NAME + "_kernel")
    a("s_cmp_ge_u32 s2, 256")
    a("s_cbranch_scc1 K_END")
    a("s_load_dwordx2 s[32:33], s[0:1], 0")
    a("s_load_dwordx16 s[4:19], s[0:1], 0")
    a("s_load_dwordx8 s[20:27], s[0:1], 64")
    a("s_load_dwordx2 s[28:29], s[0:1], 96")
    if STAMP or opt("spin", 0):
        a("s_memrealtime s[90:91]")
    a("v_lshrrev_b32 v1, 6, v0")
    a("v_and_b32 v0, 63, v0")
    a("v_readfirstlane_b32 s95, v1")
    CPE = opt('cpe', 1)
    def cpf_block(reg, val):
      if CPF:
          a(f"s_cmp_lg_u32 {reg}, {val}")
          a("s_cbranch_scc1 NOCPF")
          a("s_getpc_b64 s[84:85]")
          a.lab("CPF_PC")
          a(f"s_sub_u32 s84, s84, CPF_PC-{NAME}_kernel")
          a("s_subb_u32 s85, s85, 0")
          a("s_lshr_b32 s30, s2, 3")
          a("s_lshl_b32 s30, s30, 10")
          a("v_and_b32 v1, 7, v0")
          a("v_lshl_add_u32 v1, v1, 7, s30")
          a(f"v_min_u32 v1, K_END-{NAME}_kernel, v1")
          a("v_mov_b32 v3, s85")
          a("v_add_co_u32 v2, vcc, s84, v1")
          a("s_nop 1")
          a("v_addc_co_u32 v3, vcc, 0, v3, vcc")
          a("s_mov_b64 exec, 0xff")
          a("global_load_dword v13, v[2:3], off")
          a("s_mov_b64 exec, -1")
          a.lab("NOCPF")
    if CPE:
        cpf_block('s95', 4)
    a("s_lshr_b32 s31, s2, 3")
    a("s_and_b32 s56, s2, 1")
    a("s_lshl_b32 s56, s56, 3")
    a("s_and_b32 s74, s31, 7")
    a("s_add_u32 s56, s56, s74")
    a("s_and_b32 s57, s2, 6")
    a("s_lshl_b32 s57, s57, 1")
    a("s_lshr_b32 s75, s31, 3")
    a("s_add_u32 s57, s57, s75")
    a(f"s_mul_i32 s74, s74, {RA}")
    a(f"s_mul_i32 s75, s75, {RB}")
    a("s_add_u32 s74, s74, s75")
    a(f"s_and_b32 s74, s74, {RM}")
    if opt("ro", 0): a(f"s_or_b32 s74, s74, {opt('ro', 0)}")
    a("s_and_b32 s30, s57, 7")
    a("s_cselect_b32 s58, 0, 1")
    a("s_lshr_b32 s59, s57, 3")
    a("s_sub_u32 s78, s57, s59")
    a("s_sub_u32 s78, s78, 1")
    a("s_and_b32 s3, s95, 3")
    if STAMP:
        a(f"v_mov_b32 v{SV}, -1")
    a("s_cmp_ge_u32 s95, 4")
    a("s_cbranch_scc1 P1_CONS")
    a("v_lshrrev_b32 v3, 3, v0")
    a("v_and_b32 v8, 7, v0")
    a("v_lshrrev_b32 v9, 4, v0")
    a("s_lshl_b32 s30, s56, 2")
    a("s_add_u32 s30, s30, s3")
    a("s_lshl_b32 s79, s30, 10")
    a("s_lshl_b32 s66, s3, 12")
    a("s_lshl_b32 s70, s74, 7")
    a("s_cmp_eq_u32 s58, 1")
    a("s_cbranch_scc1 P1_LSP")

    def stamp0():
        if STAMP:
            a(f"v_writelane_b32 v{SV}, s90, 0")
            stamp(a, 1)

    def gload(ops, sl="s57", xb=68, gw=True):
        srd(a, 48, 22, 23, 1024)
        a(f"s_lshl_b32 s30, {sl}, 3")
        a("s_lshl_b32 s31, s3, 1")
        a("s_add_u32 s30, s30, s31")
        a("s_lshr_b32 s31, s30, 5")
        a("s_and_b32 s30, s30, 31")
        a("s_lshl_b32 s30, s30, 6")
        a("s_add_u32 s30, s30, s31")
        a("s_lshl_b32 s31, s56, 2")
        a("s_add_u32 s64, s30, s31")
        a("s_lshl_b32 s30, s64, 10")
        a("s_add_u32 s31, s30, 0x10000")
        a("v_lshlrev_b32 v12, 4, v0")
        if gw:
            a("buffer_load_dwordx4 v[64:67], v12, s[48:51], 0 offen")
        a(f"buffer_load_dwordx4 {vr(xb,4)}, v12, s[32:35], s30 offen")
        a(f"buffer_load_dwordx4 {vr(xb+4,4)}, v12, s[32:35], s31 offen")
        ops.extend(["g"] * 3)

    def gcalc(ops, parts=(0, 1, 2), x0=68):
        T = 76
        if 0 in parts and ops is not None:
            waitfor(ops, "g")
        for rr in range(2):
            if rr not in parts:
                continue
            xb = x0 + 4 * rr
            acc = T + 4 + rr
            for d in range(4):
                a(f"v_lshlrev_b32 v{T}, 16, v{xb+d}")
                a(f"v_and_b32 v{T+1}, 0xffff0000, v{xb+d}")
                a(f"v_lshlrev_b32 v{T+2}, 16, v{64+d}")
                a(f"v_and_b32 v{T+3}, 0xffff0000, v{64+d}")
                a(f"v_mul_f32 v{T}, v{T}, v{T+2}")
                a(f"v_mul_f32 v{T+1}, v{T+1}, v{T+3}")
                a(f"v_cvt_pk_bf16_f32 v{T}, v{T}, v{T+1}")
                a(f"v_and_b32 v{T+1}, 0xffff0000, v{T}")
                a(f"v_lshlrev_b32 v{T}, 16, v{T}")
                if d == 0:
                    a(f"v_add_f32 v{acc}, v{T}, v{T+1}")
                else:
                    a(f"v_add_f32 v{acc}, v{acc}, v{T}")
                    a(f"v_add_f32 v{acc}, v{acc}, v{T+1}")
        if 2 not in parts:
            return
        A, B = T + 4, T + 5
        for sh in (8, 4, 2, 1):
            a("s_nop 1")
            a(f"v_add_f32_dpp v{A}, v{A}, v{A} row_ror:{sh} row_mask:0xf bank_mask:0xf")
            a(f"v_add_f32_dpp v{B}, v{B}, v{B} row_ror:{sh} row_mask:0xf bank_mask:0xf")
        a("s_nop 1")
        a(f"v_add_f32_dpp v{A}, v{A}, v{A} row_bcast:15 row_mask:0xa bank_mask:0xf")
        a(f"v_add_f32_dpp v{B}, v{B}, v{B} row_bcast:15 row_mask:0xa bank_mask:0xf")
        a("s_nop 1")
        a(f"v_add_f32_dpp v{A}, v{A}, v{A} row_bcast:31 row_mask:0xc bank_mask:0xf")
        a(f"v_add_f32_dpp v{B}, v{B}, v{B} row_bcast:31 row_mask:0xc bank_mask:0xf")
        a("s_nop 1")
        a(f"v_cvt_pk_bf16_f32 v{A}, v{A}, v{B}")
        a(f"v_and_b32 v{B}, 0xffff0000, v{A}")
        a(f"v_lshlrev_b32 v{A}, 16, v{A}")
        a(f"v_mul_f32 v{A}, {f32(-math.log2(math.e))}, v{A}")
        a(f"v_mul_f32 v{B}, {f32(-math.log2(math.e))}, v{B}")
        a(f"v_exp_f32 v{A}, v{A}")
        a(f"v_exp_f32 v{B}, v{B}")
        a("s_nop 0")
        a(f"v_add_f32 v{A}, 1.0, v{A}")
        a(f"v_add_f32 v{B}, 1.0, v{B}")
        a(f"v_rcp_f32 v{A}, v{A}")
        a(f"v_rcp_f32 v{B}, v{B}")
        a("s_nop 0")
        a(f"v_cvt_pk_bf16_f32 v{A}, v{A}, v{B}")
        a(f"v_and_b32 v{B}, 0xffff0000, v{A}")
        a(f"v_lshlrev_b32 v{A}, 16, v{A}")

    def gsignal(sl, vt, val):
        a("s_lshl_b32 s61, s56, 2")
        a(f"s_lshr_b32 s31, {sl}, 2")
        a("s_add_u32 s61, s61, s31")
        a(f"s_add_u32 s61, s61, {CT_G}")
        signal(a, vt, "s61", cnt=63, lo=0, val=val)

    def gstore(sl="s57"):
        a("s_lshl_b32 s30, s56, 4")
        a(f"s_add_u32 s30, s30, {sl}")
        a("s_lshl_b32 s30, s30, 2")
        a("s_add_u32 s30, s30, s3")
        a("s_lshl_b32 s30, s30, 7")
        a(f"s_add_u32 s30, s30, 0x{G_OFF:x}")
        a("s_mov_b32 exec_lo, 0")
        a("s_brev_b32 exec_hi, 1")
        a("buffer_store_dwordx2 v[80:81], off, s[44:47], s30 sc1")
        a("s_mov_b64 exec, -1")

    def wd_setup():
        p2_ids(a)
        srd(a, 52, 20, 21, 1376 * 1024)
        a("v_lshlrev_b32 v29, 1, v3")
        a("v_and_b32 v29, 4, v29")
        a("v_xor_b32 v29, v29, v8")
        a("v_lshlrev_b32 v29, 4, v29")
        a("v_lshl_add_u32 v29, v3, 10, v29")
        a(f"s_mul_i32 s30, s3, {NST*16384}")
        a("s_lshl_b32 s31, s93, 7")
        a("s_add_u32 s30, s30, s31")
        a("v_add_u32 v29, s30, v29")
        a("s_mov_b32 s65, s94")
        a(f"s_mul_i32 s77, s3, {PIECE}")

    def wd_lds(st):
        s = st % 20
        return (s // 5) * SLOT + (s % 5) * 2048

    def issue_w(st, ops):
        a(f"s_add_u32 m0, s77, {wd_lds(st)}")
        a("s_lshl_b32 s30, s65, 14")
        a("s_add_u32 s31, s30, 7168")
        a("buffer_load_dwordx4 v29, s[52:55], s30 offen lds")
        a("s_add_u32 s65, s65, 1")
        a(f"s_cmp_eq_u32 s65, {NST}")
        a("s_cselect_b32 s65, 0, s65")
        a("buffer_load_dwordx4 v29, s[52:55], s31 offen offset:1024 lds")
        ops.extend([("w", st)] * 2)

    def waitfor(ops, key):
        last = max(i for i, o in enumerate(ops) if o == key)
        a(f"s_waitcnt vmcnt({len(ops) - 1 - last})")

    def capture(fn):
        save = a.l
        a.l = []
        fn()
        lines, a.l = a.l, save
        groups, cur = [], []
        for ln in lines:
            cur.append(ln)
            if ln.strip().startswith("buffer_"):
                groups.append(cur); cur = []
        if cur:
            groups[-1].extend(cur)
        return groups

    def pf_wd():
        a("s_lshr_b32 s30, s2, 3")
        a("s_lshl_b32 s30, s30, 2")
        a("s_add_u32 s30, s30, s3")
        a(f"s_mul_i32 s30, s30, {86*128}")
        a("v_lshlrev_b32 v12, 7, v0")
        a("buffer_load_dword v82, v12, s[52:55], s30 offen")
        a("s_add_u32 s30, s30, 8192")
        a("s_mov_b64 exec, 0x3fffff")
        a("buffer_load_dword v83, v12, s[52:55], s30 offen")
        a("s_mov_b64 exec, -1")

    def touch_w3():
        a("s_lshr_b32 s30, s2, 3")
        a("s_lshl_b32 s30, s30, 2")
        a("s_add_u32 s30, s30, s3")
        a(f"s_mul_i32 s30, s30, {11*1024}")
        a("v_lshlrev_b32 v12, 10, v0")
        a("s_mov_b64 exec, 0x7ff")
        a("buffer_load_dword v82, v12, s[52:55], s30 offen offset:384")
        a("s_mov_b64 exec, -1")

    def merge(groups):
        return [sum(groups, [])]

    def loader_loop(issue, commit, lai, direct, dpre, tag):
        items = []
        for s in range(8):
            items += [(("s", s), 1, g) for g in capture(lambda: issue(s, []))]
        assert dpre <= 5 and direct <= 10
        if opt("t3w", 0):
            items += [("t3", 1, g) for g in merge(capture(touch_w3))]
        for st in range(direct):
            items += [(("w", st), 2, g) for g in merge(capture(lambda: issue_w(st, [])))]
        ops = []
        pos = 0
        if tag == "F" and HB:
            lim = len(items) - (direct - min(direct, dpre))
            for b in range(8):
                for half, lastidx in ((0, 10 * b + 6), (1, 10 * b + 9)):
                    upto = min(lim, lastidx + 1 + lai)
                    if b < 7:
                        upto = min(upto, 80)
                    while pos < upto:
                        a.l.extend(items[pos][2]); ops.extend([pos] * items[pos][1]); pos += 1
                    if b == 0 and half == 0:
                        wd_setup()
                    waitfor(ops, lastidx)
                    if opt("lstamp", 1) and half == 0: stamp(a, 2 + b)
                    a("s_barrier")
                if b == 7:
                    for x in req_nonce():
                        a(x)
        else:
            for b in range(8):
                nxt = [i for i, it in enumerate(items) if it[0] == ("s", b + 1)]
                upto = len(items) - (direct - min(direct, dpre)) if b == 7 else nxt[min(lai, len(nxt)) - 1] + 1
                while pos < upto:
                    a.l.extend(items[pos][2]); ops.extend([items[pos][0]] * items[pos][1]); pos += 1
                if b == 0:
                    wd_setup()
                waitfor(ops, ("s", b))
                commit(b)
                if opt("lstamp", 1): stamp(a, 2 + b)
                a("s_barrier")
                if b == 7:
                    for x in req_nonce():
                        a(x)
        while pos < len(items):
            a.l.extend(items[pos][2]); pos += 1
        get_nonce(a, "L" + tag, 30)
        a("s_barrier")
        stamp(a, 16)
        a(f"s_branch P2_W{direct}")


    def final_setup(VA):
        a("s_lshr_b32 s30, s95, 2")
        a(f"v_lshrrev_b32 v{VA}, 3, v0")
        a("s_lshl_b32 s31, s3, 3")
        a(f"v_add_u32 v{VA}, s31, v{VA}")
        a(f"v_and_b32 v{VA+1}, 3, v0")
        a(f"v_lshlrev_b32 v{VA+2}, 2, v{VA+1}")
        a(f"v_xor_b32 v{VA+2}, v{VA+2}, v{VA}")
        a(f"v_lshlrev_b32 v{VA+2}, 4, v{VA+2}")
        a(f"v_lshl_add_u32 v{VA+2}, v{VA+1}, 10, v{VA+2}")
        a(f"v_bfe_u32 v{VA+1}, v0, 2, 1")
        a("s_lshl_b32 s31, s30, 1")
        a(f"v_add_u32 v{VA+1}, s31, v{VA+1}")
        a(f"v_mul_u32_u24 v{VA+3}, {PIECE}, v{VA+1}")
        a(f"v_add_u32 v{VA+3}, v{VA+3}, v{VA+2}")
        a(f"v_mul_u32_u24 v{VA+1}, {SLOT}, v{VA+1}")
        a(f"v_add_u32 v{VA+1}, v{VA+1}, v{VA+2}")
        a("s_lshl_b32 s31, s30, 7")
        a(f"v_lshl_add_u32 v{VA+2}, v{VA}, 2, s31")
        a("s_lshl_b32 s30, s30, 5")
        a("s_add_u32 s30, s30, s92")
        a("s_lshl_b32 s30, s30, 10")
        a("s_lshl_b32 s31, s93, 7")
        a("s_add_u32 s30, s30, s31")
        a(f"v_lshlrev_b32 v{VA}, 16, v{VA}")
        a(f"v_add_u32 v{VA}, s30, v{VA}")
        a(f"v_and_b32 v{VA+4}, 7, v0")
        a(f"v_lshl_add_u32 v{VA}, v{VA+4}, 4, v{VA}")
        srd(a, 48, 24, 25, 2048 * 1024)

    def final_stage(VA, R):
        a("s_barrier")
        a(f"ds_read_b32 v{VA+4}, v{VA+2} offset:8192")
        for hh in range(2):
            for w in range(4):
                a(f"ds_read_b128 {vr(R + 8*w + 4*hh, 4)}, v{VA+1} offset:{w*PIECE + hh*512}")
            a(f"ds_read_b128 {vr(R + 32 + 4*hh, 4)}, v{VA+3} offset:{4096 + hh*512}")
        for hh in range(2):
            a(f"s_waitcnt lgkmcnt({5 - 5*hh})")
            o = 4 * hh
            for i in (0, 2):
                a(f"v_pk_add_f32 {vr(R+o+i,2)}, {vr(R+o+i,2)}, {vr(R+8+o+i,2)}")
                a(f"v_pk_add_f32 {vr(R+16+o+i,2)}, {vr(R+16+o+i,2)}, {vr(R+24+o+i,2)}")
            for i in (0, 2):
                a(f"v_pk_add_f32 {vr(R+o+i,2)}, {vr(R+o+i,2)}, {vr(R+16+o+i,2)}")
            for i in range(4):
                a(f"v_fma_f32 v{R+o+i}, v{VA+4}, v{R+o+i}, v{R+32+o+i}")
            a(f"v_cvt_pk_bf16_f32 v{R+40+2*hh}, v{R+o}, v{R+o+1}")
            a(f"v_cvt_pk_bf16_f32 v{R+41+2*hh}, v{R+o+2}, v{R+o+3}")
        a(f"buffer_store_dwordx4 {vr(R+40,4)}, v{VA}, s[48:51], 0 offen sc1")

    a("v_xor_b32 v10, v9, v8")
    a("v_lshlrev_b32 v10, 4, v10")
    a("v_lshlrev_b32 v11, 16, v3")
    a("v_add3_u32 v4, v10, v11, s79")
    a("v_xor_b32 v5, 64, v4")
    a(f"v_add_u32 v5, {(8 << 16) - 1024}, v5")
    a(f"v_add_u32 v6, {2*((8 << 16) - 1024)}, v4")
    a(f"v_add_u32 v7, {2*((8 << 16) - 1024)}, v5")
    a(f"s_mov_b32 s34, 0x{2048*1024:x}")
    a("s_mov_b32 s35, 0x20000")
    a("s_mov_b32 m0, s66")
    def wsetup():
        if HB:
            a("s_and_b32 s67, s3, 1")
            a(f"s_mul_i32 s30, s67, {16*2752}")
        else:
            a(f"s_mul_i32 s30, s3, {16*2752}")
        a("s_mul_i32 s31, s78, 192")
        a("s_add_u32 s30, s30, s31")
        a("s_movk_i32 s31, 2560")
        a("v_mul_u32_u24 v11, 171, v0")
        a("v_lshl_add_u32 v10, v0, 4, s30")
        a("v_lshrrev_b32 v12, 11, v11")
        a("v_mad_u32_u24 v24, v12, s31, v10")
        a(f"v_add_u32 v12, {64*171}, v11")
        a("v_lshrrev_b32 v12, 11, v12")
        a("v_and_b32 v25, 32, v0")
        a("v_xor_b32 v25, v25, v10")
        a("v_mad_u32_u24 v25, v12, s31, v25")
        a(f"v_add_u32 v12, {128*171}, v11")
        a("v_lshrrev_b32 v12, 11, v12")
        a("v_xor_b32 v26, 32, v10")
        a("v_mad_u32_u24 v26, v12, s31, v26")
        if HB:
            a("s_mul_i32 s67, s67, 3072")
            a("s_lshr_b32 s68, s3, 1")
            a(f"s_mul_i32 s68, s68, {WB}")
            a("s_add_u32 s67, s67, s68")
            a(f"s_add_u32 s67, s67, {XB}")
            a("s_add_u32 s68, s67, 6144")
        else:
            a("s_mul_i32 s67, s3, 3072")
            a(f"s_add_u32 s67, s67, {XB}")
            a(f"s_add_u32 s68, s67, {WB}")
        a(f"s_mul_i32 s71, s74, {64*2752}")
    wsetup()
    a("s_waitcnt lgkmcnt(0)")
    stamp0()

    XP = opt("xpair", 0)
    def issueF(stage, ops):
        sl = (stage % 4) * SLOT
        if stage and not (XP and stage == 1):
            a(f"s_add_u32 m0, s66, {sl}")
            a("s_nop 0")
        if not (XP and stage == 1):
            for j in range(4):
                a(f"buffer_load_dwordx4 v{4+j}, s[32:35], s70 offen offset:{j*1024} {XNT} lds")
                if XP and stage == 0:
                    if j == 0:
                        a("s_add_u32 s30, s74, 1")
                        a("s_and_b32 s30, s30, 7")
                        a("s_lshl_b32 s30, s30, 7")
                    a(f"s_add_u32 m0, s66, {SLOT}")
                    a("s_nop 0")
                    a(f"buffer_load_dwordx4 v{4+j}, s[32:35], s30 offen offset:{j*1024} {XNT} lds")
                    a("s_mov_b32 m0, s66")
                    a("s_nop 0")
        if stage == 0 and HB:
            a("s_cmp_ge_u32 s3, 2")
            a("s_cselect_b32 s36, s18, s16")
            a("s_cselect_b32 s37, s19, s17")
            a(f"s_mov_b32 s38, 0x{512*2752:x}")
            a("s_mov_b32 s39, 0x20000")
        elif stage == 0:
            srd(a, 36, 16, 17, 512 * 2752)
        a(f"s_add_u32 m0, s67, {sl}")
        a("s_add_u32 s74, s74, 1")
        for jj in range(3):
            a(f"buffer_load_dwordx4 v{24+jj}, s[36:39], s71 offen offset:{jj*1024} {WNT} lds")
        if stage == 0 and not HB:
            srd(a, 40, 18, 19, 512 * 2752)
        a(f"s_add_u32 m0, s68, {sl}")
        a("s_and_b32 s74, s74, 7")
        if HB:
            a(f"s_add_u32 s71, s71, {32*2752}")
        for jj in range(3):
            a(f"buffer_load_dwordx4 v{24+jj}, s[{36 if HB else 40}:{39 if HB else 43}], s71 offen offset:{jj*1024} {WNT} lds")
        a("s_lshl_b32 s70, s74, 7")
        a(f"s_mul_i32 s71, s74, {64*2752}")
        if stage == 0:
            srd(a, 44, 28, 29, 0x2000000 if STAMP else WS_USED)

    loader_loop(issueF, lambda b: None, LAI, DIRECT, opt("dpre", 2), "F")

    a.lab("P1_LSP")
    a("v_lshlrev_b32 v10, 4, v8")
    a("v_lshlrev_b32 v11, 16, v3")
    a("v_add3_u32 v4, v10, v11, s79")
    a("s_and_b32 s30, s3, 1")
    a("s_lshl_b32 s30, s30, 5")
    a("s_lshr_b32 s31, s3, 1")
    a("s_add_u32 s30, s30, s31")
    a("s_lshl_b32 s30, s30, 10")
    a("s_lshl_b32 s31, s59, 7")
    a("s_add_u32 s30, s30, s31")
    a("v_and_b32 v10, 2, v3")
    a("v_xor_b32 v10, v10, v8")
    a("v_lshlrev_b32 v10, 4, v10")
    a("v_lshlrev_b32 v11, 11, v3")
    a("v_add3_u32 v24, v10, v11, s30")
    a("v_xor_b32 v25, 64, v24")
    a("v_lshrrev_b32 v10, 1, v0")
    a("s_lshl_b32 s30, s3, 1")
    a("s_and_b32 s30, s30, 4")
    a("v_xor_b32 v10, s30, v10")
    a(f"v_mul_u32_u24 v10, {2*2752}, v10")
    a("v_and_b32 v11, 1, v0")
    a("v_lshlrev_b32 v11, 4, v11")
    a("s_and_b32 s30, s3, 1")
    a("s_mul_i32 s30, s30, 2752")
    a("s_lshl_b32 s31, s59, 5")
    a("s_add_u32 s30, s30, s31")
    a(f"s_add_u32 s30, s30, {1344*2}")
    a("v_add3_u32 v26, v10, v11, s30")
    a("s_lshl_b32 s67, s3, 11")
    a(f"s_add_u32 s67, s67, {XB}")
    a("s_add_u32 s68, s67, 8192")
    a("s_lshl_b32 s69, s3, 10")
    a(f"s_add_u32 s69, s69, {XB + 16384}")
    a("s_lshl_b32 s71, s74, 16")
    a(f"s_mul_i32 s75, s74, {64*2752}")
    a(f"s_mov_b32 s34, 0x{2048*1024:x}")
    a("s_mov_b32 s35, 0x20000")
    a("s_waitcnt lgkmcnt(0)")
    stamp0()

    def issueS(stage, ops):
        sl = (stage % 4) * SLOT
        xr = 32 + 16 * (stage & 1)
        n = 0
        for j in range(4):
            if j:
                a(f"s_add_u32 s30, s70, {j * 8 * 65536}")
            a(f"buffer_load_dwordx4 {vr(xr+4*j,4)}, v4, s[32:35], {'s30' if j else 's70'} offen")
            n += 1
        a("s_add_u32 s74, s74, 1")
        if stage == 0:
            srd(a, 36, 10, 11, 512 * 1024)
            srd(a, 40, 12, 13, 512 * 1024)
            a("s_cmp_ge_u32 s3, 2")
            a("s_cselect_b32 s84, s18, s16")
            a("s_cselect_b32 s85, s19, s17")
            a(f"s_mov_b32 s86, 0x{512*2752:x}")
            a("s_mov_b32 s87, 0x20000")
            srd(a, 44, 28, 29, 0x2000000 if STAMP else WS_USED)
        if stage < 4:
            a(f"s_add_u32 m0, s67, {sl}")
            a(f"s_add_u32 s76, s71, {16*1024 - 1024}")
            a("buffer_load_dwordx4 v24, s[36:39], s71 offen lds")
            a("buffer_load_dwordx4 v24, s[36:39], s76 offen offset:1024 lds")
            a(f"s_add_u32 m0, s68, {sl}")
            a("s_nop 0")
            a("buffer_load_dwordx4 v25, s[40:43], s71 offen lds")
            a("buffer_load_dwordx4 v25, s[40:43], s76 offen offset:1024 lds")
            n += 4
        a(f"s_add_u32 m0, s69, {sl}")
        a("s_and_b32 s74, s74, 7")
        if not opt("nof", 0):
            a("buffer_load_dwordx4 v26, s[84:87], s75 offen lds")
            n += 1
        a("s_lshl_b32 s70, s74, 7")
        a("s_lshl_b32 s71, s74, 16")
        a(f"s_mul_i32 s75, s74, {64*2752}")
        ops.extend([("s", stage)] * n)
        if stage == 0:
            a("v_lshrrev_b32 v10, 1, v8")
            a("v_xor_b32 v10, v10, v9")
            a("v_lshlrev_b32 v10, 4, v10")
            a("v_and_b32 v11, 1, v8")
            a("v_lshl_add_u32 v10, v11, 3, v10")
            a("v_lshl_add_u32 v10, v3, 7, v10")
            a("v_add_u32 v5, s66, v10")
            a("v_and_b32 v11, 1, v3")
            a("v_lshlrev_b32 v10, 6, v11")
            a("v_xor_b32 v5, v5, v10")
            a("v_xor_b32 v6, 64, v5")
            a("v_mul_u32_u24 v30, 0x0202, v11")
            a("v_lshl_or_b32 v30, v30, 16, v30")
            a("v_xor_b32 v31, 0x07060302, v30")
            a("v_xor_b32 v30, 0x05040100, v30")
            a("v_and_b32 v10, 2, v0")
            a("v_or_b32 v10, 4, v10")
            a("v_lshlrev_b32 v10, 4, v10")
            a("v_lshl_add_u32 v10, v0, 7, v10")
            a("v_add_u32 v27, s68, v10")
            a("s_lshr_b32 s30, s3, 1")
            a("v_xor_b32 v28, s30, v0")
            a("v_and_b32 v28, 1, v28")
            a("v_lshlrev_b32 v28, 15, v28")
            a("v_or_b32 v28, 0x3f80, v28")


    def commitS(stage):
        if opt("nocommit", 0): return
        sl = (stage % 4) * SLOT
        xr = 32 + 16 * (stage & 1)
        a(f"v_add_u32 v7, {sl}, v5")
        a(f"v_add_u32 v2, {sl}, v6")
        for j in range(4):
            r = xr + 4 * j
            t = 16 + 4 * (j & 1)
            a(f"v_perm_b32 v{t}, v{r+1}, v{r}, v30")
            a(f"v_perm_b32 v{t+1}, v{r+3}, v{r+2}, v30")
            a(f"v_perm_b32 v{t+2}, v{r+1}, v{r}, v31")
            a(f"v_perm_b32 v{t+3}, v{r+3}, v{r+2}, v31")
            e, o = (7, 2) if (j & 1) == 0 else (2, 7)
            a(f"ds_write_b64 v{e}, {vr(t,2)} offset:{j*1024}")
            a(f"ds_write_b64 v{o}, {vr(t+2,2)} offset:{j*1024}")
        if stage < 4:
            a("s_cmp_lg_u32 s59, 0")
            a(f"s_cbranch_scc1 P1_NP{stage}")
            a(f"v_add_u32 v7, {sl}, v27")
            a("s_mov_b64 exec, 0xffff")
            a("ds_write_b16 v7, v28")
            a("s_mov_b64 exec, -1")
            a.lab(f"P1_NP{stage}")
        a("s_waitcnt lgkmcnt(0)")

    loader_loop(issueS, commitS, LAS, opt("ds", 8), opt("dspre", 4), "S")

    DS = opt("ds", 8)
    GL = opt("gl", DIRECT + 2)
    GA = opt("ga", 19)
    assert DS > GL
    ops = []
    for st in range(DIRECT, N1):
        a.lab(f"P2_W{st}")
        if st == GL and not opt("abl_g", 0):
            a("s_and_b32 s76, s57, 7")
            a("s_cmp_lg_u32 s76, 1")
            a("s_cbranch_scc1 NOG2A")
            a("s_sub_u32 s73, s57, 1")
            gload([], "s73", 84, False)
            a.lab("NOG2A")
            gload(ops)
        issue_w(st, ops)
        if 2 * (st + 1) > WTH:
            a(f"s_waitcnt vmcnt({WTH - 2})")
        if st == GA and not opt("abl_g", 0):
            a("s_cmp_eq_u32 s58, 1")
            a("s_cbranch_scc1 NOGC")
            if opt("gprio", 0): a(f"s_setprio {opt('gprio', 0)}")
            gcalc(ops)
            gstore()
            a("s_cmp_lg_u32 s76, 1")
            a("s_cbranch_scc1 NOGC")
            gcalc(None, x0=84)
            gstore("s73")
            a.lab("NOGC")
            if opt("gprio", 0): a("s_setprio 0")
    a("s_and_b32 s75, s57, 7")
    a("s_cmp_eq_u32 s75, 1")
    a("s_cselect_b32 s30, 2, 1")
    a("s_cmp_eq_u32 s75, 0")
    a("s_cselect_b32 s75, 0, s30")
    HR = 32
    TMJ = opt("tmj", 0)
    PRE = opt("pre", 1)
    NWF = 3 if PRE else 2
    WF = HR + D2 * 8
    ACC = WF + 8 * NWF
    assert ACC + 64 <= 256
    a("v_lshrrev_b32 v8, 5, v0")
    a("v_and_b32 v9, 15, v0")
    a("v_lshrrev_b32 v10, 2, v9")
    a("v_lshl_add_u32 v10, v8, 3, v10")
    a("v_lshlrev_b32 v10, 7, v10")
    a("v_lshrrev_b32 v11, 3, v9")
    a("v_lshl_add_u32 v10, v11, 6, v10")
    a("v_and_b32 v11, 16, v0")
    a("v_lshl_add_u32 v10, v11, 1, v10")
    a("v_and_b32 v11, 3, v0")
    a("v_lshl_add_u32 v10, v11, 3, v10")
    a("v_add_u32 v4, s77, v10")
    a("v_xor_b32 v5, 64, v4")
    a(f"v_add_u32 v6, {2*SLOT}, v4")
    a(f"v_add_u32 v7, {2*SLOT}, v5")
    def trread(st):
        off = wd_lds(st)
        hi = off >= 2 * SLOT
        if hi: off -= 2 * SLOT
        for ct in range(2):
            for hf in range(2):
                a(f"ds_read_b64_tr_b16 {vr(WF + 8*(st % NWF) + ct*4 + hf*2, 2)}, v{4 + 2*hi + ct} offset:{off + hf*512}")
    if PRE:
        assert N1 == 20
        a("s_waitcnt vmcnt(20)")
        trread(0)
        trread(1)
        a("s_waitcnt lgkmcnt(0)")
        issue_w(20, [])
        issue_w(21, [])
    a(f"s_mul_i32 s61, s3, {NST}")
    a(f"s_mul_i32 s66, s92, {NKS}")
    a("s_add_u32 s66, s66, s61")
    a("s_lshl_b32 s66, s66, 10")
    a("v_lshlrev_b32 v12, 4, v0")
    a("v_add_u32 v2, s66, v12")
    a(f"v_add_u32 v3, {32*NKS*1024}, v2")
    a("s_cmp_eq_u32 s3, 3")
    a(f"s_cselect_b32 s72, 20, {NST}")
    a("v_add_u32 v240, s77, v12")
    for qd in range(1, 4):
        a(f"v_xor_b32 v{240+qd}, {64*qd}, v240")
    for qd in range(4):
        a(f"v_add_u32 v{244+qd}, {2*SLOT}, v{240+qd}")
    final_setup(248)
    stamp(a, 10)
    if opt("dg2", 0):
        a("s_waitcnt vmcnt(0)")
    stamp(a, 11)
    a("s_lshr_b32 s30, s92, 1")
    a("s_lshl_b32 s30, s30, 2")
    a("s_add_u32 s30, s30, s3")
    a("s_lshl_b32 s30, s30, 7")
    a("v_mov_b32 v16, s30")
    a("s_cmp_eq_u32 s3, 3")
    a("s_cselect_b32 s30, 20, 16")
    a("v_mov_b32 v17, s30")
    if GATE:
        a("s_barrier")
    if GDEL:
        a(f"s_sleep {GDEL}")
    poll(a, "L", 16, 17, 22, 1, sleep=LSLEEP)
    if opt("dg2", 0):
        a("s_mul_i32 s61, s61, 100")
        a("s_add_u32 s61, s61, s90")
        a(f"v_writelane_b32 v{SV}, s61, 20")
    stamp(a, 12)
    ops = []
    a("s_mov_b32 s64, s94")
    def issue_h(st):
        sl = st % D2
        a("s_lshl_b32 s30, s64, 10")
        a("s_cmp_ge_u32 s64, s72")
        a("s_cselect_b32 s30, 0x10000000, s30")
        a("s_add_u32 s64, s64, 1")
        a(f"buffer_load_dwordx4 {vr(HR + sl*8, 4)}, v2, s[44:47], s30 offen sc1")
        a(f"s_cmp_eq_u32 s64, {NST}")
        a("s_cselect_b32 s64, 0, s64")
        a(f"buffer_load_dwordx4 {vr(HR + sl*8 + 4, 4)}, v3, s[44:47], s30 offen sc1")
        ops.extend([("h", st)] * 2)
    def mf(st, k):
        ct, rt = k & 1, k >> 1
        d = vr(ACC + 16 * k, 16)
        c = "0" if st == 0 else d
        a(f"v_mfma_f32_32x32x16_bf16 {d}, {vr(WF + 8*(st % NWF) + ct*4, 4)}, {vr(HR + (st % D2)*8 + 4*rt, 4)}, {c}")
    def need(keys, extra=""):
        idx = [i for i, o in enumerate(ops) if o in keys]
        if idx:
            a(f"s_waitcnt vmcnt({len(ops) - 1 - max(idx)}) {extra}")
        elif extra:
            a(f"s_waitcnt {extra}")
    if not PRE:
        trread(0)
    for st in range(D2 - 1):
        issue_h(st)
        if st == 2:
            gsignal("s57", 30, "s75")
            ops.append("sig")
    assert TMJ <= D2 - 1
    def wr(k, qd):
        a(f"ds_write_b128 v{240 + qd + 4*(k >> 1)}, {vr(ACC + 16*k + 4*qd, 4)} offset:{(k & 1)*SLOT + qd*1024}")
    for st in range(NST - TMJ):
        need([("h", st), ("w", st + 1)], "lgkmcnt(0)")
        if st == 0:
            stamp(a, 13)
        mf(st, 0)
        if st + 1 < NST and not (PRE and st == 0):
            trread(st + 1)
        mf(st, 1)
        hg = capture(lambda: issue_h(st + D2 - 1)) if st + D2 - 1 < NST else [[], []]
        a.l.extend(hg[0])
        mf(st, 2)
        a.l.extend(hg[1])
        mf(st, 3)
        if N1 + st < NST and not PRE:
            issue_w(N1 + st, ops)
        if st == KB:
            a("s_barrier")
            if TMJ: assert KB < NST - TMJ
    S0 = NST - TMJ
    if TMJ:
        need([("w", NST - 1)])
        for st in range(S0 + 1, min(NST, S0 + 3)):
            trread(st)
        for k in range(4):
            for n, st in enumerate(range(S0, NST)):
                if k == 0:
                    left = min(NST - 1, st + 2) - st
                    need([("h", st)], f"lgkmcnt({4 * left})")
                mf(st, k)
                if k == 0 and st + 3 < NST:
                    trread(st + 3)
                if k > 0:
                    if n == 0:
                        a("s_nop 7"); a("s_nop 2")
                    if n < 4:
                        wr(k - 1, n)
            if k > 0:
                for qd in range(min(4, TMJ), 4):
                    wr(k - 1, qd)
        stamp(a, 14)
        a("s_nop 7"); a("s_nop 3")
        for qd in range(4):
            wr(3, qd)
        a("s_waitcnt lgkmcnt(0)")
        a("s_barrier")
    else:
        stamp(a, 14)
        a("s_nop 8")
        for k in range(4):
            for qd in range(4):
                wr(k, qd)
        a("s_waitcnt lgkmcnt(0)")
        final_stage(248, 32)
    stamp(a, 15)
    stamp_flush(a)
    a("s_endpgm")

    a.lab("P1_CONS")
    if not CPE:
        cpf_block('s3', 0)
    if opt("t3x", 0):
        a("s_setprio 3")
        a("s_lshr_b32 s30, s2, 3")
        a("s_lshl_b32 s30, s30, 1")
        a("s_and_b32 s31, s2, 1")
        a("s_add_u32 s30, s30, s31")
        a("s_lshl_b32 s30, s30, 2")
        a("s_add_u32 s30, s30, s3")
        a("s_lshl_b32 s30, s30, 13")
        a("v_lshlrev_b32 v1, 10, v0")
        a(f"s_mov_b32 s34, 0x{2048*1024:x}")
        a("s_mov_b32 s35, 0x20000")
        a("s_mov_b64 exec, 0xff")
        a("s_waitcnt lgkmcnt(0)")
        a("buffer_load_dword v13, v1, s[32:35], s30 offen offset:384")
        a("s_mov_b64 exec, -1")
        a("s_setprio 0")
    a("s_lshr_b32 s66, s3, 1")
    a("s_and_b32 s67, s3, 1")
    a("v_and_b32 v1, 15, v0")
    a("v_lshrrev_b32 v2, 4, v0")
    a("v_lshrrev_b32 v3, 1, v1")
    a("v_xor_b32 v3, v3, v2")
    a("v_lshlrev_b32 v3, 4, v3")
    a("v_lshl_add_u32 v4, v1, 7, v3")
    a("v_lshrrev_b32 v3, 2, v1")
    a("v_lshl_add_u32 v3, v2, 3, v3")
    a("v_and_b32 v11, 3, v0")
    a(f"s_mov_b32 s72, {f32(C2)}")
    a(f"v_mov_b32 v10, {f32(C1)}")
    a("s_mov_b32 s68, 0")
    a(f"s_mov_b32 s82, {(-3*SLOT) & 0xffffffff}")
    a(f"s_mov_b32 s83, {SLOT}")

    def advance(regs):
        f = ["s_add_u32 s68, s68, 1",
             "s_and_b32 s30, s68, 3",
             "s_cmp_eq_u32 s30, 0",
             "s_cselect_b32 s30, s82, s83"]
        f += [f"v_add_u32 v{v}, s30, v{v}" for v in regs]
        f += ["s_cmp_eq_u32 s68, 8"]
        return f

    def cons_start():
        a("s_waitcnt lgkmcnt(0)")
        srd(a, 44, 28, 29, 0x2000000 if STAMP else WS_USED)
        stamp0()

    a("s_cmp_eq_u32 s58, 1")
    a("s_cbranch_scc1 P1_CSP")
    a("s_mov_b32 s73, 99")
    a("s_lshr_b32 s30, s2, 3")
    a("s_xor_b32 s30, s30, 8")
    a("s_xor_b32 s31, s3, 1")
    a("s_or_b32 s30, s30, s31")
    a("s_cbranch_scc1 NOINIT")
    a("s_setprio 3")
    a("v_mov_b32 v16, 0")
    a("v_lshlrev_b32 v17, 7, v0")
    a("s_and_b32 s31, s2, 7")
    a(f"s_mul_i32 s30, s31, {NCT // 8 * 128}")
    a(f"s_add_u32 s30, s30, 0x{FL_OFF:x}")
    a(f"s_mov_b32 exec_hi, 0x{(1 << (NCT // 8 - 32)) - 1:x}")
    a("s_waitcnt lgkmcnt(0)")
    srd(a, 44, 28, 29, 0x2000000 if STAMP else WS_USED)
    a("buffer_store_dword v16, v17, s[44:47], s30 offen sc0 sc1")
    a("s_mov_b64 exec, -1")
    a("s_mov_b32 s73, 2")
    a("s_setprio 0")
    a.lab("NOINIT")
    FS = [16, 56]
    ACC = 96
    def xf(s, rt): return FS[s] + 4 * rt
    def wf(s, i): return FS[s] + 16 + 4 * i
    a("s_lshl_b32 s30, s66, 13")
    a("v_add_u32 v4, s30, v4")
    a("v_xor_b32 v5, 64, v4")
    a("v_mul_u32_u24 v3, 192, v3")
    a("v_lshl_add_u32 v3, v11, 3, v3")
    a("s_mul_i32 s30, s67, 96")
    a(f"s_add_u32 s30, s30, {XB}")
    a("v_add_u32 v3, s30, v3")
    a("v_and_b32 v8, 1, v2")
    a("v_lshlrev_b32 v8, 5, v8")
    a("v_add_u32 v6, v3, v8")
    a("v_sub_u32 v7, v3, v8")
    a("s_cmp_eq_u32 s67, 0")
    a("s_cbranch_scc1 P1_NOSWAP")
    a("v_swap_b32 v6, v7")
    a.lab("P1_NOSWAP")
    def accF(rt, ul, mat): return ACC + 4 * ((rt * 3 + ul) * 2 + mat)
    def readsF(s, st):
        r = []
        order = [("w", 0, 0), ("x", 0, 0), ("w", 1, 0), ("x", 1, 0), ("x", 2, 0), ("x", 3, 0),
                 ("w", 0, 1), ("w", 1, 1), ("w", 0, 2), ("w", 1, 2)]
        for kind, p, ul in order:
            if kind == "x":
                r.append(f"ds_read_b128 {vr(xf(s, p), 4)}, v{4+st} offset:{p*2048}")
            else:
                base = 7 if ul == 1 else 6
                for hf in range(2):
                    off = p * WB + st * 6144 + hf * 768 + ul * 32
                    r.append(f"ds_read_b64_tr_b16 {vr(wf(s, 3*p+ul) + 2*hf, 2)}, v{base} offset:{off}")
        if opt("noread", 0): r = r[:1]
        return r
    def mfmasF(s):
        m = []
        for ul in range(3):
            for rt in range(4):
                for mat in range(2):
                    d = vr(accF(rt, ul, mat), 4)
                    m.append(f"v_mfma_f32_16x16x32_bf16 {d}, {vr(wf(s, 3*mat+ul), 4)}, {vr(xf(s, rt), 4)}, {d}")
        if opt("nomfma", 0): m = ["s_nop 0"] * len(m)
        return m
    for i in range(96):
        a(f"v_mov_b32 v{ACC+i}, 0")
    a("v_lshlrev_b32 v3, 4, v0")
    a("s_mul_i32 s69, s78, 6")
    a("s_mul_i32 s30, s67, 3")
    a("s_add_u32 s69, s69, s30")
    a("s_lshl_b32 s30, s56, 2")
    a("s_lshl_b32 s31, s66, 1")
    a("s_add_u32 s30, s30, s31")
    a(f"s_mul_i32 s30, s30, {NKS}")
    a("s_add_u32 s30, s30, s69")
    a("s_lshl_b32 s70, s30, 10")
    a(f"s_add_u32 s71, s70, {NKS*1024}")
    cons_start()
    if opt("fprio", 0): a(f"s_setprio {opt('fprio', 0)}")
    a("s_barrier")
    stamp(a, 2)
    LAD = opt("lad", 13)
    if LAD:
        r0 = readsF(0, 0)
        for r in r0[:8]:
            a(r)
        a.lab("P1_LOOPF")
        m = mfmasF(0)
        r1 = readsF(1, 1)
        adv = advance((4, 5, 6, 7))
        gaps = [[] for _ in range(24)]
        for i in range(8):
            gaps[i // 2].append(r0[8 + i])
        if HB:
            r1 = [x for x in r1 if "b128" in x] + [x for x in r1 if "b128" not in x]
            gaps[8].append("s_barrier")
        for i in range(16):
            gaps[4 + i].append(r1[i])
        for i, x in enumerate(adv[:4]):
            gaps[12 + i].append(x)
        for i, x in enumerate(adv[4:]):
            gaps[20 + min(i // 2, 3)].append(x)
        a("s_waitcnt lgkmcnt(3)")
        for i in range(24):
            if i == 2: a("s_waitcnt lgkmcnt(4)")
            if i == 8: a("s_waitcnt lgkmcnt(4)")
            a(m[i])
            for x in gaps[i]:
                a(x)
        a("s_waitcnt lgkmcnt(0)")
        a("s_cbranch_scc1 P1_LASTF")
        m1 = mfmasF(1)
        a(m1[0])
        a("s_cmp_eq_u32 s68, s73")
        a(m1[1])
        a("s_cbranch_scc1 P1_PUB")
        a.lab("P1_PUBR")
        weave(a, m1[2:], ["s_barrier"] + r0[:8], start=LAD - 2, per=1)
        a("s_branch P1_LOOPF")
        a.lab("P1_PUB")
        srd(a, 48, 26, 27, 256)
        a("v_mov_b32 v12, 1")
        a("s_and_b32 s30, s2, 7")
        a("s_lshl_b32 s30, s30, 2")
        a("s_mov_b64 exec, 1")
        a("s_waitcnt vmcnt(0)")
        a("s_setprio 3")
        a("buffer_store_dword v12, off, s[48:51], s30 sc0 sc1")
        a("s_setprio 0")
        a("s_mov_b64 exec, -1")
        a("s_branch P1_PUBR")
    else:
        for r in readsF(0, 0):
            a(r)
        a.lab("P1_LOOPF")
        a("s_waitcnt lgkmcnt(0)")
        weave(a, mfmasF(0), readsF(1, 1) + advance((4, 5, 6, 7)))
        a("s_waitcnt lgkmcnt(0)")
        a("s_cbranch_scc1 P1_LASTF")
        if BPOS:
            weave(a, mfmasF(1), ["s_barrier"] + readsF(0, 0), start=BPOS, per=2)
        else:
            weave(a, mfmasF(1), ["s_barrier"] + readsF(0, 0))
        a("s_branch P1_LOOPF")
    a.lab("P1_LASTF")
    weave(a, mfmasF(1), ["s_barrier"] + req_nonce() + ["s_waitcnt vmcnt(0)"])
    stamp(a, 3)
    if EPRIO: a(f"s_setprio {EPRIO}")
    if opt("gsw", 0):
        blocks = []
        st_ = []
        k = 0
        for ul in range(3):
            for uu in range(2):
                G = [accF(2*uu, ul, 0) + i for i in range(4)] + [accF(2*uu+1, ul, 0) + i for i in range(4)]
                U = [accF(2*uu, ul, 1) + i for i in range(4)] + [accF(2*uu+1, ul, 1) + i for i in range(4)]
                t = 56 + 8 * (k % 4)
                dst = 32 + 4 * k
                A = [f"v_pk_mul_f32 {vr(t+i,2)}, {vr(G[i],2)}, {vr(G[i],2)}" for i in range(0, 8, 2)]
                A += [f"v_pk_fma_f32 {vr(t+i,2)}, {vr(t+i,2)}, s[72:73], v[10:11] op_sel_hi:[1,0,0]" for i in range(0, 8, 2)]
                A += [f"v_pk_mul_f32 {vr(t+i,2)}, {vr(t+i,2)}, {vr(G[i],2)}" for i in range(0, 8, 2)]
                Bx = [f"v_exp_f32 v{t+i}, v{t+i}" for i in range(8)]
                C = [f"v_pk_mul_f32 {vr(G[i],2)}, {vr(G[i],2)}, {vr(U[i],2)}" for i in range(0, 8, 2)]
                C += [f"v_pk_add_f32 {vr(t+i,2)}, {vr(t+i,2)}, 1.0 op_sel_hi:[1,0]" for i in range(0, 8, 2)]
                Dx = [f"v_rcp_f32 v{t+i}, v{t+i}" for i in range(8)]
                Ee = [f"v_pk_mul_f32 {vr(G[i],2)}, {vr(G[i],2)}, {vr(t+i,2)}" for i in range(0, 8, 2)]
                Ee += [f"v_cvt_pk_bf16_f32 v{dst+i}, v{G[2*i]}, v{G[2*i+1]}" for i in range(4)]
                F = [f"v_permlane16_swap_b32 v{dst}, v{dst+2}", f"v_permlane16_swap_b32 v{dst+1}, v{dst+3}"]
                blocks.append((A, Bx, C, Dx, Ee, F))
                st_.append(f"buffer_store_dwordx4 {vr(dst,4)}, v3, s[44:47], s{70 + uu} offen offset:{ul*1024} sc1")
                k += 1
        def mix(tr, pl):
            n = max(len(tr), 1)
            pi = 0
            for i, x in enumerate(tr):
                a(x)
                want = len(pl) * (i + 1) // n
                while pi < want:
                    a(pl[pi]); pi += 1
            while pi < len(pl):
                a(pl[pi]); pi += 1
        g = lambda k, p: blocks[k][p] if 0 <= k < 6 else []
        for x in g(0, 0): a(x)
        for k in range(8):
            mix(g(k, 1), g(k - 1, 2) + g(k - 2, 4))
            mix(g(k - 1, 3), g(k + 1, 0) + (["s_nop 1"] if not g(k + 1, 0) and not g(k - 1, 3) else []) + g(k - 2, 5))
        a(f"s_setprio {PRIO}")
        for x in st_: a(x)
        a(f"s_setprio {EPRIO}")
    else:
        k = 0
        pend = []
        for ul in range(3):
            for uu in range(2):
                dst = 32 + 4 * k
                if k >= opt("skipg", 0): gelu_pair(a, accF(2*uu, ul, 0), accF(2*uu, ul, 1), accF(2*uu+1, ul, 0), accF(2*uu+1, ul, 1), 16 + 8 * (k & 1), dst)
                pend.append(f"buffer_store_dwordx4 {vr(dst,4)}, v3, s[44:47], s{70 + uu} offen offset:{ul*1024} sc1")
                k += 1
                if k > opt("burst", 5):
                    a(f"s_setprio {PRIO}")
                    for x in pend:
                        a(x)
                    pend = []
                    a(f"s_setprio {EPRIO}")
    stamp(a, 4)
    get_nonce(a, "F", 12)
    a("s_mul_i32 s61, s69, 47")
    a("s_lshr_b32 s61, s61, 10")
    a("s_add_u32 s31, s69, 2")
    a("s_mul_i32 s31, s31, 47")
    a("s_lshr_b32 s31, s31, 10")
    a("s_cmp_eq_u32 s31, s61")
    a("s_cselect_b32 s64, 1, 3")
    a("s_and_b32 s31, s56, 7")
    a("s_lshl_b32 s31, s31, 3")
    a("s_add_u32 s61, s61, s31")
    a("s_lshl_b32 s31, s66, 2")
    a("s_add_u32 s61, s61, s31")
    signal(a, 12, "s61", "s64")
    if GATE:
        a("s_barrier")
    a("s_branch P2_CONS")

    a.lab("P1_CSP")
    FS = [16, 64]
    ACC = 112
    AS = 240
    def xs(s, kk, u): return FS[s] + 4 * (4 * kk + u)
    def dfr(s, kk): return FS[s] + 32 + 4 * kk
    def ffr(s, kk): return FS[s] + 40 + 4 * kk
    def accD(st, u): return ACC + 16 * (4 * st + u)
    a("v_lshrrev_b32 v2, 5, v0")
    a("v_and_b32 v12, 31, v0")
    a("v_bfe_u32 v4, v0, 1, 3")
    a("v_xor_b32 v4, v4, v2")
    a("v_lshlrev_b32 v4, 4, v4")
    a("v_lshl_add_u32 v4, v12, 7, v4")
    a("v_xor_b32 v5, 32, v4")
    a("v_xor_b32 v6, 64, v4")
    a("v_xor_b32 v7, 0x60, v4")
    a("v_lshrrev_b32 v3, 2, v1")
    a("v_lshl_add_u32 v3, v2, 3, v3")
    a("v_bfe_u32 v14, v0, 4, 1")
    a("v_bfe_u32 v8, v0, 3, 2")
    a("v_xor_b32 v8, s3, v8")
    a("v_lshlrev_b32 v8, 5, v8")
    a("v_lshl_add_u32 v8, v3, 7, v8")
    a("v_lshl_add_u32 v8, v11, 3, v8")
    a("v_lshl_add_u32 v8, v14, 13, v8")
    a(f"v_add_u32 v8, {XB}, v8")
    a("v_lshlrev_b32 v9, 5, v3")
    a("v_lshl_add_u32 v9, v11, 3, v9")
    a(f"v_mul_u32_u24 v3, {2048 + 128}, v14")
    a("v_add_u32 v9, v9, v3")
    a(f"v_add_u32 v9, {XB + 16384}, v9")
    a("v_xor_b32 v3, 0x80, v9")
    a("v_and_b32 v14, 1, v0")
    a("v_mul_u32_u24 v14, 0x8000, v14")
    a("v_lshl_or_b32 v14, v14, 16, v14")
    def readsS(s, st):
        r = []
        for kk in range(2):
            for hf in range(2):
                r.append(f"ds_read_b64_tr_b16 {vr(dfr(s, kk) + 2*hf, 2)}, v8 offset:{(2*st+kk)*2048 + hf*512}")
        for u in range(4):
            r.append(f"ds_read_b128 {vr(xs(s, 0, u), 4)}, v{4+2*st} offset:{u*4096}")
        for kk in range(2):
            for hf in range(2):
                r.append(f"ds_read_b64_tr_b16 {vr(ffr(s, kk) + 2*hf, 2)}, v{9 if hf == 0 else 3} offset:{(2*st+kk)*512}")
        for u in range(4):
            r.append(f"ds_read_b128 {vr(xs(s, 1, u), 4)}, v{5+2*st} offset:{u*4096}")
        return r
    def allS(s, st, cw):
        m = []
        for kk in range(2):
            for u in range(4):
                d = vr(accD(st, u), 16)
                m.append(f"v_mfma_f32_32x32x16_bf16 {d}, {vr(xs(s, kk, u), 4)}, {vr(dfr(s, kk), 4)}, {d}")
            m.append(f"v_mfma_f32_32x32x16_bf16 {vr(AS,16)}, {vr(ffr(s, kk), 4)}, {vr(xs(s, kk, cw), 4)}, {vr(AS,16)}")
        return m
    def xors(s):
        return ["s_waitcnt lgkmcnt(12)"] + [f"v_xor_b32 v{dfr(s,0)+i}, v13, v{dfr(s,0)+i}" for i in range(8)]
    def weave2(mf, fill):
        n = len(mf) - 1
        fi = 0
        for i, m in enumerate(mf):
            a(m)
            want = min(len(fill), -(-len(fill) * (i + 1) // n))
            while fi < want:
                a(fill[fi]); fi += 1
    for i in range(144):
        a(f"v_mov_b32 v{ACC+i}, 0")
    a("v_cvt_f32_u32 v16, v12")
    a(f"v_mul_f32 v16, {f32(1.0/32)}, v16")
    a("v_lshlrev_b32 v18, 2, v2")
    a("v_cvt_f32_u32 v18, v18")
    for k in range(2):
        for j in range(8):
            s1 = 16 * k + 8 * (j >> 2) + (j & 3)
            a(f"v_add_f32 v19, {f32(float(s1))}, v18")
            a("v_mul_f32 v19, v19, v16")
            a(f"v_cos_f32 v{20+j}, v19")
            a(f"v_sin_f32 v{28+j}, v19")
        a("s_nop 0")
        for i in range(4):
            a(f"v_cvt_pk_bf16_f32 v{40+4*k+i}, v{20+2*i}, v{21+2*i}")
            a(f"v_cvt_pk_bf16_f32 v{48+4*k+i}, v{28+2*i}, v{29+2*i}")
    a("v_lshlrev_b32 v11, 4, v0")
    a(f"v_add_u32 v11, {F1_LDS}, v11")
    for i in range(4):
        a(f"ds_write_b128 v11, {vr(40+4*i,4)} offset:{i*1024}")
    cons_start()
    a("s_waitcnt vmcnt(0) lgkmcnt(0)")
    a("v_mov_b32 v13, 0")
    if opt("sprio", 0): a(f"s_setprio {opt('sprio', 0)}")
    a("s_barrier")
    stamp(a, 2)
    def kreads(ks):
        s, kk = ks >> 1, ks & 1
        r = [f"ds_read_b64_tr_b16 {vr(dfr(s, kk) + 2*hf, 2)}, v8 offset:{ks*2048 + hf*512}" for hf in range(2)]
        r += [f"ds_read_b128 {vr(xs(s, kk, u), 4)}, v{4+ks} offset:{u*4096}" for u in range(4)]
        r += [f"ds_read_b64_tr_b16 {vr(ffr(s, kk) + 2*hf, 2)}, v{9 if hf == 0 else 3} offset:{ks*512}" for hf in range(2)]
        return r
    def kmf(ks, cw):
        return allS(ks >> 1, ks >> 1, cw)[5 * (ks & 1): 5 * (ks & 1) + 5]
    def kxor(ks):
        d = dfr(ks >> 1, ks & 1)
        return [f"v_xor_b32 v{d+i}, v13, v{d+i}" for i in range(4)]
    def kstep(ks, cw, reads, pre, extra, wait0, xr=True):
        m = kmf(ks, cw)
        a(f"s_waitcnt lgkmcnt({wait0})")
        cnt = [2, 2, 2, 1, 1]
        ri = 0
        for g in range(5):
            a(m[g])
            if g == 0:
                for x in pre: a(x)
            for _ in range(cnt[g]):
                if ri < len(reads):
                    a(reads[ri]); ri += 1
            if g == 2 and xr:
                a(f"s_waitcnt lgkmcnt({6 + ri})")
                for x in kxor((ks + 1) & 3)[:2]: a(x)
            if g == 3 and xr:
                for x in kxor((ks + 1) & 3)[2:]: a(x)
            for x in extra[g]: a(x)
    for r in kreads(0) + kreads(1):
        a(r)
    F1 = 16
    for cw in (1, 2, 3):
        a(f"s_cmp_eq_u32 s3, {cw}")
        a(f"s_cbranch_scc1 P1_LOOPS{cw}")
    lastfill = ([f"ds_read_b128 {vr(F1+4*i,4)}, v11 offset:{i*1024}" for i in range(4)] +
                ["s_lshl_b32 s30, s56, 2", "s_add_u32 s30, s30, s3", f"s_mul_i32 s30, s30, {NKS}", "s_add_u32 s30, s30, s59",
                 "s_add_u32 s30, s30, 84", "s_lshl_b32 s70, s30, 10",
                 f"s_mul_i32 s69, s56, {EP*16}", f"s_add_u32 s69, s69, 0x{C_OFF:x}",
                 "s_waitcnt lgkmcnt(0)", "s_barrier"] + req_nonce() + [f"v_xor_b32 v{F1+16+i}, 0x80008000, v{F1+i}" for i in range(8)])
    E = lambda *l: list(l)
    for cw in range(4):
        a.lab(f"P1_LOOPS{cw}")
        kstep(0, cw, kreads(2), [], [E("s_add_u32 s68, s68, 1"), E("s_and_b32 s30, s68, 3"), E(), E("s_cmp_eq_u32 s30, 0"),
                                     E("s_cselect_b32 s30, s82, s83", "v_add_u32 v4, s30, v4")], 8)
        kstep(1, cw, kreads(3), [], [E("v_add_u32 v5, s30, v5"), E("v_add_u32 v8, s30, v8"), E(), E("v_add_u32 v6, s30, v6"),
                                     E("v_add_u32 v9, s30, v9", "v_add_u32 v3, s30, v3", "s_cmp_eq_u32 s68, 8")], 8)
        a(f"s_cbranch_scc1 P1_LASTS{cw}")
        kstep(2, cw, kreads(0), ["s_barrier"], [E(), E("v_add_u32 v7, s30, v7"), E(), E("s_cmp_ge_u32 s68, 4"),
                                                E("s_cselect_b32 s31, -1, 0", "v_and_b32 v13, s31, v14")], 8)
        kstep(3, cw, kreads(1), [], [E(), E(), E(), E(), E()], 8)
        a(f"s_branch P1_LOOPS{cw}")
        a.lab(f"P1_LASTS{cw}")
        kstep(2, cw, lastfill[:4], [], [E(), lastfill[4:8], E(), E(), lastfill[8:12]], 8)
        kstep(3, cw, [], lastfill[13:15], [E(), lastfill[15:19], lastfill[19:23], E(), E()], 0, xr=False)
        if cw != 3:
            a("s_branch P1_LASTS")
    a.lab("P1_LASTS")
    stamp(a, 3)
    if EPRIO: a(f"s_setprio {EPRIO}")
    TS = 16 * EP * 16
    a("v_lshlrev_b32 v3, 4, v0")
    a("s_lshl_b32 s30, s59, 6")
    a("s_lshl_b32 s31, s3, 4")
    a("s_add_u32 s30, s30, s31")
    a("v_bfe_u32 v5, v0, 4, 1")
    a("v_lshl_add_u32 v4, v5, 7, v1")
    a("v_add_u32 v4, s30, v4")
    a(f"s_mov_b32 s31, {4*TS}")
    a("v_mul_lo_u32 v6, v2, s31")
    a("v_lshl_add_u32 v4, v4, 4, v6")
    a("v_mul_u32_u24 v5, 0x8000, v5")
    a("v_lshl_or_b32 v5, v5, 16, v5")
    a("v_mov_b32 v6, -1")
    BF, TM, XF, CK, TM2, HD = 40, 72, 80, 96, 80, 100
    for x in gelu8([AS+i for i in range(8)], [AS+8+i for i in range(8)], TM, HD, 32):
        a(x)
    a(f"s_setprio {PRIO}")
    a(f"buffer_store_dwordx4 {vr(HD,4)}, v3, s[44:47], s70 offen sc1")
    a(f"s_setprio {EPRIO}")
    a("s_cmp_lg_u32 s30, 0")
    a("s_cbranch_scc1 P1_NOX")
    a("v_cmp_ne_u32 vcc, 0, v1")
    a(f"s_mov_b32 s31, {TS}")
    a("v_mul_lo_u32 v7, v0, s31")
    a("v_cndmask_b32 v6, 0, v6, vcc")
    for u in range(4):
        for st in range(2):
            dst = XF + 8 * st if u == 0 else TM
            for i in range(8):
                a(f"v_cvt_pk_bf16_f32 v{dst+i}, v{accD(st,u)+2*i}, v{accD(st,u)+2*i+1}")
            if u:
                for i in range(8):
                    a(f"v_mov_b32_dpp v{XF+8*st+i}, v{TM+i} row_shr:{u} row_mask:0xa bank_mask:0x1")
    a("s_nop 1")
    for comp in range(2):
        o = vr(BF + 16 * comp, 16)
        for half in range(2):
            for k in range(2):
                c = "0" if (half == 0 and k == 0) else o
                a(f"v_mfma_f32_32x32x16_bf16 {o}, {vr(XF+8*half+4*k,4)}, {vr(F1+8*(comp+half)+4*k,4)}, {c}")
    a(f"s_add_u32 s30, s69, {256*16}")
    a("s_nop 11")
    for comp in range(2):
        a(f"v_cvt_pk_bf16_f32 v{CK+2*comp}, v{BF+16*comp+8}, v{BF+16*comp+9}")
        a(f"v_cvt_pk_bf16_f32 v{CK+2*comp+1}, v{BF+16*comp+10}, v{BF+16*comp+11}")
    a("s_mov_b32 exec_hi, 0")
    a(f"buffer_store_dwordx4 {vr(CK,4)}, v7, s[44:47], s30 offen sc1")
    a("s_mov_b32 exec_hi, -1")
    a.lab("P1_NOX")
    def bfly(u):
        r_ = []
        A = BF + 16 * (u & 1)
        B = A + 8
        E, T = accD(0, u), accD(1, u)
        for r in range(0, 16, 2):
            r_.append(f"v_pk_add_f32 {vr(TM2+r,2)}, {vr(E+r,2)}, {vr(T+r,2)}")
            r_.append(f"v_pk_add_f32 {vr(T+r,2)}, {vr(E+r,2)}, {vr(T+r,2)} neg_lo:[0,1] neg_hi:[0,1]")
        for i in range(8):
            r_.append(f"v_cvt_pk_bf16_f32 v{A+i}, v{TM2+2*i}, v{TM2+2*i+1}")
            r_.append(f"v_cvt_pk_bf16_f32 v{B+i}, v{T+2*i}, v{T+2*i+1}")
        for i in range(8):
            r_.append(f"v_permlane16_swap_b32 v{A+i}, v{B+i}")
        for i in range(8):
            r_.append(f"v_bitop3_b32 v{B+i}, v{B+i}, v5, v6 bitop3:0x28")
        return r_
    def st1(u):
        m = []
        A = BF + 16 * (u & 1)
        for half in range(2):
            for k in range(2):
                for comp in range(2):
                    o = vr(accD(comp, u), 16)
                    c = "0" if (half == 0 and k == 0) else o
                    m.append(f"v_mfma_f32_32x32x16_bf16 {o}, {vr(F1+8*(comp+half)+4*k,4)}, {vr(A+8*half+4*k,4)}, {c}")
        return m
    for x in bfly(0):
        a(x)
    for u in range(4):
        weave(a, st1(u), bfly(u + 1) if u < 3 else [], per=6)
        if u == 1:
            get_nonce(a, "S", 12)
            a("s_and_b32 s61, s56, 7")
            a("s_lshl_b32 s61, s61, 3")
            a("s_lshl_b32 s31, s66, 2")
            a("s_add_u32 s61, s61, s31")
            a("s_add_u32 s61, s61, 3")
            signal(a, 12, "s61")
    a(f"s_setprio {PRIO}")
    stamp(a, 11)
    a("s_nop 8")
    for r in range(16):
        d = BF + 4 * (r & 7)
        a(f"v_cvt_pk_bf16_f32 v{d}, v{accD(0,0)+r}, v{accD(0,1)+r}")
        a(f"v_cvt_pk_bf16_f32 v{d+1}, v{accD(0,2)+r}, v{accD(0,3)+r}")
        a(f"v_cvt_pk_bf16_f32 v{d+2}, v{accD(1,0)+r}, v{accD(1,1)+r}")
        a(f"v_cvt_pk_bf16_f32 v{d+3}, v{accD(1,2)+r}, v{accD(1,3)+r}")
        a(f"s_add_u32 s30, s69, {(8*(r >> 2) + (r & 3))*TS}")
        if not opt("abl_cs", 0): a(f"buffer_store_dwordx4 {vr(d,4)}, v4, s[44:47], s30 offen sc1")
    stamp(a, 4)
    if opt("shold", 0):
        a("s_barrier")
    a("s_lshl_b32 s61, s59, 2")
    a("s_add_u32 s61, s61, s3")
    a(f"s_mul_i32 s61, s61, {NREP}")
    a(f"s_add_u32 s61, s61, {CT_C}")
    signal(a, 12, "s61", "-1")

    a.lab("P2_CONS")
    a("v_mov_b32 v56, 16")
    if EPRIO: a("s_setprio 0")
    stamp(a, 5)
    p2_ids(a)
    YA, CF, MF, PR, GV = 64, 80, 112, 144, 60
    a("v_lshrrev_b32 v8, 5, v0")
    a("v_and_b32 v9, 31, v0")
    a("s_lshl_b32 s31, s93, 6")
    a("s_lshl_b32 s61, s67, 5")
    a("s_add_u32 s31, s31, s61")
    a("s_lshl_b32 s30, s66, 5")
    a("s_add_u32 s30, s30, s92")
    a("v_lshlrev_b32 v12, 6, v9")
    a("v_add_u32 v12, s30, v12")
    a("v_lshrrev_b32 v11, 1, v9")
    a("v_lshlrev_b32 v11, 7, v11")
    a("v_and_b32 v4, 1, v9")
    a("v_lshl_add_u32 v11, v4, 2, v11")
    a("s_lshl_b32 s61, s30, 11")
    a("v_add_u32 v11, s61, v11")
    a("s_lshr_b32 s64, s30, 2")
    a("s_sub_u32 s61, 32, s92")
    a("s_and_b32 s61, s61, 31")
    a("s_sub_u32 s65, 481, s31")
    a("s_cmp_ge_u32 s93, 4")
    a("s_cselect_b32 s69, s61, s92")
    a("s_cselect_b64 vcc, -1, 0")
    a("s_cselect_b32 s73, 1.0, -1.0")
    a("s_cselect_b32 s65, s65, s31")
    a("v_add_u32 v4, s31, v9")
    a("v_sub_u32 v5, 0x200, v4")
    a("v_cndmask_b32 v4, v4, v5, vcc")
    a("v_lshrrev_b32 v6, 4, v0")
    a("v_lshlrev_b32 v6, 4, v6")
    a("v_min_u32 v6, 31, v6")
    a("v_add_u32 v6, s65, v6")
    for v in (4, 6):
        a(f"v_sub_u32 v5, 384, v{v}")
        a(f"v_cmp_gt_u32 vcc, 128, v{v}")
        a("s_nop 1")
        a(f"v_cndmask_b32 v{v}, v5, v{v}, vcc")
    a(f"v_mul_u32_u24 v5, {8*EP}, v8")
    a("v_add_u32 v4, v4, v5")
    a("v_lshlrev_b32 v4, 4, v4")
    a(f"s_mul_i32 s69, s69, {16*EP*16}")
    a(f"s_add_u32 s69, s69, 0x{C_OFF:x}")
    a("v_bfe_u32 v6, v6, 4, 3")
    a("s_lshr_b32 s61, s2, 1")
    a("s_xor_b32 s61, s61, s2")
    a("s_lshl_b32 s64, s66, 4")
    a("s_add_u32 s61, s61, s64")
    a(f"s_and_b32 s61, s61, {NREP-1}")
    a(f"s_add_u32 s61, s61, {CT_C}")
    a("v_lshl_add_u32 v6, v6, 5, s61")
    a(f"s_add_u32 s61, s30, {CT_G}")
    a("v_mov_b32 v5, s61")
    a("v_cmp_gt_u32 vcc, 48, v0")
    a("s_nop 1")
    a("v_cndmask_b32 v6, v5, v6, vcc")
    a("v_lshlrev_b32 v6, 7, v6")
    a("v_cvt_f32_u32 v9, v12")
    a(f"v_mul_f32 v9, {f32(1.0/2048)}, v9")
    a("v_mul_f32 v9, s73, v9")
    a("v_lshlrev_b32 v10, 5, v8")
    a("v_cvt_f32_u32 v10, v10")
    a("v_mul_f32 v10, v10, v9")
    T = 16
    for i in range(8):
        for c in range(4):
            a(f"v_cos_f32 v{T+c}, v10")
            a(f"v_sin_f32 v{T+4+c}, v10")
            a("v_add_f32 v10, v10, v9")
        for c in range(4):
            a(f"v_cvt_pk_bf16_f32 v{MF+4*i+c}, v{T+2*c}, v{T+2*c+1}")
    final_setup(248)
    a(f"s_mul_i32 s30, s3, {PIECE}")
    a("s_add_u32 s30, s30, 4096")
    a("v_lshlrev_b32 v5, 4, v0")
    a("v_add_u32 v240, s30, v5")
    for qd in range(1, 4):
        a(f"v_xor_b32 v{240+qd}, {64*qd}, v240")
    a("v_and_b32 v5, 31, v0")
    a("s_lshl_b32 s30, s66, 7")
    a("v_lshl_add_u32 v244, v5, 2, s30")
    stamp(a, 6)
    if not opt("pollfirst", 0) and KB >= 0:
        a("s_barrier")
    a(f"s_setprio {opt('cprio', 3)}")
    poll(a, "C", 6, 56, 58, 0x0001000100010001, sleep=opt("csleep", 0))
    stamp(a, 7)
    if opt("pollfirst", 0):
        a("s_barrier")
    for i in range(8):
        a(f"s_add_u32 s70, s69, {i*EP*16}")
        if not opt("abl_cl", 0): a(f"buffer_load_dwordx4 {vr(CF + 4*i, 4)}, v4, s[44:47], s70 offen sc1")
    a(f"s_mov_b32 s70, 0x{G_OFF:x}")
    a(f"buffer_load_dword v{GV}, v11, s[44:47], s70 offen sc1")
    for i in range(8):
        a(f"s_waitcnt vmcnt({8 - i})")
        c = "0" if i == 0 else vr(YA, 16)
        a(f"v_mfma_f32_32x32x16_bf16 {vr(YA,16)}, {vr(CF+4*i,4)}, {vr(MF+4*i,4)}, {c}")
    a("s_waitcnt vmcnt(0)")
    a(f"v_sub_f32 v{GV+2}, 1.0, v{GV}")
    a(f"v_cvt_pk_bf16_f32 v{GV+2}, v{GV+2}, v{GV+2}")
    a(f"v_lshlrev_b32 v{GV+2}, 16, v{GV+2}")
    a(f"ds_write_b32 v244, v{GV+2} offset:8192")
    a("s_nop 6")
    for qd in range(4):
        for r in (4*qd, 4*qd + 2):
            a(f"v_pk_mul_f32 {vr(YA+r,2)}, {vr(YA+r,2)}, {vr(GV,2)} op_sel_hi:[1,0]")
        a(f"ds_write_b128 v{240+qd}, {vr(YA+4*qd,4)} offset:{qd*1024}")
    a("s_waitcnt lgkmcnt(0)")
    stamp(a, 8)
    final_stage(248, 144)
    stamp(a, 9)
    stamp_flush(a)
    if opt("spin", 0):
        if opt("spinall", 0) == 0:
            a("s_or_b32 s30, s2, s3")
            a("s_cbranch_scc1 K_END")
        a.lab("SPIN_L")
        a("s_memrealtime s[92:93]")
        a("s_waitcnt lgkmcnt(0)")
        a("s_sub_u32 s92, s92, s90")
        a(f"s_cmp_lt_u32 s92, {opt('spin', 0)}")
        a("s_cbranch_scc1 SPIN_L")
    a.lab("K_END")
    a("s_endpgm")

HEADER = open("cdna_kernels/" + NAME + ".s.ref").read().split("; Override launch")[0]

DOC = """; One launch, 256 workgroups (one per CU), 4 loader waves + 4 compute waves each.
"""

def main():
    nm = NAME + "_kernel"
    out = HEADER
    out += f"; @launch grid=(256,1,1) block=(512,1,1) lds={4*SLOT}\n"
    out += '.amdgcn_target "amdgcn-amd-amdhsa--gfx950"\n'
    out += DOC
    out += '.text\n'
    a = Asm()
    out += f".globl {nm}\n.p2align 8\n.type {nm},@function\n"
    kernel(a)
    out += a.text()
    out += f""".section .rodata,"a"
.p2align 6
.amdhsa_kernel {nm}
  .amdhsa_next_free_vgpr 256
  .amdhsa_next_free_sgpr 102
  .amdhsa_accum_offset 256
  .amdhsa_group_segment_fixed_size 0
  .amdhsa_kernarg_size 104
  .amdhsa_user_sgpr_count 2
  .amdhsa_user_sgpr_kernarg_segment_ptr 1
  .amdhsa_system_sgpr_workgroup_id_x 1
.end_amdhsa_kernel
"""
    path = [x for x in sys.argv[1:] if not x.startswith("--")][0]
    open(path, "w").write(out)

main()
```

```python
import sys, math, struct

NAME = "gated_mix__spectral_fnet__geglu_ffn__prompt"
STAMP = "--stamp" in sys.argv
def opt(name, default):
    for x in sys.argv:
        if x.startswith("--" + name + "="):
            return int(x.split("=")[1])
    return default
RA = opt("ra", 1); RB = opt("rb", 2); RM = opt("rm", 6)
RJ = opt("rj", 2); RI = opt("ri", 6)
NPRE = opt("npre", 0)
D2 = opt("d2", 8)
WTH = opt("wth", 64)
PRIO = opt("prio", 3)
EPRIO = opt("eprio", 1)
KB = opt("kb", 10)
LA2 = opt("la2", 9)
N0A = opt("n0a", 3)
N0B = opt("n0b", 2)
WNT = "nt" if opt("wnt", 0) else ""
XNT = "nt" if opt("xnt", 0) else ""
PK = opt("pk", 1)
N1 = opt("n1", 20)
DIRECT = opt("direct", 4)
TAILV = opt("tailv", 1)
LAI = opt("lai", 7)
LAS = opt("las", 9)
BPOS = opt("bpos", 8)
SG = opt("sg", 0)
HB = opt("hb", 0)
GATE = opt("gate", 0)
GDEL = opt("gdel", 0)
CPF = opt("cpf", 1)
PFW = opt("pfw", 1)
LSLEEP = opt("lsleep", 0)
SPINMAX = 400000

NKS = 86
EP = 264
C_OFF = 0x600000
G_OFF = 0x8e0000
FL_OFF = 0x910000
CT_H, CT_G, CT_C = 0, 64, 128
NCT = 384
NREP = 32
WS_USED = 0x920000
ST_OFF = 0x1000000

def f32(x):
    return "0x%08x" % struct.unpack("<I", struct.pack("<f", x))[0]

class Asm:
    def __init__(self):
        self.l = []
    def __call__(self, s):
        self.l.append("    " + s)
    def lab(self, s):
        self.l.append(s + ":")
    def text(self):
        return "\n".join(self.l) + "\n"

def vr(b, n=1):
    return f"v{b}" if n == 1 else f"v[{b}:{b+n-1}]"

def srd(a, d, lo, hi, nbytes):
    a(f"s_mov_b32 s{d}, s{lo}")
    a(f"s_mov_b32 s{d+1}, s{hi}")
    a(f"s_mov_b32 s{d+2}, 0x{nbytes:x}")
    a(f"s_mov_b32 s{d+3}, 0x20000")

SV = 15
def stamp(a, idx):
    if not STAMP:
        return
    a("s_memrealtime s[62:63]")
    a("s_waitcnt lgkmcnt(0)")
    a(f"v_writelane_b32 v{SV}, s62, {idx}")

def stamp_flush(a):
    if not STAMP:
        return
    a("s_lshl_b32 s60, s2, 3")
    a("s_add_u32 s60, s60, s95")
    a("s_lshl_b32 s60, s60, 8")
    a(f"s_add_u32 s60, s60, 0x{ST_OFF:x}")
    a("v_lshlrev_b32 v14, 2, v0")
    a(f"buffer_store_dword v{SV}, v14, s[44:47], s60 offen")

def weave(a, mf, fill, start=0, per=1):
    fi = 0
    for i, m in enumerate(mf):
        a(m)
        if i >= start:
            for _ in range(per):
                if fi < len(fill):
                    a(fill[fi]); fi += 1
    while fi < len(fill):
        a(fill[fi]); fi += 1

C1 = -2.0 * math.sqrt(2.0 / math.pi) * math.log2(math.e)
C2 = C1 * 0.044715

def gelu8(G, U, t, dst, swap):
    r = []
    for i in range(0, 8, 2): r.append(f"v_pk_mul_f32 {vr(t+i,2)}, {vr(G[i],2)}, {vr(G[i],2)}")
    for i in range(0, 8, 2): r.append(f"v_pk_fma_f32 {vr(t+i,2)}, {vr(t+i,2)}, s[72:73], v[10:11] op_sel_hi:[1,0,0]")
    for i in range(0, 8, 2): r.append(f"v_pk_mul_f32 {vr(t+i,2)}, {vr(t+i,2)}, {vr(G[i],2)}")
    for i in range(8):
        r.append(f"v_exp_f32 v{t+i}, v{t+i}")
        if i & 1: r.append(f"v_pk_mul_f32 {vr(G[i-1],2)}, {vr(G[i-1],2)}, {vr(U[i-1],2)}")
    for i in range(0, 8, 2): r.append(f"v_pk_add_f32 {vr(t+i,2)}, {vr(t+i,2)}, 1.0 op_sel_hi:[1,0]")
    for i in range(8): r.append(f"v_rcp_f32 v{t+i}, v{t+i}")
    for i in range(0, 8, 2): r.append(f"v_pk_mul_f32 {vr(G[i],2)}, {vr(G[i],2)}, {vr(t+i,2)}")
    for i in range(4): r.append(f"v_cvt_pk_bf16_f32 v{dst+i}, v{G[2*i]}, v{G[2*i+1]}")
    r.append("s_nop 1")
    r.append(f"v_permlane{swap}_swap_b32 v{dst}, v{dst+2}")
    r.append(f"v_permlane{swap}_swap_b32 v{dst+1}, v{dst+3}")
    return r

def gelu_pair(a, g0, u0, g1, u1, t, dst):
    G = [g0 + i for i in range(4)] + [g1 + i for i in range(4)]
    U = [u0 + i for i in range(4)] + [u1 + i for i in range(4)]
    for x in gelu8(G, U, t, dst, 16):
        a(x)

SLOT = 40960
XB = 16384
WB = 12288
F1_LDS = 3 * SLOT + 36864
NST = 22
PIECE = 10240


def p2_ids(a):
    if opt("m8", 0):
        a("s_lshr_b32 s31, s2, 3")
        a("s_lshr_b32 s93, s31, 3")
        if opt("jx8", 0): a(f"s_xor_b32 s93, s93, {opt('jx8', 0)}")
        a("s_and_b32 s31, s31, 7")
        a("s_and_b32 s92, s2, 6")
        a("s_lshl_b32 s92, s92, 2")
        a("s_add_u32 s92, s92, s31")
        a(f"s_mul_i32 s94, s31, {opt('ri8', 3)}")
        a(f"s_and_b32 s30, s93, {opt('rm8', 3)}")
        a(f"s_mul_i32 s30, s30, {opt('rj8', 0)}")
        a("s_add_u32 s94, s94, s30")
        a("s_and_b32 s30, s2, 1")
        a("s_lshl_b32 s30, s30, 2")
        a("s_add_u32 s93, s93, s30")
        a(f"s_sub_u32 s30, s94, {NST}")
        a(f"s_cmp_ge_u32 s94, {NST}")
        a("s_cselect_b32 s94, s30, s94")
        return
    a("s_and_b32 s30, s2, 7")
    a("s_lshr_b32 s31, s2, 3")
    a("s_lshr_b32 s93, s31, 2")
    if opt("jx", 5): a(f"s_xor_b32 s93, s93, {opt('jx', 5)}")
    a("s_and_b32 s31, s31, 3")
    a(f"s_mul_i32 s94, s31, {RI}")
    a("s_sub_u32 s61, 0, s30")
    a("s_bitcmp1_b32 s31, 0")
    a("s_cselect_b32 s92, s61, s30")
    a("s_cselect_b32 s61, 8, 0")
    a("s_cmp_eq_u32 s30, 0")
    a("s_cselect_b32 s92, s61, s92")
    a("s_lshr_b32 s31, s31, 1")
    a("s_lshl_b32 s31, s31, 4")
    a("s_add_u32 s92, s92, s31")
    a("s_and_b32 s92, s92, 31")
    a(f"s_mul_i32 s30, s93, {RJ}")
    a("s_add_u32 s94, s94, s30")
    a(f"s_sub_u32 s30, s94, {NST}")
    a(f"s_cmp_ge_u32 s94, {NST}")
    a("s_cselect_b32 s94, s30, s94")

def req_nonce():
    return ["s_load_dwordx8 s[4:11], s[26:27], 0"]

def get_nonce(a, tag, vt):
    a("s_waitcnt lgkmcnt(0)")
    a("s_and_b64 s[4:5], s[4:5], s[6:7]")
    a("s_and_b64 s[8:9], s[8:9], s[10:11]")
    a("s_and_b64 s[4:5], s[4:5], s[8:9]")
    a("s_and_b32 s4, s4, s5")
    a(f"s_cbranch_scc1 NOK{tag}")
    srd(a, 48, 26, 27, 256)
    a("s_mov_b32 s61, 0")
    a(f"v_lshlrev_b32 v{vt+1}, 2, v0")
    a("s_mov_b64 exec, 0xff")
    a.lab(f"NL{tag}")
    a(f"v_mov_b32 v{vt}, 0")
    a(f"buffer_atomic_add v{vt}, v{vt+1}, s[48:51], 0 offen sc0 sc1")
    a("s_add_u32 s61, s61, 1")
    a(f"s_cmp_gt_u32 s61, {SPINMAX}")
    a("s_waitcnt vmcnt(0)")
    a(f"s_cbranch_scc1 NX{tag}")
    a(f"v_cmp_eq_u32 vcc, 0, v{vt}")
    a(f"s_cbranch_vccnz NL{tag}")
    a.lab(f"NX{tag}")
    a("s_mov_b64 exec, -1")
    a.lab(f"NOK{tag}")

def signal(a, vt, sidx, smask=None, cnt=0, lo=None, val="1"):
    a(f"s_lshl_b32 s30, {sidx}, 7")
    a(f"s_add_u32 s30, s30, 0x{FL_OFF:x}")
    a(f"v_mov_b32 v{vt}, {val}")
    a(f"v_lshlrev_b32 v{vt+1}, 7, v0")
    a(f"s_waitcnt vmcnt({cnt})")
    if smask is None:
        a("s_mov_b64 exec, 1")
    else:
        a(f"s_mov_b32 exec_lo, {smask}")
        a("s_mov_b32 exec_hi, 0")
    a(f"s_setprio {PRIO}")
    a(f"buffer_atomic_add v{vt}, v{vt+1}, s[44:47], s30 offen sc1")
    a(f"s_setprio {EPRIO if lo is None else lo}")
    a("s_mov_b64 exec, -1")

def poll(a, tag, vaddr, vexp, vt, mask, sleep=0):
    a(f"s_mov_b32 s30, 0x{FL_OFF:x}")
    a("s_mov_b32 s61, 0")
    a(f"s_mov_b32 exec_lo, 0x{mask & 0xffffffff:x}")
    a(f"s_mov_b32 exec_hi, 0x{mask >> 32:x}")
    a.lab(f"PL{tag}")
    a(f"v_mov_b32 v{vt}, 0")
    a(f"buffer_atomic_add v{vt}, v{vaddr}, s[44:47], s30 offen sc0 sc1")
    a("s_add_u32 s61, s61, 1")
    a(f"s_cmp_gt_u32 s61, {SPINMAX}")
    a("s_waitcnt vmcnt(0)")
    a(f"s_cbranch_scc1 PD{tag}")
    a(f"v_cmp_ne_u32 vcc, v{vt}, v{vexp}")
    if sleep:
        a(f"s_cbranch_vccz PD{tag}")
        a(f"s_sleep {sleep}")
        a(f"s_branch PL{tag}")
    else:
        a(f"s_cbranch_vccnz PL{tag}")
    a.lab(f"PD{tag}")
    a("s_mov_b64 exec, -1")

def kernel(a):
    a.lab(NAME + "_kernel")
    a("s_cmp_ge_u32 s2, 256")
    a("s_cbranch_scc1 K_END")
    a("s_load_dwordx2 s[32:33], s[0:1], 0")
    a("s_load_dwordx16 s[4:19], s[0:1], 0")
    a("s_load_dwordx8 s[20:27], s[0:1], 64")
    a("s_load_dwordx2 s[28:29], s[0:1], 96")
    if STAMP or opt("spin", 0):
        a("s_memrealtime s[90:91]")
    a("v_lshrrev_b32 v1, 6, v0")
    a("v_and_b32 v0, 63, v0")
    a("v_readfirstlane_b32 s95, v1")
    CPE = opt('cpe', 1)
    def cpf_block(reg, val):
      if CPF:
          a(f"s_cmp_lg_u32 {reg}, {val}")
          a("s_cbranch_scc1 NOCPF")
          a("s_getpc_b64 s[84:85]")
          a.lab("CPF_PC")
          a(f"s_sub_u32 s84, s84, CPF_PC-{NAME}_kernel")
          a("s_subb_u32 s85, s85, 0")
          a("s_lshr_b32 s30, s2, 3")
          a("s_lshl_b32 s30, s30, 10")
          a("v_and_b32 v1, 7, v0")
          a("v_lshl_add_u32 v1, v1, 7, s30")
          a(f"v_min_u32 v1, K_END-{NAME}_kernel, v1")
          a("v_mov_b32 v3, s85")
          a("v_add_co_u32 v2, vcc, s84, v1")
          a("s_nop 1")
          a("v_addc_co_u32 v3, vcc, 0, v3, vcc")
          a("s_mov_b64 exec, 0xff")
          a("global_load_dword v13, v[2:3], off")
          a("s_mov_b64 exec, -1")
          a.lab("NOCPF")
    if CPE:
        cpf_block('s95', 4)
    if opt("r3", 0):
        starts = {1: [0, 3, 6], 2: [0, 3, 5], 3: [1, 4, 6], 4: [0, 2, 5]}[opt("r3", 0)]
        tab = sum(starts[v % 3] << (4 * v) for v in range(11))
        a(f"s_mov_b32 s96, 0x{tab & 0xffffffff:x}")
        a(f"s_mov_b32 s97, 0x{tab >> 32:x}")
    a("s_lshr_b32 s31, s2, 3")
    a("s_and_b32 s56, s2, 1")
    a("s_lshl_b32 s56, s56, 3")
    a("s_and_b32 s74, s31, 7")
    a("s_add_u32 s56, s56, s74")
    a("s_and_b32 s57, s2, 6")
    a("s_lshl_b32 s57, s57, 1")
    a("s_lshr_b32 s75, s31, 3")
    a("s_add_u32 s57, s57, s75")
    if opt("r3", 0):
        a("s_add_u32 s74, s74, s75")
        a("s_lshl_b32 s74, s74, 2")
        a(f"s_lshr_b64 s[74:75], s[96:97], s74")
        a("s_and_b32 s74, s74, 7")
    else:
        a(f"s_mul_i32 s74, s74, {RA}")
        a(f"s_mul_i32 s75, s75, {RB}")
        a("s_add_u32 s74, s74, s75")
        a(f"s_and_b32 s74, s74, {RM}")
    if opt("ro", 0): a(f"s_or_b32 s74, s74, {opt('ro', 0)}")
    a("s_and_b32 s30, s57, 7")
    a("s_cselect_b32 s58, 0, 1")
    a("s_lshr_b32 s59, s57, 3")
    a("s_sub_u32 s78, s57, s59")
    a("s_sub_u32 s78, s78, 1")
    a("s_and_b32 s3, s95, 3")
    if STAMP:
        a(f"v_mov_b32 v{SV}, -1")
    a("s_cmp_ge_u32 s95, 4")
    a("s_cbranch_scc1 P1_CONS")
    a("v_lshrrev_b32 v3, 3, v0")
    a("v_and_b32 v8, 7, v0")
    a("v_lshrrev_b32 v9, 4, v0")
    a("s_lshl_b32 s30, s56, 2")
    a("s_add_u32 s30, s30, s3")
    a("s_lshl_b32 s79, s30, 10")
    a("s_lshl_b32 s66, s3, 12")
    a("s_lshl_b32 s70, s74, 7")
    a("s_cmp_eq_u32 s58, 1")
    a("s_cbranch_scc1 P1_LSP")

    def stamp0():
        if STAMP:
            a(f"v_writelane_b32 v{SV}, s90, 0")
            stamp(a, 1)

    def gload(ops, sl="s57", xb=68, gw=True):
        srd(a, 48, 22, 23, 1024)
        a(f"s_lshl_b32 s30, {sl}, 3")
        a("s_lshl_b32 s31, s3, 1")
        a("s_add_u32 s30, s30, s31")
        a("s_lshr_b32 s31, s30, 5")
        a("s_and_b32 s30, s30, 31")
        a("s_lshl_b32 s30, s30, 6")
        a("s_add_u32 s30, s30, s31")
        a("s_lshl_b32 s31, s56, 2")
        a("s_add_u32 s64, s30, s31")
        a("s_lshl_b32 s30, s64, 10")
        a("s_add_u32 s31, s30, 0x10000")
        a("v_lshlrev_b32 v12, 4, v0")
        if gw:
            a("buffer_load_dwordx4 v[64:67], v12, s[48:51], 0 offen")
        a(f"buffer_load_dwordx4 {vr(xb,4)}, v12, s[32:35], s30 offen")
        a(f"buffer_load_dwordx4 {vr(xb+4,4)}, v12, s[32:35], s31 offen")
        ops.extend(["g"] * 3)

    def gcalc(ops, parts=(0, 1, 2), x0=68):
        T = 76
        if 0 in parts and ops is not None:
            waitfor(ops, "g")
        for rr in range(2):
            if rr not in parts:
                continue
            xb = x0 + 4 * rr
            acc = T + 4 + rr
            for d in range(4):
                a(f"v_lshlrev_b32 v{T}, 16, v{xb+d}")
                a(f"v_and_b32 v{T+1}, 0xffff0000, v{xb+d}")
                a(f"v_lshlrev_b32 v{T+2}, 16, v{64+d}")
                a(f"v_and_b32 v{T+3}, 0xffff0000, v{64+d}")
                a(f"v_mul_f32 v{T}, v{T}, v{T+2}")
                a(f"v_mul_f32 v{T+1}, v{T+1}, v{T+3}")
                a(f"v_cvt_pk_bf16_f32 v{T}, v{T}, v{T+1}")
                a(f"v_and_b32 v{T+1}, 0xffff0000, v{T}")
                a(f"v_lshlrev_b32 v{T}, 16, v{T}")
                if d == 0:
                    a(f"v_add_f32 v{acc}, v{T}, v{T+1}")
                else:
                    a(f"v_add_f32 v{acc}, v{acc}, v{T}")
                    a(f"v_add_f32 v{acc}, v{acc}, v{T+1}")
        if 2 not in parts:
            return
        A, B = T + 4, T + 5
        for sh in (8, 4, 2, 1):
            a("s_nop 1")
            a(f"v_add_f32_dpp v{A}, v{A}, v{A} row_ror:{sh} row_mask:0xf bank_mask:0xf")
            a(f"v_add_f32_dpp v{B}, v{B}, v{B} row_ror:{sh} row_mask:0xf bank_mask:0xf")
        a("s_nop 1")
        a(f"v_add_f32_dpp v{A}, v{A}, v{A} row_bcast:15 row_mask:0xa bank_mask:0xf")
        a(f"v_add_f32_dpp v{B}, v{B}, v{B} row_bcast:15 row_mask:0xa bank_mask:0xf")
        a("s_nop 1")
        a(f"v_add_f32_dpp v{A}, v{A}, v{A} row_bcast:31 row_mask:0xc bank_mask:0xf")
        a(f"v_add_f32_dpp v{B}, v{B}, v{B} row_bcast:31 row_mask:0xc bank_mask:0xf")
        a("s_nop 1")
        a(f"v_cvt_pk_bf16_f32 v{A}, v{A}, v{B}")
        a(f"v_and_b32 v{B}, 0xffff0000, v{A}")
        a(f"v_lshlrev_b32 v{A}, 16, v{A}")
        a(f"v_mul_f32 v{A}, {f32(-math.log2(math.e))}, v{A}")
        a(f"v_mul_f32 v{B}, {f32(-math.log2(math.e))}, v{B}")
        a(f"v_exp_f32 v{A}, v{A}")
        a(f"v_exp_f32 v{B}, v{B}")
        a("s_nop 0")
        a(f"v_add_f32 v{A}, 1.0, v{A}")
        a(f"v_add_f32 v{B}, 1.0, v{B}")
        a(f"v_rcp_f32 v{A}, v{A}")
        a(f"v_rcp_f32 v{B}, v{B}")
        a("s_nop 0")
        a(f"v_cvt_pk_bf16_f32 v{A}, v{A}, v{B}")
        a(f"v_and_b32 v{B}, 0xffff0000, v{A}")
        a(f"v_lshlrev_b32 v{A}, 16, v{A}")

    def gsignal(sl, vt, val):
        a("s_lshl_b32 s61, s56, 2")
        a(f"s_lshr_b32 s31, {sl}, 2")
        a("s_add_u32 s61, s61, s31")
        a(f"s_add_u32 s61, s61, {CT_G}")
        signal(a, vt, "s61", cnt=63, lo=0, val=val)

    def gstore(sl="s57"):
        a("s_lshl_b32 s30, s56, 4")
        a(f"s_add_u32 s30, s30, {sl}")
        a("s_lshl_b32 s30, s30, 2")
        a("s_add_u32 s30, s30, s3")
        a("s_lshl_b32 s30, s30, 7")
        a(f"s_add_u32 s30, s30, 0x{G_OFF:x}")
        a("s_mov_b32 exec_lo, 0")
        a("s_brev_b32 exec_hi, 1")
        a("buffer_store_dwordx2 v[80:81], off, s[44:47], s30 sc1")
        a("s_mov_b64 exec, -1")

    def wd_setup():
        p2_ids(a)
        srd(a, 52, 20, 21, 1376 * 1024)
        a("v_lshlrev_b32 v29, 1, v3")
        a("v_and_b32 v29, 4, v29")
        a("v_xor_b32 v29, v29, v8")
        a("v_lshlrev_b32 v29, 4, v29")
        a("v_lshl_add_u32 v29, v3, 10, v29")
        a(f"s_mul_i32 s30, s3, {NST*16384}")
        a("s_lshl_b32 s31, s93, 7")
        a("s_add_u32 s30, s30, s31")
        a("v_add_u32 v29, s30, v29")
        a("s_mov_b32 s65, s94")
        a(f"s_mul_i32 s77, s3, {PIECE}")

    def wd_lds(st):
        s = st % 20
        return (s // 5) * SLOT + (s % 5) * 2048

    def issue_w(st, ops):
        a(f"s_add_u32 m0, s77, {wd_lds(st)}")
        a("s_lshl_b32 s30, s65, 14")
        a("s_add_u32 s31, s30, 7168")
        a("buffer_load_dwordx4 v29, s[52:55], s30 offen lds")
        a("s_add_u32 s65, s65, 1")
        a(f"s_cmp_eq_u32 s65, {NST}")
        a("s_cselect_b32 s65, 0, s65")
        a("buffer_load_dwordx4 v29, s[52:55], s31 offen offset:1024 lds")
        ops.extend([("w", st)] * 2)

    def waitfor(ops, key):
        last = max(i for i, o in enumerate(ops) if o == key)
        a(f"s_waitcnt vmcnt({len(ops) - 1 - last})")

    def capture(fn):
        save = a.l
        a.l = []
        fn()
        lines, a.l = a.l, save
        groups, cur = [], []
        for ln in lines:
            cur.append(ln)
            if ln.strip().startswith("buffer_"):
                groups.append(cur); cur = []
        if cur:
            groups[-1].extend(cur)
        return groups

    def pf_wd():
        a("s_lshr_b32 s30, s2, 3")
        a("s_lshl_b32 s30, s30, 2")
        a("s_add_u32 s30, s30, s3")
        a(f"s_mul_i32 s30, s30, {86*128}")
        a("v_lshlrev_b32 v12, 7, v0")
        a("buffer_load_dword v82, v12, s[52:55], s30 offen")
        a("s_add_u32 s30, s30, 8192")
        a("s_mov_b64 exec, 0x3fffff")
        a("buffer_load_dword v83, v12, s[52:55], s30 offen")
        a("s_mov_b64 exec, -1")

    def touch_w3():
        a("s_lshr_b32 s30, s2, 3")
        a("s_lshl_b32 s30, s30, 2")
        a("s_add_u32 s30, s30, s3")
        a(f"s_mul_i32 s30, s30, {11*1024}")
        a("v_lshlrev_b32 v12, 10, v0")
        a("s_mov_b64 exec, 0x7ff")
        a("buffer_load_dword v82, v12, s[52:55], s30 offen offset:384")
        a("s_mov_b64 exec, -1")

    def merge(groups):
        return [sum(groups, [])]

    def loader_loop(issue, commit, lai, direct, dpre, tag):
        items = []
        for s in range(8):
            items += [(("s", s), 1, g) for g in capture(lambda: issue(s, []))]
        assert dpre <= 5 and direct <= 10
        if opt("t3w", 0):
            items += [("t3", 1, g) for g in merge(capture(touch_w3))]
        for st in range(direct):
            items += [(("w", st), 2, g) for g in merge(capture(lambda: issue_w(st, [])))]
        ops = []
        pos = 0
        if tag == "F" and HB:
            lim = len(items) - (direct - min(direct, dpre))
            for b in range(8):
                for half, lastidx in ((0, 10 * b + 6), (1, 10 * b + 9)):
                    upto = min(lim, lastidx + 1 + lai)
                    if b < 7:
                        upto = min(upto, 80)
                    while pos < upto:
                        a.l.extend(items[pos][2]); ops.extend([pos] * items[pos][1]); pos += 1
                    if b == 0 and half == 0:
                        wd_setup()
                    waitfor(ops, lastidx)
                    if opt("lstamp", 1) and half == 0: stamp(a, 2 + b)
                    a("s_barrier")
                if b == 7:
                    for x in req_nonce():
                        a(x)
        else:
            for b in range(8):
                nxt = [i for i, it in enumerate(items) if it[0] == ("s", b + 1)]
                upto = len(items) - (direct - min(direct, dpre)) if b == 7 else nxt[min(lai, len(nxt)) - 1] + 1
                while pos < upto:
                    a.l.extend(items[pos][2]); ops.extend([items[pos][0]] * items[pos][1]); pos += 1
                if b == 0:
                    wd_setup()
                waitfor(ops, ("s", b))
                commit(b)
                if opt("lstamp", 1): stamp(a, 2 + b)
                a("s_barrier")
                if b == 7:
                    for x in req_nonce():
                        a(x)
        while pos < len(items):
            a.l.extend(items[pos][2]); pos += 1
        get_nonce(a, "L" + tag, 30)
        a("s_barrier")
        stamp(a, 16)
        a(f"s_branch P2_W{direct}")


    def final_setup(VA):
        a("s_lshr_b32 s30, s95, 2")
        a(f"v_lshrrev_b32 v{VA}, 3, v0")
        a("s_lshl_b32 s31, s3, 3")
        a(f"v_add_u32 v{VA}, s31, v{VA}")
        a(f"v_and_b32 v{VA+1}, 3, v0")
        a(f"v_lshlrev_b32 v{VA+2}, 2, v{VA+1}")
        a(f"v_xor_b32 v{VA+2}, v{VA+2}, v{VA}")
        a(f"v_lshlrev_b32 v{VA+2}, 4, v{VA+2}")
        a(f"v_lshl_add_u32 v{VA+2}, v{VA+1}, 10, v{VA+2}")
        a(f"v_bfe_u32 v{VA+1}, v0, 2, 1")
        a("s_lshl_b32 s31, s30, 1")
        a(f"v_add_u32 v{VA+1}, s31, v{VA+1}")
        a(f"v_mul_u32_u24 v{VA+3}, {PIECE}, v{VA+1}")
        a(f"v_add_u32 v{VA+3}, v{VA+3}, v{VA+2}")
        a(f"v_mul_u32_u24 v{VA+1}, {SLOT}, v{VA+1}")
        a(f"v_add_u32 v{VA+1}, v{VA+1}, v{VA+2}")
        a("s_lshl_b32 s31, s30, 7")
        a(f"v_lshl_add_u32 v{VA+2}, v{VA}, 2, s31")
        a("s_lshl_b32 s30, s30, 5")
        a("s_add_u32 s30, s30, s92")
        a("s_lshl_b32 s30, s30, 10")
        a("s_lshl_b32 s31, s93, 7")
        a("s_add_u32 s30, s30, s31")
        a(f"v_lshlrev_b32 v{VA}, 16, v{VA}")
        a(f"v_add_u32 v{VA}, s30, v{VA}")
        a(f"v_and_b32 v{VA+4}, 7, v0")
        a(f"v_lshl_add_u32 v{VA}, v{VA+4}, 4, v{VA}")
        srd(a, 48, 24, 25, 2048 * 1024)

    def final_stage(VA, R):
        a("s_barrier")
        a(f"ds_read_b32 v{VA+4}, v{VA+2} offset:8192")
        for hh in range(2):
            for w in range(4):
                a(f"ds_read_b128 {vr(R + 8*w + 4*hh, 4)}, v{VA+1} offset:{w*PIECE + hh*512}")
            a(f"ds_read_b128 {vr(R + 32 + 4*hh, 4)}, v{VA+3} offset:{4096 + hh*512}")
        for hh in range(2):
            a(f"s_waitcnt lgkmcnt({5 - 5*hh})")
            o = 4 * hh
            for i in (0, 2):
                a(f"v_pk_add_f32 {vr(R+o+i,2)}, {vr(R+o+i,2)}, {vr(R+8+o+i,2)}")
                a(f"v_pk_add_f32 {vr(R+16+o+i,2)}, {vr(R+16+o+i,2)}, {vr(R+24+o+i,2)}")
            for i in (0, 2):
                a(f"v_pk_add_f32 {vr(R+o+i,2)}, {vr(R+o+i,2)}, {vr(R+16+o+i,2)}")
            for i in range(4):
                a(f"v_fma_f32 v{R+o+i}, v{VA+4}, v{R+o+i}, v{R+32+o+i}")
            a(f"v_cvt_pk_bf16_f32 v{R+40+2*hh}, v{R+o}, v{R+o+1}")
            a(f"v_cvt_pk_bf16_f32 v{R+41+2*hh}, v{R+o+2}, v{R+o+3}")
        a(f"buffer_store_dwordx4 {vr(R+40,4)}, v{VA}, s[48:51], 0 offen sc1")

    a("v_xor_b32 v10, v9, v8")
    a("v_lshlrev_b32 v10, 4, v10")
    a("v_lshlrev_b32 v11, 16, v3")
    a("v_add3_u32 v4, v10, v11, s79")
    a("v_xor_b32 v5, 64, v4")
    a(f"v_add_u32 v5, {(8 << 16) - 1024}, v5")
    a(f"v_add_u32 v6, {2*((8 << 16) - 1024)}, v4")
    a(f"v_add_u32 v7, {2*((8 << 16) - 1024)}, v5")
    a(f"s_mov_b32 s34, 0x{2048*1024:x}")
    a("s_mov_b32 s35, 0x20000")
    a("s_mov_b32 m0, s66")
    def wsetup():
        if HB:
            a("s_and_b32 s67, s3, 1")
            a(f"s_mul_i32 s30, s67, {16*2752}")
        else:
            a(f"s_mul_i32 s30, s3, {16*2752}")
        a("s_mul_i32 s31, s78, 192")
        a("s_add_u32 s30, s30, s31")
        a("s_movk_i32 s31, 2560")
        a("v_mul_u32_u24 v11, 171, v0")
        a("v_lshl_add_u32 v10, v0, 4, s30")
        a("v_lshrrev_b32 v12, 11, v11")
        a("v_mad_u32_u24 v24, v12, s31, v10")
        a(f"v_add_u32 v12, {64*171}, v11")
        a("v_lshrrev_b32 v12, 11, v12")
        a("v_and_b32 v25, 32, v0")
        a("v_xor_b32 v25, v25, v10")
        a("v_mad_u32_u24 v25, v12, s31, v25")
        a(f"v_add_u32 v12, {128*171}, v11")
        a("v_lshrrev_b32 v12, 11, v12")
        a("v_xor_b32 v26, 32, v10")
        a("v_mad_u32_u24 v26, v12, s31, v26")
        if HB:
            a("s_mul_i32 s67, s67, 3072")
            a("s_lshr_b32 s68, s3, 1")
            a(f"s_mul_i32 s68, s68, {WB}")
            a("s_add_u32 s67, s67, s68")
            a(f"s_add_u32 s67, s67, {XB}")
            a("s_add_u32 s68, s67, 6144")
        else:
            a("s_mul_i32 s67, s3, 3072")
            a(f"s_add_u32 s67, s67, {XB}")
            a(f"s_add_u32 s68, s67, {WB}")
        a(f"s_mul_i32 s71, s74, {64*2752}")
    wsetup()
    a("s_waitcnt lgkmcnt(0)")
    stamp0()

    XP = opt("xpair", 0)
    def issueF(stage, ops):
        sl = (stage % 4) * SLOT
        if stage and not (XP and stage == 1):
            a(f"s_add_u32 m0, s66, {sl}")
            a("s_nop 0")
        if not (XP and stage == 1):
            for j in range(4):
                a(f"buffer_load_dwordx4 v{4+j}, s[32:35], s70 offen offset:{j*1024} {XNT} lds")
                if XP and stage == 0:
                    if j == 0:
                        a("s_add_u32 s30, s74, 1")
                        a("s_and_b32 s30, s30, 7")
                        a("s_lshl_b32 s30, s30, 7")
                    a(f"s_add_u32 m0, s66, {SLOT}")
                    a("s_nop 0")
                    a(f"buffer_load_dwordx4 v{4+j}, s[32:35], s30 offen offset:{j*1024} {XNT} lds")
                    a("s_mov_b32 m0, s66")
                    a("s_nop 0")
        if stage == 0 and HB:
            a("s_cmp_ge_u32 s3, 2")
            a("s_cselect_b32 s36, s18, s16")
            a("s_cselect_b32 s37, s19, s17")
            a(f"s_mov_b32 s38, 0x{512*2752:x}")
            a("s_mov_b32 s39, 0x20000")
        elif stage == 0:
            srd(a, 36, 16, 17, 512 * 2752)
        a(f"s_add_u32 m0, s67, {sl}")
        a("s_add_u32 s74, s74, 1")
        for jj in range(3):
            a(f"buffer_load_dwordx4 v{24+jj}, s[36:39], s71 offen offset:{jj*1024} {WNT} lds")
        if stage == 0 and not HB:
            srd(a, 40, 18, 19, 512 * 2752)
        a(f"s_add_u32 m0, s68, {sl}")
        a("s_and_b32 s74, s74, 7")
        if HB:
            a(f"s_add_u32 s71, s71, {32*2752}")
        for jj in range(3):
            a(f"buffer_load_dwordx4 v{24+jj}, s[{36 if HB else 40}:{39 if HB else 43}], s71 offen offset:{jj*1024} {WNT} lds")
        a("s_lshl_b32 s70, s74, 7")
        a(f"s_mul_i32 s71, s74, {64*2752}")
        if stage == 0:
            srd(a, 44, 28, 29, 0x2000000 if STAMP else WS_USED)

    loader_loop(issueF, lambda b: None, LAI, DIRECT, opt("dpre", 2), "F")

    a.lab("P1_LSP")
    a("v_lshlrev_b32 v10, 4, v8")
    a("v_lshlrev_b32 v11, 16, v3")
    a("v_add3_u32 v4, v10, v11, s79")
    a("s_and_b32 s30, s3, 1")
    a("s_lshl_b32 s30, s30, 5")
    a("s_lshr_b32 s31, s3, 1")
    a("s_add_u32 s30, s30, s31")
    a("s_lshl_b32 s30, s30, 10")
    a("s_lshl_b32 s31, s59, 7")
    a("s_add_u32 s30, s30, s31")
    a("v_and_b32 v10, 2, v3")
    a("v_xor_b32 v10, v10, v8")
    a("v_lshlrev_b32 v10, 4, v10")
    a("v_lshlrev_b32 v11, 11, v3")
    a("v_add3_u32 v24, v10, v11, s30")
    a("v_xor_b32 v25, 64, v24")
    a("v_lshrrev_b32 v10, 1, v0")
    a("s_lshl_b32 s30, s3, 1")
    a("s_and_b32 s30, s30, 4")
    a("v_xor_b32 v10, s30, v10")
    a(f"v_mul_u32_u24 v10, {2*2752}, v10")
    a("v_and_b32 v11, 1, v0")
    a("v_lshlrev_b32 v11, 4, v11")
    a("s_and_b32 s30, s3, 1")
    a("s_mul_i32 s30, s30, 2752")
    a("s_lshl_b32 s31, s59, 5")
    a("s_add_u32 s30, s30, s31")
    a(f"s_add_u32 s30, s30, {1344*2}")
    a("v_add3_u32 v26, v10, v11, s30")
    a("s_lshl_b32 s67, s3, 11")
    a(f"s_add_u32 s67, s67, {XB}")
    a("s_add_u32 s68, s67, 8192")
    a("s_lshl_b32 s69, s3, 10")
    a(f"s_add_u32 s69, s69, {XB + 16384}")
    a("s_lshl_b32 s71, s74, 16")
    a(f"s_mul_i32 s75, s74, {64*2752}")
    a(f"s_mov_b32 s34, 0x{2048*1024:x}")
    a("s_mov_b32 s35, 0x20000")
    a("s_waitcnt lgkmcnt(0)")
    stamp0()

    def issueS(stage, ops):
        sl = (stage % 4) * SLOT
        xr = 32 + 16 * (stage & 1)
        n = 0
        for j in range(4):
            if j:
                a(f"s_add_u32 s30, s70, {j * 8 * 65536}")
            a(f"buffer_load_dwordx4 {vr(xr+4*j,4)}, v4, s[32:35], {'s30' if j else 's70'} offen")
            n += 1
        a("s_add_u32 s74, s74, 1")
        if stage == 0:
            srd(a, 36, 10, 11, 512 * 1024)
            srd(a, 40, 12, 13, 512 * 1024)
            a("s_cmp_ge_u32 s3, 2")
            a("s_cselect_b32 s84, s18, s16")
            a("s_cselect_b32 s85, s19, s17")
            a(f"s_mov_b32 s86, 0x{512*2752:x}")
            a("s_mov_b32 s87, 0x20000")
            srd(a, 44, 28, 29, 0x2000000 if STAMP else WS_USED)
        if stage < 4:
            a(f"s_add_u32 m0, s67, {sl}")
            a(f"s_add_u32 s76, s71, {16*1024 - 1024}")
            a("buffer_load_dwordx4 v24, s[36:39], s71 offen lds")
            a("buffer_load_dwordx4 v24, s[36:39], s76 offen offset:1024 lds")
            a(f"s_add_u32 m0, s68, {sl}")
            a("s_nop 0")
            a("buffer_load_dwordx4 v25, s[40:43], s71 offen lds")
            a("buffer_load_dwordx4 v25, s[40:43], s76 offen offset:1024 lds")
            n += 4
        a(f"s_add_u32 m0, s69, {sl}")
        a("s_and_b32 s74, s74, 7")
        if not opt("nof", 0):
            a("buffer_load_dwordx4 v26, s[84:87], s75 offen lds")
            n += 1
        a("s_lshl_b32 s70, s74, 7")
        a("s_lshl_b32 s71, s74, 16")
        a(f"s_mul_i32 s75, s74, {64*2752}")
        ops.extend([("s", stage)] * n)
        if stage == 0:
            a("v_lshrrev_b32 v10, 1, v8")
            a("v_xor_b32 v10, v10, v9")
            a("v_lshlrev_b32 v10, 4, v10")
            a("v_and_b32 v11, 1, v8")
            a("v_lshl_add_u32 v10, v11, 3, v10")
            a("v_lshl_add_u32 v10, v3, 7, v10")
            a("v_add_u32 v5, s66, v10")
            a("v_and_b32 v11, 1, v3")
            a("v_lshlrev_b32 v10, 6, v11")
            a("v_xor_b32 v5, v5, v10")
            a("v_xor_b32 v6, 64, v5")
            a("v_mul_u32_u24 v30, 0x0202, v11")
            a("v_lshl_or_b32 v30, v30, 16, v30")
            a("v_xor_b32 v31, 0x07060302, v30")
            a("v_xor_b32 v30, 0x05040100, v30")
            a("v_and_b32 v10, 2, v0")
            a("v_or_b32 v10, 4, v10")
            a("v_lshlrev_b32 v10, 4, v10")
            a("v_lshl_add_u32 v10, v0, 7, v10")
            a("v_add_u32 v27, s68, v10")
            a("s_lshr_b32 s30, s3, 1")
            a("v_xor_b32 v28, s30, v0")
            a("v_and_b32 v28, 1, v28")
            a("v_lshlrev_b32 v28, 15, v28")
            a("v_or_b32 v28, 0x3f80, v28")


    def commitS(stage):
        if opt("nocommit", 0): return
        sl = (stage % 4) * SLOT
        xr = 32 + 16 * (stage & 1)
        a(f"v_add_u32 v7, {sl}, v5")
        a(f"v_add_u32 v2, {sl}, v6")
        for j in range(4):
            r = xr + 4 * j
            t = 16 + 4 * (j & 1)
            a(f"v_perm_b32 v{t}, v{r+1}, v{r}, v30")
            a(f"v_perm_b32 v{t+1}, v{r+3}, v{r+2}, v30")
            a(f"v_perm_b32 v{t+2}, v{r+1}, v{r}, v31")
            a(f"v_perm_b32 v{t+3}, v{r+3}, v{r+2}, v31")
            e, o = (7, 2) if (j & 1) == 0 else (2, 7)
            a(f"ds_write_b64 v{e}, {vr(t,2)} offset:{j*1024}")
            a(f"ds_write_b64 v{o}, {vr(t+2,2)} offset:{j*1024}")
        if stage < 4:
            a("s_cmp_lg_u32 s59, 0")
            a(f"s_cbranch_scc1 P1_NP{stage}")
            a(f"v_add_u32 v7, {sl}, v27")
            a("s_mov_b64 exec, 0xffff")
            a("ds_write_b16 v7, v28")
            a("s_mov_b64 exec, -1")
            a.lab(f"P1_NP{stage}")
        a("s_waitcnt lgkmcnt(0)")

    loader_loop(issueS, commitS, LAS, opt("ds", 8), opt("dspre", 4), "S")

    DS = opt("ds", 8)
    GL = opt("gl", DIRECT + 2)
    GA = opt("ga", 19)
    assert DS > GL
    ops = []
    for st in range(DIRECT, N1):
        a.lab(f"P2_W{st}")
        if st == GL and not opt("abl_g", 0):
            a("s_and_b32 s76, s57, 7")
            a("s_cmp_lg_u32 s76, 1")
            a("s_cbranch_scc1 NOG2A")
            a("s_sub_u32 s73, s57, 1")
            gload([], "s73", 84, False)
            a.lab("NOG2A")
            gload(ops)
        issue_w(st, ops)
        if 2 * (st + 1) > WTH:
            a(f"s_waitcnt vmcnt({WTH - 2})")
        if st == GA and not opt("abl_g", 0):
            a("s_cmp_eq_u32 s58, 1")
            a("s_cbranch_scc1 NOGC")
            if opt("gprio", 0): a(f"s_setprio {opt('gprio', 0)}")
            gcalc(ops)
            gstore()
            a("s_cmp_lg_u32 s76, 1")
            a("s_cbranch_scc1 NOGC")
            gcalc(None, x0=84)
            gstore("s73")
            a.lab("NOGC")
            if opt("gprio", 0): a("s_setprio 0")
    a("s_and_b32 s75, s57, 7")
    a("s_cmp_eq_u32 s75, 1")
    a("s_cselect_b32 s30, 2, 1")
    a("s_cmp_eq_u32 s75, 0")
    a("s_cselect_b32 s75, 0, s30")
    HR = 32
    TMJ = opt("tmj", 0)
    PRE = opt("pre", 1)
    NWF = 3 if PRE else 2
    WF = HR + D2 * 8
    ACC = WF + 8 * NWF
    assert ACC + 64 <= 256
    a("v_lshrrev_b32 v8, 5, v0")
    a("v_and_b32 v9, 15, v0")
    a("v_lshrrev_b32 v10, 2, v9")
    a("v_lshl_add_u32 v10, v8, 3, v10")
    a("v_lshlrev_b32 v10, 7, v10")
    a("v_lshrrev_b32 v11, 3, v9")
    a("v_lshl_add_u32 v10, v11, 6, v10")
    a("v_and_b32 v11, 16, v0")
    a("v_lshl_add_u32 v10, v11, 1, v10")
    a("v_and_b32 v11, 3, v0")
    a("v_lshl_add_u32 v10, v11, 3, v10")
    a("v_add_u32 v4, s77, v10")
    a("v_xor_b32 v5, 64, v4")
    a(f"v_add_u32 v6, {2*SLOT}, v4")
    a(f"v_add_u32 v7, {2*SLOT}, v5")
    def trread(st):
        off = wd_lds(st)
        hi = off >= 2 * SLOT
        if hi: off -= 2 * SLOT
        for ct in range(2):
            for hf in range(2):
                a(f"ds_read_b64_tr_b16 {vr(WF + 8*(st % NWF) + ct*4 + hf*2, 2)}, v{4 + 2*hi + ct} offset:{off + hf*512}")
    if PRE:
        assert N1 == 20
        a("s_waitcnt vmcnt(20)")
        trread(0)
        trread(1)
        a("s_waitcnt lgkmcnt(0)")
        issue_w(20, [])
        issue_w(21, [])
    a(f"s_mul_i32 s61, s3, {NST}")
    a(f"s_mul_i32 s66, s92, {NKS}")
    a("s_add_u32 s66, s66, s61")
    a("s_lshl_b32 s66, s66, 10")
    a("v_lshlrev_b32 v12, 4, v0")
    a("v_add_u32 v2, s66, v12")
    a(f"v_add_u32 v3, {32*NKS*1024}, v2")
    a("s_cmp_eq_u32 s3, 3")
    a(f"s_cselect_b32 s72, 20, {NST}")
    a("v_add_u32 v240, s77, v12")
    for qd in range(1, 4):
        a(f"v_xor_b32 v{240+qd}, {64*qd}, v240")
    for qd in range(4):
        a(f"v_add_u32 v{244+qd}, {2*SLOT}, v{240+qd}")
    final_setup(248)
    stamp(a, 10)
    if opt("dg2", 0):
        a("s_waitcnt vmcnt(0)")
    stamp(a, 11)
    a("s_lshr_b32 s30, s92, 1")
    a("s_lshl_b32 s30, s30, 2")
    a("s_add_u32 s30, s30, s3")
    a("s_lshl_b32 s30, s30, 7")
    a("v_mov_b32 v16, s30")
    a("s_cmp_eq_u32 s3, 3")
    a("s_cselect_b32 s30, 20, 16")
    a("v_mov_b32 v17, s30")
    if GATE:
        a("s_barrier")
    if GDEL:
        a(f"s_sleep {GDEL}")
    poll(a, "L", 16, 17, 22, 1, sleep=LSLEEP)
    if opt("dg2", 0):
        a("s_mul_i32 s61, s61, 100")
        a("s_add_u32 s61, s61, s90")
        a(f"v_writelane_b32 v{SV}, s61, 20")
    stamp(a, 12)
    ops = []
    a("s_mov_b32 s64, s94")
    def issue_h(st):
        sl = st % D2
        a("s_lshl_b32 s30, s64, 10")
        a("s_cmp_ge_u32 s64, s72")
        a("s_cselect_b32 s30, 0x10000000, s30")
        a("s_add_u32 s64, s64, 1")
        a(f"buffer_load_dwordx4 {vr(HR + sl*8, 4)}, v2, s[44:47], s30 offen sc1")
        a(f"s_cmp_eq_u32 s64, {NST}")
        a("s_cselect_b32 s64, 0, s64")
        a(f"buffer_load_dwordx4 {vr(HR + sl*8 + 4, 4)}, v3, s[44:47], s30 offen sc1")
        ops.extend([("h", st)] * 2)
    def mf(st, k):
        ct, rt = k & 1, k >> 1
        d = vr(ACC + 16 * k, 16)
        c = "0" if st == 0 else d
        a(f"v_mfma_f32_32x32x16_bf16 {d}, {vr(WF + 8*(st % NWF) + ct*4, 4)}, {vr(HR + (st % D2)*8 + 4*rt, 4)}, {c}")
    def need(keys, extra=""):
        idx = [i for i, o in enumerate(ops) if o in keys]
        if idx:
            a(f"s_waitcnt vmcnt({len(ops) - 1 - max(idx)}) {extra}")
        elif extra:
            a(f"s_waitcnt {extra}")
    if not PRE:
        trread(0)
    for st in range(D2 - 1):
        issue_h(st)
        if st == 2:
            gsignal("s57", 30, "s75")
            ops.append("sig")
    assert TMJ <= D2 - 1
    def wr(k, qd):
        a(f"ds_write_b128 v{240 + qd + 4*(k >> 1)}, {vr(ACC + 16*k + 4*qd, 4)} offset:{(k & 1)*SLOT + qd*1024}")
    for st in range(NST - TMJ):
        need([("h", st), ("w", st + 1)], "lgkmcnt(0)")
        if st == 0:
            stamp(a, 13)
        mf(st, 0)
        if st + 1 < NST and not (PRE and st == 0):
            trread(st + 1)
        mf(st, 1)
        hg = capture(lambda: issue_h(st + D2 - 1)) if st + D2 - 1 < NST else [[], []]
        a.l.extend(hg[0])
        mf(st, 2)
        a.l.extend(hg[1])
        mf(st, 3)
        if N1 + st < NST and not PRE:
            issue_w(N1 + st, ops)
        if st == KB:
            a("s_barrier")
            if TMJ: assert KB < NST - TMJ
    S0 = NST - TMJ
    if TMJ:
        need([("w", NST - 1)])
        for st in range(S0 + 1, min(NST, S0 + 3)):
            trread(st)
        for k in range(4):
            for n, st in enumerate(range(S0, NST)):
                if k == 0:
                    left = min(NST - 1, st + 2) - st
                    need([("h", st)], f"lgkmcnt({4 * left})")
                mf(st, k)
                if k == 0 and st + 3 < NST:
                    trread(st + 3)
                if k > 0:
                    if n == 0:
                        a("s_nop 7"); a("s_nop 2")
                    if n < 4:
                        wr(k - 1, n)
            if k > 0:
                for qd in range(min(4, TMJ), 4):
                    wr(k - 1, qd)
        stamp(a, 14)
        a("s_nop 7"); a("s_nop 3")
        for qd in range(4):
            wr(3, qd)
        a("s_waitcnt lgkmcnt(0)")
        a("s_barrier")
    else:
        stamp(a, 14)
        a("s_nop 8")
        for k in range(4):
            for qd in range(4):
                wr(k, qd)
        a("s_waitcnt lgkmcnt(0)")
        final_stage(248, 32)
    stamp(a, 15)
    stamp_flush(a)
    a("s_endpgm")

    a.lab("P1_CONS")
    if not CPE:
        cpf_block('s3', 0)
    if opt("t3x", 0):
        a("s_setprio 3")
        a("s_lshr_b32 s30, s2, 3")
        a("s_lshl_b32 s30, s30, 1")
        a("s_and_b32 s31, s2, 1")
        a("s_add_u32 s30, s30, s31")
        a("s_lshl_b32 s30, s30, 2")
        a("s_add_u32 s30, s30, s3")
        a("s_lshl_b32 s30, s30, 13")
        a("v_lshlrev_b32 v1, 10, v0")
        a(f"s_mov_b32 s34, 0x{2048*1024:x}")
        a("s_mov_b32 s35, 0x20000")
        a("s_mov_b64 exec, 0xff")
        a("s_waitcnt lgkmcnt(0)")
        a("buffer_load_dword v13, v1, s[32:35], s30 offen offset:384")
        a("s_mov_b64 exec, -1")
        a("s_setprio 0")
    a("s_lshr_b32 s66, s3, 1")
    a("s_and_b32 s67, s3, 1")
    a("v_and_b32 v1, 15, v0")
    a("v_lshrrev_b32 v2, 4, v0")
    a("v_lshrrev_b32 v3, 1, v1")
    a("v_xor_b32 v3, v3, v2")
    a("v_lshlrev_b32 v3, 4, v3")
    a("v_lshl_add_u32 v4, v1, 7, v3")
    a("v_lshrrev_b32 v3, 2, v1")
    a("v_lshl_add_u32 v3, v2, 3, v3")
    a("v_and_b32 v11, 3, v0")
    a(f"s_mov_b32 s72, {f32(C2)}")
    a(f"v_mov_b32 v10, {f32(C1)}")
    a("s_mov_b32 s68, 0")
    a(f"s_mov_b32 s82, {(-3*SLOT) & 0xffffffff}")
    a(f"s_mov_b32 s83, {SLOT}")

    def advance(regs):
        f = ["s_add_u32 s68, s68, 1",
             "s_and_b32 s30, s68, 3",
             "s_cmp_eq_u32 s30, 0",
             "s_cselect_b32 s30, s82, s83"]
        f += [f"v_add_u32 v{v}, s30, v{v}" for v in regs]
        f += ["s_cmp_eq_u32 s68, 8"]
        return f

    def cons_start():
        a("s_waitcnt lgkmcnt(0)")
        srd(a, 44, 28, 29, 0x2000000 if STAMP else WS_USED)
        stamp0()

    a("s_cmp_eq_u32 s58, 1")
    a("s_cbranch_scc1 P1_CSP")
    a("s_mov_b32 s73, 99")
    a("s_lshr_b32 s30, s2, 3")
    a("s_xor_b32 s30, s30, 8")
    a("s_xor_b32 s31, s3, 1")
    a("s_or_b32 s30, s30, s31")
    a("s_cbranch_scc1 NOINIT")
    a("s_setprio 3")
    a("v_mov_b32 v16, 0")
    a("v_lshlrev_b32 v17, 7, v0")
    a("s_and_b32 s31, s2, 7")
    a(f"s_mul_i32 s30, s31, {NCT // 8 * 128}")
    a(f"s_add_u32 s30, s30, 0x{FL_OFF:x}")
    a(f"s_mov_b32 exec_hi, 0x{(1 << (NCT // 8 - 32)) - 1:x}")
    a("s_waitcnt lgkmcnt(0)")
    srd(a, 44, 28, 29, 0x2000000 if STAMP else WS_USED)
    a("buffer_store_dword v16, v17, s[44:47], s30 offen sc0 sc1")
    a("s_mov_b64 exec, -1")
    a("s_mov_b32 s73, 2")
    a("s_setprio 0")
    a.lab("NOINIT")
    FS = [16, 56]
    ACC = 96
    def xf(s, rt): return FS[s] + 4 * rt
    def wf(s, i): return FS[s] + 16 + 4 * i
    a("s_lshl_b32 s30, s66, 13")
    a("v_add_u32 v4, s30, v4")
    a("v_xor_b32 v5, 64, v4")
    a("v_mul_u32_u24 v3, 192, v3")
    a("v_lshl_add_u32 v3, v11, 3, v3")
    a("s_mul_i32 s30, s67, 96")
    a(f"s_add_u32 s30, s30, {XB}")
    a("v_add_u32 v3, s30, v3")
    a("v_and_b32 v8, 1, v2")
    a("v_lshlrev_b32 v8, 5, v8")
    a("v_add_u32 v6, v3, v8")
    a("v_sub_u32 v7, v3, v8")
    a("s_cmp_eq_u32 s67, 0")
    a("s_cbranch_scc1 P1_NOSWAP")
    a("v_swap_b32 v6, v7")
    a.lab("P1_NOSWAP")
    def accF(rt, ul, mat): return ACC + 4 * ((rt * 3 + ul) * 2 + mat)
    def readsF(s, st):
        r = []
        order = [("w", 0, 0), ("x", 0, 0), ("w", 1, 0), ("x", 1, 0), ("x", 2, 0), ("x", 3, 0),
                 ("w", 0, 1), ("w", 1, 1), ("w", 0, 2), ("w", 1, 2)]
        for kind, p, ul in order:
            if kind == "x":
                r.append(f"ds_read_b128 {vr(xf(s, p), 4)}, v{4+st} offset:{p*2048}")
            else:
                base = 7 if ul == 1 else 6
                for hf in range(2):
                    off = p * WB + st * 6144 + hf * 768 + ul * 32
                    r.append(f"ds_read_b64_tr_b16 {vr(wf(s, 3*p+ul) + 2*hf, 2)}, v{base} offset:{off}")
        if opt("noread", 0): r = r[:1]
        return r
    def mfmasF(s):
        m = []
        for ul in range(3):
            for rt in range(4):
                for mat in range(2):
                    d = vr(accF(rt, ul, mat), 4)
                    m.append(f"v_mfma_f32_16x16x32_bf16 {d}, {vr(wf(s, 3*mat+ul), 4)}, {vr(xf(s, rt), 4)}, {d}")
        if opt("nomfma", 0): m = ["s_nop 0"] * len(m)
        return m
    for i in range(96):
        a(f"v_mov_b32 v{ACC+i}, 0")
    a("v_lshlrev_b32 v3, 4, v0")
    a("s_mul_i32 s69, s78, 6")
    a("s_mul_i32 s30, s67, 3")
    a("s_add_u32 s69, s69, s30")
    a("s_lshl_b32 s30, s56, 2")
    a("s_lshl_b32 s31, s66, 1")
    a("s_add_u32 s30, s30, s31")
    a(f"s_mul_i32 s30, s30, {NKS}")
    a("s_add_u32 s30, s30, s69")
    a("s_lshl_b32 s70, s30, 10")
    a(f"s_add_u32 s71, s70, {NKS*1024}")
    cons_start()
    if opt("fprio", 0): a(f"s_setprio {opt('fprio', 0)}")
    a("s_barrier")
    stamp(a, 2)
    LAD = opt("lad", 13)
    if LAD:
        r0 = readsF(0, 0)
        for r in r0[:8]:
            a(r)
        a.lab("P1_LOOPF")
        m = mfmasF(0)
        r1 = readsF(1, 1)
        adv = advance((4, 5, 6, 7))
        gaps = [[] for _ in range(24)]
        for i in range(8):
            gaps[i // 2].append(r0[8 + i])
        if HB:
            r1 = [x for x in r1 if "b128" in x] + [x for x in r1 if "b128" not in x]
            gaps[8].append("s_barrier")
        for i in range(16):
            gaps[4 + i].append(r1[i])
        for i, x in enumerate(adv[:4]):
            gaps[12 + i].append(x)
        for i, x in enumerate(adv[4:]):
            gaps[20 + min(i // 2, 3)].append(x)
        a("s_waitcnt lgkmcnt(3)")
        for i in range(24):
            if i == 2: a("s_waitcnt lgkmcnt(4)")
            if i == 8: a("s_waitcnt lgkmcnt(4)")
            a(m[i])
            for x in gaps[i]:
                a(x)
        a("s_waitcnt lgkmcnt(0)")
        a("s_cbranch_scc1 P1_LASTF")
        m1 = mfmasF(1)
        a(m1[0])
        a("s_cmp_eq_u32 s68, s73")
        a(m1[1])
        a("s_cbranch_scc1 P1_PUB")
        a.lab("P1_PUBR")
        weave(a, m1[2:], ["s_barrier"] + r0[:8], start=LAD - 2, per=1)
        a("s_branch P1_LOOPF")
        a.lab("P1_PUB")
        srd(a, 48, 26, 27, 256)
        a("v_mov_b32 v12, 1")
        a("s_and_b32 s30, s2, 7")
        a("s_lshl_b32 s30, s30, 2")
        a("s_mov_b64 exec, 1")
        a("s_waitcnt vmcnt(0)")
        a("s_setprio 3")
        a("buffer_store_dword v12, off, s[48:51], s30 sc0 sc1")
        a("s_setprio 0")
        a("s_mov_b64 exec, -1")
        a("s_branch P1_PUBR")
    else:
        for r in readsF(0, 0):
            a(r)
        a.lab("P1_LOOPF")
        a("s_waitcnt lgkmcnt(0)")
        weave(a, mfmasF(0), readsF(1, 1) + advance((4, 5, 6, 7)))
        a("s_waitcnt lgkmcnt(0)")
        a("s_cbranch_scc1 P1_LASTF")
        if BPOS:
            weave(a, mfmasF(1), ["s_barrier"] + readsF(0, 0), start=BPOS, per=2)
        else:
            weave(a, mfmasF(1), ["s_barrier"] + readsF(0, 0))
        a("s_branch P1_LOOPF")
    a.lab("P1_LASTF")
    weave(a, mfmasF(1), ["s_barrier"] + req_nonce() + ["s_waitcnt vmcnt(0)"])
    stamp(a, 3)
    if EPRIO: a(f"s_setprio {EPRIO}")
    if opt("gsw", 0):
        blocks = []
        st_ = []
        k = 0
        for ul in range(3):
            for uu in range(2):
                G = [accF(2*uu, ul, 0) + i for i in range(4)] + [accF(2*uu+1, ul, 0) + i for i in range(4)]
                U = [accF(2*uu, ul, 1) + i for i in range(4)] + [accF(2*uu+1, ul, 1) + i for i in range(4)]
                t = 56 + 8 * (k % 4)
                dst = 32 + 4 * k
                A = [f"v_pk_mul_f32 {vr(t+i,2)}, {vr(G[i],2)}, {vr(G[i],2)}" for i in range(0, 8, 2)]
                A += [f"v_pk_fma_f32 {vr(t+i,2)}, {vr(t+i,2)}, s[72:73], v[10:11] op_sel_hi:[1,0,0]" for i in range(0, 8, 2)]
                A += [f"v_pk_mul_f32 {vr(t+i,2)}, {vr(t+i,2)}, {vr(G[i],2)}" for i in range(0, 8, 2)]
                Bx = [f"v_exp_f32 v{t+i}, v{t+i}" for i in range(8)]
                C = [f"v_pk_mul_f32 {vr(G[i],2)}, {vr(G[i],2)}, {vr(U[i],2)}" for i in range(0, 8, 2)]
                C += [f"v_pk_add_f32 {vr(t+i,2)}, {vr(t+i,2)}, 1.0 op_sel_hi:[1,0]" for i in range(0, 8, 2)]
                Dx = [f"v_rcp_f32 v{t+i}, v{t+i}" for i in range(8)]
                Ee = [f"v_pk_mul_f32 {vr(G[i],2)}, {vr(G[i],2)}, {vr(t+i,2)}" for i in range(0, 8, 2)]
                Ee += [f"v_cvt_pk_bf16_f32 v{dst+i}, v{G[2*i]}, v{G[2*i+1]}" for i in range(4)]
                F = [f"v_permlane16_swap_b32 v{dst}, v{dst+2}", f"v_permlane16_swap_b32 v{dst+1}, v{dst+3}"]
                blocks.append((A, Bx, C, Dx, Ee, F))
                st_.append(f"buffer_store_dwordx4 {vr(dst,4)}, v3, s[44:47], s{70 + uu} offen offset:{ul*1024} sc1")
                k += 1
        def mix(tr, pl):
            n = max(len(tr), 1)
            pi = 0
            for i, x in enumerate(tr):
                a(x)
                want = len(pl) * (i + 1) // n
                while pi < want:
                    a(pl[pi]); pi += 1
            while pi < len(pl):
                a(pl[pi]); pi += 1
        g = lambda k, p: blocks[k][p] if 0 <= k < 6 else []
        for x in g(0, 0): a(x)
        for k in range(8):
            mix(g(k, 1), g(k - 1, 2) + g(k - 2, 4))
            mix(g(k - 1, 3), g(k + 1, 0) + (["s_nop 1"] if not g(k + 1, 0) and not g(k - 1, 3) else []) + g(k - 2, 5))
        a(f"s_setprio {PRIO}")
        for x in st_: a(x)
        a(f"s_setprio {EPRIO}")
    else:
        k = 0
        pend = []
        for ul in range(3):
            for uu in range(2):
                dst = 32 + 4 * k
                if k >= opt("skipg", 0): gelu_pair(a, accF(2*uu, ul, 0), accF(2*uu, ul, 1), accF(2*uu+1, ul, 0), accF(2*uu+1, ul, 1), 16 + 8 * (k & 1), dst)
                pend.append(f"buffer_store_dwordx4 {vr(dst,4)}, v3, s[44:47], s{70 + uu} offen offset:{ul*1024} sc1")
                k += 1
                if k > opt("burst", 5):
                    a(f"s_setprio {PRIO}")
                    for x in pend:
                        a(x)
                    pend = []
                    a(f"s_setprio {EPRIO}")
    stamp(a, 4)
    get_nonce(a, "F", 12)
    a("s_mul_i32 s61, s69, 47")
    a("s_lshr_b32 s61, s61, 10")
    a("s_add_u32 s31, s69, 2")
    a("s_mul_i32 s31, s31, 47")
    a("s_lshr_b32 s31, s31, 10")
    a("s_cmp_eq_u32 s31, s61")
    a("s_cselect_b32 s64, 1, 3")
    a("s_and_b32 s31, s56, 7")
    a("s_lshl_b32 s31, s31, 3")
    a("s_add_u32 s61, s61, s31")
    a("s_lshl_b32 s31, s66, 2")
    a("s_add_u32 s61, s61, s31")
    signal(a, 12, "s61", "s64")
    if GATE:
        a("s_barrier")
    a("s_branch P2_CONS")

    a.lab("P1_CSP")
    FS = [16, 64]
    ACC = 112
    AS = 240
    def xs(s, kk, u): return FS[s] + 4 * (4 * kk + u)
    def dfr(s, kk): return FS[s] + 32 + 4 * kk
    def ffr(s, kk): return FS[s] + 40 + 4 * kk
    def accD(st, u): return ACC + 16 * (4 * st + u)
    a("v_lshrrev_b32 v2, 5, v0")
    a("v_and_b32 v12, 31, v0")
    a("v_bfe_u32 v4, v0, 1, 3")
    a("v_xor_b32 v4, v4, v2")
    a("v_lshlrev_b32 v4, 4, v4")
    a("v_lshl_add_u32 v4, v12, 7, v4")
    a("v_xor_b32 v5, 32, v4")
    a("v_xor_b32 v6, 64, v4")
    a("v_xor_b32 v7, 0x60, v4")
    a("v_lshrrev_b32 v3, 2, v1")
    a("v_lshl_add_u32 v3, v2, 3, v3")
    a("v_bfe_u32 v14, v0, 4, 1")
    a("v_bfe_u32 v8, v0, 3, 2")
    a("v_xor_b32 v8, s3, v8")
    a("v_lshlrev_b32 v8, 5, v8")
    a("v_lshl_add_u32 v8, v3, 7, v8")
    a("v_lshl_add_u32 v8, v11, 3, v8")
    a("v_lshl_add_u32 v8, v14, 13, v8")
    a(f"v_add_u32 v8, {XB}, v8")
    a("v_lshlrev_b32 v9, 5, v3")
    a("v_lshl_add_u32 v9, v11, 3, v9")
    a(f"v_mul_u32_u24 v3, {2048 + 128}, v14")
    a("v_add_u32 v9, v9, v3")
    a(f"v_add_u32 v9, {XB + 16384}, v9")
    a("v_xor_b32 v3, 0x80, v9")
    a("v_and_b32 v14, 1, v0")
    a("v_mul_u32_u24 v14, 0x8000, v14")
    a("v_lshl_or_b32 v14, v14, 16, v14")
    def readsS(s, st):
        r = []
        for kk in range(2):
            for hf in range(2):
                r.append(f"ds_read_b64_tr_b16 {vr(dfr(s, kk) + 2*hf, 2)}, v8 offset:{(2*st+kk)*2048 + hf*512}")
        for u in range(4):
            r.append(f"ds_read_b128 {vr(xs(s, 0, u), 4)}, v{4+2*st} offset:{u*4096}")
        for kk in range(2):
            for hf in range(2):
                r.append(f"ds_read_b64_tr_b16 {vr(ffr(s, kk) + 2*hf, 2)}, v{9 if hf == 0 else 3} offset:{(2*st+kk)*512}")
        for u in range(4):
            r.append(f"ds_read_b128 {vr(xs(s, 1, u), 4)}, v{5+2*st} offset:{u*4096}")
        return r
    def allS(s, st, cw):
        m = []
        for kk in range(2):
            for u in range(4):
                d = vr(accD(st, u), 16)
                m.append(f"v_mfma_f32_32x32x16_bf16 {d}, {vr(xs(s, kk, u), 4)}, {vr(dfr(s, kk), 4)}, {d}")
            m.append(f"v_mfma_f32_32x32x16_bf16 {vr(AS,16)}, {vr(ffr(s, kk), 4)}, {vr(xs(s, kk, cw), 4)}, {vr(AS,16)}")
        return m
    def xors(s):
        return ["s_waitcnt lgkmcnt(12)"] + [f"v_xor_b32 v{dfr(s,0)+i}, v13, v{dfr(s,0)+i}" for i in range(8)]
    def weave2(mf, fill):
        n = len(mf) - 1
        fi = 0
        for i, m in enumerate(mf):
            a(m)
            want = min(len(fill), -(-len(fill) * (i + 1) // n))
            while fi < want:
                a(fill[fi]); fi += 1
    for i in range(144):
        a(f"v_mov_b32 v{ACC+i}, 0")
    a("v_cvt_f32_u32 v16, v12")
    a(f"v_mul_f32 v16, {f32(1.0/32)}, v16")
    a("v_lshlrev_b32 v18, 2, v2")
    a("v_cvt_f32_u32 v18, v18")
    for k in range(2):
        for j in range(8):
            s1 = 16 * k + 8 * (j >> 2) + (j & 3)
            a(f"v_add_f32 v19, {f32(float(s1))}, v18")
            a("v_mul_f32 v19, v19, v16")
            a(f"v_cos_f32 v{20+j}, v19")
            a(f"v_sin_f32 v{28+j}, v19")
        a("s_nop 0")
        for i in range(4):
            a(f"v_cvt_pk_bf16_f32 v{40+4*k+i}, v{20+2*i}, v{21+2*i}")
            a(f"v_cvt_pk_bf16_f32 v{48+4*k+i}, v{28+2*i}, v{29+2*i}")
    a("v_lshlrev_b32 v11, 4, v0")
    a(f"v_add_u32 v11, {F1_LDS}, v11")
    for i in range(4):
        a(f"ds_write_b128 v11, {vr(40+4*i,4)} offset:{i*1024}")
    cons_start()
    a("s_waitcnt vmcnt(0) lgkmcnt(0)")
    a("v_mov_b32 v13, 0")
    if opt("sprio", 0): a(f"s_setprio {opt('sprio', 0)}")
    a("s_barrier")
    stamp(a, 2)
    def kreads(ks):
        s, kk = ks >> 1, ks & 1
        r = [f"ds_read_b64_tr_b16 {vr(dfr(s, kk) + 2*hf, 2)}, v8 offset:{ks*2048 + hf*512}" for hf in range(2)]
        r += [f"ds_read_b128 {vr(xs(s, kk, u), 4)}, v{4+ks} offset:{u*4096}" for u in range(4)]
        r += [f"ds_read_b64_tr_b16 {vr(ffr(s, kk) + 2*hf, 2)}, v{9 if hf == 0 else 3} offset:{ks*512}" for hf in range(2)]
        return r
    def kmf(ks, cw):
        return allS(ks >> 1, ks >> 1, cw)[5 * (ks & 1): 5 * (ks & 1) + 5]
    def kxor(ks):
        d = dfr(ks >> 1, ks & 1)
        return [f"v_xor_b32 v{d+i}, v13, v{d+i}" for i in range(4)]
    def kstep(ks, cw, reads, pre, extra, wait0, xr=True):
        m = kmf(ks, cw)
        a(f"s_waitcnt lgkmcnt({wait0})")
        cnt = [2, 2, 2, 1, 1]
        ri = 0
        for g in range(5):
            a(m[g])
            if g == 0:
                for x in pre: a(x)
            for _ in range(cnt[g]):
                if ri < len(reads):
                    a(reads[ri]); ri += 1
            if g == 2 and xr:
                a(f"s_waitcnt lgkmcnt({6 + ri})")
                for x in kxor((ks + 1) & 3)[:2]: a(x)
            if g == 3 and xr:
                for x in kxor((ks + 1) & 3)[2:]: a(x)
            for x in extra[g]: a(x)
    for r in kreads(0) + kreads(1):
        a(r)
    F1 = 16
    for cw in (1, 2, 3):
        a(f"s_cmp_eq_u32 s3, {cw}")
        a(f"s_cbranch_scc1 P1_LOOPS{cw}")
    lastfill = ([f"ds_read_b128 {vr(F1+4*i,4)}, v11 offset:{i*1024}" for i in range(4)] +
                ["s_lshl_b32 s30, s56, 2", "s_add_u32 s30, s30, s3", f"s_mul_i32 s30, s30, {NKS}", "s_add_u32 s30, s30, s59",
                 "s_add_u32 s30, s30, 84", "s_lshl_b32 s70, s30, 10",
                 f"s_mul_i32 s69, s56, {EP*16}", f"s_add_u32 s69, s69, 0x{C_OFF:x}",
                 "s_waitcnt lgkmcnt(0)", "s_barrier"] + req_nonce() + [f"v_xor_b32 v{F1+16+i}, 0x80008000, v{F1+i}" for i in range(8)])
    E = lambda *l: list(l)
    for cw in range(4):
        a.lab(f"P1_LOOPS{cw}")
        kstep(0, cw, kreads(2), [], [E("s_add_u32 s68, s68, 1"), E("s_and_b32 s30, s68, 3"), E(), E("s_cmp_eq_u32 s30, 0"),
                                     E("s_cselect_b32 s30, s82, s83", "v_add_u32 v4, s30, v4")], 8)
        kstep(1, cw, kreads(3), [], [E("v_add_u32 v5, s30, v5"), E("v_add_u32 v8, s30, v8"), E(), E("v_add_u32 v6, s30, v6"),
                                     E("v_add_u32 v9, s30, v9", "v_add_u32 v3, s30, v3", "s_cmp_eq_u32 s68, 8")], 8)
        a(f"s_cbranch_scc1 P1_LASTS{cw}")
        kstep(2, cw, kreads(0), ["s_barrier"], [E(), E("v_add_u32 v7, s30, v7"), E(), E("s_cmp_ge_u32 s68, 4"),
                                                E("s_cselect_b32 s31, -1, 0", "v_and_b32 v13, s31, v14")], 8)
        kstep(3, cw, kreads(1), [], [E(), E(), E(), E(), E()], 8)
        a(f"s_branch P1_LOOPS{cw}")
        a.lab(f"P1_LASTS{cw}")
        kstep(2, cw, lastfill[:4], [], [E(), lastfill[4:8], E(), E(), lastfill[8:12]], 8)
        kstep(3, cw, [], lastfill[13:15], [E(), lastfill[15:19], lastfill[19:23], E(), E()], 0, xr=False)
        if cw != 3:
            a("s_branch P1_LASTS")
    a.lab("P1_LASTS")
    stamp(a, 3)
    if EPRIO: a(f"s_setprio {EPRIO}")
    TS = 16 * EP * 16
    a("v_lshlrev_b32 v3, 4, v0")
    a("s_lshl_b32 s30, s59, 6")
    a("s_lshl_b32 s31, s3, 4")
    a("s_add_u32 s30, s30, s31")
    a("v_bfe_u32 v5, v0, 4, 1")
    a("v_lshl_add_u32 v4, v5, 7, v1")
    a("v_add_u32 v4, s30, v4")
    a(f"s_mov_b32 s31, {4*TS}")
    a("v_mul_lo_u32 v6, v2, s31")
    a("v_lshl_add_u32 v4, v4, 4, v6")
    a("v_mul_u32_u24 v5, 0x8000, v5")
    a("v_lshl_or_b32 v5, v5, 16, v5")
    a("v_mov_b32 v6, -1")
    BF, TM, XF, CK, TM2, HD = 40, 72, 80, 96, 80, 100
    for x in gelu8([AS+i for i in range(8)], [AS+8+i for i in range(8)], TM, HD, 32):
        a(x)
    a(f"s_setprio {PRIO}")
    a(f"buffer_store_dwordx4 {vr(HD,4)}, v3, s[44:47], s70 offen sc1")
    a(f"s_setprio {EPRIO}")
    a("s_cmp_lg_u32 s30, 0")
    a("s_cbranch_scc1 P1_NOX")
    a("v_cmp_ne_u32 vcc, 0, v1")
    a(f"s_mov_b32 s31, {TS}")
    a("v_mul_lo_u32 v7, v0, s31")
    a("v_cndmask_b32 v6, 0, v6, vcc")
    for u in range(4):
        for st in range(2):
            dst = XF + 8 * st if u == 0 else TM
            for i in range(8):
                a(f"v_cvt_pk_bf16_f32 v{dst+i}, v{accD(st,u)+2*i}, v{accD(st,u)+2*i+1}")
            if u:
                for i in range(8):
                    a(f"v_mov_b32_dpp v{XF+8*st+i}, v{TM+i} row_shr:{u} row_mask:0xa bank_mask:0x1")
    a("s_nop 1")
    for comp in range(2):
        o = vr(BF + 16 * comp, 16)
        for half in range(2):
            for k in range(2):
                c = "0" if (half == 0 and k == 0) else o
                a(f"v_mfma_f32_32x32x16_bf16 {o}, {vr(XF+8*half+4*k,4)}, {vr(F1+8*(comp+half)+4*k,4)}, {c}")
    a(f"s_add_u32 s30, s69, {256*16}")
    a("s_nop 11")
    for comp in range(2):
        a(f"v_cvt_pk_bf16_f32 v{CK+2*comp}, v{BF+16*comp+8}, v{BF+16*comp+9}")
        a(f"v_cvt_pk_bf16_f32 v{CK+2*comp+1}, v{BF+16*comp+10}, v{BF+16*comp+11}")
    a("s_mov_b32 exec_hi, 0")
    a(f"buffer_store_dwordx4 {vr(CK,4)}, v7, s[44:47], s30 offen sc1")
    a("s_mov_b32 exec_hi, -1")
    a.lab("P1_NOX")
    def bfly(u):
        r_ = []
        A = BF + 16 * (u & 1)
        B = A + 8
        E, T = accD(0, u), accD(1, u)
        for r in range(0, 16, 2):
            r_.append(f"v_pk_add_f32 {vr(TM2+r,2)}, {vr(E+r,2)}, {vr(T+r,2)}")
            r_.append(f"v_pk_add_f32 {vr(T+r,2)}, {vr(E+r,2)}, {vr(T+r,2)} neg_lo:[0,1] neg_hi:[0,1]")
        for i in range(8):
            r_.append(f"v_cvt_pk_bf16_f32 v{A+i}, v{TM2+2*i}, v{TM2+2*i+1}")
            r_.append(f"v_cvt_pk_bf16_f32 v{B+i}, v{T+2*i}, v{T+2*i+1}")
        for i in range(8):
            r_.append(f"v_permlane16_swap_b32 v{A+i}, v{B+i}")
        for i in range(8):
            r_.append(f"v_bitop3_b32 v{B+i}, v{B+i}, v5, v6 bitop3:0x28")
        return r_
    def st1(u):
        m = []
        A = BF + 16 * (u & 1)
        for half in range(2):
            for k in range(2):
                for comp in range(2):
                    o = vr(accD(comp, u), 16)
                    c = "0" if (half == 0 and k == 0) else o
                    m.append(f"v_mfma_f32_32x32x16_bf16 {o}, {vr(F1+8*(comp+half)+4*k,4)}, {vr(A+8*half+4*k,4)}, {c}")
        return m
    for x in bfly(0):
        a(x)
    for u in range(4):
        weave(a, st1(u), bfly(u + 1) if u < 3 else [], per=6)
        if u == 1:
            get_nonce(a, "S", 12)
            a("s_and_b32 s61, s56, 7")
            a("s_lshl_b32 s61, s61, 3")
            a("s_lshl_b32 s31, s66, 2")
            a("s_add_u32 s61, s61, s31")
            a("s_add_u32 s61, s61, 3")
            signal(a, 12, "s61")
    a(f"s_setprio {PRIO}")
    stamp(a, 11)
    a("s_nop 8")
    for r in range(16):
        d = BF + 4 * (r & 7)
        a(f"v_cvt_pk_bf16_f32 v{d}, v{accD(0,0)+r}, v{accD(0,1)+r}")
        a(f"v_cvt_pk_bf16_f32 v{d+1}, v{accD(0,2)+r}, v{accD(0,3)+r}")
        a(f"v_cvt_pk_bf16_f32 v{d+2}, v{accD(1,0)+r}, v{accD(1,1)+r}")
        a(f"v_cvt_pk_bf16_f32 v{d+3}, v{accD(1,2)+r}, v{accD(1,3)+r}")
        a(f"s_add_u32 s30, s69, {(8*(r >> 2) + (r & 3))*TS}")
        if not opt("abl_cs", 0): a(f"buffer_store_dwordx4 {vr(d,4)}, v4, s[44:47], s30 offen sc1")
    stamp(a, 4)
    if opt("shold", 0):
        a("s_barrier")
    a("s_lshl_b32 s61, s59, 2")
    a("s_add_u32 s61, s61, s3")
    a(f"s_mul_i32 s61, s61, {NREP}")
    a(f"s_add_u32 s61, s61, {CT_C}")
    signal(a, 12, "s61", "-1")

    a.lab("P2_CONS")
    a("v_mov_b32 v56, 16")
    if EPRIO: a("s_setprio 0")
    stamp(a, 5)
    p2_ids(a)
    YA, CF, MF, PR, GV = 64, 80, 112, 144, 60
    a("v_lshrrev_b32 v8, 5, v0")
    a("v_and_b32 v9, 31, v0")
    a("s_lshl_b32 s31, s93, 6")
    a("s_lshl_b32 s61, s67, 5")
    a("s_add_u32 s31, s31, s61")
    a("s_lshl_b32 s30, s66, 5")
    a("s_add_u32 s30, s30, s92")
    a("v_lshlrev_b32 v12, 6, v9")
    a("v_add_u32 v12, s30, v12")
    a("v_lshrrev_b32 v11, 1, v9")
    a("v_lshlrev_b32 v11, 7, v11")
    a("v_and_b32 v4, 1, v9")
    a("v_lshl_add_u32 v11, v4, 2, v11")
    a("s_lshl_b32 s61, s30, 11")
    a("v_add_u32 v11, s61, v11")
    a("s_lshr_b32 s64, s30, 2")
    a("s_sub_u32 s61, 32, s92")
    a("s_and_b32 s61, s61, 31")
    a("s_sub_u32 s65, 481, s31")
    a("s_cmp_ge_u32 s93, 4")
    a("s_cselect_b32 s69, s61, s92")
    a("s_cselect_b64 vcc, -1, 0")
    a("s_cselect_b32 s73, 1.0, -1.0")
    a("s_cselect_b32 s65, s65, s31")
    a("v_add_u32 v4, s31, v9")
    a("v_sub_u32 v5, 0x200, v4")
    a("v_cndmask_b32 v4, v4, v5, vcc")
    a("v_lshrrev_b32 v6, 4, v0")
    a("v_lshlrev_b32 v6, 4, v6")
    a("v_min_u32 v6, 31, v6")
    a("v_add_u32 v6, s65, v6")
    for v in (4, 6):
        a(f"v_sub_u32 v5, 384, v{v}")
        a(f"v_cmp_gt_u32 vcc, 128, v{v}")
        a("s_nop 1")
        a(f"v_cndmask_b32 v{v}, v5, v{v}, vcc")
    a(f"v_mul_u32_u24 v5, {8*EP}, v8")
    a("v_add_u32 v4, v4, v5")
    a("v_lshlrev_b32 v4, 4, v4")
    a(f"s_mul_i32 s69, s69, {16*EP*16}")
    a(f"s_add_u32 s69, s69, 0x{C_OFF:x}")
    a("v_bfe_u32 v6, v6, 4, 3")
    a("s_lshr_b32 s61, s2, 1")
    a("s_xor_b32 s61, s61, s2")
    a("s_lshl_b32 s64, s66, 4")
    a("s_add_u32 s61, s61, s64")
    a(f"s_and_b32 s61, s61, {NREP-1}")
    a(f"s_add_u32 s61, s61, {CT_C}")
    a("v_lshl_add_u32 v6, v6, 5, s61")
    a(f"s_add_u32 s61, s30, {CT_G}")
    a("v_mov_b32 v5, s61")
    a("v_cmp_gt_u32 vcc, 48, v0")
    a("s_nop 1")
    a("v_cndmask_b32 v6, v5, v6, vcc")
    a("v_lshlrev_b32 v6, 7, v6")
    a("v_cvt_f32_u32 v9, v12")
    a(f"v_mul_f32 v9, {f32(1.0/2048)}, v9")
    a("v_mul_f32 v9, s73, v9")
    a("v_lshlrev_b32 v10, 5, v8")
    a("v_cvt_f32_u32 v10, v10")
    a("v_mul_f32 v10, v10, v9")
    T = 16
    for i in range(8):
        for c in range(4):
            a(f"v_cos_f32 v{T+c}, v10")
            a(f"v_sin_f32 v{T+4+c}, v10")
            a("v_add_f32 v10, v10, v9")
        for c in range(4):
            a(f"v_cvt_pk_bf16_f32 v{MF+4*i+c}, v{T+2*c}, v{T+2*c+1}")
    final_setup(248)
    a(f"s_mul_i32 s30, s3, {PIECE}")
    a("s_add_u32 s30, s30, 4096")
    a("v_lshlrev_b32 v5, 4, v0")
    a("v_add_u32 v240, s30, v5")
    for qd in range(1, 4):
        a(f"v_xor_b32 v{240+qd}, {64*qd}, v240")
    a("v_and_b32 v5, 31, v0")
    a("s_lshl_b32 s30, s66, 7")
    a("v_lshl_add_u32 v244, v5, 2, s30")
    stamp(a, 6)
    if not opt("pollfirst", 0) and KB >= 0:
        a("s_barrier")
    a(f"s_setprio {opt('cprio', 3)}")
    poll(a, "C", 6, 56, 58, 0x0001000100010001, sleep=opt("csleep", 0))
    stamp(a, 7)
    if opt("pollfirst", 0):
        a("s_barrier")
    for i in range(8):
        a(f"s_add_u32 s70, s69, {i*EP*16}")
        if not opt("abl_cl", 0): a(f"buffer_load_dwordx4 {vr(CF + 4*i, 4)}, v4, s[44:47], s70 offen sc1")
    a(f"s_mov_b32 s70, 0x{G_OFF:x}")
    a(f"buffer_load_dword v{GV}, v11, s[44:47], s70 offen sc1")
    for i in range(8):
        a(f"s_waitcnt vmcnt({8 - i})")
        c = "0" if i == 0 else vr(YA, 16)
        a(f"v_mfma_f32_32x32x16_bf16 {vr(YA,16)}, {vr(CF+4*i,4)}, {vr(MF+4*i,4)}, {c}")
    a("s_waitcnt vmcnt(0)")
    a(f"v_sub_f32 v{GV+2}, 1.0, v{GV}")
    a(f"v_cvt_pk_bf16_f32 v{GV+2}, v{GV+2}, v{GV+2}")
    a(f"v_lshlrev_b32 v{GV+2}, 16, v{GV+2}")
    a(f"ds_write_b32 v244, v{GV+2} offset:8192")
    a("s_nop 6")
    for qd in range(4):
        for r in (4*qd, 4*qd + 2):
            a(f"v_pk_mul_f32 {vr(YA+r,2)}, {vr(YA+r,2)}, {vr(GV,2)} op_sel_hi:[1,0]")
        a(f"ds_write_b128 v{240+qd}, {vr(YA+4*qd,4)} offset:{qd*1024}")
    a("s_waitcnt lgkmcnt(0)")
    stamp(a, 8)
    final_stage(248, 144)
    stamp(a, 9)
    stamp_flush(a)
    if opt("spin", 0):
        if opt("spinall", 0) == 0:
            a("s_or_b32 s30, s2, s3")
            a("s_cbranch_scc1 K_END")
        a.lab("SPIN_L")
        a("s_memrealtime s[92:93]")
        a("s_waitcnt lgkmcnt(0)")
        a("s_sub_u32 s92, s92, s90")
        a(f"s_cmp_lt_u32 s92, {opt('spin', 0)}")
        a("s_cbranch_scc1 SPIN_L")
    a.lab("K_END")
    a("s_endpgm")

HEADER = open("cdna_kernels/" + NAME + ".s.ref").read().split("; Override launch")[0]

DOC = """; One launch, 256 workgroups (one per CU), 4 loader waves + 4 compute waves each.
"""

def main():
    nm = NAME + "_kernel"
    out = HEADER
    out += f"; @launch grid=(256,1,1) block=(512,1,1) lds={4*SLOT}\n"
    out += '.amdgcn_target "amdgcn-amd-amdhsa--gfx950"\n'
    out += DOC
    out += '.text\n'
    a = Asm()
    out += f".globl {nm}\n.p2align 8\n.type {nm},@function\n"
    kernel(a)
    out += a.text()
    out += f""".section .rodata,"a"
.p2align 6
.amdhsa_kernel {nm}
  .amdhsa_next_free_vgpr 256
  .amdhsa_next_free_sgpr 102
  .amdhsa_accum_offset 256
  .amdhsa_group_segment_fixed_size 0
  .amdhsa_kernarg_size 104
  .amdhsa_user_sgpr_count 2
  .amdhsa_user_sgpr_kernarg_segment_ptr 1
  .amdhsa_system_sgpr_workgroup_id_x 1
.end_amdhsa_kernel
"""
    path = [x for x in sys.argv[1:] if not x.startswith("--")][0]
    open(path, "w").write(out)

main()
```

```python
import sys, math, struct

NAME = "gated_mix__spectral_fnet__geglu_ffn__prompt"
STAMP = "--stamp" in sys.argv
def opt(name, default):
    for x in sys.argv:
        if x.startswith("--" + name + "="):
            return int(x.split("=")[1])
    return default
RA = opt("ra", 1); RB = opt("rb", 2); RM = opt("rm", 6)
RJ = opt("rj", 0); RI = opt("ri", 6)
NPRE = opt("npre", 0)
D2 = opt("d2", 8)
WTH = opt("wth", 64)
PRIO = opt("prio", 3)
EPRIO = opt("eprio", 1)
KB = opt("kb", 10)
LA2 = opt("la2", 9)
N0A = opt("n0a", 3)
N0B = opt("n0b", 2)
WNT = "nt" if opt("wnt", 0) else ""
XNT = "nt" if opt("xnt", 0) else ""
PK = opt("pk", 1)
N1 = opt("n1", 20)
DIRECT = opt("direct", 4)
TAILV = opt("tailv", 1)
LAI = opt("lai", 7)
LAS = opt("las", 9)
BPOS = opt("bpos", 8)
SG = opt("sg", 0)
HB = opt("hb", 0)
GATE = opt("gate", 0)
GDEL = opt("gdel", 0)
CPF = opt("cpf", 1)
PFW = opt("pfw", 1)
LSLEEP = opt("lsleep", 0)
SPINMAX = 400000

NKS = 86
EP = 264
C_OFF = 0x600000
G_OFF = 0x8e0000
FL_OFF = 0x910000
CT_H, CT_G, CT_C = 0, 64, 128
NCT = 384
NREP = 32
WS_USED = 0x920000
ST_OFF = 0x1000000

def f32(x):
    return "0x%08x" % struct.unpack("<I", struct.pack("<f", x))[0]

class Asm:
    def __init__(self):
        self.l = []
    def __call__(self, s):
        self.l.append("    " + s)
    def lab(self, s):
        self.l.append(s + ":")
    def text(self):
        return "\n".join(self.l) + "\n"

def vr(b, n=1):
    return f"v{b}" if n == 1 else f"v[{b}:{b+n-1}]"

def srd(a, d, lo, hi, nbytes):
    a(f"s_mov_b32 s{d}, s{lo}")
    a(f"s_mov_b32 s{d+1}, s{hi}")
    a(f"s_mov_b32 s{d+2}, 0x{nbytes:x}")
    a(f"s_mov_b32 s{d+3}, 0x20000")

SV = 15
def stamp(a, idx):
    if not STAMP:
        return
    a("s_memrealtime s[62:63]")
    a("s_waitcnt lgkmcnt(0)")
    a(f"v_writelane_b32 v{SV}, s62, {idx}")

def stamp_flush(a):
    if not STAMP:
        return
    a("s_lshl_b32 s60, s2, 3")
    a("s_add_u32 s60, s60, s95")
    a("s_lshl_b32 s60, s60, 8")
    a(f"s_add_u32 s60, s60, 0x{ST_OFF:x}")
    a("v_lshlrev_b32 v14, 2, v0")
    a(f"buffer_store_dword v{SV}, v14, s[44:47], s60 offen")

def weave(a, mf, fill, start=0, per=1):
    fi = 0
    for i, m in enumerate(mf):
        a(m)
        if i >= start:
            for _ in range(per):
                if fi < len(fill):
                    a(fill[fi]); fi += 1
    while fi < len(fill):
        a(fill[fi]); fi += 1

C1 = -2.0 * math.sqrt(2.0 / math.pi) * math.log2(math.e)
C2 = C1 * 0.044715

def gelu8(G, U, t, dst, swap):
    r = []
    for i in range(0, 8, 2): r.append(f"v_pk_mul_f32 {vr(t+i,2)}, {vr(G[i],2)}, {vr(G[i],2)}")
    for i in range(0, 8, 2): r.append(f"v_pk_fma_f32 {vr(t+i,2)}, {vr(t+i,2)}, s[72:73], v[10:11] op_sel_hi:[1,0,0]")
    for i in range(0, 8, 2): r.append(f"v_pk_mul_f32 {vr(t+i,2)}, {vr(t+i,2)}, {vr(G[i],2)}")
    for i in range(8):
        r.append(f"v_exp_f32 v{t+i}, v{t+i}")
        if i & 1: r.append(f"v_pk_mul_f32 {vr(G[i-1],2)}, {vr(G[i-1],2)}, {vr(U[i-1],2)}")
    for i in range(0, 8, 2): r.append(f"v_pk_add_f32 {vr(t+i,2)}, {vr(t+i,2)}, 1.0 op_sel_hi:[1,0]")
    for i in range(8): r.append(f"v_rcp_f32 v{t+i}, v{t+i}")
    for i in range(0, 8, 2): r.append(f"v_pk_mul_f32 {vr(G[i],2)}, {vr(G[i],2)}, {vr(t+i,2)}")
    for i in range(4): r.append(f"v_cvt_pk_bf16_f32 v{dst+i}, v{G[2*i]}, v{G[2*i+1]}")
    r.append("s_nop 1")
    r.append(f"v_permlane{swap}_swap_b32 v{dst}, v{dst+2}")
    r.append(f"v_permlane{swap}_swap_b32 v{dst+1}, v{dst+3}")
    return r

def gelu_pair(a, g0, u0, g1, u1, t, dst):
    G = [g0 + i for i in range(4)] + [g1 + i for i in range(4)]
    U = [u0 + i for i in range(4)] + [u1 + i for i in range(4)]
    for x in gelu8(G, U, t, dst, 16):
        a(x)

SLOT = 40960
XB = 16384
WB = 12288
F1_LDS = 3 * SLOT + 36864
NST = 22
PIECE = 10240


def p2_ids(a):
    if opt("m8", 0):
        a("s_lshr_b32 s31, s2, 3")
        a("s_lshr_b32 s93, s31, 3")
        if opt("jx8", 0): a(f"s_xor_b32 s93, s93, {opt('jx8', 0)}")
        a("s_and_b32 s31, s31, 7")
        a("s_and_b32 s92, s2, 6")
        a("s_lshl_b32 s92, s92, 2")
        a("s_add_u32 s92, s92, s31")
        a(f"s_mul_i32 s94, s31, {opt('ri8', 3)}")
        a(f"s_and_b32 s30, s93, {opt('rm8', 3)}")
        a(f"s_mul_i32 s30, s30, {opt('rj8', 0)}")
        a("s_add_u32 s94, s94, s30")
        a("s_and_b32 s30, s2, 1")
        a("s_lshl_b32 s30, s30, 2")
        a("s_add_u32 s93, s93, s30")
        a(f"s_sub_u32 s30, s94, {NST}")
        a(f"s_cmp_ge_u32 s94, {NST}")
        a("s_cselect_b32 s94, s30, s94")
        return
    a("s_and_b32 s30, s2, 7")
    a("s_lshr_b32 s31, s2, 3")
    a("s_lshr_b32 s93, s31, 2")
    if opt("jx", 5): a(f"s_xor_b32 s93, s93, {opt('jx', 5)}")
    a("s_and_b32 s31, s31, 3")
    a(f"s_mul_i32 s94, s31, {RI}")
    a("s_sub_u32 s61, 0, s30")
    a("s_bitcmp1_b32 s31, 0")
    a("s_cselect_b32 s92, s61, s30")
    a("s_cselect_b32 s61, 8, 0")
    a("s_cmp_eq_u32 s30, 0")
    a("s_cselect_b32 s92, s61, s92")
    a("s_lshr_b32 s31, s31, 1")
    a("s_lshl_b32 s31, s31, 4")
    a("s_add_u32 s92, s92, s31")
    a("s_and_b32 s92, s92, 31")
    a(f"s_mul_i32 s30, s93, {RJ}")
    a("s_add_u32 s94, s94, s30")
    a(f"s_sub_u32 s30, s94, {NST}")
    a(f"s_cmp_ge_u32 s94, {NST}")
    a("s_cselect_b32 s94, s30, s94")

def req_nonce():
    return ["s_load_dwordx8 s[4:11], s[26:27], 0"]

def get_nonce(a, tag, vt):
    a("s_waitcnt lgkmcnt(0)")
    a("s_and_b64 s[4:5], s[4:5], s[6:7]")
    a("s_and_b64 s[8:9], s[8:9], s[10:11]")
    a("s_and_b64 s[4:5], s[4:5], s[8:9]")
    a("s_and_b32 s4, s4, s5")
    a(f"s_cbranch_scc1 NOK{tag}")
    srd(a, 48, 26, 27, 256)
    a("s_mov_b32 s61, 0")
    a(f"v_lshlrev_b32 v{vt+1}, 2, v0")
    a("s_mov_b64 exec, 0xff")
    a.lab(f"NL{tag}")
    a(f"v_mov_b32 v{vt}, 0")
    a(f"buffer_atomic_add v{vt}, v{vt+1}, s[48:51], 0 offen sc0 sc1")
    a("s_add_u32 s61, s61, 1")
    a(f"s_cmp_gt_u32 s61, {SPINMAX}")
    a("s_waitcnt vmcnt(0)")
    a(f"s_cbranch_scc1 NX{tag}")
    a(f"v_cmp_eq_u32 vcc, 0, v{vt}")
    a(f"s_cbranch_vccnz NL{tag}")
    a.lab(f"NX{tag}")
    a("s_mov_b64 exec, -1")
    a.lab(f"NOK{tag}")

def signal(a, vt, sidx, smask=None, cnt=0, lo=None, val="1"):
    a(f"s_lshl_b32 s30, {sidx}, 7")
    a(f"s_add_u32 s30, s30, 0x{FL_OFF:x}")
    a(f"v_mov_b32 v{vt}, {val}")
    a(f"v_lshlrev_b32 v{vt+1}, 7, v0")
    a(f"s_waitcnt vmcnt({cnt})")
    if smask is None:
        a("s_mov_b64 exec, 1")
    else:
        a(f"s_mov_b32 exec_lo, {smask}")
        a("s_mov_b32 exec_hi, 0")
    a(f"s_setprio {PRIO}")
    a(f"buffer_atomic_add v{vt}, v{vt+1}, s[44:47], s30 offen sc1")
    a(f"s_setprio {EPRIO if lo is None else lo}")
    a("s_mov_b64 exec, -1")

def poll(a, tag, vaddr, vexp, vt, mask, sleep=0):
    a(f"s_mov_b32 s30, 0x{FL_OFF:x}")
    a("s_mov_b32 s61, 0")
    a(f"s_mov_b32 exec_lo, 0x{mask & 0xffffffff:x}")
    a(f"s_mov_b32 exec_hi, 0x{mask >> 32:x}")
    a.lab(f"PL{tag}")
    a(f"v_mov_b32 v{vt}, 0")
    a(f"buffer_atomic_add v{vt}, v{vaddr}, s[44:47], s30 offen sc0 sc1")
    a("s_add_u32 s61, s61, 1")
    a(f"s_cmp_gt_u32 s61, {SPINMAX}")
    a("s_waitcnt vmcnt(0)")
    a(f"s_cbranch_scc1 PD{tag}")
    a(f"v_cmp_ne_u32 vcc, v{vt}, v{vexp}")
    if sleep:
        a(f"s_cbranch_vccz PD{tag}")
        a(f"s_sleep {sleep}")
        a(f"s_branch PL{tag}")
    else:
        a(f"s_cbranch_vccnz PL{tag}")
    a.lab(f"PD{tag}")
    a("s_mov_b64 exec, -1")

def kernel(a):
    a.lab(NAME + "_kernel")
    a("s_cmp_ge_u32 s2, 256")
    a("s_cbranch_scc1 K_END")
    a("s_load_dwordx2 s[32:33], s[0:1], 0")
    a("s_load_dwordx16 s[4:19], s[0:1], 0")
    a("s_load_dwordx8 s[20:27], s[0:1], 64")
    a("s_load_dwordx2 s[28:29], s[0:1], 96")
    if STAMP or opt("spin", 0):
        a("s_memrealtime s[90:91]")
    a("v_lshrrev_b32 v1, 6, v0")
    a("v_and_b32 v0, 63, v0")
    a("v_readfirstlane_b32 s95, v1")
    CPE = opt('cpe', 1)
    def cpf_block(reg, val):
      if CPF:
          a(f"s_cmp_lg_u32 {reg}, {val}")
          a("s_cbranch_scc1 NOCPF")
          a("s_getpc_b64 s[84:85]")
          a.lab("CPF_PC")
          a(f"s_sub_u32 s84, s84, CPF_PC-{NAME}_kernel")
          a("s_subb_u32 s85, s85, 0")
          a("s_lshr_b32 s30, s2, 3")
          a("s_lshl_b32 s30, s30, 10")
          a("v_and_b32 v1, 7, v0")
          a("v_lshl_add_u32 v1, v1, 7, s30")
          a(f"v_min_u32 v1, K_END-{NAME}_kernel, v1")
          a("v_mov_b32 v3, s85")
          a("v_add_co_u32 v2, vcc, s84, v1")
          a("s_nop 1")
          a("v_addc_co_u32 v3, vcc, 0, v3, vcc")
          a("s_mov_b64 exec, 0xff")
          a("global_load_dword v13, v[2:3], off")
          a("s_mov_b64 exec, -1")
          a.lab("NOCPF")
    if CPE:
        cpf_block('s95', 4)
    if opt("r3", 1):
        starts = {1: [0, 3, 6], 2: [0, 3, 5], 3: [1, 4, 6], 4: [0, 2, 5], 5: [0, 4], 6: [0], 7: [0, 2, 4, 6]}[opt("r3", 1)]
        tab = sum(starts[v % len(starts)] << (4 * v) for v in range(11))
        a(f"s_mov_b32 s96, 0x{tab & 0xffffffff:x}")
        a(f"s_mov_b32 s97, 0x{tab >> 32:x}")
    a("s_lshr_b32 s31, s2, 3")
    a("s_and_b32 s56, s2, 1")
    a("s_lshl_b32 s56, s56, 3")
    a("s_and_b32 s74, s31, 7")
    a("s_add_u32 s56, s56, s74")
    a("s_and_b32 s57, s2, 6")
    a("s_lshl_b32 s57, s57, 1")
    a("s_lshr_b32 s75, s31, 3")
    a("s_add_u32 s57, s57, s75")
    if opt("r3", 1):
        a("s_add_u32 s74, s74, s75")
        a("s_lshl_b32 s74, s74, 2")
        a(f"s_lshr_b64 s[74:75], s[96:97], s74")
        if opt("xo", 0):
            xt = {1: [0, 2, 2, 0, 0, 2, 2, 0], 2: [0, 1, 1, 0, 0, 1, 1, 0], 3: [0, 4, 2, 6, 4, 0, 6, 2], 4: [0, 2, 1, 3, 2, 0, 3, 1], 5: [0, 2, 3, 1, 1, 3, 2, 0]}[opt("xo", 0)]
            a("s_and_b32 s30, s2, 7")
            a("s_lshl_b32 s30, s30, 2")
            a(f"s_lshr_b32 s30, 0x{sum(v << (4*i) for i, v in enumerate(xt)):x}, s30")
            a("s_add_u32 s74, s74, s30")
        a("s_and_b32 s74, s74, 7")
    else:
        a(f"s_mul_i32 s74, s74, {RA}")
        a(f"s_mul_i32 s75, s75, {RB}")
        a("s_add_u32 s74, s74, s75")
        a(f"s_and_b32 s74, s74, {RM}")
    if opt("ro", 0): a(f"s_or_b32 s74, s74, {opt('ro', 0)}")
    a("s_and_b32 s30, s57, 7")
    a("s_cselect_b32 s58, 0, 1")
    a("s_lshr_b32 s59, s57, 3")
    a("s_sub_u32 s78, s57, s59")
    a("s_sub_u32 s78, s78, 1")
    a("s_and_b32 s3, s95, 3")
    if STAMP:
        a(f"v_mov_b32 v{SV}, -1")
    a("s_cmp_ge_u32 s95, 4")
    a("s_cbranch_scc1 P1_CONS")
    a("v_lshrrev_b32 v3, 3, v0")
    a("v_and_b32 v8, 7, v0")
    a("v_lshrrev_b32 v9, 4, v0")
    a("s_lshl_b32 s30, s56, 2")
    a("s_add_u32 s30, s30, s3")
    a("s_lshl_b32 s79, s30, 10")
    a("s_lshl_b32 s66, s3, 12")
    a("s_lshl_b32 s70, s74, 7")
    a("s_cmp_eq_u32 s58, 1")
    a("s_cbranch_scc1 P1_LSP")

    def stamp0():
        if STAMP:
            a(f"v_writelane_b32 v{SV}, s90, 0")
            stamp(a, 1)

    def gload(ops, sl="s57", xb=68, gw=True):
        srd(a, 48, 22, 23, 1024)
        a(f"s_lshl_b32 s30, {sl}, 3")
        a("s_lshl_b32 s31, s3, 1")
        a("s_add_u32 s30, s30, s31")
        a("s_lshr_b32 s31, s30, 5")
        a("s_and_b32 s30, s30, 31")
        a("s_lshl_b32 s30, s30, 6")
        a("s_add_u32 s30, s30, s31")
        a("s_lshl_b32 s31, s56, 2")
        a("s_add_u32 s64, s30, s31")
        a("s_lshl_b32 s30, s64, 10")
        a("s_add_u32 s31, s30, 0x10000")
        a("v_lshlrev_b32 v12, 4, v0")
        if gw:
            a("buffer_load_dwordx4 v[64:67], v12, s[48:51], 0 offen")
        a(f"buffer_load_dwordx4 {vr(xb,4)}, v12, s[32:35], s30 offen")
        a(f"buffer_load_dwordx4 {vr(xb+4,4)}, v12, s[32:35], s31 offen")
        ops.extend(["g"] * 3)

    def gcalc(ops, parts=(0, 1, 2), x0=68):
        T = 76
        if 0 in parts and ops is not None:
            waitfor(ops, "g")
        for rr in range(2):
            if rr not in parts:
                continue
            xb = x0 + 4 * rr
            acc = T + 4 + rr
            for d in range(4):
                a(f"v_lshlrev_b32 v{T}, 16, v{xb+d}")
                a(f"v_and_b32 v{T+1}, 0xffff0000, v{xb+d}")
                a(f"v_lshlrev_b32 v{T+2}, 16, v{64+d}")
                a(f"v_and_b32 v{T+3}, 0xffff0000, v{64+d}")
                a(f"v_mul_f32 v{T}, v{T}, v{T+2}")
                a(f"v_mul_f32 v{T+1}, v{T+1}, v{T+3}")
                a(f"v_cvt_pk_bf16_f32 v{T}, v{T}, v{T+1}")
                a(f"v_and_b32 v{T+1}, 0xffff0000, v{T}")
                a(f"v_lshlrev_b32 v{T}, 16, v{T}")
                if d == 0:
                    a(f"v_add_f32 v{acc}, v{T}, v{T+1}")
                else:
                    a(f"v_add_f32 v{acc}, v{acc}, v{T}")
                    a(f"v_add_f32 v{acc}, v{acc}, v{T+1}")
        if 2 not in parts:
            return
        A, B = T + 4, T + 5
        for sh in (8, 4, 2, 1):
            a("s_nop 1")
            a(f"v_add_f32_dpp v{A}, v{A}, v{A} row_ror:{sh} row_mask:0xf bank_mask:0xf")
            a(f"v_add_f32_dpp v{B}, v{B}, v{B} row_ror:{sh} row_mask:0xf bank_mask:0xf")
        a("s_nop 1")
        a(f"v_add_f32_dpp v{A}, v{A}, v{A} row_bcast:15 row_mask:0xa bank_mask:0xf")
        a(f"v_add_f32_dpp v{B}, v{B}, v{B} row_bcast:15 row_mask:0xa bank_mask:0xf")
        a("s_nop 1")
        a(f"v_add_f32_dpp v{A}, v{A}, v{A} row_bcast:31 row_mask:0xc bank_mask:0xf")
        a(f"v_add_f32_dpp v{B}, v{B}, v{B} row_bcast:31 row_mask:0xc bank_mask:0xf")
        a("s_nop 1")
        a(f"v_cvt_pk_bf16_f32 v{A}, v{A}, v{B}")
        a(f"v_and_b32 v{B}, 0xffff0000, v{A}")
        a(f"v_lshlrev_b32 v{A}, 16, v{A}")
        a(f"v_mul_f32 v{A}, {f32(-math.log2(math.e))}, v{A}")
        a(f"v_mul_f32 v{B}, {f32(-math.log2(math.e))}, v{B}")
        a(f"v_exp_f32 v{A}, v{A}")
        a(f"v_exp_f32 v{B}, v{B}")
        a("s_nop 0")
        a(f"v_add_f32 v{A}, 1.0, v{A}")
        a(f"v_add_f32 v{B}, 1.0, v{B}")
        a(f"v_rcp_f32 v{A}, v{A}")
        a(f"v_rcp_f32 v{B}, v{B}")
        a("s_nop 0")
        a(f"v_cvt_pk_bf16_f32 v{A}, v{A}, v{B}")
        a(f"v_and_b32 v{B}, 0xffff0000, v{A}")
        a(f"v_lshlrev_b32 v{A}, 16, v{A}")

    def gsignal(sl, vt, val):
        a("s_lshl_b32 s61, s56, 2")
        a(f"s_lshr_b32 s31, {sl}, 2")
        a("s_add_u32 s61, s61, s31")
        a(f"s_add_u32 s61, s61, {CT_G}")
        signal(a, vt, "s61", cnt=63, lo=0, val=val)

    def gstore(sl="s57"):
        a("s_lshl_b32 s30, s56, 4")
        a(f"s_add_u32 s30, s30, {sl}")
        a("s_lshl_b32 s30, s30, 2")
        a("s_add_u32 s30, s30, s3")
        a("s_lshl_b32 s30, s30, 7")
        a(f"s_add_u32 s30, s30, 0x{G_OFF:x}")
        a("s_mov_b32 exec_lo, 0")
        a("s_brev_b32 exec_hi, 1")
        a("buffer_store_dwordx2 v[80:81], off, s[44:47], s30 sc1")
        a("s_mov_b64 exec, -1")

    def wd_setup():
        p2_ids(a)
        srd(a, 52, 20, 21, 1376 * 1024)
        a("v_lshlrev_b32 v29, 1, v3")
        a("v_and_b32 v29, 4, v29")
        a("v_xor_b32 v29, v29, v8")
        a("v_lshlrev_b32 v29, 4, v29")
        a("v_lshl_add_u32 v29, v3, 10, v29")
        a(f"s_mul_i32 s30, s3, {NST*16384}")
        a("s_lshl_b32 s31, s93, 7")
        a("s_add_u32 s30, s30, s31")
        a("v_add_u32 v29, s30, v29")
        a("s_mov_b32 s65, s94")
        a(f"s_mul_i32 s77, s3, {PIECE}")

    def wd_lds(st):
        s = st % 20
        return (s // 5) * SLOT + (s % 5) * 2048

    def issue_w(st, ops):
        a(f"s_add_u32 m0, s77, {wd_lds(st)}")
        a("s_lshl_b32 s30, s65, 14")
        a("s_add_u32 s31, s30, 7168")
        a("buffer_load_dwordx4 v29, s[52:55], s30 offen lds")
        a("s_add_u32 s65, s65, 1")
        a(f"s_cmp_eq_u32 s65, {NST}")
        a("s_cselect_b32 s65, 0, s65")
        a("buffer_load_dwordx4 v29, s[52:55], s31 offen offset:1024 lds")
        ops.extend([("w", st)] * 2)

    def waitfor(ops, key):
        last = max(i for i, o in enumerate(ops) if o == key)
        a(f"s_waitcnt vmcnt({len(ops) - 1 - last})")

    def capture(fn):
        save = a.l
        a.l = []
        fn()
        lines, a.l = a.l, save
        groups, cur = [], []
        for ln in lines:
            cur.append(ln)
            if ln.strip().startswith("buffer_"):
                groups.append(cur); cur = []
        if cur:
            groups[-1].extend(cur)
        return groups

    def pf_wd():
        a("s_lshr_b32 s30, s2, 3")
        a("s_lshl_b32 s30, s30, 2")
        a("s_add_u32 s30, s30, s3")
        a(f"s_mul_i32 s30, s30, {86*128}")
        a("v_lshlrev_b32 v12, 7, v0")
        a("buffer_load_dword v82, v12, s[52:55], s30 offen")
        a("s_add_u32 s30, s30, 8192")
        a("s_mov_b64 exec, 0x3fffff")
        a("buffer_load_dword v83, v12, s[52:55], s30 offen")
        a("s_mov_b64 exec, -1")

    def touch_w3():
        a("s_lshr_b32 s30, s2, 3")
        a("s_lshl_b32 s30, s30, 2")
        a("s_add_u32 s30, s30, s3")
        a(f"s_mul_i32 s30, s30, {11*1024}")
        a("v_lshlrev_b32 v12, 10, v0")
        a("s_mov_b64 exec, 0x7ff")
        a("buffer_load_dword v82, v12, s[52:55], s30 offen offset:384")
        a("s_mov_b64 exec, -1")

    def merge(groups):
        return [sum(groups, [])]

    def loader_loop(issue, commit, lai, direct, dpre, tag):
        items = []
        for s in range(8):
            items += [(("s", s), 1, g) for g in capture(lambda: issue(s, []))]
        assert dpre <= 5 and direct <= 10
        if opt("t3w", 1):
            items += [("t3", 1, g) for g in merge(capture(touch_w3))]
        for st in range(direct):
            items += [(("w", st), 2, g) for g in merge(capture(lambda: issue_w(st, [])))]
        ops = []
        pos = 0
        if tag == "F" and HB:
            lim = len(items) - (direct - min(direct, dpre))
            for b in range(8):
                for half, lastidx in ((0, 10 * b + 6), (1, 10 * b + 9)):
                    upto = min(lim, lastidx + 1 + lai)
                    if b < 7:
                        upto = min(upto, 80)
                    while pos < upto:
                        a.l.extend(items[pos][2]); ops.extend([pos] * items[pos][1]); pos += 1
                    if b == 0 and half == 0:
                        wd_setup()
                    waitfor(ops, lastidx)
                    if opt("lstamp", 1) and half == 0: stamp(a, 2 + b)
                    a("s_barrier")
                if b == 7:
                    for x in req_nonce():
                        a(x)
        else:
            for b in range(8):
                nxt = [i for i, it in enumerate(items) if it[0] == ("s", b + 1)]
                upto = len(items) - (direct - min(direct, dpre)) if b == 7 else nxt[min(lai, len(nxt)) - 1] + 1
                while pos < upto:
                    a.l.extend(items[pos][2]); ops.extend([items[pos][0]] * items[pos][1]); pos += 1
                if b == 0:
                    wd_setup()
                waitfor(ops, ("s", b))
                commit(b)
                if opt("lstamp", 1): stamp(a, 2 + b)
                a("s_barrier")
                if b == 7:
                    for x in req_nonce():
                        a(x)
        while pos < len(items):
            a.l.extend(items[pos][2]); pos += 1
        get_nonce(a, "L" + tag, 30)
        a("s_barrier")
        stamp(a, 16)
        a(f"s_branch P2_W{direct}")


    def final_setup(VA):
        a("s_lshr_b32 s30, s95, 2")
        a(f"v_lshrrev_b32 v{VA}, 3, v0")
        a("s_lshl_b32 s31, s3, 3")
        a(f"v_add_u32 v{VA}, s31, v{VA}")
        a(f"v_and_b32 v{VA+1}, 3, v0")
        a(f"v_lshlrev_b32 v{VA+2}, 2, v{VA+1}")
        a(f"v_xor_b32 v{VA+2}, v{VA+2}, v{VA}")
        a(f"v_lshlrev_b32 v{VA+2}, 4, v{VA+2}")
        a(f"v_lshl_add_u32 v{VA+2}, v{VA+1}, 10, v{VA+2}")
        a(f"v_bfe_u32 v{VA+1}, v0, 2, 1")
        a("s_lshl_b32 s31, s30, 1")
        a(f"v_add_u32 v{VA+1}, s31, v{VA+1}")
        a(f"v_mul_u32_u24 v{VA+3}, {PIECE}, v{VA+1}")
        a(f"v_add_u32 v{VA+3}, v{VA+3}, v{VA+2}")
        a(f"v_mul_u32_u24 v{VA+1}, {SLOT}, v{VA+1}")
        a(f"v_add_u32 v{VA+1}, v{VA+1}, v{VA+2}")
        a("s_lshl_b32 s31, s30, 7")
        a(f"v_lshl_add_u32 v{VA+2}, v{VA}, 2, s31")
        a("s_lshl_b32 s30, s30, 5")
        a("s_add_u32 s30, s30, s92")
        a("s_lshl_b32 s30, s30, 10")
        a("s_lshl_b32 s31, s93, 7")
        a("s_add_u32 s30, s30, s31")
        a(f"v_lshlrev_b32 v{VA}, 16, v{VA}")
        a(f"v_add_u32 v{VA}, s30, v{VA}")
        a(f"v_and_b32 v{VA+4}, 7, v0")
        a(f"v_lshl_add_u32 v{VA}, v{VA+4}, 4, v{VA}")
        srd(a, 48, 24, 25, 2048 * 1024)

    def final_stage(VA, R):
        a("s_barrier")
        a(f"ds_read_b32 v{VA+4}, v{VA+2} offset:8192")
        for hh in range(2):
            for w in range(4):
                a(f"ds_read_b128 {vr(R + 8*w + 4*hh, 4)}, v{VA+1} offset:{w*PIECE + hh*512}")
            a(f"ds_read_b128 {vr(R + 32 + 4*hh, 4)}, v{VA+3} offset:{4096 + hh*512}")
        for hh in range(2):
            a(f"s_waitcnt lgkmcnt({5 - 5*hh})")
            o = 4 * hh
            for i in (0, 2):
                a(f"v_pk_add_f32 {vr(R+o+i,2)}, {vr(R+o+i,2)}, {vr(R+8+o+i,2)}")
                a(f"v_pk_add_f32 {vr(R+16+o+i,2)}, {vr(R+16+o+i,2)}, {vr(R+24+o+i,2)}")
            for i in (0, 2):
                a(f"v_pk_add_f32 {vr(R+o+i,2)}, {vr(R+o+i,2)}, {vr(R+16+o+i,2)}")
            for i in range(4):
                a(f"v_fma_f32 v{R+o+i}, v{VA+4}, v{R+o+i}, v{R+32+o+i}")
            a(f"v_cvt_pk_bf16_f32 v{R+40+2*hh}, v{R+o}, v{R+o+1}")
            a(f"v_cvt_pk_bf16_f32 v{R+41+2*hh}, v{R+o+2}, v{R+o+3}")
        a(f"buffer_store_dwordx4 {vr(R+40,4)}, v{VA}, s[48:51], 0 offen sc1")

    a("v_xor_b32 v10, v9, v8")
    a("v_lshlrev_b32 v10, 4, v10")
    a("v_lshlrev_b32 v11, 16, v3")
    a("v_add3_u32 v4, v10, v11, s79")
    a("v_xor_b32 v5, 64, v4")
    a(f"v_add_u32 v5, {(8 << 16) - 1024}, v5")
    a(f"v_add_u32 v6, {2*((8 << 16) - 1024)}, v4")
    a(f"v_add_u32 v7, {2*((8 << 16) - 1024)}, v5")
    a(f"s_mov_b32 s34, 0x{2048*1024:x}")
    a("s_mov_b32 s35, 0x20000")
    a("s_mov_b32 m0, s66")
    def wsetup():
        if HB:
            a("s_and_b32 s67, s3, 1")
            a(f"s_mul_i32 s30, s67, {16*2752}")
        else:
            a(f"s_mul_i32 s30, s3, {16*2752}")
        a("s_mul_i32 s31, s78, 192")
        a("s_add_u32 s30, s30, s31")
        a("s_movk_i32 s31, 2560")
        a("v_mul_u32_u24 v11, 171, v0")
        a("v_lshl_add_u32 v10, v0, 4, s30")
        a("v_lshrrev_b32 v12, 11, v11")
        a("v_mad_u32_u24 v24, v12, s31, v10")
        a(f"v_add_u32 v12, {64*171}, v11")
        a("v_lshrrev_b32 v12, 11, v12")
        a("v_and_b32 v25, 32, v0")
        a("v_xor_b32 v25, v25, v10")
        a("v_mad_u32_u24 v25, v12, s31, v25")
        a(f"v_add_u32 v12, {128*171}, v11")
        a("v_lshrrev_b32 v12, 11, v12")
        a("v_xor_b32 v26, 32, v10")
        a("v_mad_u32_u24 v26, v12, s31, v26")
        if HB:
            a("s_mul_i32 s67, s67, 3072")
            a("s_lshr_b32 s68, s3, 1")
            a(f"s_mul_i32 s68, s68, {WB}")
            a("s_add_u32 s67, s67, s68")
            a(f"s_add_u32 s67, s67, {XB}")
            a("s_add_u32 s68, s67, 6144")
        else:
            a("s_mul_i32 s67, s3, 3072")
            a(f"s_add_u32 s67, s67, {XB}")
            a(f"s_add_u32 s68, s67, {WB}")
        a(f"s_mul_i32 s71, s74, {64*2752}")
    wsetup()
    a("s_waitcnt lgkmcnt(0)")
    stamp0()

    XP = opt("xpair", 0)
    def issueF(stage, ops):
        sl = (stage % 4) * SLOT
        if stage and not (XP and stage == 1):
            a(f"s_add_u32 m0, s66, {sl}")
            a("s_nop 0")
        if not (XP and stage == 1):
            for j in range(4):
                a(f"buffer_load_dwordx4 v{4+j}, s[32:35], s70 offen offset:{j*1024} {XNT} lds")
                if XP and stage == 0:
                    if j == 0:
                        a("s_add_u32 s30, s74, 1")
                        a("s_and_b32 s30, s30, 7")
                        a("s_lshl_b32 s30, s30, 7")
                    a(f"s_add_u32 m0, s66, {SLOT}")
                    a("s_nop 0")
                    a(f"buffer_load_dwordx4 v{4+j}, s[32:35], s30 offen offset:{j*1024} {XNT} lds")
                    a("s_mov_b32 m0, s66")
                    a("s_nop 0")
        if stage == 0 and HB:
            a("s_cmp_ge_u32 s3, 2")
            a("s_cselect_b32 s36, s18, s16")
            a("s_cselect_b32 s37, s19, s17")
            a(f"s_mov_b32 s38, 0x{512*2752:x}")
            a("s_mov_b32 s39, 0x20000")
        elif stage == 0:
            srd(a, 36, 16, 17, 512 * 2752)
        a(f"s_add_u32 m0, s67, {sl}")
        a("s_add_u32 s74, s74, 1")
        for jj in range(3):
            a(f"buffer_load_dwordx4 v{24+jj}, s[36:39], s71 offen offset:{jj*1024} {WNT} lds")
        if stage == 0 and not HB:
            srd(a, 40, 18, 19, 512 * 2752)
        a(f"s_add_u32 m0, s68, {sl}")
        a("s_and_b32 s74, s74, 7")
        if HB:
            a(f"s_add_u32 s71, s71, {32*2752}")
        for jj in range(3):
            a(f"buffer_load_dwordx4 v{24+jj}, s[{36 if HB else 40}:{39 if HB else 43}], s71 offen offset:{jj*1024} {WNT} lds")
        a("s_lshl_b32 s70, s74, 7")
        a(f"s_mul_i32 s71, s74, {64*2752}")
        if stage == 0:
            srd(a, 44, 28, 29, 0x2000000 if STAMP else WS_USED)

    loader_loop(issueF, lambda b: None, LAI, DIRECT, opt("dpre", 2), "F")

    a.lab("P1_LSP")
    a("v_lshlrev_b32 v10, 4, v8")
    a("v_lshlrev_b32 v11, 16, v3")
    a("v_add3_u32 v4, v10, v11, s79")
    a("s_and_b32 s30, s3, 1")
    a("s_lshl_b32 s30, s30, 5")
    a("s_lshr_b32 s31, s3, 1")
    a("s_add_u32 s30, s30, s31")
    a("s_lshl_b32 s30, s30, 10")
    a("s_lshl_b32 s31, s59, 7")
    a("s_add_u32 s30, s30, s31")
    a("v_and_b32 v10, 2, v3")
    a("v_xor_b32 v10, v10, v8")
    a("v_lshlrev_b32 v10, 4, v10")
    a("v_lshlrev_b32 v11, 11, v3")
    a("v_add3_u32 v24, v10, v11, s30")
    a("v_xor_b32 v25, 64, v24")
    a("v_lshrrev_b32 v10, 1, v0")
    a("s_lshl_b32 s30, s3, 1")
    a("s_and_b32 s30, s30, 4")
    a("v_xor_b32 v10, s30, v10")
    a(f"v_mul_u32_u24 v10, {2*2752}, v10")
    a("v_and_b32 v11, 1, v0")
    a("v_lshlrev_b32 v11, 4, v11")
    a("s_and_b32 s30, s3, 1")
    a("s_mul_i32 s30, s30, 2752")
    a("s_lshl_b32 s31, s59, 5")
    a("s_add_u32 s30, s30, s31")
    a(f"s_add_u32 s30, s30, {1344*2}")
    a("v_add3_u32 v26, v10, v11, s30")
    a("s_lshl_b32 s67, s3, 11")
    a(f"s_add_u32 s67, s67, {XB}")
    a("s_add_u32 s68, s67, 8192")
    a("s_lshl_b32 s69, s3, 10")
    a(f"s_add_u32 s69, s69, {XB + 16384}")
    a("s_lshl_b32 s71, s74, 16")
    a(f"s_mul_i32 s75, s74, {64*2752}")
    a(f"s_mov_b32 s34, 0x{2048*1024:x}")
    a("s_mov_b32 s35, 0x20000")
    a("s_waitcnt lgkmcnt(0)")
    stamp0()

    def issueS(stage, ops):
        sl = (stage % 4) * SLOT
        xr = 32 + 16 * (stage & 1)
        n = 0
        for j in range(4):
            if j:
                a(f"s_add_u32 s30, s70, {j * 8 * 65536}")
            a(f"buffer_load_dwordx4 {vr(xr+4*j,4)}, v4, s[32:35], {'s30' if j else 's70'} offen")
            n += 1
        a("s_add_u32 s74, s74, 1")
        if stage == 0:
            srd(a, 36, 10, 11, 512 * 1024)
            srd(a, 40, 12, 13, 512 * 1024)
            a("s_cmp_ge_u32 s3, 2")
            a("s_cselect_b32 s84, s18, s16")
            a("s_cselect_b32 s85, s19, s17")
            a(f"s_mov_b32 s86, 0x{512*2752:x}")
            a("s_mov_b32 s87, 0x20000")
            srd(a, 44, 28, 29, 0x2000000 if STAMP else WS_USED)
        if stage < 4:
            a(f"s_add_u32 m0, s67, {sl}")
            a(f"s_add_u32 s76, s71, {16*1024 - 1024}")
            a("buffer_load_dwordx4 v24, s[36:39], s71 offen lds")
            a("buffer_load_dwordx4 v24, s[36:39], s76 offen offset:1024 lds")
            a(f"s_add_u32 m0, s68, {sl}")
            a("s_nop 0")
            a("buffer_load_dwordx4 v25, s[40:43], s71 offen lds")
            a("buffer_load_dwordx4 v25, s[40:43], s76 offen offset:1024 lds")
            n += 4
        a(f"s_add_u32 m0, s69, {sl}")
        a("s_and_b32 s74, s74, 7")
        if not opt("nof", 0):
            a("buffer_load_dwordx4 v26, s[84:87], s75 offen lds")
            n += 1
        a("s_lshl_b32 s70, s74, 7")
        a("s_lshl_b32 s71, s74, 16")
        a(f"s_mul_i32 s75, s74, {64*2752}")
        ops.extend([("s", stage)] * n)
        if stage == 0:
            a("v_lshrrev_b32 v10, 1, v8")
            a("v_xor_b32 v10, v10, v9")
            a("v_lshlrev_b32 v10, 4, v10")
            a("v_and_b32 v11, 1, v8")
            a("v_lshl_add_u32 v10, v11, 3, v10")
            a("v_lshl_add_u32 v10, v3, 7, v10")
            a("v_add_u32 v5, s66, v10")
            a("v_and_b32 v11, 1, v3")
            a("v_lshlrev_b32 v10, 6, v11")
            a("v_xor_b32 v5, v5, v10")
            a("v_xor_b32 v6, 64, v5")
            a("v_mul_u32_u24 v30, 0x0202, v11")
            a("v_lshl_or_b32 v30, v30, 16, v30")
            a("v_xor_b32 v31, 0x07060302, v30")
            a("v_xor_b32 v30, 0x05040100, v30")
            a("v_and_b32 v10, 2, v0")
            a("v_or_b32 v10, 4, v10")
            a("v_lshlrev_b32 v10, 4, v10")
            a("v_lshl_add_u32 v10, v0, 7, v10")
            a("v_add_u32 v27, s68, v10")
            a("s_lshr_b32 s30, s3, 1")
            a("v_xor_b32 v28, s30, v0")
            a("v_and_b32 v28, 1, v28")
            a("v_lshlrev_b32 v28, 15, v28")
            a("v_or_b32 v28, 0x3f80, v28")


    def commitS(stage):
        if opt("nocommit", 0): return
        sl = (stage % 4) * SLOT
        xr = 32 + 16 * (stage & 1)
        a(f"v_add_u32 v7, {sl}, v5")
        a(f"v_add_u32 v2, {sl}, v6")
        for j in range(4):
            r = xr + 4 * j
            t = 16 + 4 * (j & 1)
            a(f"v_perm_b32 v{t}, v{r+1}, v{r}, v30")
            a(f"v_perm_b32 v{t+1}, v{r+3}, v{r+2}, v30")
            a(f"v_perm_b32 v{t+2}, v{r+1}, v{r}, v31")
            a(f"v_perm_b32 v{t+3}, v{r+3}, v{r+2}, v31")
            e, o = (7, 2) if (j & 1) == 0 else (2, 7)
            a(f"ds_write_b64 v{e}, {vr(t,2)} offset:{j*1024}")
            a(f"ds_write_b64 v{o}, {vr(t+2,2)} offset:{j*1024}")
        if stage < 4:
            a("s_cmp_lg_u32 s59, 0")
            a(f"s_cbranch_scc1 P1_NP{stage}")
            a(f"v_add_u32 v7, {sl}, v27")
            a("s_mov_b64 exec, 0xffff")
            a("ds_write_b16 v7, v28")
            a("s_mov_b64 exec, -1")
            a.lab(f"P1_NP{stage}")
        a("s_waitcnt lgkmcnt(0)")

    loader_loop(issueS, commitS, LAS, opt("ds", 8), opt("dspre", 4), "S")

    DS = opt("ds", 8)
    GL = opt("gl", DIRECT + 2)
    GA = opt("ga", 19)
    assert DS > GL
    ops = []
    for st in range(DIRECT, N1):
        a.lab(f"P2_W{st}")
        if st == GL and not opt("abl_g", 0):
            a("s_and_b32 s76, s57, 7")
            a("s_cmp_lg_u32 s76, 1")
            a("s_cbranch_scc1 NOG2A")
            a("s_sub_u32 s73, s57, 1")
            gload([], "s73", 84, False)
            a.lab("NOG2A")
            gload(ops)
        issue_w(st, ops)
        if 2 * (st + 1) > WTH:
            a(f"s_waitcnt vmcnt({WTH - 2})")
        if st == GA and not opt("abl_g", 0):
            a("s_cmp_eq_u32 s58, 1")
            a("s_cbranch_scc1 NOGC")
            if opt("gprio", 0): a(f"s_setprio {opt('gprio', 0)}")
            gcalc(ops)
            gstore()
            a("s_cmp_lg_u32 s76, 1")
            a("s_cbranch_scc1 NOGC")
            gcalc(None, x0=84)
            gstore("s73")
            a.lab("NOGC")
            if opt("gprio", 0): a("s_setprio 0")
    a("s_and_b32 s75, s57, 7")
    a("s_cmp_eq_u32 s75, 1")
    a("s_cselect_b32 s30, 2, 1")
    a("s_cmp_eq_u32 s75, 0")
    a("s_cselect_b32 s75, 0, s30")
    HR = 32
    TMJ = opt("tmj", 0)
    PRE = opt("pre", 1)
    NWF = 3 if PRE else 2
    WF = HR + D2 * 8
    ACC = WF + 8 * NWF
    assert ACC + 64 <= 256
    a("v_lshrrev_b32 v8, 5, v0")
    a("v_and_b32 v9, 15, v0")
    a("v_lshrrev_b32 v10, 2, v9")
    a("v_lshl_add_u32 v10, v8, 3, v10")
    a("v_lshlrev_b32 v10, 7, v10")
    a("v_lshrrev_b32 v11, 3, v9")
    a("v_lshl_add_u32 v10, v11, 6, v10")
    a("v_and_b32 v11, 16, v0")
    a("v_lshl_add_u32 v10, v11, 1, v10")
    a("v_and_b32 v11, 3, v0")
    a("v_lshl_add_u32 v10, v11, 3, v10")
    a("v_add_u32 v4, s77, v10")
    a("v_xor_b32 v5, 64, v4")
    a(f"v_add_u32 v6, {2*SLOT}, v4")
    a(f"v_add_u32 v7, {2*SLOT}, v5")
    def trread(st):
        off = wd_lds(st)
        hi = off >= 2 * SLOT
        if hi: off -= 2 * SLOT
        for ct in range(2):
            for hf in range(2):
                a(f"ds_read_b64_tr_b16 {vr(WF + 8*(st % NWF) + ct*4 + hf*2, 2)}, v{4 + 2*hi + ct} offset:{off + hf*512}")
    if PRE:
        assert N1 == 20
        a("s_waitcnt vmcnt(20)")
        trread(0)
        trread(1)
        a("s_waitcnt lgkmcnt(0)")
        issue_w(20, [])
        issue_w(21, [])
    a(f"s_mul_i32 s61, s3, {NST}")
    a(f"s_mul_i32 s66, s92, {NKS}")
    a("s_add_u32 s66, s66, s61")
    a("s_lshl_b32 s66, s66, 10")
    a("v_lshlrev_b32 v12, 4, v0")
    a("v_add_u32 v2, s66, v12")
    a(f"v_add_u32 v3, {32*NKS*1024}, v2")
    a("s_cmp_eq_u32 s3, 3")
    a(f"s_cselect_b32 s72, 20, {NST}")
    a("v_add_u32 v240, s77, v12")
    for qd in range(1, 4):
        a(f"v_xor_b32 v{240+qd}, {64*qd}, v240")
    for qd in range(4):
        a(f"v_add_u32 v{244+qd}, {2*SLOT}, v{240+qd}")
    final_setup(248)
    stamp(a, 10)
    if opt("dg2", 0):
        a("s_waitcnt vmcnt(0)")
    stamp(a, 11)
    a("s_lshr_b32 s30, s92, 1")
    a("s_lshl_b32 s30, s30, 2")
    a("s_add_u32 s30, s30, s3")
    a("s_lshl_b32 s30, s30, 7")
    a("v_mov_b32 v16, s30")
    a("s_cmp_eq_u32 s3, 3")
    a("s_cselect_b32 s30, 20, 16")
    a("v_mov_b32 v17, s30")
    if GATE:
        a("s_barrier")
    if GDEL:
        a(f"s_sleep {GDEL}")
    poll(a, "L", 16, 17, 22, 1, sleep=LSLEEP)
    if opt("dg2", 0):
        a("s_mul_i32 s61, s61, 100")
        a("s_add_u32 s61, s61, s90")
        a(f"v_writelane_b32 v{SV}, s61, 20")
    stamp(a, 12)
    ops = []
    a("s_mov_b32 s64, s94")
    def issue_h(st):
        sl = st % D2
        a("s_lshl_b32 s30, s64, 10")
        a("s_cmp_ge_u32 s64, s72")
        a("s_cselect_b32 s30, 0x10000000, s30")
        a("s_add_u32 s64, s64, 1")
        a(f"buffer_load_dwordx4 {vr(HR + sl*8, 4)}, v2, s[44:47], s30 offen sc1")
        a(f"s_cmp_eq_u32 s64, {NST}")
        a("s_cselect_b32 s64, 0, s64")
        a(f"buffer_load_dwordx4 {vr(HR + sl*8 + 4, 4)}, v3, s[44:47], s30 offen sc1")
        ops.extend([("h", st)] * 2)
    def mf(st, k):
        ct, rt = k & 1, k >> 1
        d = vr(ACC + 16 * k, 16)
        c = "0" if st == 0 else d
        a(f"v_mfma_f32_32x32x16_bf16 {d}, {vr(WF + 8*(st % NWF) + ct*4, 4)}, {vr(HR + (st % D2)*8 + 4*rt, 4)}, {c}")
    def need(keys, extra=""):
        idx = [i for i, o in enumerate(ops) if o in keys]
        if idx:
            a(f"s_waitcnt vmcnt({len(ops) - 1 - max(idx)}) {extra}")
        elif extra:
            a(f"s_waitcnt {extra}")
    if not PRE:
        trread(0)
    for st in range(D2 - 1):
        issue_h(st)
        if st == 2:
            gsignal("s57", 30, "s75")
            ops.append("sig")
    assert TMJ <= D2 - 1
    def wr(k, qd):
        a(f"ds_write_b128 v{240 + qd + 4*(k >> 1)}, {vr(ACC + 16*k + 4*qd, 4)} offset:{(k & 1)*SLOT + qd*1024}")
    for st in range(NST - TMJ):
        need([("h", st), ("w", st + 1)], "lgkmcnt(0)")
        if st == 0:
            stamp(a, 13)
        mf(st, 0)
        if st + 1 < NST and not (PRE and st == 0):
            trread(st + 1)
        mf(st, 1)
        hg = capture(lambda: issue_h(st + D2 - 1)) if st + D2 - 1 < NST else [[], []]
        a.l.extend(hg[0])
        mf(st, 2)
        a.l.extend(hg[1])
        mf(st, 3)
        if N1 + st < NST and not PRE:
            issue_w(N1 + st, ops)
        if st == KB:
            a("s_barrier")
            if TMJ: assert KB < NST - TMJ
    S0 = NST - TMJ
    if TMJ:
        need([("w", NST - 1)])
        for st in range(S0 + 1, min(NST, S0 + 3)):
            trread(st)
        for k in range(4):
            for n, st in enumerate(range(S0, NST)):
                if k == 0:
                    left = min(NST - 1, st + 2) - st
                    need([("h", st)], f"lgkmcnt({4 * left})")
                mf(st, k)
                if k == 0 and st + 3 < NST:
                    trread(st + 3)
                if k > 0:
                    if n == 0:
                        a("s_nop 7"); a("s_nop 2")
                    if n < 4:
                        wr(k - 1, n)
            if k > 0:
                for qd in range(min(4, TMJ), 4):
                    wr(k - 1, qd)
        stamp(a, 14)
        a("s_nop 7"); a("s_nop 3")
        for qd in range(4):
            wr(3, qd)
        a("s_waitcnt lgkmcnt(0)")
        a("s_barrier")
    else:
        stamp(a, 14)
        a("s_nop 8")
        for k in range(4):
            for qd in range(4):
                wr(k, qd)
        a("s_waitcnt lgkmcnt(0)")
        final_stage(248, 32)
    stamp(a, 15)
    stamp_flush(a)
    a("s_endpgm")

    a.lab("P1_CONS")
    if not CPE:
        cpf_block('s3', 0)
    if opt("t3x", 1):
        a("s_setprio 3")
        a("s_lshr_b32 s30, s2, 3")
        a("s_lshl_b32 s30, s30, 1")
        a("s_and_b32 s31, s2, 1")
        a("s_add_u32 s30, s30, s31")
        a("s_lshl_b32 s30, s30, 2")
        a("s_add_u32 s30, s30, s3")
        a("s_lshl_b32 s30, s30, 13")
        a("v_lshlrev_b32 v1, 10, v0")
        a(f"s_mov_b32 s34, 0x{2048*1024:x}")
        a("s_mov_b32 s35, 0x20000")
        a("s_mov_b64 exec, 0xff")
        a("s_waitcnt lgkmcnt(0)")
        a("buffer_load_dword v13, v1, s[32:35], s30 offen offset:384")
        a("s_mov_b64 exec, -1")
        a("s_setprio 0")
    a("s_lshr_b32 s66, s3, 1")
    a("s_and_b32 s67, s3, 1")
    a("v_and_b32 v1, 15, v0")
    a("v_lshrrev_b32 v2, 4, v0")
    a("v_lshrrev_b32 v3, 1, v1")
    a("v_xor_b32 v3, v3, v2")
    a("v_lshlrev_b32 v3, 4, v3")
    a("v_lshl_add_u32 v4, v1, 7, v3")
    a("v_lshrrev_b32 v3, 2, v1")
    a("v_lshl_add_u32 v3, v2, 3, v3")
    a("v_and_b32 v11, 3, v0")
    a(f"s_mov_b32 s72, {f32(C2)}")
    a(f"v_mov_b32 v10, {f32(C1)}")
    a("s_mov_b32 s68, 0")
    a(f"s_mov_b32 s82, {(-3*SLOT) & 0xffffffff}")
    a(f"s_mov_b32 s83, {SLOT}")

    def advance(regs):
        f = ["s_add_u32 s68, s68, 1",
             "s_and_b32 s30, s68, 3",
             "s_cmp_eq_u32 s30, 0",
             "s_cselect_b32 s30, s82, s83"]
        f += [f"v_add_u32 v{v}, s30, v{v}" for v in regs]
        f += ["s_cmp_eq_u32 s68, 8"]
        return f

    def cons_start():
        a("s_waitcnt lgkmcnt(0)")
        srd(a, 44, 28, 29, 0x2000000 if STAMP else WS_USED)
        stamp0()

    a("s_cmp_eq_u32 s58, 1")
    a("s_cbranch_scc1 P1_CSP")
    a("s_mov_b32 s73, 99")
    a("s_lshr_b32 s30, s2, 3")
    a("s_xor_b32 s30, s30, 8")
    a("s_xor_b32 s31, s3, 1")
    a("s_or_b32 s30, s30, s31")
    a("s_cbranch_scc1 NOINIT")
    a("s_setprio 3")
    a("v_mov_b32 v16, 0")
    a("v_lshlrev_b32 v17, 7, v0")
    a("s_and_b32 s31, s2, 7")
    a(f"s_mul_i32 s30, s31, {NCT // 8 * 128}")
    a(f"s_add_u32 s30, s30, 0x{FL_OFF:x}")
    a(f"s_mov_b32 exec_hi, 0x{(1 << (NCT // 8 - 32)) - 1:x}")
    a("s_waitcnt lgkmcnt(0)")
    srd(a, 44, 28, 29, 0x2000000 if STAMP else WS_USED)
    a("buffer_store_dword v16, v17, s[44:47], s30 offen sc0 sc1")
    a("s_mov_b64 exec, -1")
    a("s_mov_b32 s73, 2")
    a("s_setprio 0")
    a.lab("NOINIT")
    FS = [16, 56]
    ACC = 96
    def xf(s, rt): return FS[s] + 4 * rt
    def wf(s, i): return FS[s] + 16 + 4 * i
    a("s_lshl_b32 s30, s66, 13")
    a("v_add_u32 v4, s30, v4")
    a("v_xor_b32 v5, 64, v4")
    a("v_mul_u32_u24 v3, 192, v3")
    a("v_lshl_add_u32 v3, v11, 3, v3")
    a("s_mul_i32 s30, s67, 96")
    a(f"s_add_u32 s30, s30, {XB}")
    a("v_add_u32 v3, s30, v3")
    a("v_and_b32 v8, 1, v2")
    a("v_lshlrev_b32 v8, 5, v8")
    a("v_add_u32 v6, v3, v8")
    a("v_sub_u32 v7, v3, v8")
    a("s_cmp_eq_u32 s67, 0")
    a("s_cbranch_scc1 P1_NOSWAP")
    a("v_swap_b32 v6, v7")
    a.lab("P1_NOSWAP")
    def accF(rt, ul, mat): return ACC + 4 * ((rt * 3 + ul) * 2 + mat)
    def readsF(s, st):
        r = []
        order = [("w", 0, 0), ("x", 0, 0), ("w", 1, 0), ("x", 1, 0), ("x", 2, 0), ("x", 3, 0),
                 ("w", 0, 1), ("w", 1, 1), ("w", 0, 2), ("w", 1, 2)]
        for kind, p, ul in order:
            if kind == "x":
                r.append(f"ds_read_b128 {vr(xf(s, p), 4)}, v{4+st} offset:{p*2048}")
            else:
                base = 7 if ul == 1 else 6
                for hf in range(2):
                    off = p * WB + st * 6144 + hf * 768 + ul * 32
                    r.append(f"ds_read_b64_tr_b16 {vr(wf(s, 3*p+ul) + 2*hf, 2)}, v{base} offset:{off}")
        if opt("noread", 0): r = r[:1]
        return r
    def mfmasF(s):
        m = []
        for ul in range(3):
            for rt in range(4):
                for mat in range(2):
                    d = vr(accF(rt, ul, mat), 4)
                    m.append(f"v_mfma_f32_16x16x32_bf16 {d}, {vr(wf(s, 3*mat+ul), 4)}, {vr(xf(s, rt), 4)}, {d}")
        if opt("nomfma", 0): m = ["s_nop 0"] * len(m)
        return m
    for i in range(96):
        a(f"v_mov_b32 v{ACC+i}, 0")
    a("v_lshlrev_b32 v3, 4, v0")
    a("s_mul_i32 s69, s78, 6")
    a("s_mul_i32 s30, s67, 3")
    a("s_add_u32 s69, s69, s30")
    a("s_lshl_b32 s30, s56, 2")
    a("s_lshl_b32 s31, s66, 1")
    a("s_add_u32 s30, s30, s31")
    a(f"s_mul_i32 s30, s30, {NKS}")
    a("s_add_u32 s30, s30, s69")
    a("s_lshl_b32 s70, s30, 10")
    a(f"s_add_u32 s71, s70, {NKS*1024}")
    cons_start()
    if opt("fprio", 0): a(f"s_setprio {opt('fprio', 0)}")
    a("s_barrier")
    stamp(a, 2)
    LAD = opt("lad", 13)
    if LAD:
        r0 = readsF(0, 0)
        for r in r0[:8]:
            a(r)
        a.lab("P1_LOOPF")
        m = mfmasF(0)
        r1 = readsF(1, 1)
        adv = advance((4, 5, 6, 7))
        gaps = [[] for _ in range(24)]
        for i in range(8):
            gaps[i // 2].append(r0[8 + i])
        if HB:
            r1 = [x for x in r1 if "b128" in x] + [x for x in r1 if "b128" not in x]
            gaps[8].append("s_barrier")
        for i in range(16):
            gaps[4 + i].append(r1[i])
        for i, x in enumerate(adv[:4]):
            gaps[12 + i].append(x)
        for i, x in enumerate(adv[4:]):
            gaps[20 + min(i // 2, 3)].append(x)
        a("s_waitcnt lgkmcnt(3)")
        for i in range(24):
            if i == 2: a("s_waitcnt lgkmcnt(4)")
            if i == 8: a("s_waitcnt lgkmcnt(4)")
            a(m[i])
            for x in gaps[i]:
                a(x)
        a("s_waitcnt lgkmcnt(0)")
        a("s_cbranch_scc1 P1_LASTF")
        m1 = mfmasF(1)
        a(m1[0])
        a("s_cmp_eq_u32 s68, s73")
        a(m1[1])
        a("s_cbranch_scc1 P1_PUB")
        a.lab("P1_PUBR")
        weave(a, m1[2:], ["s_barrier"] + r0[:8], start=LAD - 2, per=1)
        a("s_branch P1_LOOPF")
        a.lab("P1_PUB")
        srd(a, 48, 26, 27, 256)
        a("v_mov_b32 v12, 1")
        a("s_and_b32 s30, s2, 7")
        a("s_lshl_b32 s30, s30, 2")
        a("s_mov_b64 exec, 1")
        a("s_waitcnt vmcnt(0)")
        a("s_setprio 3")
        a("buffer_store_dword v12, off, s[48:51], s30 sc0 sc1")
        a("s_setprio 0")
        a("s_mov_b64 exec, -1")
        a("s_branch P1_PUBR")
    else:
        for r in readsF(0, 0):
            a(r)
        a.lab("P1_LOOPF")
        a("s_waitcnt lgkmcnt(0)")
        weave(a, mfmasF(0), readsF(1, 1) + advance((4, 5, 6, 7)))
        a("s_waitcnt lgkmcnt(0)")
        a("s_cbranch_scc1 P1_LASTF")
        if BPOS:
            weave(a, mfmasF(1), ["s_barrier"] + readsF(0, 0), start=BPOS, per=2)
        else:
            weave(a, mfmasF(1), ["s_barrier"] + readsF(0, 0))
        a("s_branch P1_LOOPF")
    a.lab("P1_LASTF")
    weave(a, mfmasF(1), ["s_barrier"] + req_nonce() + ["s_waitcnt vmcnt(0)"])
    stamp(a, 3)
    if EPRIO: a(f"s_setprio {EPRIO}")
    if opt("gsw", 0):
        blocks = []
        st_ = []
        k = 0
        for ul in range(3):
            for uu in range(2):
                G = [accF(2*uu, ul, 0) + i for i in range(4)] + [accF(2*uu+1, ul, 0) + i for i in range(4)]
                U = [accF(2*uu, ul, 1) + i for i in range(4)] + [accF(2*uu+1, ul, 1) + i for i in range(4)]
                t = 56 + 8 * (k % 4)
                dst = 32 + 4 * k
                A = [f"v_pk_mul_f32 {vr(t+i,2)}, {vr(G[i],2)}, {vr(G[i],2)}" for i in range(0, 8, 2)]
                A += [f"v_pk_fma_f32 {vr(t+i,2)}, {vr(t+i,2)}, s[72:73], v[10:11] op_sel_hi:[1,0,0]" for i in range(0, 8, 2)]
                A += [f"v_pk_mul_f32 {vr(t+i,2)}, {vr(t+i,2)}, {vr(G[i],2)}" for i in range(0, 8, 2)]
                Bx = [f"v_exp_f32 v{t+i}, v{t+i}" for i in range(8)]
                C = [f"v_pk_mul_f32 {vr(G[i],2)}, {vr(G[i],2)}, {vr(U[i],2)}" for i in range(0, 8, 2)]
                C += [f"v_pk_add_f32 {vr(t+i,2)}, {vr(t+i,2)}, 1.0 op_sel_hi:[1,0]" for i in range(0, 8, 2)]
                Dx = [f"v_rcp_f32 v{t+i}, v{t+i}" for i in range(8)]
                Ee = [f"v_pk_mul_f32 {vr(G[i],2)}, {vr(G[i],2)}, {vr(t+i,2)}" for i in range(0, 8, 2)]
                Ee += [f"v_cvt_pk_bf16_f32 v{dst+i}, v{G[2*i]}, v{G[2*i+1]}" for i in range(4)]
                F = [f"v_permlane16_swap_b32 v{dst}, v{dst+2}", f"v_permlane16_swap_b32 v{dst+1}, v{dst+3}"]
                blocks.append((A, Bx, C, Dx, Ee, F))
                st_.append(f"buffer_store_dwordx4 {vr(dst,4)}, v3, s[44:47], s{70 + uu} offen offset:{ul*1024} sc1")
                k += 1
        def mix(tr, pl):
            n = max(len(tr), 1)
            pi = 0
            for i, x in enumerate(tr):
                a(x)
                want = len(pl) * (i + 1) // n
                while pi < want:
                    a(pl[pi]); pi += 1
            while pi < len(pl):
                a(pl[pi]); pi += 1
        g = lambda k, p: blocks[k][p] if 0 <= k < 6 else []
        for x in g(0, 0): a(x)
        for k in range(8):
            mix(g(k, 1), g(k - 1, 2) + g(k - 2, 4))
            mix(g(k - 1, 3), g(k + 1, 0) + (["s_nop 1"] if not g(k + 1, 0) and not g(k - 1, 3) else []) + g(k - 2, 5))
        a(f"s_setprio {PRIO}")
        for x in st_: a(x)
        a(f"s_setprio {EPRIO}")
    else:
        k = 0
        pend = []
        for ul in range(3):
            for uu in range(2):
                dst = 32 + 4 * k
                if k >= opt("skipg", 0): gelu_pair(a, accF(2*uu, ul, 0), accF(2*uu, ul, 1), accF(2*uu+1, ul, 0), accF(2*uu+1, ul, 1), 16 + 8 * (k & 1), dst)
                pend.append(f"buffer_store_dwordx4 {vr(dst,4)}, v3, s[44:47], s{70 + uu} offen offset:{ul*1024} sc1")
                k += 1
                if k > opt("burst", 5):
                    a(f"s_setprio {PRIO}")
                    for x in pend:
                        a(x)
                    pend = []
                    a(f"s_setprio {EPRIO}")
    stamp(a, 4)
    get_nonce(a, "F", 12)
    a("s_mul_i32 s61, s69, 47")
    a("s_lshr_b32 s61, s61, 10")
    a("s_add_u32 s31, s69, 2")
    a("s_mul_i32 s31, s31, 47")
    a("s_lshr_b32 s31, s31, 10")
    a("s_cmp_eq_u32 s31, s61")
    a("s_cselect_b32 s64, 1, 3")
    a("s_and_b32 s31, s56, 7")
    a("s_lshl_b32 s31, s31, 3")
    a("s_add_u32 s61, s61, s31")
    a("s_lshl_b32 s31, s66, 2")
    a("s_add_u32 s61, s61, s31")
    signal(a, 12, "s61", "s64")
    if GATE:
        a("s_barrier")
    a("s_branch P2_CONS")

    a.lab("P1_CSP")
    FS = [16, 64]
    ACC = 112
    AS = 240
    def xs(s, kk, u): return FS[s] + 4 * (4 * kk + u)
    def dfr(s, kk): return FS[s] + 32 + 4 * kk
    def ffr(s, kk): return FS[s] + 40 + 4 * kk
    def accD(st, u): return ACC + 16 * (4 * st + u)
    a("v_lshrrev_b32 v2, 5, v0")
    a("v_and_b32 v12, 31, v0")
    a("v_bfe_u32 v4, v0, 1, 3")
    a("v_xor_b32 v4, v4, v2")
    a("v_lshlrev_b32 v4, 4, v4")
    a("v_lshl_add_u32 v4, v12, 7, v4")
    a("v_xor_b32 v5, 32, v4")
    a("v_xor_b32 v6, 64, v4")
    a("v_xor_b32 v7, 0x60, v4")
    a("v_lshrrev_b32 v3, 2, v1")
    a("v_lshl_add_u32 v3, v2, 3, v3")
    a("v_bfe_u32 v14, v0, 4, 1")
    a("v_bfe_u32 v8, v0, 3, 2")
    a("v_xor_b32 v8, s3, v8")
    a("v_lshlrev_b32 v8, 5, v8")
    a("v_lshl_add_u32 v8, v3, 7, v8")
    a("v_lshl_add_u32 v8, v11, 3, v8")
    a("v_lshl_add_u32 v8, v14, 13, v8")
    a(f"v_add_u32 v8, {XB}, v8")
    a("v_lshlrev_b32 v9, 5, v3")
    a("v_lshl_add_u32 v9, v11, 3, v9")
    a(f"v_mul_u32_u24 v3, {2048 + 128}, v14")
    a("v_add_u32 v9, v9, v3")
    a(f"v_add_u32 v9, {XB + 16384}, v9")
    a("v_xor_b32 v3, 0x80, v9")
    a("v_and_b32 v14, 1, v0")
    a("v_mul_u32_u24 v14, 0x8000, v14")
    a("v_lshl_or_b32 v14, v14, 16, v14")
    def readsS(s, st):
        r = []
        for kk in range(2):
            for hf in range(2):
                r.append(f"ds_read_b64_tr_b16 {vr(dfr(s, kk) + 2*hf, 2)}, v8 offset:{(2*st+kk)*2048 + hf*512}")
        for u in range(4):
            r.append(f"ds_read_b128 {vr(xs(s, 0, u), 4)}, v{4+2*st} offset:{u*4096}")
        for kk in range(2):
            for hf in range(2):
                r.append(f"ds_read_b64_tr_b16 {vr(ffr(s, kk) + 2*hf, 2)}, v{9 if hf == 0 else 3} offset:{(2*st+kk)*512}")
        for u in range(4):
            r.append(f"ds_read_b128 {vr(xs(s, 1, u), 4)}, v{5+2*st} offset:{u*4096}")
        return r
    def allS(s, st, cw):
        m = []
        for kk in range(2):
            for u in range(4):
                d = vr(accD(st, u), 16)
                m.append(f"v_mfma_f32_32x32x16_bf16 {d}, {vr(xs(s, kk, u), 4)}, {vr(dfr(s, kk), 4)}, {d}")
            m.append(f"v_mfma_f32_32x32x16_bf16 {vr(AS,16)}, {vr(ffr(s, kk), 4)}, {vr(xs(s, kk, cw), 4)}, {vr(AS,16)}")
        return m
    def xors(s):
        return ["s_waitcnt lgkmcnt(12)"] + [f"v_xor_b32 v{dfr(s,0)+i}, v13, v{dfr(s,0)+i}" for i in range(8)]
    def weave2(mf, fill):
        n = len(mf) - 1
        fi = 0
        for i, m in enumerate(mf):
            a(m)
            want = min(len(fill), -(-len(fill) * (i + 1) // n))
            while fi < want:
                a(fill[fi]); fi += 1
    for i in range(144):
        a(f"v_mov_b32 v{ACC+i}, 0")
    a("v_cvt_f32_u32 v16, v12")
    a(f"v_mul_f32 v16, {f32(1.0/32)}, v16")
    a("v_lshlrev_b32 v18, 2, v2")
    a("v_cvt_f32_u32 v18, v18")
    for k in range(2):
        for j in range(8):
            s1 = 16 * k + 8 * (j >> 2) + (j & 3)
            a(f"v_add_f32 v19, {f32(float(s1))}, v18")
            a("v_mul_f32 v19, v19, v16")
            a(f"v_cos_f32 v{20+j}, v19")
            a(f"v_sin_f32 v{28+j}, v19")
        a("s_nop 0")
        for i in range(4):
            a(f"v_cvt_pk_bf16_f32 v{40+4*k+i}, v{20+2*i}, v{21+2*i}")
            a(f"v_cvt_pk_bf16_f32 v{48+4*k+i}, v{28+2*i}, v{29+2*i}")
    a("v_lshlrev_b32 v11, 4, v0")
    a(f"v_add_u32 v11, {F1_LDS}, v11")
    for i in range(4):
        a(f"ds_write_b128 v11, {vr(40+4*i,4)} offset:{i*1024}")
    cons_start()
    a("s_waitcnt vmcnt(0) lgkmcnt(0)")
    a("v_mov_b32 v13, 0")
    if opt("sprio", 0): a(f"s_setprio {opt('sprio', 0)}")
    a("s_barrier")
    stamp(a, 2)
    def kreads(ks):
        s, kk = ks >> 1, ks & 1
        r = [f"ds_read_b64_tr_b16 {vr(dfr(s, kk) + 2*hf, 2)}, v8 offset:{ks*2048 + hf*512}" for hf in range(2)]
        r += [f"ds_read_b128 {vr(xs(s, kk, u), 4)}, v{4+ks} offset:{u*4096}" for u in range(4)]
        r += [f"ds_read_b64_tr_b16 {vr(ffr(s, kk) + 2*hf, 2)}, v{9 if hf == 0 else 3} offset:{ks*512}" for hf in range(2)]
        return r
    def kmf(ks, cw):
        return allS(ks >> 1, ks >> 1, cw)[5 * (ks & 1): 5 * (ks & 1) + 5]
    def kxor(ks):
        d = dfr(ks >> 1, ks & 1)
        return [f"v_xor_b32 v{d+i}, v13, v{d+i}" for i in range(4)]
    def kstep(ks, cw, reads, pre, extra, wait0, xr=True):
        m = kmf(ks, cw)
        a(f"s_waitcnt lgkmcnt({wait0})")
        cnt = [2, 2, 2, 1, 1]
        ri = 0
        for g in range(5):
            a(m[g])
            if g == 0:
                for x in pre: a(x)
            for _ in range(cnt[g]):
                if ri < len(reads):
                    a(reads[ri]); ri += 1
            if g == 2 and xr:
                a(f"s_waitcnt lgkmcnt({6 + ri})")
                for x in kxor((ks + 1) & 3)[:2]: a(x)
            if g == 3 and xr:
                for x in kxor((ks + 1) & 3)[2:]: a(x)
            for x in extra[g]: a(x)
    for r in kreads(0) + kreads(1):
        a(r)
    F1 = 16
    for cw in (1, 2, 3):
        a(f"s_cmp_eq_u32 s3, {cw}")
        a(f"s_cbranch_scc1 P1_LOOPS{cw}")
    lastfill = ([f"ds_read_b128 {vr(F1+4*i,4)}, v11 offset:{i*1024}" for i in range(4)] +
                ["s_lshl_b32 s30, s56, 2", "s_add_u32 s30, s30, s3", f"s_mul_i32 s30, s30, {NKS}", "s_add_u32 s30, s30, s59",
                 "s_add_u32 s30, s30, 84", "s_lshl_b32 s70, s30, 10",
                 f"s_mul_i32 s69, s56, {EP*16}", f"s_add_u32 s69, s69, 0x{C_OFF:x}",
                 "s_waitcnt lgkmcnt(0)", "s_barrier"] + req_nonce() + [f"v_xor_b32 v{F1+16+i}, 0x80008000, v{F1+i}" for i in range(8)])
    E = lambda *l: list(l)
    for cw in range(4):
        a.lab(f"P1_LOOPS{cw}")
        kstep(0, cw, kreads(2), [], [E("s_add_u32 s68, s68, 1"), E("s_and_b32 s30, s68, 3"), E(), E("s_cmp_eq_u32 s30, 0"),
                                     E("s_cselect_b32 s30, s82, s83", "v_add_u32 v4, s30, v4")], 8)
        kstep(1, cw, kreads(3), [], [E("v_add_u32 v5, s30, v5"), E("v_add_u32 v8, s30, v8"), E(), E("v_add_u32 v6, s30, v6"),
                                     E("v_add_u32 v9, s30, v9", "v_add_u32 v3, s30, v3", "s_cmp_eq_u32 s68, 8")], 8)
        a(f"s_cbranch_scc1 P1_LASTS{cw}")
        kstep(2, cw, kreads(0), ["s_barrier"], [E(), E("v_add_u32 v7, s30, v7"), E(), E("s_cmp_ge_u32 s68, 4"),
                                                E("s_cselect_b32 s31, -1, 0", "v_and_b32 v13, s31, v14")], 8)
        kstep(3, cw, kreads(1), [], [E(), E(), E(), E(), E()], 8)
        a(f"s_branch P1_LOOPS{cw}")
        a.lab(f"P1_LASTS{cw}")
        kstep(2, cw, lastfill[:4], [], [E(), lastfill[4:8], E(), E(), lastfill[8:12]], 8)
        kstep(3, cw, [], lastfill[13:15], [E(), lastfill[15:19], lastfill[19:23], E(), E()], 0, xr=False)
        if cw != 3:
            a("s_branch P1_LASTS")
    a.lab("P1_LASTS")
    stamp(a, 3)
    if EPRIO: a(f"s_setprio {EPRIO}")
    TS = 16 * EP * 16
    a("v_lshlrev_b32 v3, 4, v0")
    a("s_lshl_b32 s30, s59, 6")
    a("s_lshl_b32 s31, s3, 4")
    a("s_add_u32 s30, s30, s31")
    a("v_bfe_u32 v5, v0, 4, 1")
    a("v_lshl_add_u32 v4, v5, 7, v1")
    a("v_add_u32 v4, s30, v4")
    a(f"s_mov_b32 s31, {4*TS}")
    a("v_mul_lo_u32 v6, v2, s31")
    a("v_lshl_add_u32 v4, v4, 4, v6")
    a("v_mul_u32_u24 v5, 0x8000, v5")
    a("v_lshl_or_b32 v5, v5, 16, v5")
    a("v_mov_b32 v6, -1")
    BF, TM, XF, CK, TM2, HD = 40, 72, 80, 96, 80, 100
    for x in gelu8([AS+i for i in range(8)], [AS+8+i for i in range(8)], TM, HD, 32):
        a(x)
    a(f"s_setprio {PRIO}")
    a(f"buffer_store_dwordx4 {vr(HD,4)}, v3, s[44:47], s70 offen sc1")
    a(f"s_setprio {EPRIO}")
    a("s_cmp_lg_u32 s30, 0")
    a("s_cbranch_scc1 P1_NOX")
    a("v_cmp_ne_u32 vcc, 0, v1")
    a(f"s_mov_b32 s31, {TS}")
    a("v_mul_lo_u32 v7, v0, s31")
    a("v_cndmask_b32 v6, 0, v6, vcc")
    for u in range(4):
        for st in range(2):
            dst = XF + 8 * st if u == 0 else TM
            for i in range(8):
                a(f"v_cvt_pk_bf16_f32 v{dst+i}, v{accD(st,u)+2*i}, v{accD(st,u)+2*i+1}")
            if u:
                for i in range(8):
                    a(f"v_mov_b32_dpp v{XF+8*st+i}, v{TM+i} row_shr:{u} row_mask:0xa bank_mask:0x1")
    a("s_nop 1")
    for comp in range(2):
        o = vr(BF + 16 * comp, 16)
        for half in range(2):
            for k in range(2):
                c = "0" if (half == 0 and k == 0) else o
                a(f"v_mfma_f32_32x32x16_bf16 {o}, {vr(XF+8*half+4*k,4)}, {vr(F1+8*(comp+half)+4*k,4)}, {c}")
    a(f"s_add_u32 s30, s69, {256*16}")
    a("s_nop 11")
    for comp in range(2):
        a(f"v_cvt_pk_bf16_f32 v{CK+2*comp}, v{BF+16*comp+8}, v{BF+16*comp+9}")
        a(f"v_cvt_pk_bf16_f32 v{CK+2*comp+1}, v{BF+16*comp+10}, v{BF+16*comp+11}")
    a("s_mov_b32 exec_hi, 0")
    a(f"buffer_store_dwordx4 {vr(CK,4)}, v7, s[44:47], s30 offen sc1")
    a("s_mov_b32 exec_hi, -1")
    a.lab("P1_NOX")
    def bfly(u):
        r_ = []
        A = BF + 16 * (u & 1)
        B = A + 8
        E, T = accD(0, u), accD(1, u)
        for r in range(0, 16, 2):
            r_.append(f"v_pk_add_f32 {vr(TM2+r,2)}, {vr(E+r,2)}, {vr(T+r,2)}")
            r_.append(f"v_pk_add_f32 {vr(T+r,2)}, {vr(E+r,2)}, {vr(T+r,2)} neg_lo:[0,1] neg_hi:[0,1]")
        for i in range(8):
            r_.append(f"v_cvt_pk_bf16_f32 v{A+i}, v{TM2+2*i}, v{TM2+2*i+1}")
            r_.append(f"v_cvt_pk_bf16_f32 v{B+i}, v{T+2*i}, v{T+2*i+1}")
        for i in range(8):
            r_.append(f"v_permlane16_swap_b32 v{A+i}, v{B+i}")
        for i in range(8):
            r_.append(f"v_bitop3_b32 v{B+i}, v{B+i}, v5, v6 bitop3:0x28")
        return r_
    def st1(u):
        m = []
        A = BF + 16 * (u & 1)
        for half in range(2):
            for k in range(2):
                for comp in range(2):
                    o = vr(accD(comp, u), 16)
                    c = "0" if (half == 0 and k == 0) else o
                    m.append(f"v_mfma_f32_32x32x16_bf16 {o}, {vr(F1+8*(comp+half)+4*k,4)}, {vr(A+8*half+4*k,4)}, {c}")
        return m
    for x in bfly(0):
        a(x)
    for u in range(4):
        weave(a, st1(u), bfly(u + 1) if u < 3 else [], per=6)
        if u == 1:
            get_nonce(a, "S", 12)
            a("s_and_b32 s61, s56, 7")
            a("s_lshl_b32 s61, s61, 3")
            a("s_lshl_b32 s31, s66, 2")
            a("s_add_u32 s61, s61, s31")
            a("s_add_u32 s61, s61, 3")
            signal(a, 12, "s61")
    a(f"s_setprio {PRIO}")
    stamp(a, 11)
    a("s_nop 8")
    for r in range(16):
        d = BF + 4 * (r & 7)
        a(f"v_cvt_pk_bf16_f32 v{d}, v{accD(0,0)+r}, v{accD(0,1)+r}")
        a(f"v_cvt_pk_bf16_f32 v{d+1}, v{accD(0,2)+r}, v{accD(0,3)+r}")
        a(f"v_cvt_pk_bf16_f32 v{d+2}, v{accD(1,0)+r}, v{accD(1,1)+r}")
        a(f"v_cvt_pk_bf16_f32 v{d+3}, v{accD(1,2)+r}, v{accD(1,3)+r}")
        a(f"s_add_u32 s30, s69, {(8*(r >> 2) + (r & 3))*TS}")
        if not opt("abl_cs", 0): a(f"buffer_store_dwordx4 {vr(d,4)}, v4, s[44:47], s30 offen sc1")
    stamp(a, 4)
    if opt("shold", 0):
        a("s_barrier")
    a("s_lshl_b32 s61, s59, 2")
    a("s_add_u32 s61, s61, s3")
    a(f"s_mul_i32 s61, s61, {NREP}")
    a(f"s_add_u32 s61, s61, {CT_C}")
    signal(a, 12, "s61", "-1")

    a.lab("P2_CONS")
    a("v_mov_b32 v56, 16")
    if EPRIO: a("s_setprio 0")
    stamp(a, 5)
    p2_ids(a)
    YA, CF, MF, PR, GV = 64, 80, 112, 144, 60
    a("v_lshrrev_b32 v8, 5, v0")
    a("v_and_b32 v9, 31, v0")
    a("s_lshl_b32 s31, s93, 6")
    a("s_lshl_b32 s61, s67, 5")
    a("s_add_u32 s31, s31, s61")
    a("s_lshl_b32 s30, s66, 5")
    a("s_add_u32 s30, s30, s92")
    a("v_lshlrev_b32 v12, 6, v9")
    a("v_add_u32 v12, s30, v12")
    a("v_lshrrev_b32 v11, 1, v9")
    a("v_lshlrev_b32 v11, 7, v11")
    a("v_and_b32 v4, 1, v9")
    a("v_lshl_add_u32 v11, v4, 2, v11")
    a("s_lshl_b32 s61, s30, 11")
    a("v_add_u32 v11, s61, v11")
    a("s_lshr_b32 s64, s30, 2")
    a("s_sub_u32 s61, 32, s92")
    a("s_and_b32 s61, s61, 31")
    a("s_sub_u32 s65, 481, s31")
    a("s_cmp_ge_u32 s93, 4")
    a("s_cselect_b32 s69, s61, s92")
    a("s_cselect_b64 vcc, -1, 0")
    a("s_cselect_b32 s73, 1.0, -1.0")
    a("s_cselect_b32 s65, s65, s31")
    a("v_add_u32 v4, s31, v9")
    a("v_sub_u32 v5, 0x200, v4")
    a("v_cndmask_b32 v4, v4, v5, vcc")
    a("v_lshrrev_b32 v6, 4, v0")
    a("v_lshlrev_b32 v6, 4, v6")
    a("v_min_u32 v6, 31, v6")
    a("v_add_u32 v6, s65, v6")
    for v in (4, 6):
        a(f"v_sub_u32 v5, 384, v{v}")
        a(f"v_cmp_gt_u32 vcc, 128, v{v}")
        a("s_nop 1")
        a(f"v_cndmask_b32 v{v}, v5, v{v}, vcc")
    a(f"v_mul_u32_u24 v5, {8*EP}, v8")
    a("v_add_u32 v4, v4, v5")
    a("v_lshlrev_b32 v4, 4, v4")
    a(f"s_mul_i32 s69, s69, {16*EP*16}")
    a(f"s_add_u32 s69, s69, 0x{C_OFF:x}")
    a("v_bfe_u32 v6, v6, 4, 3")
    a("s_lshr_b32 s61, s2, 1")
    a("s_xor_b32 s61, s61, s2")
    a("s_lshl_b32 s64, s66, 4")
    a("s_add_u32 s61, s61, s64")
    a(f"s_and_b32 s61, s61, {NREP-1}")
    a(f"s_add_u32 s61, s61, {CT_C}")
    a("v_lshl_add_u32 v6, v6, 5, s61")
    a(f"s_add_u32 s61, s30, {CT_G}")
    a("v_mov_b32 v5, s61")
    a("v_cmp_gt_u32 vcc, 48, v0")
    a("s_nop 1")
    a("v_cndmask_b32 v6, v5, v6, vcc")
    a("v_lshlrev_b32 v6, 7, v6")
    a("v_cvt_f32_u32 v9, v12")
    a(f"v_mul_f32 v9, {f32(1.0/2048)}, v9")
    a("v_mul_f32 v9, s73, v9")
    a("v_lshlrev_b32 v10, 5, v8")
    a("v_cvt_f32_u32 v10, v10")
    a("v_mul_f32 v10, v10, v9")
    T = 16
    for i in range(8):
        for c in range(4):
            a(f"v_cos_f32 v{T+c}, v10")
            a(f"v_sin_f32 v{T+4+c}, v10")
            a("v_add_f32 v10, v10, v9")
        for c in range(4):
            a(f"v_cvt_pk_bf16_f32 v{MF+4*i+c}, v{T+2*c}, v{T+2*c+1}")
    final_setup(248)
    a(f"s_mul_i32 s30, s3, {PIECE}")
    a("s_add_u32 s30, s30, 4096")
    a("v_lshlrev_b32 v5, 4, v0")
    a("v_add_u32 v240, s30, v5")
    for qd in range(1, 4):
        a(f"v_xor_b32 v{240+qd}, {64*qd}, v240")
    a("v_and_b32 v5, 31, v0")
    a("s_lshl_b32 s30, s66, 7")
    a("v_lshl_add_u32 v244, v5, 2, s30")
    stamp(a, 6)
    if not opt("pollfirst", 0) and KB >= 0:
        a("s_barrier")
    a(f"s_setprio {opt('cprio', 3)}")
    poll(a, "C", 6, 56, 58, 0x0001000100010001, sleep=opt("csleep", 0))
    stamp(a, 7)
    if opt("pollfirst", 0):
        a("s_barrier")
    for i in range(8):
        a(f"s_add_u32 s70, s69, {i*EP*16}")
        if not opt("abl_cl", 0): a(f"buffer_load_dwordx4 {vr(CF + 4*i, 4)}, v4, s[44:47], s70 offen sc1")
    a(f"s_mov_b32 s70, 0x{G_OFF:x}")
    a(f"buffer_load_dword v{GV}, v11, s[44:47], s70 offen sc1")
    for i in range(8):
        a(f"s_waitcnt vmcnt({8 - i})")
        c = "0" if i == 0 else vr(YA, 16)
        a(f"v_mfma_f32_32x32x16_bf16 {vr(YA,16)}, {vr(CF+4*i,4)}, {vr(MF+4*i,4)}, {c}")
    a("s_waitcnt vmcnt(0)")
    a(f"v_sub_f32 v{GV+2}, 1.0, v{GV}")
    a(f"v_cvt_pk_bf16_f32 v{GV+2}, v{GV+2}, v{GV+2}")
    a(f"v_lshlrev_b32 v{GV+2}, 16, v{GV+2}")
    a(f"ds_write_b32 v244, v{GV+2} offset:8192")
    a("s_nop 6")
    for qd in range(4):
        for r in (4*qd, 4*qd + 2):
            a(f"v_pk_mul_f32 {vr(YA+r,2)}, {vr(YA+r,2)}, {vr(GV,2)} op_sel_hi:[1,0]")
        a(f"ds_write_b128 v{240+qd}, {vr(YA+4*qd,4)} offset:{qd*1024}")
    a("s_waitcnt lgkmcnt(0)")
    stamp(a, 8)
    final_stage(248, 144)
    stamp(a, 9)
    stamp_flush(a)
    if opt("spin", 0):
        if opt("spinall", 0) == 0:
            a("s_or_b32 s30, s2, s3")
            a("s_cbranch_scc1 K_END")
        a.lab("SPIN_L")
        a("s_memrealtime s[92:93]")
        a("s_waitcnt lgkmcnt(0)")
        a("s_sub_u32 s92, s92, s90")
        a(f"s_cmp_lt_u32 s92, {opt('spin', 0)}")
        a("s_cbranch_scc1 SPIN_L")
    a.lab("K_END")
    a("s_endpgm")

HEADER = open("cdna_kernels/" + NAME + ".s.ref").read().split("; Override launch")[0]

DOC = """; One launch, 256 workgroups (one per CU), 4 loader waves + 4 compute waves each.
"""

def main():
    nm = NAME + "_kernel"
    out = HEADER
    out += f"; @launch grid=(256,1,1) block=(512,1,1) lds={4*SLOT}\n"
    out += '.amdgcn_target "amdgcn-amd-amdhsa--gfx950"\n'
    out += DOC
    out += '.text\n'
    a = Asm()
    out += f".globl {nm}\n.p2align 8\n.type {nm},@function\n"
    kernel(a)
    out += a.text()
    out += f""".section .rodata,"a"
.p2align 6
.amdhsa_kernel {nm}
  .amdhsa_next_free_vgpr 256
  .amdhsa_next_free_sgpr 102
  .amdhsa_accum_offset 256
  .amdhsa_group_segment_fixed_size 0
  .amdhsa_kernarg_size 104
  .amdhsa_user_sgpr_count 2
  .amdhsa_user_sgpr_kernarg_segment_ptr 1
  .amdhsa_system_sgpr_workgroup_id_x 1
.end_amdhsa_kernel
"""
    path = [x for x in sys.argv[1:] if not x.startswith("--")][0]
    open(path, "w").write(out)

main()
```

```python
import sys, math, struct, re

NAME = "gated_mix__spectral_fnet__geglu_ffn__prompt"
STAMP = "--stamp" in sys.argv
def opt(name, default):
    for x in sys.argv:
        if x.startswith("--" + name + "="):
            return int(x.split("=")[1])
    return default
RA = opt("ra", 1); RB = opt("rb", 2); RM = opt("rm", 6)
RJ = opt("rj", 0); RI = opt("ri", 6)
NPRE = opt("npre", 0)
D2 = opt("d2", 8)
WTH = opt("wth", 64)
PRIO = opt("prio", 3)
EPRIO = opt("eprio", 0)
KB = opt("kb", 11)
LA2 = opt("la2", 9)
N0A = opt("n0a", 3)
N0B = opt("n0b", 2)
WNT = "nt" if opt("wnt", 0) else ""
XNT = "nt" if opt("xnt", 0) else ""
PK = opt("pk", 1)
N1 = opt("n1", 20)
DIRECT = opt("direct", 4)
TAILV = opt("tailv", 1)
LAI = opt("lai", 7)
LAS = opt("las", 9)
BPOS = opt("bpos", 8)
SG = opt("sg", 0)
HB = opt("hb", 0)
GATE = opt("gate", 0)
GDEL = opt("gdel", 0)
CPF = opt("cpf", 1)
PFW = opt("pfw", 1)
LSLEEP = opt("lsleep", 0)
SPINMAX = 400000

NKS = 86
EP = 264
C_OFF = 0x600000
G_OFF = 0x8e0000
FL_OFF = 0x910000
CT_H, CT_G, CT_C = 0, 64, 128
NCT = 384
NREP = 32
WS_USED = 0x920000
ST_OFF = 0x1000000

def f32(x):
    return "0x%08x" % struct.unpack("<I", struct.pack("<f", x))[0]

class Asm:
    def __init__(self):
        self.l = []
    def __call__(self, s):
        self.l.append("    " + s)
    def lab(self, s):
        self.l.append(s + ":")
    def text(self):
        return "\n".join(self.l) + "\n"

def vr(b, n=1):
    return f"v{b}" if n == 1 else f"v[{b}:{b+n-1}]"

def srd(a, d, lo, hi, nbytes):
    a(f"s_mov_b32 s{d}, s{lo}")
    a(f"s_mov_b32 s{d+1}, s{hi}")
    a(f"s_mov_b32 s{d+2}, 0x{nbytes:x}")
    a(f"s_mov_b32 s{d+3}, 0x20000")

SV = 15
def stamp(a, idx):
    if not STAMP or (opt("minstamp", 0) and idx not in (9, 15)):
        return
    a("s_memrealtime s[62:63]")
    a("s_waitcnt lgkmcnt(0)")
    a(f"v_writelane_b32 v{SV}, s62, {idx}")

def stamp_flush(a):
    if not STAMP:
        return
    a("s_lshl_b32 s60, s2, 3")
    a("s_add_u32 s60, s60, s95")
    a("s_lshl_b32 s60, s60, 8")
    a(f"s_add_u32 s60, s60, 0x{ST_OFF:x}")
    a("v_lshlrev_b32 v14, 2, v0")
    a(f"buffer_store_dword v{SV}, v14, s[44:47], s60 offen")

def weave(a, mf, fill, start=0, per=1):
    fi = 0
    for i, m in enumerate(mf):
        a(m)
        if i >= start:
            for _ in range(per):
                if fi < len(fill):
                    a(fill[fi]); fi += 1
    while fi < len(fill):
        a(fill[fi]); fi += 1

C1 = -2.0 * math.sqrt(2.0 / math.pi) * math.log2(math.e)
C2 = C1 * 0.044715

def gelu8(G, U, t, dst, swap):
    r = []
    for i in range(0, 8, 2): r.append(f"v_pk_mul_f32 {vr(t+i,2)}, {vr(G[i],2)}, {vr(G[i],2)}")
    for i in range(0, 8, 2): r.append(f"v_pk_fma_f32 {vr(t+i,2)}, {vr(t+i,2)}, s[72:73], v[10:11] op_sel_hi:[1,0,0]")
    for i in range(0, 8, 2): r.append(f"v_pk_mul_f32 {vr(t+i,2)}, {vr(t+i,2)}, {vr(G[i],2)}")
    for i in range(8):
        r.append(f"v_exp_f32 v{t+i}, v{t+i}")
        if i & 1: r.append(f"v_pk_mul_f32 {vr(G[i-1],2)}, {vr(G[i-1],2)}, {vr(U[i-1],2)}")
    for i in range(0, 8, 2): r.append(f"v_pk_add_f32 {vr(t+i,2)}, {vr(t+i,2)}, 1.0 op_sel_hi:[1,0]")
    for i in range(8): r.append(f"v_rcp_f32 v{t+i}, v{t+i}")
    for i in range(0, 8, 2): r.append(f"v_pk_mul_f32 {vr(G[i],2)}, {vr(G[i],2)}, {vr(t+i,2)}")
    for i in range(4): r.append(f"v_cvt_pk_bf16_f32 v{dst+i}, v{G[2*i]}, v{G[2*i+1]}")
    r.append("s_nop 1")
    r.append(f"v_permlane{swap}_swap_b32 v{dst}, v{dst+2}")
    r.append(f"v_permlane{swap}_swap_b32 v{dst+1}, v{dst+3}")
    return r

def gelu_pair(a, g0, u0, g1, u1, t, dst):
    G = [g0 + i for i in range(4)] + [g1 + i for i in range(4)]
    U = [u0 + i for i in range(4)] + [u1 + i for i in range(4)]
    for x in gelu8(G, U, t, dst, 16):
        a(x)

SLOT = 40960
XB = 16384
WB = 12288
F1_LDS = 3 * SLOT + 36864
NST = 22
PIECE = 10240


def p2_ids(a):
    if opt("m8", 0):
        a("s_lshr_b32 s31, s2, 3")
        a("s_lshr_b32 s93, s31, 3")
        if opt("jx8", 0): a(f"s_xor_b32 s93, s93, {opt('jx8', 0)}")
        a("s_and_b32 s31, s31, 7")
        a("s_and_b32 s92, s2, 6")
        a("s_lshl_b32 s92, s92, 2")
        a("s_add_u32 s92, s92, s31")
        a(f"s_mul_i32 s94, s31, {opt('ri8', 3)}")
        a(f"s_and_b32 s30, s93, {opt('rm8', 3)}")
        a(f"s_mul_i32 s30, s30, {opt('rj8', 0)}")
        a("s_add_u32 s94, s94, s30")
        a("s_and_b32 s30, s2, 1")
        a("s_lshl_b32 s30, s30, 2")
        a("s_add_u32 s93, s93, s30")
        a(f"s_sub_u32 s30, s94, {NST}")
        a(f"s_cmp_ge_u32 s94, {NST}")
        a("s_cselect_b32 s94, s30, s94")
        return
    a("s_and_b32 s30, s2, 7")
    a("s_lshr_b32 s31, s2, 3")
    a("s_lshr_b32 s93, s31, 2")
    if opt("jx", 5): a(f"s_xor_b32 s93, s93, {opt('jx', 5)}")
    a("s_and_b32 s31, s31, 3")
    a(f"s_mul_i32 s94, s31, {RI}")
    a("s_sub_u32 s61, 0, s30")
    a("s_bitcmp1_b32 s31, 0")
    a("s_cselect_b32 s92, s61, s30")
    a("s_cselect_b32 s61, 8, 0")
    a("s_cmp_eq_u32 s30, 0")
    a("s_cselect_b32 s92, s61, s92")
    a("s_lshr_b32 s31, s31, 1")
    a("s_lshl_b32 s31, s31, 4")
    a("s_add_u32 s92, s92, s31")
    a("s_and_b32 s92, s92, 31")
    a(f"s_mul_i32 s30, s93, {RJ}")
    a("s_add_u32 s94, s94, s30")
    a(f"s_sub_u32 s30, s94, {NST}")
    a(f"s_cmp_ge_u32 s94, {NST}")
    a("s_cselect_b32 s94, s30, s94")

def req_nonce():
    return ["s_load_dwordx8 s[4:11], s[26:27], 0"]

def get_nonce(a, tag, vt):
    a("s_waitcnt lgkmcnt(0)")
    a("s_and_b64 s[4:5], s[4:5], s[6:7]")
    a("s_and_b64 s[8:9], s[8:9], s[10:11]")
    a("s_and_b64 s[4:5], s[4:5], s[8:9]")
    a("s_and_b32 s4, s4, s5")
    a(f"s_cbranch_scc1 NOK{tag}")
    srd(a, 48, 26, 27, 256)
    a("s_mov_b32 s61, 0")
    a(f"v_lshlrev_b32 v{vt+1}, 2, v0")
    a("s_mov_b64 exec, 0xff")
    a.lab(f"NL{tag}")
    a(f"v_mov_b32 v{vt}, 0")
    a(f"buffer_atomic_add v{vt}, v{vt+1}, s[48:51], 0 offen sc0 sc1")
    a("s_add_u32 s61, s61, 1")
    a(f"s_cmp_gt_u32 s61, {SPINMAX}")
    a("s_waitcnt vmcnt(0)")
    a(f"s_cbranch_scc1 NX{tag}")
    a(f"v_cmp_eq_u32 vcc, 0, v{vt}")
    a(f"s_cbranch_vccnz NL{tag}")
    a.lab(f"NX{tag}")
    a("s_mov_b64 exec, -1")
    a.lab(f"NOK{tag}")

def signal(a, vt, sidx, smask=None, cnt=0, lo=None, val="1"):
    a(f"s_lshl_b32 s30, {sidx}, 7")
    a(f"s_add_u32 s30, s30, 0x{FL_OFF:x}")
    a(f"v_mov_b32 v{vt}, {val}")
    a(f"v_lshlrev_b32 v{vt+1}, 7, v0")
    a(f"s_waitcnt vmcnt({cnt})")
    if smask is None:
        a("s_mov_b64 exec, 1")
    else:
        a(f"s_mov_b32 exec_lo, {smask}")
        a("s_mov_b32 exec_hi, 0")
    a(f"s_setprio {PRIO}")
    a(f"buffer_atomic_add v{vt}, v{vt+1}, s[44:47], s30 offen sc1")
    a(f"s_setprio {EPRIO if lo is None else lo}")
    a("s_mov_b64 exec, -1")

def poll(a, tag, vaddr, vexp, vt, mask, sleep=0):
    a(f"s_mov_b32 s30, 0x{FL_OFF:x}")
    a("s_mov_b32 s61, 0")
    a(f"s_mov_b32 exec_lo, 0x{mask & 0xffffffff:x}")
    a(f"s_mov_b32 exec_hi, 0x{mask >> 32:x}")
    a.lab(f"PL{tag}")
    a(f"v_mov_b32 v{vt}, 0")
    a(f"buffer_atomic_add v{vt}, v{vaddr}, s[44:47], s30 offen sc0 sc1")
    a("s_add_u32 s61, s61, 1")
    a(f"s_cmp_gt_u32 s61, {SPINMAX}")
    a("s_waitcnt vmcnt(0)")
    a(f"s_cbranch_scc1 PD{tag}")
    a(f"v_cmp_ne_u32 vcc, v{vt}, v{vexp}")
    if sleep:
        a(f"s_cbranch_vccz PD{tag}")
        a(f"s_sleep {sleep}")
        a(f"s_branch PL{tag}")
    else:
        a(f"s_cbranch_vccnz PL{tag}")
    a.lab(f"PD{tag}")
    a("s_mov_b64 exec, -1")

def kernel(a):
    a.lab(NAME + "_kernel")
    a("s_cmp_ge_u32 s2, 256")
    a("s_cbranch_scc1 K_END")
    a("s_load_dwordx2 s[32:33], s[0:1], 0")
    a("s_load_dwordx16 s[4:19], s[0:1], 0")
    a("s_load_dwordx8 s[20:27], s[0:1], 64")
    a("s_load_dwordx2 s[28:29], s[0:1], 96")
    if STAMP or opt("spin", 0):
        a("s_memrealtime s[90:91]")
    a("v_lshrrev_b32 v1, 6, v0")
    a("v_and_b32 v0, 63, v0")
    a("v_readfirstlane_b32 s95, v1")
    CPE = opt('cpe', 1)
    def cpf_block(reg, val):
      if CPF:
          a(f"s_cmp_lg_u32 {reg}, {val}")
          a("s_cbranch_scc1 NOCPF")
          a("s_getpc_b64 s[84:85]")
          a.lab("CPF_PC")
          a(f"s_sub_u32 s84, s84, CPF_PC-{NAME}_kernel")
          a("s_subb_u32 s85, s85, 0")
          a("s_lshr_b32 s30, s2, 3")
          a("s_lshl_b32 s30, s30, 10")
          a("v_and_b32 v1, 7, v0")
          a("v_lshl_add_u32 v1, v1, 7, s30")
          a(f"v_min_u32 v1, K_END-{NAME}_kernel, v1")
          a("v_mov_b32 v3, s85")
          a("v_add_co_u32 v2, vcc, s84, v1")
          a("s_nop 1")
          a("v_addc_co_u32 v3, vcc, 0, v3, vcc")
          a("s_mov_b64 exec, 0xff")
          a("global_load_dword v13, v[2:3], off")
          a("s_mov_b64 exec, -1")
          a.lab("NOCPF")
    if CPE:
        cpf_block('s95', 4)
    if opt("r3", 1):
        starts = {1: [0, 3, 6], 2: [0, 3, 5], 3: [1, 4, 6], 4: [0, 2, 5], 5: [0, 4], 6: [0], 7: [0, 2, 4, 6]}[opt("r3", 1)]
        tab = sum(starts[v % len(starts)] << (4 * v) for v in range(11))
        a(f"s_mov_b32 s96, 0x{tab & 0xffffffff:x}")
        a(f"s_mov_b32 s97, 0x{tab >> 32:x}")
    a("s_lshr_b32 s31, s2, 3")
    a("s_and_b32 s56, s2, 1")
    a("s_lshl_b32 s56, s56, 3")
    a("s_and_b32 s74, s31, 7")
    a("s_add_u32 s56, s56, s74")
    a("s_and_b32 s57, s2, 6")
    a("s_lshl_b32 s57, s57, 1")
    a("s_lshr_b32 s75, s31, 3")
    a("s_add_u32 s57, s57, s75")
    if opt("r3", 1):
        a("s_add_u32 s74, s74, s75")
        a("s_lshl_b32 s74, s74, 2")
        a(f"s_lshr_b64 s[74:75], s[96:97], s74")
        if opt("xo", 0):
            xt = {1: [0, 2, 2, 0, 0, 2, 2, 0], 2: [0, 1, 1, 0, 0, 1, 1, 0], 3: [0, 4, 2, 6, 4, 0, 6, 2], 4: [0, 2, 1, 3, 2, 0, 3, 1], 5: [0, 2, 3, 1, 1, 3, 2, 0]}[opt("xo", 0)]
            a("s_and_b32 s30, s2, 7")
            a("s_lshl_b32 s30, s30, 2")
            a(f"s_lshr_b32 s30, 0x{sum(v << (4*i) for i, v in enumerate(xt)):x}, s30")
            a("s_add_u32 s74, s74, s30")
        a("s_and_b32 s74, s74, 7")
    else:
        a(f"s_mul_i32 s74, s74, {RA}")
        a(f"s_mul_i32 s75, s75, {RB}")
        a("s_add_u32 s74, s74, s75")
        a(f"s_and_b32 s74, s74, {RM}")
    if opt("ro", 0): a(f"s_or_b32 s74, s74, {opt('ro', 0)}")
    a("s_and_b32 s30, s57, 7")
    a("s_cselect_b32 s58, 0, 1")
    a("s_lshr_b32 s59, s57, 3")
    a("s_sub_u32 s78, s57, s59")
    a("s_sub_u32 s78, s78, 1")
    a("s_and_b32 s3, s95, 3")
    if STAMP:
        a(f"v_mov_b32 v{SV}, -1")
    a("s_cmp_ge_u32 s95, 4")
    a("s_cbranch_scc1 P1_CONS")
    a("v_lshrrev_b32 v3, 3, v0")
    a("v_and_b32 v8, 7, v0")
    a("v_lshrrev_b32 v9, 4, v0")
    a("s_lshl_b32 s30, s56, 2")
    a("s_add_u32 s30, s30, s3")
    a("s_lshl_b32 s79, s30, 10")
    a("s_lshl_b32 s66, s3, 12")
    a("s_lshl_b32 s70, s74, 7")
    a("s_cmp_eq_u32 s58, 1")
    a("s_cbranch_scc1 P1_LSP")

    def stamp0():
        if STAMP:
            a(f"v_writelane_b32 v{SV}, s90, 0")
            stamp(a, 1)

    def gload(ops, sl="s57", xb=68, gw=True):
        srd(a, 48, 22, 23, 1024)
        a(f"s_lshl_b32 s30, {sl}, 3")
        a("s_lshl_b32 s31, s3, 1")
        a("s_add_u32 s30, s30, s31")
        a("s_lshr_b32 s31, s30, 5")
        a("s_and_b32 s30, s30, 31")
        a("s_lshl_b32 s30, s30, 6")
        a("s_add_u32 s30, s30, s31")
        a("s_lshl_b32 s31, s56, 2")
        a("s_add_u32 s64, s30, s31")
        a("s_lshl_b32 s30, s64, 10")
        a("s_add_u32 s31, s30, 0x10000")
        a("v_lshlrev_b32 v12, 4, v0")
        if gw:
            a("buffer_load_dwordx4 v[64:67], v12, s[48:51], 0 offen")
        a(f"buffer_load_dwordx4 {vr(xb,4)}, v12, s[32:35], s30 offen")
        a(f"buffer_load_dwordx4 {vr(xb+4,4)}, v12, s[32:35], s31 offen")
        ops.extend(["g"] * 3)

    def gcalc(ops, parts=(0, 1, 2), x0=68):
        T = 76
        if 0 in parts and ops is not None:
            waitfor(ops, "g")
        for rr in range(2):
            if rr not in parts:
                continue
            xb = x0 + 4 * rr
            acc = T + 4 + rr
            for d in range(4):
                a(f"v_lshlrev_b32 v{T}, 16, v{xb+d}")
                a(f"v_and_b32 v{T+1}, 0xffff0000, v{xb+d}")
                a(f"v_lshlrev_b32 v{T+2}, 16, v{64+d}")
                a(f"v_and_b32 v{T+3}, 0xffff0000, v{64+d}")
                a(f"v_mul_f32 v{T}, v{T}, v{T+2}")
                a(f"v_mul_f32 v{T+1}, v{T+1}, v{T+3}")
                a(f"v_cvt_pk_bf16_f32 v{T}, v{T}, v{T+1}")
                a(f"v_and_b32 v{T+1}, 0xffff0000, v{T}")
                a(f"v_lshlrev_b32 v{T}, 16, v{T}")
                if d == 0:
                    a(f"v_add_f32 v{acc}, v{T}, v{T+1}")
                else:
                    a(f"v_add_f32 v{acc}, v{acc}, v{T}")
                    a(f"v_add_f32 v{acc}, v{acc}, v{T+1}")
        if 2 not in parts:
            return
        A, B = T + 4, T + 5
        for sh in (8, 4, 2, 1):
            a("s_nop 1")
            a(f"v_add_f32_dpp v{A}, v{A}, v{A} row_ror:{sh} row_mask:0xf bank_mask:0xf")
            a(f"v_add_f32_dpp v{B}, v{B}, v{B} row_ror:{sh} row_mask:0xf bank_mask:0xf")
        a("s_nop 1")
        a(f"v_add_f32_dpp v{A}, v{A}, v{A} row_bcast:15 row_mask:0xa bank_mask:0xf")
        a(f"v_add_f32_dpp v{B}, v{B}, v{B} row_bcast:15 row_mask:0xa bank_mask:0xf")
        a("s_nop 1")
        a(f"v_add_f32_dpp v{A}, v{A}, v{A} row_bcast:31 row_mask:0xc bank_mask:0xf")
        a(f"v_add_f32_dpp v{B}, v{B}, v{B} row_bcast:31 row_mask:0xc bank_mask:0xf")
        a("s_nop 1")
        a(f"v_cvt_pk_bf16_f32 v{A}, v{A}, v{B}")
        a(f"v_and_b32 v{B}, 0xffff0000, v{A}")
        a(f"v_lshlrev_b32 v{A}, 16, v{A}")
        a(f"v_mul_f32 v{A}, {f32(-math.log2(math.e))}, v{A}")
        a(f"v_mul_f32 v{B}, {f32(-math.log2(math.e))}, v{B}")
        a(f"v_exp_f32 v{A}, v{A}")
        a(f"v_exp_f32 v{B}, v{B}")
        a("s_nop 0")
        a(f"v_add_f32 v{A}, 1.0, v{A}")
        a(f"v_add_f32 v{B}, 1.0, v{B}")
        a(f"v_rcp_f32 v{A}, v{A}")
        a(f"v_rcp_f32 v{B}, v{B}")
        a("s_nop 0")
        a(f"v_cvt_pk_bf16_f32 v{A}, v{A}, v{B}")
        a(f"v_and_b32 v{B}, 0xffff0000, v{A}")
        a(f"v_lshlrev_b32 v{A}, 16, v{A}")

    def gsignal(sl, vt, val):
        a("s_lshl_b32 s61, s56, 2")
        a(f"s_lshr_b32 s31, {sl}, 2")
        a("s_add_u32 s61, s61, s31")
        a(f"s_add_u32 s61, s61, {CT_G}")
        signal(a, vt, "s61", cnt=63, lo=0, val=val)

    def gstore(sl="s57"):
        a("s_lshl_b32 s30, s56, 4")
        a(f"s_add_u32 s30, s30, {sl}")
        a("s_lshl_b32 s30, s30, 2")
        a("s_add_u32 s30, s30, s3")
        a("s_lshl_b32 s30, s30, 7")
        a(f"s_add_u32 s30, s30, 0x{G_OFF:x}")
        a("s_mov_b32 exec_lo, 0")
        a("s_brev_b32 exec_hi, 1")
        a("buffer_store_dwordx2 v[80:81], off, s[44:47], s30 sc1")
        a("s_mov_b64 exec, -1")

    def wd_setup():
        p2_ids(a)
        srd(a, 52, 20, 21, 1376 * 1024)
        a("v_lshlrev_b32 v29, 1, v3")
        a("v_and_b32 v29, 4, v29")
        a("v_xor_b32 v29, v29, v8")
        a("v_lshlrev_b32 v29, 4, v29")
        a("v_lshl_add_u32 v29, v3, 10, v29")
        a(f"s_mul_i32 s30, s3, {NST*16384}")
        a("s_lshl_b32 s31, s93, 7")
        a("s_add_u32 s30, s30, s31")
        a("v_add_u32 v29, s30, v29")
        a("s_mov_b32 s65, s94")
        a(f"s_mul_i32 s77, s3, {PIECE}")
        a("v_lshrrev_b32 v232, 5, v0")
        a("v_and_b32 v233, 15, v0")
        a("v_lshrrev_b32 v234, 2, v233")
        a("v_lshl_add_u32 v234, v232, 3, v234")
        a("v_lshlrev_b32 v234, 7, v234")
        a("v_lshrrev_b32 v235, 3, v233")
        a("v_lshl_add_u32 v234, v235, 6, v234")
        a("v_and_b32 v235, 16, v0")
        a("v_lshl_add_u32 v234, v235, 1, v234")
        a("v_and_b32 v235, 3, v0")
        a("v_lshl_add_u32 v234, v235, 3, v234")
        a("v_add_u32 v226, s77, v234")
        a("v_xor_b32 v227, 64, v226")
        a(f"v_add_u32 v228, {2*SLOT}, v226")
        a(f"v_add_u32 v229, {2*SLOT}, v227")
        a(f"s_mul_i32 s31, s3, {NST}")
        a(f"s_mul_i32 s30, s92, {NKS}")
        a("s_add_u32 s30, s30, s31")
        a("s_lshl_b32 s30, s30, 10")
        a("v_lshlrev_b32 v232, 4, v0")
        a("v_add_u32 v224, s30, v232")
        a(f"v_add_u32 v225, {32*NKS*1024}, v224")
        a("s_cmp_eq_u32 s3, 3")
        a(f"s_cselect_b32 s72, 20, {NST}")
        a("s_cselect_b32 s30, 20, 16")
        a("v_mov_b32 v231, s30")
        a("s_lshr_b32 s30, s92, 1")
        a("s_lshl_b32 s30, s30, 2")
        a("s_add_u32 s30, s30, s3")
        a("s_lshl_b32 s30, s30, 7")
        a("v_mov_b32 v230, s30")
        a("v_add_u32 v240, s77, v232")
        for qd in range(1, 4):
            a(f"v_xor_b32 v{240+qd}, {64*qd}, v240")
        for qd in range(4):
            a(f"v_add_u32 v{244+qd}, {2*SLOT}, v{240+qd}")
        final_setup(248)

    def wd_lds(st):
        s = st % 20
        return (s // 5) * SLOT + (s % 5) * 2048

    def issue_w(st, ops):
        a(f"s_add_u32 m0, s77, {wd_lds(st)}")
        a("s_lshl_b32 s30, s65, 14")
        a("s_add_u32 s31, s30, 7168")
        a("buffer_load_dwordx4 v29, s[52:55], s30 offen lds")
        a("s_add_u32 s65, s65, 1")
        a(f"s_cmp_eq_u32 s65, {NST}")
        a("s_cselect_b32 s65, 0, s65")
        a("buffer_load_dwordx4 v29, s[52:55], s31 offen offset:1024 lds")
        ops.extend([("w", st)] * 2)

    def waitfor(ops, key):
        last = max(i for i, o in enumerate(ops) if o == key)
        a(f"s_waitcnt vmcnt({len(ops) - 1 - last})")

    def capture(fn):
        save = a.l
        a.l = []
        fn()
        lines, a.l = a.l, save
        groups, cur = [], []
        for ln in lines:
            cur.append(ln)
            if ln.strip().startswith("buffer_"):
                groups.append(cur); cur = []
        if cur:
            groups[-1].extend(cur)
        return groups

    def pf_wd():
        a("s_lshr_b32 s30, s2, 3")
        a("s_lshl_b32 s30, s30, 2")
        a("s_add_u32 s30, s30, s3")
        a(f"s_mul_i32 s30, s30, {86*128}")
        a("v_lshlrev_b32 v12, 7, v0")
        a("buffer_load_dword v82, v12, s[52:55], s30 offen")
        a("s_add_u32 s30, s30, 8192")
        a("s_mov_b64 exec, 0x3fffff")
        a("buffer_load_dword v83, v12, s[52:55], s30 offen")
        a("s_mov_b64 exec, -1")

    def touch_w3():
        a("s_lshr_b32 s30, s2, 3")
        a("s_lshl_b32 s30, s30, 2")
        a("s_add_u32 s30, s30, s3")
        a(f"s_mul_i32 s30, s30, {11*1024}")
        a("v_lshlrev_b32 v12, 10, v0")
        a("s_mov_b64 exec, 0x7ff")
        a("buffer_load_dword v82, v12, s[52:55], s30 offen offset:384")
        a("s_mov_b64 exec, -1")

    def merge(groups):
        return [sum(groups, [])]

    def loader_loop(issue, commit, lai, direct, dpre, tag):
        items = []
        for s in range(8):
            items += [(("s", s), 1, g) for g in capture(lambda: issue(s, []))]
        assert dpre <= 5 and direct <= 10
        if opt("t3w", 1):
            items += [("t3", 1, g) for g in merge(capture(touch_w3))]
        for st in range(direct):
            items += [(("w", st), 2, g) for g in merge(capture(lambda: issue_w(st, [])))]
        ops = []
        pos = 0
        if tag == "F" and HB:
            lim = len(items) - (direct - min(direct, dpre))
            for b in range(8):
                for half, lastidx in ((0, 10 * b + 6), (1, 10 * b + 9)):
                    upto = min(lim, lastidx + 1 + lai)
                    if b < 7:
                        upto = min(upto, 80)
                    while pos < upto:
                        a.l.extend(items[pos][2]); ops.extend([pos] * items[pos][1]); pos += 1
                    if b == 0 and half == 0:
                        wd_setup()
                    waitfor(ops, lastidx)
                    if opt("lstamp", 1) and half == 0: stamp(a, 2 + b)
                    a("s_barrier")
                if b == 7:
                    for x in req_nonce():
                        a(x)
        else:
            for b in range(8):
                nxt = [i for i, it in enumerate(items) if it[0] == ("s", b + 1)]
                upto = len(items) - (direct - min(direct, dpre)) if b == 7 else nxt[min(lai, len(nxt)) - 1] + 1
                while pos < upto:
                    a.l.extend(items[pos][2]); ops.extend([items[pos][0]] * items[pos][1]); pos += 1
                    if b == 0 and pos == nxt[0]:
                        wd_setup()
                waitfor(ops, ("s", b))
                commit(b)
                if opt("lstamp", 1): stamp(a, 2 + b)
                a("s_barrier")
                if b == 7:
                    for x in req_nonce():
                        a(x)
        while pos < len(items):
            a.l.extend(items[pos][2]); pos += 1
        get_nonce(a, "L" + tag, 30)
        a("s_barrier")
        stamp(a, 16)
        a(f"s_branch P2_W{direct}")


    def final_setup(VA):
        a("s_lshr_b32 s30, s95, 2")
        a(f"v_lshrrev_b32 v{VA}, 3, v0")
        a("s_lshl_b32 s31, s3, 3")
        a(f"v_add_u32 v{VA}, s31, v{VA}")
        a(f"v_and_b32 v{VA+1}, 3, v0")
        a(f"v_lshlrev_b32 v{VA+2}, 2, v{VA+1}")
        a(f"v_xor_b32 v{VA+2}, v{VA+2}, v{VA}")
        a(f"v_lshlrev_b32 v{VA+2}, 4, v{VA+2}")
        a(f"v_lshl_add_u32 v{VA+2}, v{VA+1}, 10, v{VA+2}")
        a(f"v_bfe_u32 v{VA+1}, v0, 2, 1")
        a("s_lshl_b32 s31, s30, 1")
        a(f"v_add_u32 v{VA+1}, s31, v{VA+1}")
        a(f"v_mul_u32_u24 v{VA+3}, {PIECE}, v{VA+1}")
        a(f"v_add_u32 v{VA+3}, v{VA+3}, v{VA+2}")
        a(f"v_mul_u32_u24 v{VA+1}, {SLOT}, v{VA+1}")
        a(f"v_add_u32 v{VA+1}, v{VA+1}, v{VA+2}")
        a("s_lshl_b32 s31, s30, 7")
        a(f"v_lshl_add_u32 v{VA+2}, v{VA}, 2, s31")
        a("s_lshl_b32 s30, s30, 5")
        a("s_add_u32 s30, s30, s92")
        a("s_lshl_b32 s30, s30, 10")
        a("s_lshl_b32 s31, s93, 7")
        a("s_add_u32 s30, s30, s31")
        a(f"v_lshlrev_b32 v{VA}, 16, v{VA}")
        a(f"v_add_u32 v{VA}, s30, v{VA}")
        a(f"v_and_b32 v{VA+4}, 7, v0")
        a(f"v_lshl_add_u32 v{VA}, v{VA+4}, 4, v{VA}")

    def final_stage(VA, R):
        a("s_barrier")
        srd(a, 48, 24, 25, 2048 * 1024)
        a(f"ds_read_b32 v{VA+4}, v{VA+2} offset:8192")
        for hh in range(2):
            for w in range(4):
                a(f"ds_read_b128 {vr(R + 8*w + 4*hh, 4)}, v{VA+1} offset:{w*PIECE + hh*512}")
            a(f"ds_read_b128 {vr(R + 32 + 4*hh, 4)}, v{VA+3} offset:{4096 + hh*512}")
        for hh in range(2):
            a(f"s_waitcnt lgkmcnt({5 - 5*hh})")
            o = 4 * hh
            for i in (0, 2):
                a(f"v_pk_add_f32 {vr(R+o+i,2)}, {vr(R+o+i,2)}, {vr(R+8+o+i,2)}")
                a(f"v_pk_add_f32 {vr(R+16+o+i,2)}, {vr(R+16+o+i,2)}, {vr(R+24+o+i,2)}")
            for i in (0, 2):
                a(f"v_pk_add_f32 {vr(R+o+i,2)}, {vr(R+o+i,2)}, {vr(R+16+o+i,2)}")
            for i in range(4):
                a(f"v_fma_f32 v{R+o+i}, v{VA+4}, v{R+o+i}, v{R+32+o+i}")
            a(f"v_cvt_pk_bf16_f32 v{R+40+2*hh}, v{R+o}, v{R+o+1}")
            a(f"v_cvt_pk_bf16_f32 v{R+41+2*hh}, v{R+o+2}, v{R+o+3}")
        a(f"buffer_store_dwordx4 {vr(R+40,4)}, v{VA}, s[48:51], 0 offen sc1")

    a("v_xor_b32 v10, v9, v8")
    a("v_lshlrev_b32 v10, 4, v10")
    a("v_lshlrev_b32 v11, 16, v3")
    a("v_add3_u32 v4, v10, v11, s79")
    a("v_xor_b32 v5, 64, v4")
    a(f"v_add_u32 v5, {(8 << 16) - 1024}, v5")
    a(f"v_add_u32 v6, {2*((8 << 16) - 1024)}, v4")
    a(f"v_add_u32 v7, {2*((8 << 16) - 1024)}, v5")
    a(f"s_mov_b32 s34, 0x{2048*1024:x}")
    a("s_mov_b32 s35, 0x20000")
    a("s_mov_b32 m0, s66")
    def wsetup():
        if HB:
            a("s_and_b32 s67, s3, 1")
            a(f"s_mul_i32 s30, s67, {16*2752}")
        else:
            a(f"s_mul_i32 s30, s3, {16*2752}")
        a("s_mul_i32 s31, s78, 192")
        a("s_add_u32 s30, s30, s31")
        a("s_movk_i32 s31, 2560")
        a("v_mul_u32_u24 v11, 171, v0")
        a("v_lshl_add_u32 v10, v0, 4, s30")
        a("v_lshrrev_b32 v12, 11, v11")
        a("v_mad_u32_u24 v24, v12, s31, v10")
        a(f"v_add_u32 v12, {64*171}, v11")
        a("v_lshrrev_b32 v12, 11, v12")
        a("v_and_b32 v25, 32, v0")
        a("v_xor_b32 v25, v25, v10")
        a("v_mad_u32_u24 v25, v12, s31, v25")
        a(f"v_add_u32 v12, {128*171}, v11")
        a("v_lshrrev_b32 v12, 11, v12")
        a("v_xor_b32 v26, 32, v10")
        a("v_mad_u32_u24 v26, v12, s31, v26")
        if HB:
            a("s_mul_i32 s67, s67, 3072")
            a("s_lshr_b32 s68, s3, 1")
            a(f"s_mul_i32 s68, s68, {WB}")
            a("s_add_u32 s67, s67, s68")
            a(f"s_add_u32 s67, s67, {XB}")
            a("s_add_u32 s68, s67, 6144")
        else:
            a("s_mul_i32 s67, s3, 3072")
            a(f"s_add_u32 s67, s67, {XB}")
            a(f"s_add_u32 s68, s67, {WB}")
        a(f"s_mul_i32 s71, s74, {64*2752}")
    wsetup()
    a("s_waitcnt lgkmcnt(0)")
    stamp0()

    XP = opt("xpair", 0)
    def issueF(stage, ops):
        sl = (stage % 4) * SLOT
        if stage and not (XP and stage == 1):
            a(f"s_add_u32 m0, s66, {sl}")
            a("s_nop 0")
        if not (XP and stage == 1):
            for j in range(4):
                a(f"buffer_load_dwordx4 v{4+j}, s[32:35], s70 offen offset:{j*1024} {XNT} lds")
                if XP and stage == 0:
                    if j == 0:
                        a("s_add_u32 s30, s74, 1")
                        a("s_and_b32 s30, s30, 7")
                        a("s_lshl_b32 s30, s30, 7")
                    a(f"s_add_u32 m0, s66, {SLOT}")
                    a("s_nop 0")
                    a(f"buffer_load_dwordx4 v{4+j}, s[32:35], s30 offen offset:{j*1024} {XNT} lds")
                    a("s_mov_b32 m0, s66")
                    a("s_nop 0")
        if stage == 0 and HB:
            a("s_cmp_ge_u32 s3, 2")
            a("s_cselect_b32 s36, s18, s16")
            a("s_cselect_b32 s37, s19, s17")
            a(f"s_mov_b32 s38, 0x{512*2752:x}")
            a("s_mov_b32 s39, 0x20000")
        elif stage == 0:
            srd(a, 36, 16, 17, 512 * 2752)
        a(f"s_add_u32 m0, s67, {sl}")
        a("s_add_u32 s74, s74, 1")
        for jj in range(3):
            a(f"buffer_load_dwordx4 v{24+jj}, s[36:39], s71 offen offset:{jj*1024} {WNT} lds")
        if stage == 0 and not HB:
            srd(a, 40, 18, 19, 512 * 2752)
        a(f"s_add_u32 m0, s68, {sl}")
        a("s_and_b32 s74, s74, 7")
        if HB:
            a(f"s_add_u32 s71, s71, {32*2752}")
        for jj in range(3):
            a(f"buffer_load_dwordx4 v{24+jj}, s[{36 if HB else 40}:{39 if HB else 43}], s71 offen offset:{jj*1024} {WNT} lds")
        a("s_lshl_b32 s70, s74, 7")
        a(f"s_mul_i32 s71, s74, {64*2752}")
        if stage == 0:
            srd(a, 44, 28, 29, 0x2000000 if STAMP else WS_USED)

    loader_loop(issueF, lambda b: None, LAI, DIRECT, opt("dpre", 2), "F")

    a.lab("P1_LSP")
    a("v_lshlrev_b32 v10, 4, v8")
    a("v_lshlrev_b32 v11, 16, v3")
    a("v_add3_u32 v4, v10, v11, s79")
    a("s_and_b32 s30, s3, 1")
    a("s_lshl_b32 s30, s30, 5")
    a("s_lshr_b32 s31, s3, 1")
    a("s_add_u32 s30, s30, s31")
    a("s_lshl_b32 s30, s30, 10")
    a("s_lshl_b32 s31, s59, 7")
    a("s_add_u32 s30, s30, s31")
    a("v_and_b32 v10, 2, v3")
    a("v_xor_b32 v10, v10, v8")
    a("v_lshlrev_b32 v10, 4, v10")
    a("v_lshlrev_b32 v11, 11, v3")
    a("v_add3_u32 v24, v10, v11, s30")
    a("v_xor_b32 v25, 64, v24")
    a("v_lshrrev_b32 v10, 1, v0")
    a("s_lshl_b32 s30, s3, 1")
    a("s_and_b32 s30, s30, 4")
    a("v_xor_b32 v10, s30, v10")
    a(f"v_mul_u32_u24 v10, {2*2752}, v10")
    a("v_and_b32 v11, 1, v0")
    a("v_lshlrev_b32 v11, 4, v11")
    a("s_and_b32 s30, s3, 1")
    a("s_mul_i32 s30, s30, 2752")
    a("s_lshl_b32 s31, s59, 5")
    a("s_add_u32 s30, s30, s31")
    a(f"s_add_u32 s30, s30, {1344*2}")
    a("v_add3_u32 v26, v10, v11, s30")
    a("s_lshl_b32 s67, s3, 11")
    a(f"s_add_u32 s67, s67, {XB}")
    a("s_add_u32 s68, s67, 8192")
    a("s_lshl_b32 s69, s3, 10")
    a(f"s_add_u32 s69, s69, {XB + 16384}")
    a("s_lshl_b32 s71, s74, 16")
    a(f"s_mul_i32 s75, s74, {64*2752}")
    a(f"s_mov_b32 s34, 0x{2048*1024:x}")
    a("s_mov_b32 s35, 0x20000")
    a("s_waitcnt lgkmcnt(0)")
    stamp0()

    def issueS(stage, ops):
        sl = (stage % 4) * SLOT
        xr = 32 + 16 * (stage & 1)
        n = 0
        for j in range(4):
            if j:
                a(f"s_add_u32 s30, s70, {j * 8 * 65536}")
            a(f"buffer_load_dwordx4 {vr(xr+4*j,4)}, v4, s[32:35], {'s30' if j else 's70'} offen")
            n += 1
        a("s_add_u32 s74, s74, 1")
        if stage == 0:
            srd(a, 36, 10, 11, 512 * 1024)
            srd(a, 40, 12, 13, 512 * 1024)
            a("s_cmp_ge_u32 s3, 2")
            a("s_cselect_b32 s84, s18, s16")
            a("s_cselect_b32 s85, s19, s17")
            a(f"s_mov_b32 s86, 0x{512*2752:x}")
            a("s_mov_b32 s87, 0x20000")
            srd(a, 44, 28, 29, 0x2000000 if STAMP else WS_USED)
        if stage < 4:
            a(f"s_add_u32 m0, s67, {sl}")
            a(f"s_add_u32 s76, s71, {16*1024 - 1024}")
            a("buffer_load_dwordx4 v24, s[36:39], s71 offen lds")
            a("buffer_load_dwordx4 v24, s[36:39], s76 offen offset:1024 lds")
            a(f"s_add_u32 m0, s68, {sl}")
            a("s_nop 0")
            a("buffer_load_dwordx4 v25, s[40:43], s71 offen lds")
            a("buffer_load_dwordx4 v25, s[40:43], s76 offen offset:1024 lds")
            n += 4
        a(f"s_add_u32 m0, s69, {sl}")
        a("s_and_b32 s74, s74, 7")
        if not opt("nof", 0):
            a("buffer_load_dwordx4 v26, s[84:87], s75 offen lds")
            n += 1
        a("s_lshl_b32 s70, s74, 7")
        a("s_lshl_b32 s71, s74, 16")
        a(f"s_mul_i32 s75, s74, {64*2752}")
        ops.extend([("s", stage)] * n)
        if stage == 0:
            a("v_lshrrev_b32 v10, 1, v8")
            a("v_xor_b32 v10, v10, v9")
            a("v_lshlrev_b32 v10, 4, v10")
            a("v_and_b32 v11, 1, v8")
            a("v_lshl_add_u32 v10, v11, 3, v10")
            a("v_lshl_add_u32 v10, v3, 7, v10")
            a("v_add_u32 v5, s66, v10")
            a("v_and_b32 v11, 1, v3")
            a("v_lshlrev_b32 v10, 6, v11")
            a("v_xor_b32 v5, v5, v10")
            a("v_xor_b32 v6, 64, v5")
            a("v_mul_u32_u24 v30, 0x0202, v11")
            a("v_lshl_or_b32 v30, v30, 16, v30")
            a("v_xor_b32 v31, 0x07060302, v30")
            a("v_xor_b32 v30, 0x05040100, v30")
            a("v_and_b32 v10, 2, v0")
            a("v_or_b32 v10, 4, v10")
            a("v_lshlrev_b32 v10, 4, v10")
            a("v_lshl_add_u32 v10, v0, 7, v10")
            a("v_add_u32 v27, s68, v10")
            a("s_lshr_b32 s30, s3, 1")
            a("v_xor_b32 v28, s30, v0")
            a("v_and_b32 v28, 1, v28")
            a("v_lshlrev_b32 v28, 15, v28")
            a("v_or_b32 v28, 0x3f80, v28")


    def commitS(stage):
        if opt("nocommit", 0): return
        sl = (stage % 4) * SLOT
        xr = 32 + 16 * (stage & 1)
        a(f"v_add_u32 v7, {sl}, v5")
        a(f"v_add_u32 v2, {sl}, v6")
        for j in range(4):
            r = xr + 4 * j
            t = 16 + 4 * (j & 1)
            a(f"v_perm_b32 v{t}, v{r+1}, v{r}, v30")
            a(f"v_perm_b32 v{t+1}, v{r+3}, v{r+2}, v30")
            a(f"v_perm_b32 v{t+2}, v{r+1}, v{r}, v31")
            a(f"v_perm_b32 v{t+3}, v{r+3}, v{r+2}, v31")
            e, o = (7, 2) if (j & 1) == 0 else (2, 7)
            a(f"ds_write_b64 v{e}, {vr(t,2)} offset:{j*1024}")
            a(f"ds_write_b64 v{o}, {vr(t+2,2)} offset:{j*1024}")
        if stage < 4:
            a("s_cmp_lg_u32 s59, 0")
            a(f"s_cbranch_scc1 P1_NP{stage}")
            a(f"v_add_u32 v7, {sl}, v27")
            a("s_mov_b64 exec, 0xffff")
            a("ds_write_b16 v7, v28")
            a("s_mov_b64 exec, -1")
            a.lab(f"P1_NP{stage}")
        a("s_waitcnt lgkmcnt(0)")

    loader_loop(issueS, commitS, LAS, opt("ds", 8), opt("dspre", 4), "S")

    DS = opt("ds", 8)
    GL = opt("gl", DIRECT + 2)
    GA = opt("ga", 19)
    assert DS > GL
    ops = []
    for st in range(DIRECT, N1):
        a.lab(f"P2_W{st}")
        if st == GL and not opt("abl_g", 0):
            a("s_and_b32 s76, s57, 7")
            a("s_cmp_lg_u32 s76, 1")
            a("s_cbranch_scc1 NOG2A")
            a("s_sub_u32 s73, s57, 1")
            gload([], "s73", 84, False)
            a.lab("NOG2A")
            gload(ops)
        issue_w(st, ops)
        if 2 * (st + 1) > WTH:
            a(f"s_waitcnt vmcnt({WTH - 2})")
        if st == GA and not opt("abl_g", 0):
            a("s_cmp_eq_u32 s58, 1")
            a("s_cbranch_scc1 NOGC")
            if opt("gprio", 0): a(f"s_setprio {opt('gprio', 0)}")
            gcalc(ops)
            gstore()
            a("s_cmp_lg_u32 s76, 1")
            a("s_cbranch_scc1 NOGC")
            gcalc(None, x0=84)
            gstore("s73")
            a.lab("NOGC")
            if opt("gprio", 0): a("s_setprio 0")
    a("s_and_b32 s75, s57, 7")
    a("s_cmp_eq_u32 s75, 1")
    a("s_cselect_b32 s30, 2, 1")
    a("s_cmp_eq_u32 s75, 0")
    a("s_cselect_b32 s75, 0, s30")
    HR = 32
    TMJ = opt("tmj", 0)
    PRE = opt("pre", 1)
    NWF = 3 if PRE else 2
    WF = HR + D2 * 8
    ACC = WF + 8 * NWF
    assert ACC + 64 <= 256
    def trread(st):
        off = wd_lds(st)
        hi = off >= 2 * SLOT
        if hi: off -= 2 * SLOT
        for ct in range(2):
            for hf in range(2):
                a(f"ds_read_b64_tr_b16 {vr(WF + 8*(st % NWF) + ct*4 + hf*2, 2)}, v{226 + 2*hi + ct} offset:{off + hf*512}")
    if PRE:
        assert N1 == 20
        a("s_waitcnt vmcnt(20)")
        trread(0)
        trread(1)
        a("s_waitcnt lgkmcnt(0)")
        issue_w(20, [])
        issue_w(21, [])
    stamp(a, 10)
    if opt("dg2", 0):
        a("s_waitcnt vmcnt(0)")
    stamp(a, 11)
    if GATE:
        a("s_barrier")
    if GDEL:
        a(f"s_sleep {GDEL}")
    poll(a, "L", 230, 231, 22, 1, sleep=LSLEEP)
    if opt("dg2", 0):
        a("s_mul_i32 s61, s61, 100")
        a("s_add_u32 s61, s61, s90")
        a(f"v_writelane_b32 v{SV}, s61, 20")
    stamp(a, 12)
    ops = []
    a("s_mov_b32 s64, s94")
    def issue_h(st):
        sl = st % D2
        a("s_lshl_b32 s30, s64, 10")
        a("s_cmp_ge_u32 s64, s72")
        a("s_cselect_b32 s30, 0x10000000, s30")
        a("s_add_u32 s64, s64, 1")
        a(f"buffer_load_dwordx4 {vr(HR + sl*8, 4)}, v224, s[44:47], s30 offen sc1")
        a(f"s_cmp_eq_u32 s64, {NST}")
        a("s_cselect_b32 s64, 0, s64")
        a(f"buffer_load_dwordx4 {vr(HR + sl*8 + 4, 4)}, v225, s[44:47], s30 offen sc1")
        ops.extend([("h", st)] * 2)
    def mf(st, k):
        ct, rt = k & 1, k >> 1
        d = vr(ACC + 16 * k, 16)
        c = "0" if st == 0 else d
        a(f"v_mfma_f32_32x32x16_bf16 {d}, {vr(WF + 8*(st % NWF) + ct*4, 4)}, {vr(HR + (st % D2)*8 + 4*rt, 4)}, {c}")
    def need(keys, extra=""):
        idx = [i for i, o in enumerate(ops) if o in keys]
        if idx:
            a(f"s_waitcnt vmcnt({len(ops) - 1 - max(idx)}) {extra}")
        elif extra:
            a(f"s_waitcnt {extra}")
    if not PRE:
        trread(0)
    for st in range(D2 - 1):
        issue_h(st)
        if st == 2:
            gsignal("s57", 30, "s75")
            ops.append("sig")
    assert TMJ <= D2 - 1
    def wr(k, qd):
        a(f"ds_write_b128 v{240 + qd + 4*(k >> 1)}, {vr(ACC + 16*k + 4*qd, 4)} offset:{(k & 1)*SLOT + qd*1024}")
    for st in range(NST - TMJ):
        need([("h", st), ("w", st + 1)], "lgkmcnt(0)")
        if st == 0:
            stamp(a, 13)
        mf(st, 0)
        if st + 1 < NST and not (PRE and st == 0):
            trread(st + 1)
        mf(st, 1)
        hg = capture(lambda: issue_h(st + D2 - 1)) if st + D2 - 1 < NST else [[], []]
        a.l.extend(hg[0])
        mf(st, 2)
        a.l.extend(hg[1])
        mf(st, 3)
        if N1 + st < NST and not PRE:
            issue_w(N1 + st, ops)
        if st == KB:
            a("s_barrier")
            if TMJ: assert KB < NST - TMJ
    S0 = NST - TMJ
    if TMJ:
        need([("w", NST - 1)])
        for st in range(S0 + 1, min(NST, S0 + 3)):
            trread(st)
        for k in range(4):
            for n, st in enumerate(range(S0, NST)):
                if k == 0:
                    left = min(NST - 1, st + 2) - st
                    need([("h", st)], f"lgkmcnt({4 * left})")
                mf(st, k)
                if k == 0 and st + 3 < NST:
                    trread(st + 3)
                if k > 0:
                    if n == 0:
                        a("s_nop 7"); a("s_nop 2")
                    if n < 4:
                        wr(k - 1, n)
            if k > 0:
                for qd in range(min(4, TMJ), 4):
                    wr(k - 1, qd)
        stamp(a, 14)
        a("s_nop 7"); a("s_nop 3")
        for qd in range(4):
            wr(3, qd)
        a("s_waitcnt lgkmcnt(0)")
        a("s_barrier")
    else:
        stamp(a, 14)
        a("s_nop 8")
        for k in range(4):
            for qd in range(4):
                wr(k, qd)
        a("s_waitcnt lgkmcnt(0)")
        final_stage(248, 32)
    stamp(a, 15)
    stamp_flush(a)
    a("s_endpgm")

    a.lab("P1_CONS")
    if not CPE:
        cpf_block('s3', 0)
    if opt("t3x", 1):
        a("s_setprio 3")
        a("s_lshr_b32 s30, s2, 3")
        a("s_lshl_b32 s30, s30, 1")
        a("s_and_b32 s31, s2, 1")
        a("s_add_u32 s30, s30, s31")
        a("s_lshl_b32 s30, s30, 2")
        a("s_add_u32 s30, s30, s3")
        a("s_lshl_b32 s30, s30, 13")
        a("v_lshlrev_b32 v1, 10, v0")
        a(f"s_mov_b32 s34, 0x{2048*1024:x}")
        a("s_mov_b32 s35, 0x20000")
        a("s_mov_b64 exec, 0xff")
        a("s_waitcnt lgkmcnt(0)")
        a("buffer_load_dword v13, v1, s[32:35], s30 offen offset:384")
        a("s_mov_b64 exec, -1")
        a("s_setprio 0")
    a("s_lshr_b32 s66, s3, 1")
    a("s_and_b32 s67, s3, 1")
    a("v_and_b32 v1, 15, v0")
    a("v_lshrrev_b32 v2, 4, v0")
    a("v_lshrrev_b32 v3, 1, v1")
    a("v_xor_b32 v3, v3, v2")
    a("v_lshlrev_b32 v3, 4, v3")
    a("v_lshl_add_u32 v4, v1, 7, v3")
    a("v_lshrrev_b32 v3, 2, v1")
    a("v_lshl_add_u32 v3, v2, 3, v3")
    a("v_and_b32 v11, 3, v0")
    a(f"s_mov_b32 s72, {f32(C2)}")
    a(f"v_mov_b32 v10, {f32(C1)}")
    a("s_mov_b32 s68, 0")
    a(f"s_mov_b32 s82, {(-3*SLOT) & 0xffffffff}")
    a(f"s_mov_b32 s83, {SLOT}")

    def advance(regs):
        f = ["s_add_u32 s68, s68, 1",
             "s_and_b32 s30, s68, 3",
             "s_cmp_eq_u32 s30, 0",
             "s_cselect_b32 s30, s82, s83"]
        f += [f"v_add_u32 v{v}, s30, v{v}" for v in regs]
        f += ["s_cmp_eq_u32 s68, 8"]
        return f

    YA, CF, MF, PR, GV = 64, 80, 192, 144, 60
    def cons_p2_raw():
        p2_ids(a)
        a("v_lshrrev_b32 v8, 5, v0")
        a("v_and_b32 v9, 31, v0")
        a("s_lshl_b32 s31, s93, 6")
        a("s_lshl_b32 s61, s67, 5")
        a("s_add_u32 s31, s31, s61")
        a("s_lshl_b32 s30, s66, 5")
        a("s_add_u32 s30, s30, s92")
        a("v_lshlrev_b32 v12, 6, v9")
        a("v_add_u32 v12, s30, v12")
        a("v_lshrrev_b32 v11, 1, v9")
        a("v_lshlrev_b32 v11, 7, v11")
        a("v_and_b32 v4, 1, v9")
        a("v_lshl_add_u32 v11, v4, 2, v11")
        a("s_lshl_b32 s61, s30, 11")
        a("v_add_u32 v11, s61, v11")
        a("s_lshr_b32 s64, s30, 2")
        a("s_sub_u32 s61, 32, s92")
        a("s_and_b32 s61, s61, 31")
        a("s_sub_u32 s65, 481, s31")
        a("s_cmp_ge_u32 s93, 4")
        a("s_cselect_b32 s69, s61, s92")
        a("s_cselect_b64 vcc, -1, 0")
        a("s_cselect_b32 s73, 1.0, -1.0")
        a("s_cselect_b32 s65, s65, s31")
        a("v_add_u32 v4, s31, v9")
        a("v_sub_u32 v5, 0x200, v4")
        a("v_cndmask_b32 v4, v4, v5, vcc")
        a("v_lshrrev_b32 v6, 4, v0")
        a("v_lshlrev_b32 v6, 4, v6")
        a("v_min_u32 v6, 31, v6")
        a("v_add_u32 v6, s65, v6")
        for v in (4, 6):
            a(f"v_sub_u32 v5, 384, v{v}")
            a(f"v_cmp_gt_u32 vcc, 128, v{v}")
            a("s_nop 1")
            a(f"v_cndmask_b32 v{v}, v5, v{v}, vcc")
        a(f"v_mul_u32_u24 v5, {8*EP}, v8")
        a("v_add_u32 v4, v4, v5")
        a("v_lshlrev_b32 v4, 4, v4")
        a(f"s_mul_i32 s69, s69, {16*EP*16}")
        a(f"s_add_u32 s69, s69, 0x{C_OFF:x}")
        a("v_bfe_u32 v6, v6, 4, 3")
        a("s_lshr_b32 s61, s2, 1")
        a("s_xor_b32 s61, s61, s2")
        a("s_lshl_b32 s64, s66, 4")
        a("s_add_u32 s61, s61, s64")
        a(f"s_and_b32 s61, s61, {NREP-1}")
        a(f"s_add_u32 s61, s61, {CT_C}")
        a("v_lshl_add_u32 v6, v6, 5, s61")
        a(f"s_add_u32 s61, s30, {CT_G}")
        a("v_mov_b32 v5, s61")
        a("v_cmp_gt_u32 vcc, 48, v0")
        a("s_nop 1")
        a("v_cndmask_b32 v6, v5, v6, vcc")
        a("v_lshlrev_b32 v6, 7, v6")
        a("v_cvt_f32_u32 v9, v12")
        a(f"v_mul_f32 v9, {f32(1.0/2048)}, v9")
        a("v_mul_f32 v9, s73, v9")
        a("v_lshlrev_b32 v10, 5, v8")
        a("v_cvt_f32_u32 v10, v10")
        a("v_mul_f32 v10, v10, v9")
        T = 16
        for i in range(8):
            for c in range(4):
                a(f"v_cos_f32 v{T+c}, v10")
                a(f"v_sin_f32 v{T+4+c}, v10")
                a("v_add_f32 v10, v10, v9")
            for c in range(4):
                a(f"v_cvt_pk_bf16_f32 v{MF+4*i+c}, v{T+2*c}, v{T+2*c+1}")
        final_setup(248)
        a(f"s_mul_i32 s30, s3, {PIECE}")
        a("s_add_u32 s30, s30, 4096")
        a("v_lshlrev_b32 v5, 4, v0")
        a("v_add_u32 v240, s30, v5")
        for qd in range(1, 4):
            a(f"v_xor_b32 v{240+qd}, {64*qd}, v240")
        a("v_and_b32 v5, 31, v0")
        a("s_lshl_b32 s30, s66, 7")
        a("v_lshl_add_u32 v244, v5, 2, s30")
    def cons_p2_setup():
        save = a.l
        a.l = []
        cons_p2_raw()
        lines, a.l = a.l, save
        ren = {f"v{i}": f"v{220+i}" for i in range(4, 13)}
        ren.update({"s69": "s79", "s73": "s76"})
        for ln in lines:
            a.l.append(re.sub(r"\b[vs]\d+\b", lambda m: ren.get(m.group(0), m.group(0)), ln))

    def cons_start():
        a("s_waitcnt lgkmcnt(0)")
        srd(a, 44, 28, 29, 0x2000000 if STAMP else WS_USED)
        stamp0()

    a("s_cmp_eq_u32 s58, 1")
    a("s_cbranch_scc1 P1_CSP")
    a("s_mov_b32 s73, 99")
    a("s_lshr_b32 s30, s2, 3")
    a("s_xor_b32 s30, s30, 8")
    a("s_xor_b32 s31, s3, 1")
    a("s_or_b32 s30, s30, s31")
    a("s_cbranch_scc1 NOINIT")
    a("s_setprio 3")
    a("v_mov_b32 v16, 0")
    a("v_lshlrev_b32 v17, 7, v0")
    a("s_and_b32 s31, s2, 7")
    a(f"s_mul_i32 s30, s31, {NCT // 8 * 128}")
    a(f"s_add_u32 s30, s30, 0x{FL_OFF:x}")
    a(f"s_mov_b32 exec_hi, 0x{(1 << (NCT // 8 - 32)) - 1:x}")
    a("s_waitcnt lgkmcnt(0)")
    srd(a, 44, 28, 29, 0x2000000 if STAMP else WS_USED)
    a("buffer_store_dword v16, v17, s[44:47], s30 offen sc0 sc1")
    a("s_mov_b64 exec, -1")
    a("s_mov_b32 s73, 2")
    a("s_setprio 0")
    a.lab("NOINIT")
    FS = [16, 56]
    ACC = 96
    def xf(s, rt): return FS[s] + 4 * rt
    def wf(s, i): return FS[s] + 16 + 4 * i
    a("s_lshl_b32 s30, s66, 13")
    a("v_add_u32 v4, s30, v4")
    a("v_xor_b32 v5, 64, v4")
    a("v_mul_u32_u24 v3, 192, v3")
    a("v_lshl_add_u32 v3, v11, 3, v3")
    a("s_mul_i32 s30, s67, 96")
    a(f"s_add_u32 s30, s30, {XB}")
    a("v_add_u32 v3, s30, v3")
    a("v_and_b32 v8, 1, v2")
    a("v_lshlrev_b32 v8, 5, v8")
    a("v_add_u32 v6, v3, v8")
    a("v_sub_u32 v7, v3, v8")
    a("s_cmp_eq_u32 s67, 0")
    a("s_cbranch_scc1 P1_NOSWAP")
    a("v_swap_b32 v6, v7")
    a.lab("P1_NOSWAP")
    def accF(rt, ul, mat): return ACC + 4 * ((rt * 3 + ul) * 2 + mat)
    def readsF(s, st):
        r = []
        order = [("w", 0, 0), ("x", 0, 0), ("w", 1, 0), ("x", 1, 0), ("x", 2, 0), ("x", 3, 0),
                 ("w", 0, 1), ("w", 1, 1), ("w", 0, 2), ("w", 1, 2)]
        for kind, p, ul in order:
            if kind == "x":
                r.append(f"ds_read_b128 {vr(xf(s, p), 4)}, v{4+st} offset:{p*2048}")
            else:
                base = 7 if ul == 1 else 6
                for hf in range(2):
                    off = p * WB + st * 6144 + hf * 768 + ul * 32
                    r.append(f"ds_read_b64_tr_b16 {vr(wf(s, 3*p+ul) + 2*hf, 2)}, v{base} offset:{off}")
        if opt("noread", 0): r = r[:1]
        return r
    def mfmasF(s):
        m = []
        for ul in range(3):
            for rt in range(4):
                for mat in range(2):
                    d = vr(accF(rt, ul, mat), 4)
                    m.append(f"v_mfma_f32_16x16x32_bf16 {d}, {vr(wf(s, 3*mat+ul), 4)}, {vr(xf(s, rt), 4)}, {d}")
        if opt("nomfma", 0): m = ["s_nop 0"] * len(m)
        return m
    for i in range(96):
        a(f"v_mov_b32 v{ACC+i}, 0")
    a("v_lshlrev_b32 v3, 4, v0")
    a("s_mul_i32 s69, s78, 6")
    a("s_mul_i32 s30, s67, 3")
    a("s_add_u32 s69, s69, s30")
    a("s_lshl_b32 s30, s56, 2")
    a("s_lshl_b32 s31, s66, 1")
    a("s_add_u32 s30, s30, s31")
    a(f"s_mul_i32 s30, s30, {NKS}")
    a("s_add_u32 s30, s30, s69")
    a("s_lshl_b32 s70, s30, 10")
    a(f"s_add_u32 s71, s70, {NKS*1024}")
    cons_p2_setup()
    cons_start()
    if opt("fprio", 0): a(f"s_setprio {opt('fprio', 0)}")
    a("s_barrier")
    stamp(a, 2)
    LAD = opt("lad", 13)
    if LAD:
        r0 = readsF(0, 0)
        for r in r0[:8]:
            a(r)
        a.lab("P1_LOOPF")
        m = mfmasF(0)
        r1 = readsF(1, 1)
        adv = advance((4, 5, 6, 7))
        gaps = [[] for _ in range(24)]
        for i in range(8):
            gaps[i // 2].append(r0[8 + i])
        if HB:
            r1 = [x for x in r1 if "b128" in x] + [x for x in r1 if "b128" not in x]
            gaps[8].append("s_barrier")
        for i in range(16):
            gaps[4 + i].append(r1[i])
        for i, x in enumerate(adv[:4]):
            gaps[12 + i].append(x)
        for i, x in enumerate(adv[4:]):
            gaps[20 + min(i // 2, 3)].append(x)
        a("s_waitcnt lgkmcnt(3)")
        for i in range(24):
            if i == 2: a("s_waitcnt lgkmcnt(4)")
            if i == 8: a("s_waitcnt lgkmcnt(4)")
            a(m[i])
            for x in gaps[i]:
                a(x)
        a("s_waitcnt lgkmcnt(0)")
        a("s_cbranch_scc1 P1_LASTF")
        m1 = mfmasF(1)
        a(m1[0])
        a("s_cmp_eq_u32 s68, s73")
        a(m1[1])
        a("s_cbranch_scc1 P1_PUB")
        a.lab("P1_PUBR")
        weave(a, m1[2:], ["s_barrier"] + r0[:8], start=LAD - 2, per=1)
        a("s_branch P1_LOOPF")
        a.lab("P1_PUB")
        srd(a, 48, 26, 27, 256)
        a("v_mov_b32 v12, 1")
        a("s_and_b32 s30, s2, 7")
        a("s_lshl_b32 s30, s30, 2")
        a("s_mov_b64 exec, 1")
        a("s_waitcnt vmcnt(0)")
        a("s_setprio 3")
        a("buffer_store_dword v12, off, s[48:51], s30 sc0 sc1")
        a("s_setprio 0")
        a("s_mov_b64 exec, -1")
        a("s_branch P1_PUBR")
    else:
        for r in readsF(0, 0):
            a(r)
        a.lab("P1_LOOPF")
        a("s_waitcnt lgkmcnt(0)")
        weave(a, mfmasF(0), readsF(1, 1) + advance((4, 5, 6, 7)))
        a("s_waitcnt lgkmcnt(0)")
        a("s_cbranch_scc1 P1_LASTF")
        if BPOS:
            weave(a, mfmasF(1), ["s_barrier"] + readsF(0, 0), start=BPOS, per=2)
        else:
            weave(a, mfmasF(1), ["s_barrier"] + readsF(0, 0))
        a("s_branch P1_LOOPF")
    a.lab("P1_LASTF")
    weave(a, mfmasF(1), ["s_barrier"] + req_nonce() + ["s_waitcnt vmcnt(0)"])
    stamp(a, 3)
    if EPRIO: a(f"s_setprio {EPRIO}")
    if opt("gsw", 0):
        blocks = []
        st_ = []
        k = 0
        for ul in range(3):
            for uu in range(2):
                G = [accF(2*uu, ul, 0) + i for i in range(4)] + [accF(2*uu+1, ul, 0) + i for i in range(4)]
                U = [accF(2*uu, ul, 1) + i for i in range(4)] + [accF(2*uu+1, ul, 1) + i for i in range(4)]
                t = 56 + 8 * (k % 4)
                dst = 32 + 4 * k
                A = [f"v_pk_mul_f32 {vr(t+i,2)}, {vr(G[i],2)}, {vr(G[i],2)}" for i in range(0, 8, 2)]
                A += [f"v_pk_fma_f32 {vr(t+i,2)}, {vr(t+i,2)}, s[72:73], v[10:11] op_sel_hi:[1,0,0]" for i in range(0, 8, 2)]
                A += [f"v_pk_mul_f32 {vr(t+i,2)}, {vr(t+i,2)}, {vr(G[i],2)}" for i in range(0, 8, 2)]
                Bx = [f"v_exp_f32 v{t+i}, v{t+i}" for i in range(8)]
                C = [f"v_pk_mul_f32 {vr(G[i],2)}, {vr(G[i],2)}, {vr(U[i],2)}" for i in range(0, 8, 2)]
                C += [f"v_pk_add_f32 {vr(t+i,2)}, {vr(t+i,2)}, 1.0 op_sel_hi:[1,0]" for i in range(0, 8, 2)]
                Dx = [f"v_rcp_f32 v{t+i}, v{t+i}" for i in range(8)]
                Ee = [f"v_pk_mul_f32 {vr(G[i],2)}, {vr(G[i],2)}, {vr(t+i,2)}" for i in range(0, 8, 2)]
                Ee += [f"v_cvt_pk_bf16_f32 v{dst+i}, v{G[2*i]}, v{G[2*i+1]}" for i in range(4)]
                F = [f"v_permlane16_swap_b32 v{dst}, v{dst+2}", f"v_permlane16_swap_b32 v{dst+1}, v{dst+3}"]
                blocks.append((A, Bx, C, Dx, Ee, F))
                st_.append(f"buffer_store_dwordx4 {vr(dst,4)}, v3, s[44:47], s{70 + uu} offen offset:{ul*1024} sc1")
                k += 1
        def mix(tr, pl):
            n = max(len(tr), 1)
            pi = 0
            for i, x in enumerate(tr):
                a(x)
                want = len(pl) * (i + 1) // n
                while pi < want:
                    a(pl[pi]); pi += 1
            while pi < len(pl):
                a(pl[pi]); pi += 1
        g = lambda k, p: blocks[k][p] if 0 <= k < 6 else []
        for x in g(0, 0): a(x)
        for k in range(8):
            mix(g(k, 1), g(k - 1, 2) + g(k - 2, 4))
            mix(g(k - 1, 3), g(k + 1, 0) + (["s_nop 1"] if not g(k + 1, 0) and not g(k - 1, 3) else []) + g(k - 2, 5))
        a(f"s_setprio {PRIO}")
        for x in st_: a(x)
        a(f"s_setprio {EPRIO}")
    else:
        k = 0
        pend = []
        for ul in range(3):
            for uu in range(2):
                dst = 32 + 4 * k
                if k >= opt("skipg", 0): gelu_pair(a, accF(2*uu, ul, 0), accF(2*uu, ul, 1), accF(2*uu+1, ul, 0), accF(2*uu+1, ul, 1), 16 + 8 * (k & 1), dst)
                pend.append(f"buffer_store_dwordx4 {vr(dst,4)}, v3, s[44:47], s{70 + uu} offen offset:{ul*1024} sc1")
                k += 1
                if k > opt("burst", 5):
                    a(f"s_setprio {PRIO}")
                    for x in pend:
                        a(x)
                    pend = []
                    a(f"s_setprio {EPRIO}")
    stamp(a, 4)
    get_nonce(a, "F", 12)
    a("s_mul_i32 s61, s69, 47")
    a("s_lshr_b32 s61, s61, 10")
    a("s_add_u32 s31, s69, 2")
    a("s_mul_i32 s31, s31, 47")
    a("s_lshr_b32 s31, s31, 10")
    a("s_cmp_eq_u32 s31, s61")
    a("s_cselect_b32 s64, 1, 3")
    a("s_and_b32 s31, s56, 7")
    a("s_lshl_b32 s31, s31, 3")
    a("s_add_u32 s61, s61, s31")
    a("s_lshl_b32 s31, s66, 2")
    a("s_add_u32 s61, s61, s31")
    signal(a, 12, "s61", "s64")
    if GATE:
        a("s_barrier")
    a("s_branch P2_CONS")

    a.lab("P1_CSP")
    FS = [16, 64]
    ACC = 112
    AS = 240
    def xs(s, kk, u): return FS[s] + 4 * (4 * kk + u)
    def dfr(s, kk): return FS[s] + 32 + 4 * kk
    def ffr(s, kk): return FS[s] + 40 + 4 * kk
    def accD(st, u): return ACC + 16 * (4 * st + u)
    a("v_lshrrev_b32 v2, 5, v0")
    a("v_and_b32 v12, 31, v0")
    a("v_bfe_u32 v4, v0, 1, 3")
    a("v_xor_b32 v4, v4, v2")
    a("v_lshlrev_b32 v4, 4, v4")
    a("v_lshl_add_u32 v4, v12, 7, v4")
    a("v_xor_b32 v5, 32, v4")
    a("v_xor_b32 v6, 64, v4")
    a("v_xor_b32 v7, 0x60, v4")
    a("v_lshrrev_b32 v3, 2, v1")
    a("v_lshl_add_u32 v3, v2, 3, v3")
    a("v_bfe_u32 v14, v0, 4, 1")
    a("v_bfe_u32 v8, v0, 3, 2")
    a("v_xor_b32 v8, s3, v8")
    a("v_lshlrev_b32 v8, 5, v8")
    a("v_lshl_add_u32 v8, v3, 7, v8")
    a("v_lshl_add_u32 v8, v11, 3, v8")
    a("v_lshl_add_u32 v8, v14, 13, v8")
    a(f"v_add_u32 v8, {XB}, v8")
    a("v_lshlrev_b32 v9, 5, v3")
    a("v_lshl_add_u32 v9, v11, 3, v9")
    a(f"v_mul_u32_u24 v3, {2048 + 128}, v14")
    a("v_add_u32 v9, v9, v3")
    a(f"v_add_u32 v9, {XB + 16384}, v9")
    a("v_xor_b32 v3, 0x80, v9")
    a("v_and_b32 v14, 1, v0")
    a("v_mul_u32_u24 v14, 0x8000, v14")
    a("v_lshl_or_b32 v14, v14, 16, v14")
    def readsS(s, st):
        r = []
        for kk in range(2):
            for hf in range(2):
                r.append(f"ds_read_b64_tr_b16 {vr(dfr(s, kk) + 2*hf, 2)}, v8 offset:{(2*st+kk)*2048 + hf*512}")
        for u in range(4):
            r.append(f"ds_read_b128 {vr(xs(s, 0, u), 4)}, v{4+2*st} offset:{u*4096}")
        for kk in range(2):
            for hf in range(2):
                r.append(f"ds_read_b64_tr_b16 {vr(ffr(s, kk) + 2*hf, 2)}, v{9 if hf == 0 else 3} offset:{(2*st+kk)*512}")
        for u in range(4):
            r.append(f"ds_read_b128 {vr(xs(s, 1, u), 4)}, v{5+2*st} offset:{u*4096}")
        return r
    def allS(s, st, cw):
        m = []
        for kk in range(2):
            for u in range(4):
                d = vr(accD(st, u), 16)
                m.append(f"v_mfma_f32_32x32x16_bf16 {d}, {vr(xs(s, kk, u), 4)}, {vr(dfr(s, kk), 4)}, {d}")
            m.append(f"v_mfma_f32_32x32x16_bf16 {vr(AS,16)}, {vr(ffr(s, kk), 4)}, {vr(xs(s, kk, cw), 4)}, {vr(AS,16)}")
        return m
    def xors(s):
        return ["s_waitcnt lgkmcnt(12)"] + [f"v_xor_b32 v{dfr(s,0)+i}, v13, v{dfr(s,0)+i}" for i in range(8)]
    def weave2(mf, fill):
        n = len(mf) - 1
        fi = 0
        for i, m in enumerate(mf):
            a(m)
            want = min(len(fill), -(-len(fill) * (i + 1) // n))
            while fi < want:
                a(fill[fi]); fi += 1
    for i in range(144):
        a(f"v_mov_b32 v{ACC+i}, 0")
    a("v_cvt_f32_u32 v16, v12")
    a(f"v_mul_f32 v16, {f32(1.0/32)}, v16")
    a("v_lshlrev_b32 v18, 2, v2")
    a("v_cvt_f32_u32 v18, v18")
    for k in range(2):
        for j in range(8):
            s1 = 16 * k + 8 * (j >> 2) + (j & 3)
            a(f"v_add_f32 v19, {f32(float(s1))}, v18")
            a("v_mul_f32 v19, v19, v16")
            a(f"v_cos_f32 v{20+j}, v19")
            a(f"v_sin_f32 v{28+j}, v19")
        a("s_nop 0")
        for i in range(4):
            a(f"v_cvt_pk_bf16_f32 v{40+4*k+i}, v{20+2*i}, v{21+2*i}")
            a(f"v_cvt_pk_bf16_f32 v{48+4*k+i}, v{28+2*i}, v{29+2*i}")
    a("v_lshlrev_b32 v11, 4, v0")
    a(f"v_add_u32 v11, {F1_LDS}, v11")
    for i in range(4):
        a(f"ds_write_b128 v11, {vr(40+4*i,4)} offset:{i*1024}")
    cons_start()
    a("s_waitcnt vmcnt(0) lgkmcnt(0)")
    a("v_mov_b32 v13, 0")
    if opt("sprio", 0): a(f"s_setprio {opt('sprio', 0)}")
    a("s_barrier")
    stamp(a, 2)
    def kreads(ks):
        s, kk = ks >> 1, ks & 1
        r = [f"ds_read_b64_tr_b16 {vr(dfr(s, kk) + 2*hf, 2)}, v8 offset:{ks*2048 + hf*512}" for hf in range(2)]
        r += [f"ds_read_b128 {vr(xs(s, kk, u), 4)}, v{4+ks} offset:{u*4096}" for u in range(4)]
        r += [f"ds_read_b64_tr_b16 {vr(ffr(s, kk) + 2*hf, 2)}, v{9 if hf == 0 else 3} offset:{ks*512}" for hf in range(2)]
        return r
    def kmf(ks, cw):
        return allS(ks >> 1, ks >> 1, cw)[5 * (ks & 1): 5 * (ks & 1) + 5]
    def kxor(ks):
        d = dfr(ks >> 1, ks & 1)
        return [f"v_xor_b32 v{d+i}, v13, v{d+i}" for i in range(4)]
    def kstep(ks, cw, reads, pre, extra, wait0, xr=True):
        m = kmf(ks, cw)
        a(f"s_waitcnt lgkmcnt({wait0})")
        cnt = [2, 2, 2, 1, 1]
        ri = 0
        for g in range(5):
            a(m[g])
            if g == 0:
                for x in pre: a(x)
            for _ in range(cnt[g]):
                if ri < len(reads):
                    a(reads[ri]); ri += 1
            if g == 2 and xr:
                a(f"s_waitcnt lgkmcnt({6 + ri})")
                for x in kxor((ks + 1) & 3)[:2]: a(x)
            if g == 3 and xr:
                for x in kxor((ks + 1) & 3)[2:]: a(x)
            for x in extra[g]: a(x)
    for r in kreads(0) + kreads(1):
        a(r)
    F1 = 16
    for cw in (1, 2, 3):
        a(f"s_cmp_eq_u32 s3, {cw}")
        a(f"s_cbranch_scc1 P1_LOOPS{cw}")
    lastfill = ([f"ds_read_b128 {vr(F1+4*i,4)}, v11 offset:{i*1024}" for i in range(4)] +
                ["s_lshl_b32 s30, s56, 2", "s_add_u32 s30, s30, s3", f"s_mul_i32 s30, s30, {NKS}", "s_add_u32 s30, s30, s59",
                 "s_add_u32 s30, s30, 84", "s_lshl_b32 s70, s30, 10",
                 f"s_mul_i32 s69, s56, {EP*16}", f"s_add_u32 s69, s69, 0x{C_OFF:x}",
                 "s_waitcnt lgkmcnt(0)", "s_barrier"] + req_nonce() + [f"v_xor_b32 v{F1+16+i}, 0x80008000, v{F1+i}" for i in range(8)])
    E = lambda *l: list(l)
    for cw in range(4):
        a.lab(f"P1_LOOPS{cw}")
        kstep(0, cw, kreads(2), [], [E("s_add_u32 s68, s68, 1"), E("s_and_b32 s30, s68, 3"), E(), E("s_cmp_eq_u32 s30, 0"),
                                     E("s_cselect_b32 s30, s82, s83", "v_add_u32 v4, s30, v4")], 8)
        kstep(1, cw, kreads(3), [], [E("v_add_u32 v5, s30, v5"), E("v_add_u32 v8, s30, v8"), E(), E("v_add_u32 v6, s30, v6"),
                                     E("v_add_u32 v9, s30, v9", "v_add_u32 v3, s30, v3", "s_cmp_eq_u32 s68, 8")], 8)
        a(f"s_cbranch_scc1 P1_LASTS{cw}")
        kstep(2, cw, kreads(0), ["s_barrier"], [E(), E("v_add_u32 v7, s30, v7"), E(), E("s_cmp_ge_u32 s68, 4"),
                                                E("s_cselect_b32 s31, -1, 0", "v_and_b32 v13, s31, v14")], 8)
        kstep(3, cw, kreads(1), [], [E(), E(), E(), E(), E()], 8)
        a(f"s_branch P1_LOOPS{cw}")
        a.lab(f"P1_LASTS{cw}")
        kstep(2, cw, lastfill[:4], [], [E(), lastfill[4:8], E(), E(), lastfill[8:12]], 8)
        kstep(3, cw, [], lastfill[13:15], [E(), lastfill[15:19], lastfill[19:23], E(), E()], 0, xr=False)
        if cw != 3:
            a("s_branch P1_LASTS")
    a.lab("P1_LASTS")
    stamp(a, 3)
    if EPRIO: a(f"s_setprio {EPRIO}")
    TS = 16 * EP * 16
    a("v_lshlrev_b32 v3, 4, v0")
    a("s_lshl_b32 s30, s59, 6")
    a("s_lshl_b32 s31, s3, 4")
    a("s_add_u32 s30, s30, s31")
    a("v_bfe_u32 v5, v0, 4, 1")
    a("v_lshl_add_u32 v4, v5, 7, v1")
    a("v_add_u32 v4, s30, v4")
    a(f"s_mov_b32 s31, {4*TS}")
    a("v_mul_lo_u32 v6, v2, s31")
    a("v_lshl_add_u32 v4, v4, 4, v6")
    a("v_mul_u32_u24 v5, 0x8000, v5")
    a("v_lshl_or_b32 v5, v5, 16, v5")
    a("v_mov_b32 v6, -1")
    BF, TM, XF, CK, TM2, HD = 40, 72, 80, 96, 80, 100
    for x in gelu8([AS+i for i in range(8)], [AS+8+i for i in range(8)], TM, HD, 32):
        a(x)
    a(f"s_setprio {PRIO}")
    a(f"buffer_store_dwordx4 {vr(HD,4)}, v3, s[44:47], s70 offen sc1")
    a(f"s_setprio {EPRIO}")
    a("s_cmp_lg_u32 s30, 0")
    a("s_cbranch_scc1 P1_NOX")
    a("v_cmp_ne_u32 vcc, 0, v1")
    a(f"s_mov_b32 s31, {TS}")
    a("v_mul_lo_u32 v7, v0, s31")
    a("v_cndmask_b32 v6, 0, v6, vcc")
    for u in range(4):
        for st in range(2):
            dst = XF + 8 * st if u == 0 else TM
            for i in range(8):
                a(f"v_cvt_pk_bf16_f32 v{dst+i}, v{accD(st,u)+2*i}, v{accD(st,u)+2*i+1}")
            if u:
                for i in range(8):
                    a(f"v_mov_b32_dpp v{XF+8*st+i}, v{TM+i} row_shr:{u} row_mask:0xa bank_mask:0x1")
    a("s_nop 1")
    for comp in range(2):
        o = vr(BF + 16 * comp, 16)
        for half in range(2):
            for k in range(2):
                c = "0" if (half == 0 and k == 0) else o
                a(f"v_mfma_f32_32x32x16_bf16 {o}, {vr(XF+8*half+4*k,4)}, {vr(F1+8*(comp+half)+4*k,4)}, {c}")
    a(f"s_add_u32 s30, s69, {256*16}")
    a("s_nop 11")
    for comp in range(2):
        a(f"v_cvt_pk_bf16_f32 v{CK+2*comp}, v{BF+16*comp+8}, v{BF+16*comp+9}")
        a(f"v_cvt_pk_bf16_f32 v{CK+2*comp+1}, v{BF+16*comp+10}, v{BF+16*comp+11}")
    a("s_mov_b32 exec_hi, 0")
    a(f"buffer_store_dwordx4 {vr(CK,4)}, v7, s[44:47], s30 offen sc1")
    a("s_mov_b32 exec_hi, -1")
    a.lab("P1_NOX")
    def bfly(u):
        r_ = []
        A = BF + 16 * (u & 1)
        B = A + 8
        E, T = accD(0, u), accD(1, u)
        for r in range(0, 16, 2):
            r_.append(f"v_pk_add_f32 {vr(TM2+r,2)}, {vr(E+r,2)}, {vr(T+r,2)}")
            r_.append(f"v_pk_add_f32 {vr(T+r,2)}, {vr(E+r,2)}, {vr(T+r,2)} neg_lo:[0,1] neg_hi:[0,1]")
        for i in range(8):
            r_.append(f"v_cvt_pk_bf16_f32 v{A+i}, v{TM2+2*i}, v{TM2+2*i+1}")
            r_.append(f"v_cvt_pk_bf16_f32 v{B+i}, v{T+2*i}, v{T+2*i+1}")
        for i in range(8):
            r_.append(f"v_permlane16_swap_b32 v{A+i}, v{B+i}")
        for i in range(8):
            r_.append(f"v_bitop3_b32 v{B+i}, v{B+i}, v5, v6 bitop3:0x28")
        return r_
    def st1(u):
        m = []
        A = BF + 16 * (u & 1)
        for half in range(2):
            for k in range(2):
                for comp in range(2):
                    o = vr(accD(comp, u), 16)
                    c = "0" if (half == 0 and k == 0) else o
                    m.append(f"v_mfma_f32_32x32x16_bf16 {o}, {vr(F1+8*(comp+half)+4*k,4)}, {vr(A+8*half+4*k,4)}, {c}")
        return m
    for x in bfly(0):
        a(x)
    for u in range(4):
        weave(a, st1(u), bfly(u + 1) if u < 3 else [], per=6)
        if u == 1:
            get_nonce(a, "S", 12)
            a("s_and_b32 s61, s56, 7")
            a("s_lshl_b32 s61, s61, 3")
            a("s_lshl_b32 s31, s66, 2")
            a("s_add_u32 s61, s61, s31")
            a("s_add_u32 s61, s61, 3")
            signal(a, 12, "s61")
    a(f"s_setprio {PRIO}")
    stamp(a, 11)
    a("s_nop 8")
    for r in range(16):
        d = BF + 4 * (r & 7)
        a(f"v_cvt_pk_bf16_f32 v{d}, v{accD(0,0)+r}, v{accD(0,1)+r}")
        a(f"v_cvt_pk_bf16_f32 v{d+1}, v{accD(0,2)+r}, v{accD(0,3)+r}")
        a(f"v_cvt_pk_bf16_f32 v{d+2}, v{accD(1,0)+r}, v{accD(1,1)+r}")
        a(f"v_cvt_pk_bf16_f32 v{d+3}, v{accD(1,2)+r}, v{accD(1,3)+r}")
        a(f"s_add_u32 s30, s69, {(8*(r >> 2) + (r & 3))*TS}")
        if not opt("abl_cs", 0): a(f"buffer_store_dwordx4 {vr(d,4)}, v4, s[44:47], s30 offen sc1")
    stamp(a, 4)
    if opt("shold", 0):
        a("s_barrier")
    a("s_lshl_b32 s61, s59, 2")
    a("s_add_u32 s61, s61, s3")
    a(f"s_mul_i32 s61, s61, {NREP}")
    a(f"s_add_u32 s61, s61, {CT_C}")
    signal(a, 12, "s61", "-1")

    a("s_setprio 0")
    cons_p2_setup()
    a.lab("P2_CONS")
    a("v_mov_b32 v56, 16")
    if EPRIO: a("s_setprio 0")
    stamp(a, 5)
    stamp(a, 6)
    if not opt("pollfirst", 0) and KB >= 0:
        a("s_barrier")
    a(f"s_setprio {opt('cprio', 3)}")
    poll(a, "C", 226, 56, 58, 0x0001000100010001, sleep=opt("csleep", 0))
    stamp(a, 7)
    if opt("pollfirst", 0):
        a("s_barrier")
    for i in range(8):
        a(f"s_add_u32 s70, s79, {i*EP*16}")
        if not opt("abl_cl", 0): a(f"buffer_load_dwordx4 {vr(CF + 4*i, 4)}, v224, s[44:47], s70 offen sc1")
    a(f"s_mov_b32 s70, 0x{G_OFF:x}")
    a(f"buffer_load_dword v{GV}, v231, s[44:47], s70 offen sc1")
    for i in range(8):
        a(f"s_waitcnt vmcnt({8 - i})")
        c = "0" if i == 0 else vr(YA, 16)
        a(f"v_mfma_f32_32x32x16_bf16 {vr(YA,16)}, {vr(CF+4*i,4)}, {vr(MF+4*i,4)}, {c}")
    a("s_waitcnt vmcnt(0)")
    a(f"v_sub_f32 v{GV+2}, 1.0, v{GV}")
    a(f"v_cvt_pk_bf16_f32 v{GV+2}, v{GV+2}, v{GV+2}")
    a(f"v_lshlrev_b32 v{GV+2}, 16, v{GV+2}")
    a(f"ds_write_b32 v244, v{GV+2} offset:8192")
    a("s_nop 6")
    for qd in range(4):
        for r in (4*qd, 4*qd + 2):
            a(f"v_pk_mul_f32 {vr(YA+r,2)}, {vr(YA+r,2)}, {vr(GV,2)} op_sel_hi:[1,0]")
        a(f"ds_write_b128 v{240+qd}, {vr(YA+4*qd,4)} offset:{qd*1024}")
    a("s_waitcnt lgkmcnt(0)")
    stamp(a, 8)
    final_stage(248, 144)
    stamp(a, 9)
    stamp_flush(a)
    if opt("spin", 0):
        if opt("spinall", 0) == 0:
            a("s_or_b32 s30, s2, s3")
            a("s_cbranch_scc1 K_END")
        a.lab("SPIN_L")
        a("s_memrealtime s[92:93]")
        a("s_waitcnt lgkmcnt(0)")
        a("s_sub_u32 s92, s92, s90")
        a(f"s_cmp_lt_u32 s92, {opt('spin', 0)}")
        a("s_cbranch_scc1 SPIN_L")
    a.lab("K_END")
    a("s_endpgm")

HEADER = open("cdna_kernels/" + NAME + ".s.ref").read().split("; Override launch")[0]

DOC = """; One launch, 256 workgroups (one per CU), 4 loader waves + 4 compute waves each.
"""

def main():
    nm = NAME + "_kernel"
    out = HEADER
    out += f"; @launch grid=(256,1,1) block=(512,1,1) lds={4*SLOT}\n"
    out += '.amdgcn_target "amdgcn-amd-amdhsa--gfx950"\n'
    out += DOC
    out += '.text\n'
    a = Asm()
    out += f".globl {nm}\n.p2align 8\n.type {nm},@function\n"
    kernel(a)
    out += a.text()
    out += f""".section .rodata,"a"
.p2align 6
.amdhsa_kernel {nm}
  .amdhsa_next_free_vgpr 256
  .amdhsa_next_free_sgpr 102
  .amdhsa_accum_offset 256
  .amdhsa_group_segment_fixed_size 0
  .amdhsa_kernarg_size 104
  .amdhsa_user_sgpr_count 2
  .amdhsa_user_sgpr_kernarg_segment_ptr 1
  .amdhsa_system_sgpr_workgroup_id_x 1
.end_amdhsa_kernel
"""
    path = [x for x in sys.argv[1:] if not x.startswith("--")][0]
    open(path, "w").write(out)

main()
```
